```python
import torch

def _softmax(x, axis=-1):
    return torch.softmax(x, dim=axis)

def _gelu(x):
    return torch.nn.functional.gelu(x, approximate='tanh')

def _silu(x):
    return torch.nn.functional.silu(x)

def _sigmoid(x):
    return torch.sigmoid(x)

def _layernorm(x, axis=-1, eps=1e-05):
    m = x.mean(dim=axis, keepdim=True)
    v = x.var(dim=axis, keepdim=True, unbiased=False)
    return (x - m) / torch.sqrt(v + eps)

def _scatter_add(tgt, idx, src, axis=0):
    return tgt.clone().index_add_(axis, idx, src)

def _segment_sum(src, seg, n):
    out = torch.zeros((n,) + src.shape[1:], dtype=src.dtype)
    return out.index_add_(0, seg, src)

def _pad(x, pw):
    flat = tuple((v for pair in reversed(pw) for v in pair))
    return torch.nn.functional.pad(x, flat)
kernel_name = 'adaLN_cond__linear_kernel_hedgehog__glu_gated_reglu__prompt'

def setup_inputs():

    _w = lambda a: (lambda t: t.to(torch.bfloat16) if t.is_floating_point() else t)(torch.as_tensor(a))

    def _A_setup():
        B, S, D, H = (1, 2048, 512, 32)
        Dh = D // H
        return {'x': _w((lambda *s: torch.randn(*s, dtype=torch.bfloat16) * 0.05)(B, S, D)), 'wqkv': _w((lambda *s: torch.randn(*s, dtype=torch.bfloat16) * 0.4)(D, 3 * D)), 'w_phi': _w((lambda *s: torch.randn(*s, dtype=torch.bfloat16) * 0.4)(H, Dh, Dh) * Dh ** (-0.5)), 'wo': _w((lambda *s: torch.randn(*s, dtype=torch.bfloat16) * 0.05)(D, D))}
    _A_in = _A_setup()

    def _B_setup():
        B, S, D, F = (1, 2048, 512, 1376)
        return {'x': _w((lambda *s: torch.randn(*s, dtype=torch.bfloat16) * 0.05)(B, S, D)), 'W_gate': _w((lambda *s: torch.randn(*s, dtype=torch.bfloat16) * 0.8)(D, F) * (2.0 / D) ** 0.5), 'W_up': _w((lambda *s: torch.randn(*s, dtype=torch.bfloat16) * 0.8)(D, F) * (2.0 / D) ** 0.5), 'W_down': _w((lambda *s: torch.randn(*s, dtype=torch.bfloat16) * 0.8)(F, D) * (1.0 / F) ** 0.5)}
    _B_in = _B_setup()
    return {'A_x': _A_in['x'], 'A_wqkv': _A_in['wqkv'], 'A_w_phi': _A_in['w_phi'], 'A_wo': _A_in['wo'], 'B_x': _B_in['x'], 'B_W_gate': _B_in['W_gate'], 'B_W_up': _B_in['W_up'], 'B_W_down': _B_in['W_down'], 'c': _w((lambda *s: torch.randn(*s, dtype=torch.bfloat16) * 0.2)(1, 512) * 8.0), 'w_mod': _w((lambda *s: torch.randn(*s, dtype=torch.bfloat16) * 0.2)(512, 6 * 512) * 512 ** (-0.5) * 8.0)}

def reference(A_x, A_wqkv, A_w_phi, A_wo, B_x, B_W_gate, B_W_up, B_W_down, c, w_mod):

    def _A_ref(x, wqkv, w_phi, wo):
        B, S, D = x.shape
        H = 32
        Dh = D // H
        qkv = (lambda x, *d: x.permute(*d))((x @ wqkv).reshape(B, S, 3, H, Dh), 2, 0, 3, 1, 4)
        q, k, v = (qkv[0], qkv[1], qkv[2])
        pq = torch.einsum('bhsd,hdf->bhsf', q, w_phi)
        pk = torch.einsum('bhsd,hdf->bhsf', k, w_phi)
        phi_q = torch.concatenate([_softmax(pq, axis=-1), _softmax(-pq, axis=-1)], axis=-1)
        phi_k = torch.concatenate([_softmax(pk, axis=-1), _softmax(-pk, axis=-1)], axis=-1)
        kv = torch.einsum('bhsf,bhsd->bhfd', phi_k, v)
        z = torch.einsum('bhsf->bhf', phi_k)
        num = torch.einsum('bhqf,bhfd->bhqd', phi_q, kv)
        den = torch.einsum('bhqf,bhf->bhq', phi_q, z)[..., None] + 1e-06
        o = num / den
        return (lambda x, *d: x.permute(*d))(o, 0, 2, 1, 3).reshape(B, S, D) @ wo

    def _B_ref(x, W_gate, W_up, W_down):
        gate = torch.einsum('bsd,df->bsf', x, W_gate)
        up = torch.einsum('bsd,df->bsf', x, W_up)
        gate = gate * (lambda x, dt: x.to(dt))(gate > 0, gate.dtype)
        h = gate * up
        return torch.einsum('bsf,fd->bsd', h, W_down)
    x = A_x
    mod = (_silu(c) @ w_mod).reshape(c.shape[0], 6, 1, -1)
    sa, ca, ga, sb, cb, gb = (mod[:, 0].clone(), mod[:, 1].clone(), mod[:, 2].clone(), mod[:, 3].clone(), mod[:, 4].clone(), mod[:, 5].clone())
    h = _layernorm(x, axis=-1) * (1 + ca) + sa
    x = x + ga * _A_ref(h, A_wqkv, A_w_phi, A_wo)
    h = _layernorm(x, axis=-1) * (1 + cb) + sb
    x = x + gb * _B_ref(h, B_W_gate, B_W_up, B_W_down)
    return x
```

```python
import re

def v(i, n=1):
    return f"v{i}" if n == 1 else f"v[{i}:{i+n-1}]"
def a(i, n=1):
    return f"a{i}" if n == 1 else f"a[{i}:{i+n-1}]"
def s(i, n=1):
    return f"s{i}" if n == 1 else f"s[{i}:{i+n-1}]"

_REG = re.compile(r"^-?\|?(?:abs\()?([vas])(?:(\d+)|\[(\d+):(\d+)\])\)?\|?$")

def regs_of(op):
    op = op.strip()
    if op in ("vcc", "vcc_lo", "vcc_hi"): return {("vcc", 0)}
    if op in ("exec", "exec_lo", "exec_hi"): return {("exec", 0)}
    if op == "m0": return {("m0", 0)}
    m = _REG.match(op)
    if not m: return set()
    k = m.group(1)
    if m.group(2) is not None: return {(k, int(m.group(2)))}
    return {(k, i) for i in range(int(m.group(3)), int(m.group(4)) + 1)}

TRANS = ("v_exp_f32", "v_log_f32", "v_rcp_f32", "v_rsq_f32", "v_sqrt_f32", "v_sin_f32", "v_cos_f32")

class Ins:
    def __init__(self, text):
        self.text = text
        t = text.split(";")[0].strip()
        self.label = t[:-1] if t.endswith(":") else None
        self.op = "" if self.label else t.split()[0] if t else ""
        rest = t[len(self.op):].strip() if not self.label else ""
        ops, depth, cur = [], 0, ""
        for ch in rest:
            if ch in "[(": depth += 1
            if ch in "])": depth -= 1
            if ch == "," and depth == 0: ops.append(cur.strip()); cur = ""
            else: cur += ch
        if cur.strip(): ops.append(cur.strip())
        self.mods = ""
        if ops:
            parts = ops[-1].split(None, 1)
            ops[-1] = parts[0]
            if len(parts) > 1: self.mods = parts[1]
        self.ops = ops
        op = self.op
        self.is_mfma = op.startswith("v_mfma")
        self.is_valu = op.startswith("v_") and not self.is_mfma
        self.is_salu = op.startswith("s_")
        self.is_ds = op.startswith("ds_")
        self.is_vmem = op.startswith("buffer_") or op.startswith("global_")
        self.is_dpp = "_dpp" in op or "row_" in self.mods or "quad_perm" in self.mods
        self.is_trans = any(op.startswith(x) for x in TRANS)
        self.is_perml = op.startswith("v_permlane")
        self.is_dot = op.startswith("v_dot")
        self.is_lds_dma = self.is_vmem and (" lds" in (" " + self.mods) or "load_lds" in op)
        self.wr, self.rd = set(), set()
        R = [regs_of(o) for o in ops]
        if self.is_mfma:
            self.wr = R[0]; self.A = R[1]; self.B = R[2]; self.C = R[3]
            self.rd = R[1] | R[2] | R[3]
            self.passes = 8 if "32x32" in op else 4
        elif self.is_valu:
            if op.startswith("v_nop"): pass
            elif self.is_perml:
                self.wr = R[0] | R[1]; self.rd = R[0] | R[1]
            else:
                self.wr = set(R[0]); srcs = R[1:]
                if op.startswith(("v_add_co", "v_sub_co", "v_addc_co", "v_subb_co")):
                    self.wr |= R[1]; srcs = R[2:]
                for r in srcs: self.rd |= r
                if op.startswith(("v_fmac", "v_dot2c", "v_fma_mixlo", "v_fma_mixhi", "v_writelane")) or self.is_dpp:
                    self.rd |= R[0]
                if op.startswith("v_cmpx"): self.wr |= {("exec", 0)}
        elif self.is_ds:
            if op.startswith(("ds_read", "ds_bpermute", "ds_swizzle", "ds_permute")):
                self.wr = R[0]
                for r in R[1:]: self.rd |= r
            else:
                for r in R: self.rd |= r
        elif self.is_vmem:
            if self.is_lds_dma or "store" in op or ("atomic" in op):
                for r in R: self.rd |= r
                if "atomic" in op and "sc0" in self.mods: self.wr = R[0]
            else:
                self.wr = R[0]
                for r in R[1:]: self.rd |= r
            self.wide_store = "store" in op and ("x3" in op or "x4" in op)
            if "store" in op:
                self.sdata = R[0] if op.startswith("buffer_") else R[1]
        elif self.is_salu:
            if op.startswith(("s_cmp", "s_cbranch", "s_branch", "s_waitcnt", "s_barrier", "s_nop", "s_endpgm", "s_sleep", "s_setprio", "s_bitcmp")):
                for r in R: self.rd |= r
            else:
                if R: self.wr = set(R[0])
                for r in R[1:]: self.rd |= r
                if "saveexec" in op: self.wr |= {("exec", 0)}
    def states(self):
        if self.label or not self.op or self.op.startswith("."): return 0
        if self.op == "s_nop": return int(self.ops[0], 0) + 1
        return 1

def isvec(rs): return {r for r in rs if r[0] in "va" and r[0] != "vcc"}
def issc(rs): return {r for r in rs if r[0] in ("s", "vcc")}

def need(p, c):
    n = 0
    pv = isvec(p.wr)
    if p.is_valu:
        if c.is_mfma and pv & c.rd: n = max(n, 3 if p.is_dot else 2)
        if c.is_perml and pv & c.rd: n = max(n, 2)
        if c.is_valu and c.is_dpp and pv & c.rd: n = max(n, 2)
        if p.is_trans and c.is_valu and pv & c.rd: n = max(n, 1)
        if p.is_trans and (c.is_ds or c.is_vmem) and pv & c.rd: n = max(n, 1)
        if c.op.startswith(("v_readfirstlane", "v_readlane")) and pv & c.rd: n = max(n, 1)
        if p.is_dot and pv & (c.rd | c.wr):
            if c.op != p.op: n = max(n, 3)
            else:
                ab = set()
                for o in c.ops[1:3]: ab |= regs_of(o)
                if pv & ab: n = max(n, 3)
        if ("op_sel" in p.mods or "sdwa" in p.op or p.op.startswith(("v_fma_mixlo", "v_fma_mixhi"))) and c.is_valu and pv & (c.rd | c.wr): n = max(n, 1)
        ps = issc(p.wr)
        if ps:
            if c.is_valu and ps & c.rd:
                n = max(n, 4 if c.op.startswith(("v_readlane", "v_writelane")) else 2)
            if c.op.startswith("v_cndmask") and ("vcc", 0) in ps: n = max(n, 2)
            if c.is_vmem and ps & c.rd: n = max(n, 5)
            if c.is_salu and ps & c.rd: n = max(n, 1)
            if c.op.startswith(("s_cbranch_vcc",)) and ("vcc", 0) in ps: n = max(n, 1)
        if ("exec", 0) in p.wr:
            if c.is_mfma: n = max(n, 4)
            if c.is_dpp: n = max(n, 5)
            if c.is_perml or c.op.startswith(("v_readlane", "v_readfirstlane", "v_writelane")): n = max(n, 4)
    if p.is_mfma:
        big = {4: 8, 8: 12}[p.passes]
        if c.is_mfma:
            if p.wr & (c.A | c.B): n = max(n, big)
            if p.wr & c.C:
                if not (p.wr == c.C and p.passes == c.passes): n = max(n, big - 2)
            elif p.wr & c.wr: n = max(n, big)
        elif (c.is_valu or c.is_ds or c.is_vmem):
            if p.wr & (c.rd | c.wr): n = max(n, big)
            if c.is_valu and (p.C & c.wr): n = max(n, {4: 3, 8: 7}[p.passes])
    if p.is_salu and ("m0", 0) in p.wr and c.is_lds_dma: n = max(n, 1)
    if p.is_vmem and getattr(p, "wide_store", False) and (p.sdata & c.wr):
        n = max(n, 2 if c.is_valu else 1)
    if p.is_ds and p.op.startswith("ds_write") and ("b128" in p.op or "b96" in p.op) and c.is_valu and (isvec(p.rd) & c.wr): n = max(n, 1)
    return n

def hazard_pass(lines):
    ins = [Ins(l) for l in lines]
    saved = {}
    for it in range(3):
        out = []; hist = []; newsaved = {}
        dead = False
        for I in ins:
            if I.label:
                hs = [] if dead else list(hist)
                for h in saved.get(I.label, []) + newsaved.get(I.label, []): hs += h
                hist = hs; dead = False
                out.append(I); continue
            if I.states() == 0: out.append(I); continue
            req = 0
            for p, d in hist: req = max(req, need(p, I) - d)
            while req > 0:
                k = min(req, 16); nop = Ins(f"s_nop {k-1}"); out.append(nop)
                hist = [(p, d + k) for p, d in hist]; req -= k
            st = I.states()
            hist = [(p, d + st) for p, d in hist if d + st < 24] + [(I, 0)]
            out.append(I)
            if I.op.startswith(("s_cbranch", "s_branch")):
                newsaved.setdefault(I.ops[0], []).append(list(hist))
                if I.op == "s_branch": dead = True
            if I.op == "s_endpgm": dead = True
        saved = newsaved
        ins = out
    return [I.text for I in ins]

class Asm:
    def __init__(self): self.lines = []; self._n = 0
    def __call__(self, t):
        for l in t.split("\n"):
            l = l.strip()
            if l: self.lines.append(l)
    def label(self, name): self.lines.append(name + ":")
    def uniq(self, p="L"):
        self._n += 1; return f"{p}_{self._n}"
    def text(self):
        out = []
        for l in hazard_pass(self.lines):
            out.append(l if l.endswith(":") else "    " + l)
        return "\n".join(out)
```

```python
import sys
sys.path.insert(0, "gen")
from asmlib import *

KNAME = "adaLN_cond__linear_kernel_hedgehog__glu_gated_reglu__prompt_kernel"

WS_EPOCH = 0x0
WS_FL1 = 0x8000
WS_MOD = 0x10000
WS_KVP = 0x20000
KVP_STRIDE = 4608
WS_G0 = 0x200000
G_O, G_H2, G_HH, G_ST, G_FLO, G_FL2, G_FL3 = 0x0, 0x20000, 0x40000, 0xA0000, 0xB0000, 0xB0800, 0xB1000
WS_TS = 0x1400000
L_WK, L_WV, L_WQ, L_XS = 0, 32768, 65536, 32768
L_TAB, L_STX, L_EXC, L_KVR, L_MT = 98304, 102400, 106496, 139264, 162816
L_KVF = 139264
L_EX2 = 143360
L_X1 = 151552


def slot_addr(i):
    i %= 12
    if i < 6:
        return 65536 + i * 12288
    if i < 11:
        return (i - 6) * 12288
    return 139264


S_X, S_W, S_WS, S_WM, S_C, S_PHI, S_WO, S_WG, S_WU, S_WD, S_OUT, S_GU = 4, 8, 12, 16, 20, 24, 28, 32, 36, 40, 44, 48
sW, sM, sKH, sRB, sJ, sTAG, sG = 52, 53, 54, 55, 56, 57, 58
sT0, sT1, sT2, sT3, sCNT, sL2E, sMASK, sONES = 59, 60, 61, 62, 63, 64, 65, 66
sGUS, sGUL = 67, 3
sEX = 68
sRT = 70
sTS = 72
SPIN = 0x40000


class Gen:
    def __init__(self, diag=False, stop=None, sc1=True):
        self.A = Asm()
        self.diag = diag
        self.nts = 0
        self.tsnames = []
        self.stop = stop
        self.st = " sc1" if sc1 else ""

    def ts(self, name):
        if self.diag:
            assert self.nts < 15
            self.A(f"s_memtime {s(sTS + 2*self.nts, 2)}\ns_waitcnt lgkmcnt(0)")
            self.nts += 1
            self.tsnames.append(name)
        if self.stop == name:
            self.A("s_branch L_fin")

    def bar(self):
        self.A("s_barrier")

    def red4(self, op, a0, b0, a1, b1):
        A = self.A
        A(f"v_permlane32_swap_b32 {v(a0)}, {v(b0)}")
        A(f"v_permlane32_swap_b32 {v(a1)}, {v(b1)}")
        A(f"{op} {v(a0)}, {v(a0)}, {v(b0)}")
        A(f"{op} {v(a1)}, {v(a1)}, {v(b1)}")
        A(f"v_permlane16_swap_b32 {v(a0)}, {v(a1)}")
        A(f"{op} {v(a0)}, {v(a0)}, {v(a1)}")

    def bcast4(self, a0, b0, a1, b1):
        A = self.A
        A(f"v_mov_b32 {v(a1)}, {v(a0)}")
        A(f"v_permlane16_swap_b32 {v(a0)}, {v(a1)}")
        A(f"v_mov_b32 {v(b0)}, {v(a0)}")
        A(f"v_mov_b32 {v(b1)}, {v(a1)}")
        A(f"v_permlane32_swap_b32 {v(a0)}, {v(b0)}")
        A(f"v_permlane32_swap_b32 {v(a1)}, {v(b1)}")

    def softmax2(self, X, EP, EN, T, P):
        A = self.A
        a0, b0, a1, b1 = T, T + 1, T + 2, T + 3
        for t, (aa, bb) in enumerate(((a0, b0), (a1, b1))):
            x = X + 4 * t
            A(f"v_max3_f32 {v(aa)}, {v(x)}, {v(x+1)}, {v(x+2)}")
            A(f"v_max3_f32 {v(bb)}, -{v(x)}, -{v(x+1)}, -{v(x+2)}")
            A(f"v_max_f32 {v(aa)}, {v(aa)}, {v(x+3)}")
            A(f"v_max_f32_e64 {v(bb)}, {v(bb)}, -{v(x+3)}")
        self.red4("v_max_f32", a0, b0, a1, b1)
        A(f"v_mul_f32 {v(a0)}, {s(sL2E)}, {v(a0)}")
        self.bcast4(a0, b0, a1, b1)
        for t, (aa, bb) in enumerate(((a0, b0), (a1, b1))):
            for r in range(4):
                A(f"v_fma_f32 {v(EP+4*t+r)}, {v(X+4*t+r)}, {s(sL2E)}, -{v(aa)}")
                A(f"v_fma_f32 {v(EN+4*t+r)}, -{v(X+4*t+r)}, {s(sL2E)}, -{v(bb)}")
        for i in range(8):
            A(f"v_exp_f32 {v(EP+i)}, {v(EP+i)}")
            A(f"v_exp_f32 {v(EN+i)}, {v(EN+i)}")
        for t, (aa, bb) in enumerate(((a0, b0), (a1, b1))):
            e, n = EP + 4 * t, EN + 4 * t
            A(f"v_add_f32 {v(aa)}, {v(e)}, {v(e+1)}")
            A(f"v_add_f32 {v(bb)}, {v(n)}, {v(n+1)}")
            A(f"v_add_f32 {v(T+4)}, {v(e+2)}, {v(e+3)}")
            A(f"v_add_f32 {v(T+5)}, {v(n+2)}, {v(n+3)}")
            A(f"v_add_f32 {v(aa)}, {v(aa)}, {v(T+4)}")
            A(f"v_add_f32 {v(bb)}, {v(bb)}, {v(T+5)}")
        self.red4("v_add_f32", a0, b0, a1, b1)
        A(f"v_rcp_f32 {v(a0)}, {v(a0)}")
        self.bcast4(a0, b0, a1, b1)
        for t, (aa, bb) in enumerate(((a0, b0), (a1, b1))):
            for r in range(4):
                A(f"v_mul_f32 {v(EP+4*t+r)}, {v(EP+4*t+r)}, {v(aa)}")
                A(f"v_mul_f32 {v(EN+4*t+r)}, {v(EN+4*t+r)}, {v(bb)}")
        for t in range(2):
            for h in range(2):
                A(f"v_cvt_pk_bf16_f32 {v(P+4*t+h)}, {v(EP+4*t+2*h)}, {v(EP+4*t+2*h+1)}")
                A(f"v_cvt_pk_bf16_f32 {v(P+4*t+2+h)}, {v(EN+4*t+2*h)}, {v(EN+4*t+2*h+1)}")

    def publish_flag(self, soff_expr_code, sc1=True):
        A = self.A
        L = A.uniq("L_pub")
        A("s_waitcnt vmcnt(0)")
        self.bar()
        A(f"s_cmp_lg_u32 {s(sW)}, 0")
        A(f"s_cbranch_scc1 {L}")
        A(soff_expr_code)
        A(f"v_mov_b32 v5, {s(sTAG)}")
        A("v_mov_b32 v6, 0")
        A("s_mov_b64 exec, 1")
        A(f"buffer_store_dword v5, v6, {s(S_WS,4)}, {s(sT0)} offen" + (" sc1" if sc1 else self.st))
        A("s_mov_b64 exec, -1")
        A.label(L)

    def wait_flags16(self, soff_expr_code):
        A = self.A
        L, Lp, Ld = A.uniq("L_wf"), A.uniq("L_poll"), A.uniq("L_pd")
        A(f"s_cmp_lg_u32 {s(sW)}, 0")
        A(f"s_cbranch_scc1 {L}")
        A(soff_expr_code)
        A("v_and_b32 v5, 15, v0")
        A("v_lshlrev_b32 v5, 7, v5")
        A(f"s_mov_b32 {s(sCNT)}, {SPIN}")
        A.label(Lp)
        A(f"buffer_load_dword v6, v5, {s(S_WS,4)}, {s(sT0)} offen sc1")
        A(f"s_sub_u32 {s(sCNT)}, {s(sCNT)}, 1")
        A(f"s_cbranch_scc1 {Ld}")
        A("s_waitcnt vmcnt(0)")
        A(f"v_cmp_ne_u32 vcc, {s(sTAG)}, v6")
        A(f"s_cbranch_vccnz {Lp}")
        A.label(Ld)
        A("s_waitcnt vmcnt(0)")
        A.label(L)
        self.bar()

    def prologue(self):
        A = self.A
        A("s_cmp_ge_u32 s2, 256")
        A("s_cbranch_scc1 L_end")
        if self.diag:
            A(f"s_memrealtime {s(sRT,2)}")
        self.ts("start")
        for r, off in ((S_WS, 96), (S_C, 64), (S_WM, 72), (S_X, 0), (S_W, 8), (S_PHI, 16), (S_WO, 24), (S_WG, 40), (S_WU, 48), (S_WD, 56), (S_OUT, 80)):
            A(f"s_load_dwordx2 {s(r,2)}, s[0:1], {off}")
        sizes = {S_WS: 0x10000000, S_C: 1024, S_WM: 512*6144, S_X: 2048*1024, S_W: 512*3072, S_PHI: 32*512, S_WO: 512*1024,
                 S_WG: 512*2752, S_WU: 512*2752, S_WD: 1376*1024, S_OUT: 2048*1024, S_GU: 512*2752}
        A("v_lshrrev_b32 v2, 6, v0")
        A("v_and_b32 v1, 63, v0")
        A(f"v_readfirstlane_b32 {s(sW)}, v2")
        for r, sz in sizes.items():
            A(f"s_mov_b32 {s(r+2)}, {sz:#x}")
            A(f"s_mov_b32 {s(r+3)}, 0x20000")
        A(f"s_and_b32 {s(sM)}, {s(sW)}, 3")
        A(f"s_lshr_b32 {s(sKH)}, {s(sW)}, 2")
        A(f"s_and_b32 {s(sRB)}, s2, 7")
        A(f"s_lshl_b32 {s(sRB)}, {s(sRB)}, 1")
        A(f"s_lshr_b32 {s(sT0)}, s2, 7")
        A(f"s_add_u32 {s(sRB)}, {s(sRB)}, {s(sT0)}")
        A(f"s_bfe_u32 {s(sJ)}, s2, 0x40003")
        A(f"s_lshl_b32 {s(sG)}, {s(sRB)}, 20")
        A(f"s_add_u32 {s(sG)}, {s(sG)}, {WS_G0:#x}")
        A(f"s_mov_b32 {s(sL2E)}, 0x3fb8aa3b")
        A(f"s_mov_b32 {s(sMASK)}, 0xffff0000")
        A(f"s_mov_b32 {s(sONES)}, 0x3f803f80")
        A("v_mov_b32 v7, 0")
        A("s_waitcnt lgkmcnt(0)")
        A(f"buffer_load_dword v126, v7, {s(S_WS,4)}, 0 offen sc1")
        A(f"s_bitcmp1_b32 {s(sW)}, 0")
        A(f"s_cselect_b32 {s(S_GU)}, {s(S_WU)}, {s(S_WG)}")
        A(f"s_cselect_b32 {s(S_GU+1)}, {s(S_WU+1)}, {s(S_WG+1)}")

    def p0_issue(self):
        A = self.A
        A("s_cmp_ge_u32 s2, 48")
        A("s_cbranch_scc1 L_p0a_skip")
        A("v_lshrrev_b32 v2, 3, v1")
        A("v_lshlrev_b32 v3, 4, v2")
        A(f"s_lshl_b32 {s(sT0)}, {s(sW)}, 7")
        A(f"buffer_load_dwordx4 v[8:11], v3, {s(S_C,4)}, {s(sT0)} offen")
        A("v_mul_u32_u24 v2, 49152, v2")
        A("v_and_b32 v3, 7, v1")
        A("v_lshl_add_u32 v2, v3, 4, v2")
        A(f"s_mul_i32 {s(sT0)}, {s(sW)}, {64*6144}")
        A(f"s_lshl_b32 {s(sT1)}, s2, 7")
        A(f"s_add_u32 {s(sT0)}, {s(sT0)}, {s(sT1)}")
        for i in range(8):
            A(f"buffer_load_dwordx4 {v(32+4*i,4)}, v2, {s(S_WM,4)}, {s(sT0)} offen")
            if i < 7:
                A(f"s_add_u32 {s(sT0)}, {s(sT0)}, 6144")
        A.label("L_p0a_skip")

    def x_dma(self):
        A = self.A
        A(f"v_xor_b32 v2, {s(sW)}, v1")
        A(f"s_lshl_b32 {s(sT0)}, {s(sRB)}, 17")
        A(f"s_lshl_b32 {s(sT1)}, {s(sW)}, 10")
        A(f"s_add_u32 {s(sT0)}, {s(sT0)}, {s(sT1)}")
        A(f"v_lshl_add_u32 v2, v2, 4, {s(sT0)}")
        A("v_xor_b32 v3, 0x80, v2")
        A(f"s_add_u32 {s(sT1)}, {s(sT1)}, {L_XS}")
        A(f"s_lshr_b32 {s(sT0)}, {s(sJ)}, 1")
        A(f"s_lshl_b32 {s(sT0)}, {s(sT0)}, 14")
        A(f"s_mov_b32 {s(sCNT)}, 8")
        A.label("L_xdma")
        A(f"s_add_u32 m0, {s(sT0)}, {s(sT1)}")
        A(f"s_add_u32 {s(sT2)}, {s(sT0)}, 8192")
        A(f"buffer_load_dwordx4 v2, {s(S_X,4)}, {s(sT0)} offen lds")
        A(f"s_add_u32 m0, {s(sT2)}, {s(sT1)}")
        A(f"s_add_u32 {s(sT0)}, {s(sT0)}, 16384")
        A(f"buffer_load_dwordx4 v3, {s(S_X,4)}, {s(sT2)} offen lds")
        A(f"s_and_b32 {s(sT0)}, {s(sT0)}, 0x1ffff")
        A(f"s_sub_u32 {s(sCNT)}, {s(sCNT)}, 1")
        A(f"s_cmp_lg_u32 {s(sCNT)}, 0")
        A("s_cbranch_scc1 L_xdma")

    def p0_compute(self):
        A = self.A
        A("s_cmp_ge_u32 s2, 48")
        A("s_cbranch_scc1 L_p0b_skip")
        A("s_waitcnt vmcnt(24)")
        A(f"v_readfirstlane_b32 {s(sTAG)}, v126")
        for i in range(4):
            A(f"v_lshlrev_b32 {v(16+2*i)}, 16, {v(8+i)}")
            A(f"v_and_b32 {v(17+2*i)}, {s(sMASK)}, {v(8+i)}")
        for i in range(8):
            A(f"v_mul_f32 {v(24+i)}, {s(sL2E)}, {v(16+i)}")
        for i in range(8):
            A(f"v_exp_f32_e64 {v(24+i)}, -{v(24+i)}")
        for i in range(8):
            A(f"v_add_f32 {v(24+i)}, 1.0, {v(24+i)}")
        for i in range(8):
            A(f"v_rcp_f32 {v(24+i)}, {v(24+i)}")
        for i in range(8):
            A(f"v_mul_f32 {v(16+i)}, {v(16+i)}, {v(24+i)}")
        for i in range(4):
            A(f"v_cvt_pk_bf16_f32 {v(8+i)}, {v(16+2*i)}, {v(17+2*i)}")
        for i in range(4):
            A(f"v_lshlrev_b32 {v(16+2*i)}, 16, {v(8+i)}")
            A(f"v_and_b32 {v(17+2*i)}, {s(sMASK)}, {v(8+i)}")
        A(f"s_add_u32 {s(sTAG)}, {s(sTAG)}, 1")
        for i in range(8):
            A(f"s_waitcnt vmcnt({16+7-i})")
            for q in range(4):
                A(f"v_lshlrev_b32 {v(8+2*q)}, 16, {v(32+4*i+q)}")
                A(f"v_and_b32 {v(9+2*q)}, {s(sMASK)}, {v(32+4*i+q)}")
            for c in range(8):
                if i == 0:
                    A(f"v_mul_f32 {v(24+c)}, {v(16+i)}, {v(8+c)}")
                else:
                    A(f"v_fmac_f32 {v(24+c)}, {v(16+i)}, {v(8+c)}")
        for c in range(4):
            A(f"v_permlane32_swap_b32 {v(24+c)}, {v(28+c)}")
        for c in range(4):
            A(f"v_add_f32 {v(24+c)}, {v(24+c)}, {v(28+c)}")
        for c in range(2):
            A(f"v_permlane16_swap_b32 {v(24+c)}, {v(26+c)}")
        for c in range(2):
            A(f"v_add_f32 {v(24+c)}, {v(24+c)}, {v(26+c)}")
        for c in range(2):
            A(f"v_add_f32_dpp {v(26+c)}, {v(24+c)}, {v(24+c)} row_ror:8 row_mask:0xf bank_mask:0xf")
        A("v_and_b32 v4, 7, v1")
        A("v_lshlrev_b32 v4, 5, v4")
        A("v_lshrrev_b32 v5, 4, v1")
        A("v_lshl_add_u32 v4, v5, 3, v4")
        A(f"s_lshl_b32 {s(sT0)}, {s(sW)}, 8")
        A(f"v_add_u32 v4, {s(sT0)}, v4")
        A(f"ds_write_b64 v4, v[26:27] offset:{L_WK}")
        A("s_waitcnt lgkmcnt(0)")
        self.bar()
        A(f"s_cmp_lg_u32 {s(sW)}, 0")
        A("s_cbranch_scc1 L_p0c_skip")
        A("v_lshlrev_b32 v4, 2, v1")
        for i in range(4):
            A(f"ds_read2st64_b32 {v(8+2*i,2)}, v4 offset0:{2*i} offset1:{2*i+1}")
        A("s_waitcnt lgkmcnt(0)")
        for i in range(4):
            A(f"v_add_f32 {v(8+i)}, {v(8+i)}, {v(12+i)}")
        A("v_add_f32 v8, v8, v9\nv_add_f32 v10, v10, v11\nv_add_f32 v8, v8, v10")
        A("v_cvt_pk_bf16_f32 v8, v8, v8")
        A(f"v_and_b32 v8, {s(sMASK)}, v8")
        A(f"v_mov_b32 v9, {s(sTAG)}")
        A("v_lshlrev_b32 v4, 3, v1")
        A(f"s_lshl_b32 {s(sT0)}, s2, 9")
        A(f"s_add_u32 {s(sT0)}, {s(sT0)}, {WS_MOD:#x}")
        A(f"buffer_store_dwordx2 v[8:9], v4, {s(S_WS,4)}, {s(sT0)} offen sc1")
        A.label("L_p0c_skip")
        self.bar()
        A.label("L_p0b_skip")

    def w_dma(self, mat, lbase):
        A = self.A
        A(f"s_mul_i32 {s(sT0)}, {s(sW)}, 49152")
        A(f"s_lshl_b32 {s(sT1)}, {s(sJ)}, 6")
        A(f"s_add_u32 {s(sT0)}, {s(sT0)}, {s(sT1)}")
        if mat:
            A(f"s_add_u32 {s(sT0)}, {s(sT0)}, {mat*1024}")
        A(f"s_lshl_b32 {s(sT1)}, {s(sW)}, 10")
        for i in range(4):
            A(f"s_add_u32 m0, {s(sT1)}, {lbase + i*8192}")
            if i:
                A(f"s_add_u32 {s(sT0)}, {s(sT0)}, {8*49152}")
            A(f"buffer_load_dwordx4 v7, {s(S_W,4)}, {s(sT0)} offen lds")

    def p1(self):
        A = self.A
        AF = lambda t, u: 64 + (u * 2 + t) * 4
        A("v_lshrrev_b32 v2, 2, v1")
        A("v_mul_u32_u24 v2, 3072, v2")
        A("v_lshrrev_b32 v3, 5, v1")
        A("v_lshlrev_b32 v3, 1, v3")
        A("v_and_b32 v4, 3, v1")
        A("v_xor_b32 v3, v3, v4")
        A("v_lshl_add_u32 v7, v3, 4, v2")
        self.w_dma(1, L_WK)
        A("v_lshrrev_b32 v8, 4, v1")
        A("v_and_b32 v9, 15, v1")
        A("v_xor_b32 v2, v8, v9")
        A("v_lshlrev_b32 v2, 4, v2")
        A("v_lshl_add_u32 v2, v9, 10, v2")
        A(f"s_lshl_b32 {s(sT0)}, {s(sM)}, 15")
        A(f"s_mul_i32 {s(sT1)}, {s(sKH)}, {512 + 16384}")
        A(f"s_add_u32 {s(sT0)}, {s(sT0)}, {s(sT1)}")
        A(f"s_add_u32 {s(sT0)}, {s(sT0)}, {L_XS}")
        A(f"v_add_u32 v2, {s(sT0)}, v2")
        for q in range(1, 4):
            A(f"v_xor_b32 {v(2+q)}, {64*q}, v2")
        for q in range(4):
            A(f"v_xor_b32 {v(10+q)}, 0x4000, {v(2+q)}")
        A("s_waitcnt vmcnt(4)")
        A(f"v_readfirstlane_b32 {s(sTAG)}, v126")
        self.bar()
        self.ts("x_landed")
        A(f"s_add_u32 {s(sTAG)}, {s(sTAG)}, 1")
        for u in range(8):
            for t in range(2):
                A(f"ds_read_b128 {v(AF(t,u),4)}, {v((2 if t == 0 else 10) + (u & 3))} offset:{(u >> 2)*256}")
        A("s_waitcnt lgkmcnt(0)")
        self.bar()
        self.w_dma(2, L_WV)
        A("v_lshlrev_b32 v2, 7, v8")
        A("v_lshl_add_u32 v2, v9, 1, v2")
        A(f"s_lshl_b32 {s(sT0)}, {s(sJ)}, 10")
        A(f"s_lshl_b32 {s(sT1)}, {s(sKH)}, 9")
        A(f"s_add_u32 {s(sT1)}, {s(sT1)}, {s(sT0)}")
        for h in range(2):
            for jj in range(4):
                A(f"buffer_load_ushort {v(40+4*h+jj)}, v2, {s(S_PHI,4)}, {s(sT0)} offen offset:{h*512+jj*32}")
        for jj in range(4):
            A(f"buffer_load_ushort {v(48+jj)}, v2, {s(S_PHI,4)}, {s(sT1)} offen offset:{jj*32}")
        for i in range(4):
            A(f"v_mov_b32 {v(16+i)}, 0")
        for u in range(8):
            for q in range(4):
                for t in range(2):
                    r = AF(t, u) + q
                    A(f"v_dot2c_f32_bf16 {v(16+2*t)}, {s(sONES)}, {v(r)}")
                    A(f"v_dot2c_f32_bf16 {v(17+2*t)}, {v(r)}, {v(r)}")
        self.red4("v_add_f32", 16, 17, 18, 19)
        A("v_lshlrev_b32 v2, 2, v0")
        A(f"v_add_u32 v2, {L_STX}, v2")
        A("ds_write_b32 v2, v16")
        A(f"v_xor_b32 v2, {1024 + 64}, v2")
        A("s_waitcnt lgkmcnt(0)")
        self.bar()
        A("ds_read_b32 v17, v2")
        A("s_waitcnt lgkmcnt(0)")
        A("v_add_f32 v16, v16, v17")
        A("v_mul_f32 v16, 0x3b000000, v16")
        self.bcast4(16, 17, 18, 19)
        for t in range(2):
            m_, e_ = 16 + 2 * t, 17 + 2 * t
            A(f"v_fma_f32 {v(e_)}, -{v(m_)}, {v(m_)}, {v(e_)}")
            A(f"v_max_f32 {v(e_)}, 0, {v(e_)}")
            A(f"v_add_f32 {v(e_)}, 0x3727c5ac, {v(e_)}")
            A(f"v_rsq_f32 {v(e_)}, {v(e_)}")
            A(f"v_mul_f32_e64 {v(m_)}, -{v(m_)}, {v(e_)}")
        for u in range(8):
            for q in range(4):
                r0, r1 = AF(0, u) + q, AF(1, u) + q
                A(f"v_lshlrev_b32 v20, 16, {v(r0)}")
                A(f"v_and_b32 v21, {s(sMASK)}, {v(r0)}")
                A(f"v_lshlrev_b32 v22, 16, {v(r1)}")
                A(f"v_and_b32 v23, {s(sMASK)}, {v(r1)}")
                A(f"v_fma_mixlo_f16 {v(r0)}, v20, v17, v16")
                A(f"v_fma_mixlo_f16 {v(r1)}, v22, v19, v18")
                A(f"v_fma_mixhi_f16 {v(r0)}, v21, v17, v16")
                A(f"v_fma_mixhi_f16 {v(r1)}, v23, v19, v18")
        self.ts("normed")
        A("v_lshlrev_b32 v2, 3, v0")
        A(f"s_and_b32 {s(sT0)}, {s(sJ)}, 7")
        A(f"s_lshl_b32 {s(sT0)}, {s(sT0)}, 9")
        A(f"s_lshl_b32 {s(sT1)}, {s(sM)}, 12")
        A(f"s_add_u32 {s(sT0)}, {s(sT0)}, {s(sT1)}")
        A(f"s_add_u32 {s(sT0)}, {s(sT0)}, {WS_MOD + 8192:#x}")
        A("v_lshlrev_b32 v3, 3, v1")
        A(f"s_mov_b32 {s(sT1)}, {WS_MOD:#x}")
        A(f"s_mov_b32 {s(sT2)}, {WS_MOD + 4096:#x}")
        A(f"s_mov_b32 {s(sCNT)}, {SPIN}")
        A.label("L_s0")
        A(f"buffer_load_dwordx2 v[20:21], v2, {s(S_WS,4)}, {s(sT1)} offen sc1")
        A(f"buffer_load_dwordx2 v[22:23], v2, {s(S_WS,4)}, {s(sT2)} offen sc1")
        A(f"buffer_load_dwordx2 v[24:25], v3, {s(S_WS,4)}, {s(sT0)} offen sc1")
        A(f"s_sub_u32 {s(sCNT)}, {s(sCNT)}, 1")
        A("s_cbranch_scc1 L_s0d")
        A("s_waitcnt vmcnt(0)")
        A(f"v_xor_b32 v21, {s(sTAG)}, v21")
        A(f"v_xor_b32 v23, {s(sTAG)}, v23")
        A(f"v_xor_b32 v25, {s(sTAG)}, v25")
        A("v_or3_b32 v21, v21, v23, v25")
        A("v_cmp_ne_u32 vcc, 0, v21")
        A("s_cbranch_vccnz L_s0")
        A.label("L_s0d")
        A("s_waitcnt vmcnt(0)")
        self.w_dma(0, L_WQ)
        A("v_add_f32 v22, 1.0, v22")
        A(f"s_cmp_eq_u32 {s(sM)}, 2")
        A(f"s_cselect_b32 {s(sT0)}, 1.0, 0")
        A(f"v_add_f32 v24, {s(sT0)}, v24")
        A("v_cvt_pk_bf16_f32 v22, v22, v24")
        A(f"v_and_b32 v24, {s(sMASK)}, v22")
        A("v_lshlrev_b32 v22, 16, v22")
        A("v_lshrrev_b32 v2, 3, v0")
        A("v_lshlrev_b32 v2, 6, v2")
        A("v_and_b32 v3, 7, v0")
        A("v_lshl_add_u32 v2, v3, 2, v2")
        A(f"v_add_u32 v2, {L_TAB}, v2")
        A("ds_write2_b32 v2, v22, v20 offset0:0 offset1:8")
        A("v_and_b32 v3, 255, v0")
        A("v_lshlrev_b32 v3, 2, v3")
        A(f"v_add_u32 v3, {L_MT}, v3")
        A("ds_write_b32 v3, v24")
        for i in range(6):
            A(f"v_lshl_or_b32 {v(40+2*i)}, {v(41+2*i)}, 16, {v(40+2*i)}")
        for i in range(6):
            A(f"v_accvgpr_write_b32 {a(32+i)}, {v(40+2*i)}")
        A("v_lshlrev_b32 v20, 2, v8")
        A("v_sub_u32 v20, v9, v20")
        A("v_mov_b32 v21, 0x3f80")
        A("v_mov_b32 v22, 0x3f800000")
        for reg in range(2):
            A(f"v_cmp_eq_u32 vcc, {2*reg}, v20")
            A("v_cndmask_b32 v23, 0, v21, vcc")
            A(f"v_cmp_eq_u32 vcc, {2*reg+1}, v20")
            A("v_cndmask_b32 v23, v23, v22, vcc")
            A(f"v_accvgpr_write_b32 {a(38+reg)}, v23")
        A(f"v_mov_b32 v23, {s(sONES)}")
        for i in range(4):
            A(f"v_accvgpr_write_b32 {a(40+i)}, v23")
        A("v_lshrrev_b32 v20, 2, v9")
        A("v_lshl_add_u32 v20, v8, 3, v20")
        A("v_lshlrev_b32 v20, 6, v20")
        A("v_and_b32 v21, 3, v1")
        A("v_lshl_add_u32 v20, v21, 3, v20")
        A("v_and_b32 v21, 1, v8")
        A(f"v_xor_b32 v21, {s(sKH)}, v21")
        A("v_lshl_add_u32 v20, v21, 5, v20")
        A(f"s_lshl_b32 {s(sT0)}, {s(sKH)}, 14")
        A(f"v_add_u32 v2, {s(sT0)}, v20")
        A("v_xor_b32 v3, 32, v2")
        A(f"s_lshl_b32 {s(sT0)}, {s(sKH)}, 11")
        A(f"s_add_u32 {s(sT0)}, {s(sT0)}, {L_TAB}")
        A(f"v_lshl_add_u32 v4, v8, 6, {s(sT0)}")
        A("s_waitcnt lgkmcnt(0)")
        self.bar()
        self.ts("s0_done")

        def rd_tab(u):
            for i in range(4):
                A(f"ds_read_b128 {v(16+4*i,4)}, v4 offset:{u*256 + i*16}")

        def rd_b(u):
            p = (u & 1) * 16
            for mi, base in enumerate((L_WK, L_WV)):
                for h in range(2):
                    for hh in range(2):
                        A(f"ds_read_b64_tr_b16 {a(p + (mi*2+h)*4 + hh*2, 2)}, {v(2+h)} offset:{base + u*2048 + hh*256}")
        rd_tab(0)
        rd_b(0)
        for u in range(8):
            A("s_waitcnt lgkmcnt(8)")
            for q in range(4):
                for t in range(2):
                    r = AF(t, u) + q
                    A(f"v_fma_mix_f32 {v(8+2*t)}, {v(r)}, {v(16+2*q)}, {v(24+2*q)} op_sel:[0,0,0] op_sel_hi:[1,0,0]")
                    A(f"v_fma_mix_f32 {v(9+2*t)}, {v(r)}, {v(17+2*q)}, {v(25+2*q)} op_sel:[1,0,0] op_sel_hi:[1,0,0]")
                for t in range(2):
                    A(f"v_cvt_pk_bf16_f32 {v(AF(t,u)+q)}, {v(8+2*t)}, {v(9+2*t)}")
            if u < 7:
                rd_tab(u + 1)
                rd_b(u + 1)
                A("s_waitcnt lgkmcnt(12)")
            else:
                A("s_waitcnt lgkmcnt(0)")
            p = (u & 1) * 16
            for h in range(2):
                for t in range(2):
                    d = 32 + (h * 2 + t) * 4
                    A(f"v_mfma_f32_16x16x32_bf16 {v(d,4)}, {a(p+h*4,4)}, {v(AF(t,u),4)}, {v(d,4) if u else 0}")
            for h in range(2):
                for t in range(2):
                    d = 48 + (h * 2 + t) * 4
                    A(f"v_mfma_f32_16x16x32_bf16 {v(d,4)}, {v(AF(t,u),4)}, {a(p+8+h*4,4)}, {v(d,4) if u else 0}")
        A(f"s_lshl_b32 {s(sT0)}, {s(sW)}, 12")
        A(f"s_add_u32 {s(sT0)}, {s(sT0)}, {L_EXC}")
        A(f"v_lshl_add_u32 v5, v1, 4, {s(sT0)}")
        A(f"s_xor_b32 {s(sT1)}, {s(sW)}, 4")
        A(f"s_lshl_b32 {s(sT1)}, {s(sT1)}, 12")
        A(f"s_add_u32 {s(sT1)}, {s(sT1)}, {L_EXC}")
        A(f"v_lshl_add_u32 v6, v1, 4, {s(sT1)}")
        for i, r in enumerate((40, 44, 56, 60)):
            A(f"ds_write_b128 v5, {v(r,4)} offset:{i*1024}")
        A("s_waitcnt lgkmcnt(0)")
        self.bar()
        for i, r in enumerate((20, 16, 28, 24)):
            A(f"ds_read_b128 {v(r,4)}, v6 offset:{i*1024}")
        self.slab_setup()
        self.slab_dma(S_WO, 0, 8, 0)
        A("s_waitcnt lgkmcnt(0)")
        for i in range(8):
            A(f"v_add_f32 {v(32+i)}, {v(32+i)}, {v(16+i)}")
        for i in range(8):
            A(f"v_add_f32 {v(48+i)}, {v(48+i)}, {v(24+i)}")
        self.ts("kv_gemm")
        for i in range(4):
            A(f"v_cvt_pk_bf16_f32 {v(8+i)}, {v(32+2*i)}, {v(33+2*i)}")
        for t in range(2):
            A(f"v_mfma_f32_16x16x16_bf16 {v(40+4*t,4)}, {a(36,2)}, {v(8+2*t,2)}, 0")
        for i in range(4):
            A(f"v_cvt_pk_bf16_f32 {v(32+i)}, {v(48+2*i)}, {v(49+2*i)}")
        self.softmax2(40, 16, 24, 8, 56)
        for (d, p) in ((16, 56), (20, 60), (24, 58), (28, 62)):
            A(f"v_mfma_f32_16x16x16_bf16 {v(d,4)}, {v(p,2)}, {a(38,2)}, 0")
        for i in range(8):
            A(f"v_cvt_pk_bf16_f32 {v(40+i)}, {v(16+2*i)}, {v(17+2*i)}")
        A(f"v_mfma_f32_16x16x32_bf16 v[16:19], v[40:43], v[32:35], 0")
        A(f"v_mfma_f32_16x16x32_bf16 v[20:23], v[44:47], v[32:35], 0")
        A(f"v_mfma_f32_16x16x32_bf16 v[24:27], v[40:43], a[40:43], 0")
        A(f"v_mfma_f32_16x16x32_bf16 v[28:31], v[44:47], a[40:43], 0")
        A(f"s_mul_i32 {s(sT0)}, {s(sW)}, 2304")
        A(f"s_add_u32 {s(sT0)}, {s(sT0)}, {L_KVR}")
        A(f"v_lshl_add_u32 v8, v1, 4, {s(sT0)}")
        A("v_and_b32 v9, 48, v1")
        A(f"v_add_u32 v9, {s(sT0)}, v9")
        A("ds_write_b128 v8, v[16:19]")
        A("ds_write_b128 v8, v[20:23] offset:1024")
        A("ds_write_b128 v9, v[24:27] offset:2048")
        A("ds_write_b128 v9, v[28:31] offset:2112")
        A("v_lshrrev_b32 v10, 7, v0")
        A("v_and_b32 v11, 127, v0")
        A("v_bfe_u32 v12, v0, 3, 1")
        A("v_and_b32 v13, 7, v0")
        A("v_add_u32 v13, 128, v13")
        A("v_cmp_gt_u32 vcc, 256, v0")
        A("v_cndmask_b32 v10, v12, v10, vcc")
        A("v_cndmask_b32 v11, v13, v11, vcc")
        A("v_mul_u32_u24 v10, 9216, v10")
        A("v_lshl_add_u32 v10, v11, 4, v10")
        A(f"v_add_u32 v10, {L_KVR}, v10")
        A("v_lshlrev_b32 v11, 4, v0")
        A("s_waitcnt lgkmcnt(0)")
        self.bar()
        A("v_cmp_gt_u32 vcc, 272, v0")
        A(f"s_and_saveexec_b64 {s(sEX,2)}, vcc")
        A("s_cbranch_execz L_kvred_skip")
        for i in range(4):
            A(f"ds_read_b128 {v(16+4*i,4)}, v10 offset:{i*2304}")
        A(f"s_lshl_b32 {s(sT0)}, {s(sJ)}, 4")
        A(f"s_add_u32 {s(sT0)}, {s(sT0)}, {s(sRB)}")
        A(f"s_mul_i32 {s(sT0)}, {s(sT0)}, {KVP_STRIDE}")
        A(f"s_add_u32 {s(sT0)}, {s(sT0)}, {WS_KVP:#x}")
        A("s_waitcnt lgkmcnt(0)")
        for i in range(4):
            A(f"v_add_f32 {v(16+i)}, {v(16+i)}, {v(20+i)}")
            A(f"v_add_f32 {v(24+i)}, {v(24+i)}, {v(28+i)}")
        for i in range(4):
            A(f"v_add_f32 {v(16+i)}, {v(16+i)}, {v(24+i)}")
        A(f"buffer_store_dwordx4 v[16:19], v11, {s(S_WS,4)}, {s(sT0)} offen sc1")
        A.label("L_kvred_skip")
        A(f"s_mov_b64 exec, {s(sEX,2)}")
        self.publish_flag(f"""s_lshl_b32 {s(sT0)}, {s(sJ)}, 4
            s_add_u32 {s(sT0)}, {s(sT0)}, {s(sRB)}
            s_lshl_b32 {s(sT0)}, {s(sT0)}, 7
            s_add_u32 {s(sT0)}, {s(sT0)}, {WS_FL1:#x}""")
        self.ts("kv_pub")
        A(f"s_lshl_b32 {s(sT0)}, {s(sKH)}, 5")
        A(f"v_xor_b32 v2, {s(sT0)}, v2")
        A(f"v_add_u32 v2, {L_WQ}, v2")
        A("v_xor_b32 v3, 32, v2")

        def rd_q(u):
            p = (u & 3) * 8
            for h in range(2):
                for hh in range(2):
                    A(f"ds_read_b64_tr_b16 {a(p + h*4 + hh*2, 2)}, {v(2+h)} offset:{u*2048 + hh*256}")
        rd_q(0); rd_q(1); rd_q(2)
        for u in range(8):
            A(f"s_waitcnt lgkmcnt({min(8, 4*(7-u))})")
            p = (u & 3) * 8
            for t in range(2):
                for h in range(2):
                    d = 32 + (t * 2 + h) * 4
                    A(f"v_mfma_f32_16x16x32_bf16 {v(d,4)}, {a(p+h*4,4)}, {v(AF(t,u),4)}, {v(d,4) if u else 0}")
            if u + 3 < 8:
                rd_q(u + 3)
        A(f"s_lshl_b32 {s(sT0)}, {s(sW)}, 12")
        A(f"s_add_u32 {s(sT0)}, {s(sT0)}, {L_EXC}")
        A(f"v_lshl_add_u32 v5, v1, 4, {s(sT0)}")
        A(f"s_xor_b32 {s(sT1)}, {s(sW)}, 4")
        A(f"s_lshl_b32 {s(sT1)}, {s(sT1)}, 12")
        A(f"s_add_u32 {s(sT1)}, {s(sT1)}, {L_EXC}")
        A(f"v_lshl_add_u32 v6, v1, 4, {s(sT1)}")
        A("ds_write_b128 v5, v[40:43]")
        A("ds_write_b128 v5, v[44:47] offset:1024")
        A("s_waitcnt lgkmcnt(0)")
        self.bar()
        A("ds_read_b128 v[16:19], v6")
        A("ds_read_b128 v[20:23], v6 offset:1024")
        A("s_waitcnt lgkmcnt(0)")
        self.bar()
        self.gu_setup()
        self.gu_dma_all([0, 2, 4])
        self.x_res_load()
        for i in range(8):
            A(f"v_add_f32 {v(32+i)}, {v(32+i)}, {v(16+i)}")
        for i in range(4):
            A(f"v_cvt_pk_bf16_f32 {v(8+i)}, {v(32+2*i)}, {v(33+2*i)}")
        for h in range(2):
            A(f"v_mfma_f32_16x16x16_bf16 {v(40+4*h,4)}, {a(32+2*h,2)}, {v(8+2*h,2)}, 0")
        self.softmax2(40, 16, 24, 8, 56)
        self.ts("q_done")
        self.wait_flags16(f"""s_lshl_b32 {s(sT0)}, {s(sJ)}, 11
            s_add_u32 {s(sT0)}, {s(sT0)}, {WS_FL1:#x}""")
        self.ts("s1_flags")
        A("v_lshlrev_b32 v11, 4, v0")
        A("v_lshrrev_b32 v8, 7, v0")
        A("v_lshlrev_b32 v8, 10, v8")
        A("v_lshl_add_u32 v8, v1, 4, v8")
        A("v_bfe_u32 v9, v0, 6, 1")
        A("v_lshl_add_u32 v8, v9, 3, v8")
        A("v_bfe_u32 v9, v0, 3, 1")
        A("v_lshlrev_b32 v9, 6, v9")
        A("v_and_b32 v10, 3, v0")
        A("v_lshl_add_u32 v9, v10, 4, v9")
        A("v_bfe_u32 v10, v0, 2, 1")
        A("v_lshl_add_u32 v9, v10, 3, v9")
        A("v_add_u32 v9, 2048, v9")
        A("v_cmp_gt_u32 vcc, 256, v0")
        A("v_cndmask_b32 v8, v9, v8, vcc")
        A(f"v_add_u32 v8, {L_KVF}, v8")
        A("v_cmp_gt_u32 vcc, 272, v0")
        A(f"s_and_saveexec_b64 {s(sEX,2)}, vcc")
        A("s_cbranch_execz L_kvg_skip")
        A(f"s_mul_i32 {s(sT0)}, {s(sJ)}, {16*KVP_STRIDE}")
        A(f"s_add_u32 {s(sT0)}, {s(sT0)}, {WS_KVP:#x}")
        for i in range(16):
            A(f"buffer_load_dwordx4 {v(64+4*i,4)}, v11, {s(S_WS,4)}, {s(sT0)} offen sc1")
            if i < 15:
                A(f"s_add_u32 {s(sT0)}, {s(sT0)}, {KVP_STRIDE}")
        for i in range(1, 16):
            A(f"s_waitcnt vmcnt({15-i})")
            for q in range(4):
                A(f"v_add_f32 {v(64+q)}, {v(64+q)}, {v(64+4*i+q)}")
        A("v_cvt_pk_bf16_f32 v64, v64, v65")
        A("v_cvt_pk_bf16_f32 v65, v66, v67")
        A("ds_write_b64 v8, v[64:65]")
        A.label("L_kvg_skip")
        A(f"s_mov_b64 exec, {s(sEX,2)}")
        A("v_lshlrev_b32 v8, 4, v1")
        A(f"v_add_u32 v8, {L_KVF}, v8")
        A("v_and_b32 v9, 48, v1")
        A(f"v_add_u32 v9, {L_KVF + 2048}, v9")
        A("s_waitcnt lgkmcnt(0)")
        self.bar()
        A("ds_read_b128 v[16:19], v8")
        A("ds_read_b128 v[20:23], v8 offset:1024")
        A("ds_read_b128 v[24:27], v9")
        A("ds_read_b128 v[28:31], v9 offset:64")
        A("s_waitcnt lgkmcnt(0)")
        for h in range(2):
            A(f"v_mfma_f32_16x16x32_bf16 {v(40+4*h,4)}, {v(24+4*h,4)}, {v(56+4*h,4)}, 0")
        for h in range(2):
            A(f"v_mfma_f32_16x16x32_bf16 {v(32+4*h,4)}, {v(16+4*h,4)}, {v(56+4*h,4)}, 0")
        A(f"s_lshl_b32 {s(sT0)}, {s(sM)}, 1")
        A(f"s_add_u32 {s(sT0)}, {s(sT0)}, {s(sKH)}")
        A(f"s_lshl_b32 {s(sT0)}, {s(sT0)}, 4")
        A(f"s_add_u32 {s(sT0)}, {s(sT0)}, {s(sJ)}")
        A(f"s_lshl_b32 {s(sT0)}, {s(sT0)}, 10")
        A(f"s_add_u32 {s(sT0)}, {s(sT0)}, {s(sG)}")
        A("v_lshlrev_b32 v8, 4, v1")
        for h in range(2):
            A(f"v_add_f32 {v(40+4*h)}, 0x358637bd, {v(40+4*h)}")
            A(f"v_rcp_f32 {v(40+4*h)}, {v(40+4*h)}")
        for h in range(2):
            for r in range(4):
                A(f"v_mul_f32 {v(32+4*h+r)}, {v(32+4*h+r)}, {v(40+4*h)}")
        for i in range(4):
            A(f"v_cvt_pk_bf16_f32 {v(16+i)}, {v(32+2*i)}, {v(33+2*i)}")
        A(f"buffer_store_dwordx4 v[16:19], v8, {s(S_WS,4)}, {s(sT0)} offen{self.st}")
        self.publish_flag(f"""s_lshl_b32 {s(sT0)}, {s(sJ)}, 7
            s_add_u32 {s(sT0)}, {s(sT0)}, {s(sG)}
            s_add_u32 {s(sT0)}, {s(sT0)}, {G_FLO:#x}""", sc1=False)
        self.ts("o_pub")

    def slab_setup(self):
        A = self.A
        A("v_lshrrev_b32 v7, 3, v1")
        A("v_lshlrev_b32 v7, 10, v7")
        A("v_lshrrev_b32 v12, 4, v1")
        A("v_lshlrev_b32 v12, 1, v12")
        A("v_and_b32 v13, 7, v1")
        A("v_xor_b32 v12, v12, v13")
        A("v_lshl_add_u32 v7, v12, 4, v7")

    def slab_dma(self, srd, row8_0, n, lbase, nwaves=8):
        A = self.A
        A(f"s_and_b32 {s(sT0)}, {s(sJ)}, 7")
        A(f"s_lshl_b32 {s(sT0)}, {s(sT0)}, 7")
        A(f"s_lshl_b32 {s(sT1)}, {s(sW)}, 13")
        A(f"s_add_u32 {s(sT0)}, {s(sT0)}, {s(sT1)}")
        if row8_0:
            A(f"s_add_u32 {s(sT0)}, {s(sT0)}, {row8_0*8192}")
        A(f"s_lshl_b32 {s(sT1)}, {s(sW)}, 10")
        for i in range(n):
            A(f"s_add_u32 m0, {s(sT1)}, {lbase + i*8192}")
            if i:
                A(f"s_add_u32 {s(sT0)}, {s(sT0)}, 65536")
            A(f"buffer_load_dwordx4 v7, {s(srd,4)}, {s(sT0)} offen lds")

    def gu_setup(self):
        A = self.A
        for i in range(3):
            A(f"v_add_u32 v12, {64*i}, v1")
            A("v_mul_u32_u24 v13, 0x5556, v12")
            A("v_lshrrev_b32 v13, 18, v13")
            A("v_mul_u32_u24 v14, 12, v13")
            A("v_sub_u32 v12, v12, v14")
            A("v_bfe_u32 v14, v13, 2, 1")
            A("v_lshlrev_b32 v14, 1, v14")
            A("v_xor_b32 v12, v12, v14")
            A("v_mul_u32_u24 v13, 2752, v13")
            A(f"v_lshl_add_u32 {v(48+i)}, v12, 4, v13")
        A(f"s_bfe_u32 {s(sT0)}, {s(sW)}, 0x10001")
        A(f"s_mul_i32 {s(sGUL)}, {s(sT0)}, 3072")
        A(f"s_mul_i32 {s(sGUS)}, {s(sT0)}, {16*2752}")
        A(f"s_mul_i32 {s(sT2)}, {s(sJ)}, 192")
        A(f"s_add_u32 {s(sGUS)}, {s(sGUS)}, {s(sT2)}")
        A(f"s_and_b32 {s(sT2)}, {s(sW)}, 1")
        A(f"s_mul_i32 {s(sT2)}, {s(sT2)}, 6144")
        A(f"s_add_u32 {s(sGUL)}, {s(sGUL)}, {s(sT2)}")

    def gu_dma(self, u_base, per_wave_parity=True, vo=48):
        A = self.A
        A(f"s_add_u32 {s(sT0)}, {s(sGUS)}, {u_base*32*2752}")
        A(f"s_add_u32 {s(sT1)}, {s(sGUL)}, {slot_addr(u_base)}")
        if per_wave_parity:
            A(f"s_mul_i32 {s(sT2)}, {s(sKH)}, {32*2752}")
            A(f"s_mul_i32 {s(sT3)}, {s(sKH)}, {slot_addr(u_base+1) - slot_addr(u_base)}")
            A(f"s_add_u32 {s(sT0)}, {s(sT0)}, {s(sT2)}")
            A(f"s_add_u32 {s(sT1)}, {s(sT1)}, {s(sT3)}")
        for i in range(3):
            A(f"s_add_u32 m0, {s(sT1)}, {i*1024}")
            A(f"buffer_load_dwordx4 {v(vo+i)}, {s(S_GU,4)}, {s(sT0)} offen lds")

    def gu_dma_all(self, ubases):
        for u in ubases:
            self.gu_dma(u)

    def rowmajor_addr(self, dst):
        A = self.A
        A(f"s_lshl_b32 {s(sT0)}, {s(sRB)}, 3")
        A(f"s_lshr_b32 {s(sT1)}, {s(sJ)}, 3")
        A(f"s_lshl_b32 {s(sT1)}, {s(sT1)}, 2")
        A(f"s_add_u32 {s(sT0)}, {s(sT0)}, {s(sT1)}")
        A(f"s_add_u32 {s(sT0)}, {s(sT0)}, {s(sM)}")
        A(f"s_lshl_b32 {s(sT0)}, {s(sT0)}, 14")
        A(f"s_and_b32 {s(sT1)}, {s(sJ)}, 7")
        A(f"s_lshl_b32 {s(sT1)}, {s(sT1)}, 7")
        A(f"s_add_u32 {s(sT0)}, {s(sT0)}, {s(sT1)}")
        A(f"s_lshl_b32 {s(sT1)}, {s(sKH)}, 6")
        A(f"s_add_u32 {s(sT0)}, {s(sT0)}, {s(sT1)}")
        A("v_and_b32 v12, 15, v1")
        A(f"v_lshl_add_u32 {v(dst)}, v12, 10, {s(sT0)}")
        A("v_bfe_u32 v12, v1, 4, 1")
        A(f"v_lshl_add_u32 {v(dst)}, v12, 5, {v(dst)}")
        A("v_lshrrev_b32 v12, 5, v1")
        A(f"v_lshl_add_u32 {v(dst)}, v12, 4, {v(dst)}")

    def x_res_load(self):
        self.rowmajor_addr(13)
        self.A(f"buffer_load_dwordx4 v[52:55], v13, {s(S_X,4)}, 0 offen")

    def slab_bases(self, khoff_code):
        A = self.A
        A(khoff_code)
        A("v_lshrrev_b32 v12, 2, v1")
        A(f"v_lshl_add_u32 v2, v12, 7, {s(sT0)}")
        A("v_and_b32 v13, 3, v1")
        A("v_lshl_add_u32 v2, v13, 3, v2")
        A("v_bfe_u32 v12, v1, 3, 2")
        A(f"s_lshl_b32 {s(sT1)}, {s(sKH)}, 1")
        A(f"v_xor_b32 v12, {s(sT1)}, v12")
        A("v_lshl_add_u32 v2, v12, 5, v2")
        for t in range(1, 4):
            A(f"v_xor_b32 {v(2+t)}, {32*t}, v2")

    def g64_step_reads(self, buf, off):
        A = self.A
        for t in range(4):
            for hh in range(2):
                A(f"ds_read_b64_tr_b16 {v(64 + buf*16 + t*4 + hh*2, 2)}, {v(2+t)} offset:{off + hh*2048}")

    def g64_exchange(self, base):
        A = self.A
        A(f"s_lshl_b32 {s(sT0)}, {s(sW)}, 11")
        A(f"s_add_u32 {s(sT0)}, {s(sT0)}, {base}")
        A(f"v_lshl_add_u32 v8, v1, 4, {s(sT0)}")
        A(f"s_xor_b32 {s(sT1)}, {s(sW)}, 4")
        A(f"s_lshl_b32 {s(sT1)}, {s(sT1)}, 11")
        A(f"s_add_u32 {s(sT1)}, {s(sT1)}, {base}")
        A(f"v_lshl_add_u32 v9, v1, 4, {s(sT1)}")
        A("ds_write_b128 v8, v[40:43]")
        A("ds_write_b128 v8, v[44:47] offset:1024")
        A("s_waitcnt lgkmcnt(0)")
        self.bar()
        A("ds_read_b128 v[40:43], v9")
        A("ds_read_b128 v[44:47], v9 offset:1024")

    def mt_addr(self, dst):
        A = self.A
        A(f"s_lshl_b32 {s(sT0)}, {s(sKH)}, 7")
        A(f"s_add_u32 {s(sT0)}, {s(sT0)}, {L_MT}")
        A(f"v_and_b32 {v(dst)}, 48, v1")
        A(f"v_add_u32 {v(dst)}, {s(sT0)}, {v(dst)}")

    def p2(self):
        A = self.A
        self.slab_bases(f"s_lshl_b32 {s(sT0)}, {s(sKH)}, 15")
        A("v_mov_b32 v14, v5")
        self.wait_flags16(f"""s_add_u32 {s(sT0)}, {s(sG)}, {G_FLO:#x}""")
        A("v_mov_b32 v5, v14")
        self.ts("o_flags")
        A("s_cmp_lg_u32 s2, 0")
        A("s_cbranch_scc1 L_ep_skip")
        A(f"v_mov_b32 v12, {s(sTAG)}")
        A("v_mov_b32 v13, 0")
        A(f"buffer_store_dword v12, v13, {s(S_WS,4)}, 0 offen sc1")
        A("s_waitcnt vmcnt(0)")
        A.label("L_ep_skip")
        A(f"s_lshr_b32 {s(sT0)}, {s(sJ)}, 3")
        A(f"s_lshl_b32 {s(sT0)}, {s(sT0)}, 2")
        A(f"s_add_u32 {s(sT0)}, {s(sT0)}, {s(sM)}")
        A(f"s_lshl_b32 {s(sT0)}, {s(sT0)}, 14")
        A(f"s_lshl_b32 {s(sT1)}, {s(sKH)}, 13")
        A(f"s_add_u32 {s(sT0)}, {s(sT0)}, {s(sT1)}")
        A(f"s_add_u32 {s(sT0)}, {s(sT0)}, {s(sG)}")
        A(f"s_add_u32 {s(sT1)}, {s(sT0)}, 4096")
        A("v_lshlrev_b32 v8, 4, v1")
        for i in range(8):
            A(f"buffer_load_dwordx4 {a(48+4*i,4)}, v8, {s(S_WS,4)}, {s(sT0 if i < 4 else sT1)} offen offset:{(i&3)*1024} sc1")
        self.g64_step_reads(0, 0)
        for u in range(8):
            if u < 7:
                self.g64_step_reads((u + 1) & 1, (u + 1) * 4096)
            A(f"s_waitcnt vmcnt({7-u}) lgkmcnt({8 if u < 7 else 0})")
            for t in range(4):
                d = 32 + 4 * t
                A(f"v_mfma_f32_16x16x32_bf16 {v(d,4)}, {v(64+(u&1)*16+t*4,4)}, {a(48+4*u,4)}, {v(d,4) if u else 0}")
        self.g64_exchange(L_EX2)
        self.gu_dma_all([6, 8])
        self.mt_addr(10)
        for vec in range(3):
            for t in range(2):
                A(f"ds_read_b128 {v(64+8*vec+4*t,4)}, v10 offset:{vec*256 + t*64}")
        A("v_permlane16_swap_b32 v52, v54")
        A("v_permlane16_swap_b32 v53, v55")
        for i in range(4):
            A(f"v_lshlrev_b32 {v(16+2*i)}, 16, {v(52+i)}")
            A(f"v_and_b32 {v(17+2*i)}, {s(sMASK)}, {v(52+i)}")
        A("s_waitcnt lgkmcnt(0)")
        for i in range(8):
            A(f"v_add_f32 {v(32+i)}, {v(32+i)}, {v(40+i)}")
        for i in range(8):
            A(f"v_fmac_f32 {v(16+i)}, {v(32+i)}, {v(64+i)}")
        for i in range(4):
            A(f"v_cvt_pk_bf16_f32 {v(52+i)}, {v(16+2*i)}, {v(17+2*i)}")
        A("v_mov_b32 v24, 0\nv_mov_b32 v25, 0")
        for i in range(4):
            A(f"v_dot2c_f32_bf16 v24, {s(sONES)}, {v(52+i)}")
            A(f"v_dot2c_f32_bf16 v25, {v(52+i)}, {v(52+i)}")
        for i in range(4):
            A(f"v_lshlrev_b32 {v(16+2*i)}, 16, {v(52+i)}")
            A(f"v_and_b32 {v(17+2*i)}, {s(sMASK)}, {v(52+i)}")
        A("v_permlane32_swap_b32 v24, v25")
        A("v_add_f32 v24, v24, v25")
        A("v_mov_b32 v25, v24")
        A("v_permlane16_swap_b32 v24, v25")
        A("v_add_f32 v24, v24, v25")
        A("v_mov_b32 v25, v24")
        A("v_permlane32_swap_b32 v24, v25")
        A(f"v_mov_b32 v26, {s(sTAG)}")
        A(f"v_mov_b32 v27, {s(sTAG)}")
        A(f"s_lshr_b32 {s(sT0)}, {s(sJ)}, 3")
        A(f"s_lshl_b32 {s(sT0)}, {s(sT0)}, 2")
        A(f"s_add_u32 {s(sT0)}, {s(sT0)}, {s(sM)}")
        A(f"s_lshl_b32 {s(sT3)}, {s(sT0)}, 14")
        A(f"s_lshl_b32 {s(sT0)}, {s(sT0)}, 12")
        A(f"s_add_u32 {s(sT0)}, {s(sT0)}, {s(sG)}")
        A(f"s_add_u32 {s(sT0)}, {s(sT0)}, {G_ST:#x}")
        A(f"s_and_b32 {s(sT1)}, {s(sJ)}, 7")
        A(f"s_lshl_b32 {s(sT1)}, {s(sT1)}, 1")
        A(f"s_add_u32 {s(sT1)}, {s(sT1)}, {s(sKH)}")
        A(f"s_lshl_b32 {s(sT2)}, {s(sT1)}, 10")
        A(f"s_add_u32 {s(sT3)}, {s(sT3)}, {s(sT2)}")
        A(f"s_add_u32 {s(sT3)}, {s(sT3)}, {s(sG)}")
        A(f"s_add_u32 {s(sT3)}, {s(sT3)}, {G_H2:#x}")
        A(f"s_lshl_b32 {s(sT1)}, {s(sT1)}, 8")
        A(f"s_add_u32 {s(sT1)}, {s(sT1)}, {s(sT0)}")
        A("v_lshlrev_b32 v8, 4, v1")
        A("s_mov_b64 exec, 0xffff")
        A(f"buffer_store_dwordx4 v[24:27], v8, {s(S_WS,4)}, {s(sT1)} offen{self.st}")
        A("s_mov_b64 exec, -1")
        A(f"s_mov_b32 {s(sCNT)}, {SPIN}")
        A.label("L_st")
        for i in range(4):
            A(f"buffer_load_dwordx4 {v(88+4*i,4)}, v8, {s(S_WS,4)}, {s(sT0)} offen offset:{i*1024} sc1")
        A(f"s_sub_u32 {s(sCNT)}, {s(sCNT)}, 1")
        A("s_cbranch_scc1 L_std")
        A("s_waitcnt vmcnt(0)")
        for i in range(4):
            A(f"v_xor_b32 {v(28+i)}, {s(sTAG)}, {v(90+4*i)}")
        A("v_or3_b32 v28, v28, v29, v30")
        A("v_or_b32 v28, v28, v31")
        A("v_cmp_ne_u32 vcc, 0, v28")
        A("s_cbranch_vccnz L_st")
        A.label("L_std")
        A("s_waitcnt vmcnt(0)")
        A("v_add_f32 v24, v88, v92\nv_add_f32 v25, v89, v93\nv_add_f32 v26, v96, v100\nv_add_f32 v27, v97, v101")
        A("v_add_f32 v24, v24, v26\nv_add_f32 v25, v25, v27")
        A("v_permlane32_swap_b32 v24, v25")
        A("v_add_f32 v24, v24, v25")
        A("v_mov_b32 v25, v24")
        A("v_permlane16_swap_b32 v24, v25")
        A("v_add_f32 v24, v24, v25")
        A("v_mul_f32 v24, 0x3b000000, v24")
        A("v_mov_b32 v25, v24")
        A("v_permlane32_swap_b32 v24, v25")
        A("v_fma_f32 v25, -v24, v24, v25")
        A("v_max_f32 v25, 0, v25")
        A("v_add_f32 v25, 0x3727c5ac, v25")
        A("v_rsq_f32 v25, v25")
        A("v_mul_f32_e64 v24, -v24, v25")
        for i in range(8):
            A(f"v_fma_f32 {v(16+i)}, {v(16+i)}, v25, v24")
        for i in range(8):
            A(f"v_fma_f32 {v(16+i)}, {v(16+i)}, {v(80+i)}, {v(72+i)}")
        for i in range(4):
            A(f"v_cvt_pk_bf16_f32 {v(28+i)}, {v(16+2*i)}, {v(17+2*i)}")
        A(f"buffer_store_dwordx4 v[28:31], v8, {s(S_WS,4)}, {s(sT3)} offen{self.st}")
        self.publish_flag(f"""s_lshl_b32 {s(sT0)}, {s(sJ)}, 7
            s_add_u32 {s(sT0)}, {s(sT0)}, {s(sG)}
            s_add_u32 {s(sT0)}, {s(sT0)}, {G_FL2:#x}""", sc1=False)
        self.gu_dma(10)
        A("v_lshlrev_b32 v8, 4, v0")
        A(f"v_add_u32 v8, {L_X1}, v8")
        A("ds_write_b128 v8, v[52:55]")
        self.ts("h2_pub")

    def p3(self):
        A = self.A
        A("s_waitcnt vmcnt(0) lgkmcnt(0)")
        self.wait_flags16(f"""s_add_u32 {s(sT0)}, {s(sG)}, {G_FL2:#x}""")
        self.ts("h2_flags")
        A(f"s_cmp_eq_u32 {s(sJ)}, 15")
        A("s_cbranch_scc1 L_p3_done")
        A(f"s_cmp_lg_u32 {s(sKH)}, 0")
        A("s_cbranch_scc1 L_p3_helper")
        A(f"s_lshl_b32 {s(sT0)}, {s(sM)}, 15")
        A(f"s_add_u32 {s(sT0)}, {s(sT0)}, {s(sG)}")
        A(f"s_add_u32 {s(sT0)}, {s(sT0)}, {G_H2:#x}")
        A(f"s_add_u32 {s(sT1)}, {s(sT0)}, 16384")
        A("v_lshlrev_b32 v4, 4, v1")
        for u in range(16):
            for t in range(2):
                A(f"buffer_load_dwordx4 {a((u*2+t)*4,4)}, v4, {s(S_WS,4)}, {s(sT0+t)} offen offset:{(u&3)*1024} sc1")
            if (u & 3) == 3 and u < 15:
                A(f"s_add_u32 {s(sT0)}, {s(sT0)}, 4096")
                A(f"s_add_u32 {s(sT1)}, {s(sT1)}, 4096")
        A("v_lshrrev_b32 v5, 2, v1")
        A("v_mul_u32_u24 v5, 192, v5")
        A("v_and_b32 v6, 3, v1")
        A("v_lshl_add_u32 v5, v6, 3, v5")
        A("v_bfe_u32 v6, v1, 4, 1")
        A("v_lshlrev_b32 v6, 5, v6")
        A("v_add_u32 v2, v5, v6")
        A("v_sub_u32 v3, v5, v6")
        A("v_add_u32 v3, 32, v3")
        seq = [(u, f, mt) for u in range(16) for f in range(6) for mt in range(2)]
        cur = {"base": 0}

        def rd(idx):
            u, f, mt = seq[idx]
            addr = slot_addr(u) + mt * 6144 + (f & ~1) * 32
            if not (0 <= addr - cur["base"] and addr - cur["base"] + 3072 < 65536):
                nb = slot_addr(u)
                d = nb - cur["base"]
                for r in (2, 3):
                    if d >= 0:
                        A(f"v_add_u32 {v(r)}, {d}, {v(r)}")
                    else:
                        A(f"v_subrev_u32 {v(r)}, {-d}, {v(r)}")
                cur["base"] = nb
            o = addr - cur["base"]
            b = 8 + (idx % 6) * 4
            for hh in range(2):
                A(f"ds_read_b64_tr_b16 {v(b+hh*2,2)}, {v(2 + (f & 1))} offset:{o + hh*3072}")
        NPF = 5
        for i in range(NPF):
            rd(i)
        for idx, (u, f, mt) in enumerate(seq):
            if f == 0 and mt == 0:
                if u == 5:
                    self.bar()
                if u == 11:
                    self.bar()
            nxt = idx + NPF
            left = min(NPF - 1, len(seq) - 1 - idx)
            w = f"lgkmcnt({2*left})"
            if f == 0 and mt == 0:
                w = f"vmcnt({30-2*u}) " + w
            A(f"s_waitcnt {w}")
            b = 8 + (idx % 6) * 4
            for t in range(2):
                d = 32 + ((mt * 2 + t) * 6 + f) * 4
                A(f"v_mfma_f32_16x16x32_bf16 {v(d,4)}, {v(b,4)}, {a((u*2+t)*4,4)}, {v(d,4) if u else 0}")
            if nxt < len(seq):
                rd(nxt)
        self.bar()
        A(f"s_mul_i32 {s(sT0)}, {s(sM)}, {2*48*1024}")
        A(f"s_mul_i32 {s(sT1)}, {s(sJ)}, 3072")
        A(f"s_add_u32 {s(sT0)}, {s(sT0)}, {s(sT1)}")
        A(f"s_add_u32 {s(sT0)}, {s(sT0)}, {s(sG)}")
        A(f"s_add_u32 {s(sT0)}, {s(sT0)}, {G_HH:#x}")
        A(f"s_add_u32 {s(sT1)}, {s(sT0)}, {48*1024}")
        for t in range(2):
            for e in range(3):
                g0 = 32 + (t * 6 + 2 * e) * 4
                u0 = 32 + ((2 + t) * 6 + 2 * e) * 4
                for i in range(8):
                    A(f"v_max_f32 {v(g0+i)}, 0, {v(g0+i)}")
                for i in range(8):
                    A(f"v_mul_f32 {v(g0+i)}, {v(g0+i)}, {v(u0+i)}")
                o = 8 + (t * 3 + e) * 4
                for i in range(4):
                    A(f"v_cvt_pk_bf16_f32 {v(o+i)}, {v(g0+2*i)}, {v(g0+2*i+1)}")
                A(f"buffer_store_dwordx4 {v(o,4)}, v4, {s(S_WS,4)}, {s(sT0+t)} offen offset:{e*1024}{self.st}")
        A("s_branch L_p3_done")
        A.label("L_p3_helper")
        self.bar()
        for u in range(12, 16):
            self.gu_dma(u, per_wave_parity=False)
        A("s_waitcnt vmcnt(0)")
        self.bar()
        self.bar()
        A.label("L_p3_done")
        self.publish_flag(f"""s_lshl_b32 {s(sT0)}, {s(sJ)}, 7
            s_add_u32 {s(sT0)}, {s(sT0)}, {s(sG)}
            s_add_u32 {s(sT0)}, {s(sT0)}, {G_FL3:#x}""", sc1=False)
        self.ts("hh_pub")

    def p4(self):
        A = self.A
        self.slab_setup()
        self.slab_dma(S_WD, 0, 9, 0)
        self.slab_dma(S_WD, 22 * 4, 9, 73728)
        self.slab_bases(f"s_mul_i32 {s(sT0)}, {s(sKH)}, 73728")
        A("v_mov_b32 v14, v5")
        A("s_waitcnt vmcnt(0)")
        self.wait_flags16(f"""s_add_u32 {s(sT0)}, {s(sG)}, {G_FL3:#x}""")
        A("v_mov_b32 v5, v14")
        self.ts("hh_flags")
        A(f"s_lshr_b32 {s(sT0)}, {s(sJ)}, 3")
        A(f"s_lshl_b32 {s(sT0)}, {s(sT0)}, 2")
        A(f"s_add_u32 {s(sT0)}, {s(sT0)}, {s(sM)}")
        A(f"s_mul_i32 {s(sT0)}, {s(sT0)}, {48*1024}")
        A(f"s_mul_i32 {s(sT1)}, {s(sKH)}, {22*1024}")
        A(f"s_add_u32 {s(sT0)}, {s(sT0)}, {s(sT1)}")
        A(f"s_add_u32 {s(sT0)}, {s(sT0)}, {s(sG)}")
        A(f"s_add_u32 {s(sT0)}, {s(sT0)}, {G_HH:#x}")
        A("v_lshlrev_b32 v8, 4, v1")
        for i in range(22):
            A(f"buffer_load_dwordx4 {a(4*i,4)}, v8, {s(S_WS,4)}, {s(sT0)} offen offset:{(i&3)*1024} sc1")
            if (i & 3) == 3:
                A(f"s_add_u32 {s(sT0)}, {s(sT0)}, 4096")
        cur = {"base": 0}

        def reads(i):
            off = (i % 18) * 4096
            if not (0 <= off - cur["base"] < 61440):
                d = off - cur["base"]
                for r in range(2, 6):
                    if d >= 0:
                        A(f"v_add_u32 {v(r)}, {d}, {v(r)}")
                    else:
                        A(f"v_subrev_u32 {v(r)}, {-d}, {v(r)}")
                cur["base"] = off
            self.g64_step_reads(i & 1, off - cur["base"])
        reads(0)
        extra = 0
        for i in range(22):
            if i == 5:
                self.bar()
                self.slab_dma(S_WD, 18 * 4, 2, 0)
                self.slab_dma(S_WD, 40 * 4, 2, 73728)
                extra = 4
            if i == 17:
                A("s_waitcnt vmcnt(0)")
                self.bar()
                extra = 0
            if i == 21:
                A(f"s_cmp_lg_u32 {s(sKH)}, 0")
                A("s_cbranch_scc1 L_p4_lastskip")
            if i < 21:
                reads(i + 1)
            A(f"s_waitcnt vmcnt({21-i+extra if i < 17 else 0}) lgkmcnt({8 if i < 21 else 0})")
            for t in range(4):
                d = 32 + 4 * t
                A(f"v_mfma_f32_16x16x32_bf16 {v(d,4)}, {v(64+(i&1)*16+t*4,4)}, {a(4*i,4)}, {v(d,4) if i else 0}")
        A.label("L_p4_lastskip")
        A("s_waitcnt lgkmcnt(0)")
        self.g64_exchange(24576)
        self.mt_addr(10)
        for t in range(2):
            A(f"ds_read_b128 {v(64+4*t,4)}, v10 offset:{3*256 + t*64}")
        A("v_lshlrev_b32 v8, 4, v0")
        A(f"v_add_u32 v8, {L_X1}, v8")
        A("ds_read_b128 v[52:55], v8")
        self.rowmajor_addr(13)
        A("s_waitcnt lgkmcnt(0)")
        for i in range(4):
            A(f"v_lshlrev_b32 {v(16+2*i)}, 16, {v(52+i)}")
            A(f"v_and_b32 {v(17+2*i)}, {s(sMASK)}, {v(52+i)}")
        for i in range(8):
            A(f"v_add_f32 {v(32+i)}, {v(32+i)}, {v(40+i)}")
        for i in range(8):
            A(f"v_fmac_f32 {v(16+i)}, {v(32+i)}, {v(64+i)}")
        for i in range(4):
            A(f"v_cvt_pk_bf16_f32 {v(28+i)}, {v(16+2*i)}, {v(17+2*i)}")
        A("v_permlane16_swap_b32 v28, v30")
        A("v_permlane16_swap_b32 v29, v31")
        A(f"buffer_store_dwordx4 v[28:31], v13, {s(S_OUT,4)}, 0 offen")
        A("s_waitcnt vmcnt(0)")
        self.ts("end")

    def finish(self):
        A = self.A
        A.label("L_fin")
        if self.diag:
            A("s_waitcnt vmcnt(0) lgkmcnt(0)")
            A(f"s_cmp_lg_u32 {s(sW)}, 0")
            A("s_cbranch_scc1 L_end")
            A(f"s_lshl_b32 {s(sT0)}, s2, 7")
            A(f"s_add_u32 {s(sT0)}, {s(sT0)}, {WS_TS:#x}")
            A("s_mov_b64 exec, 1")
            A("v_mov_b32 v6, 0")
            A(f"v_mov_b32 v8, {s(sRT)}")
            A(f"buffer_store_dword v8, v6, {s(S_WS,4)}, {s(sT0)} offen offset:124")
            for i in range(self.nts):
                A(f"v_mov_b32 {v(10+i)}, {s(sTS+2*i)}")
                A(f"buffer_store_dword {v(10+i)}, v6, {s(S_WS,4)}, {s(sT0)} offen offset:{4*i}")
            A("s_waitcnt vmcnt(0)")
        A.label("L_end")
        A("s_endpgm")

    def build(self):
        self.prologue()
        self.p0_issue()
        self.x_dma()
        self.p0_compute()
        self.p1()
        self.p2()
        self.p3()
        self.p4()
        self.finish()
        hdr = open("header.txt").read()
        return (hdr + "; @launch grid=(256,1,1) block=(512,1,1) lds=163840\n"
                + '.amdgcn_target "amdgcn-amd-amdhsa--gfx950"\n.text\n'
                + f".globl {KNAME}\n.p2align 8\n.type {KNAME},@function\n{KNAME}:\n"
                + self.A.text()
                + f"""
.section .rodata,"a"
.p2align 6
.amdhsa_kernel {KNAME}
  .amdhsa_next_free_vgpr 256
  .amdhsa_next_free_sgpr 102
  .amdhsa_accum_offset 128
  .amdhsa_group_segment_fixed_size 0
  .amdhsa_kernarg_size 104
  .amdhsa_user_sgpr_count 2
  .amdhsa_user_sgpr_kernarg_segment_ptr 1
  .amdhsa_system_sgpr_workgroup_id_x 1
.end_amdhsa_kernel
""")


if __name__ == "__main__":
    import argparse
    ap = argparse.ArgumentParser()
    ap.add_argument("-o", default="k1.s")
    ap.add_argument("--diag", action="store_true")
    ap.add_argument("--stop", default=None)
    ap.add_argument("--fast", action="store_true")
    args = ap.parse_args()
    g = Gen(diag=args.diag, stop=args.stop, sc1=not args.fast)
    t = g.build()
    open(args.o, "w").write(t)
    if args.diag:
        open(args.o + ".ts", "w").write("\n".join(g.tsnames))
    print("written", args.o, len(t.splitlines()), "lines")
```

```python
import sys
sys.path.insert(0, "gen")
from asmlib import *

KNAME = "adaLN_cond__linear_kernel_hedgehog__glu_gated_reglu__prompt_kernel"

WS_EPOCH = 0x0
WS_FL1 = 0x8000
WS_MOD = 0x10000
WS_KVP = 0x20000
KVP_STRIDE = 4608
WS_G0 = 0x200000
G_O, G_H2, G_HH, G_ST, G_FLO, G_FL2, G_FL3 = 0x0, 0x20000, 0x40000, 0xA0000, 0xB0000, 0xB0800, 0xB1000
WS_TS = 0x1400000
L_WK, L_WV, L_WQ, L_XS = 0, 32768, 65536, 32768
L_TAB, L_STX, L_EXC, L_KVR, L_MT = 98304, 102400, 106496, 139264, 162816
L_KVF = 139264
L_EX2 = 143360
L_X1 = 151552


def slot_addr(i):
    i %= 12
    if i < 6:
        return 65536 + i * 12288
    if i < 11:
        return (i - 6) * 12288
    return 139264


S_X, S_W, S_WS, S_WM, S_C, S_PHI, S_WO, S_WG, S_WU, S_WD, S_OUT, S_GU = 4, 8, 12, 16, 20, 24, 28, 32, 36, 40, 44, 48
sW, sM, sKH, sRB, sJ, sTAG, sG = 52, 53, 54, 55, 56, 57, 58
sT0, sT1, sT2, sT3, sCNT, sL2E, sMASK, sONES = 59, 60, 61, 62, 63, 64, 65, 66
sGUS, sGUL = 67, 3
sEX = 68
sRT = 70
sTS = 72
SPIN = 0x40000


class Gen:
    def __init__(self, diag=False, stop=None, sc1=True):
        self.A = Asm()
        self.diag = diag
        self.nts = 0
        self.tsnames = []
        self.stop = stop
        self.st = " sc1" if sc1 else ""

    def ts(self, name):
        if self.diag:
            assert self.nts < 15
            self.A(f"s_memtime {s(sTS + 2*self.nts, 2)}\ns_waitcnt lgkmcnt(0)")
            self.nts += 1
            self.tsnames.append(name)
        if self.stop == name:
            self.A("s_branch L_fin")

    def bar(self):
        self.A("s_barrier")

    def red4(self, op, a0, b0, a1, b1):
        A = self.A
        A(f"v_permlane32_swap_b32 {v(a0)}, {v(b0)}")
        A(f"v_permlane32_swap_b32 {v(a1)}, {v(b1)}")
        A(f"{op} {v(a0)}, {v(a0)}, {v(b0)}")
        A(f"{op} {v(a1)}, {v(a1)}, {v(b1)}")
        A(f"v_permlane16_swap_b32 {v(a0)}, {v(a1)}")
        A(f"{op} {v(a0)}, {v(a0)}, {v(a1)}")

    def bcast4(self, a0, b0, a1, b1):
        A = self.A
        A(f"v_mov_b32 {v(a1)}, {v(a0)}")
        A(f"v_permlane16_swap_b32 {v(a0)}, {v(a1)}")
        A(f"v_mov_b32 {v(b0)}, {v(a0)}")
        A(f"v_mov_b32 {v(b1)}, {v(a1)}")
        A(f"v_permlane32_swap_b32 {v(a0)}, {v(b0)}")
        A(f"v_permlane32_swap_b32 {v(a1)}, {v(b1)}")

    def softmax2(self, X, EP, EN, T, P):
        A = self.A
        a0, b0, a1, b1 = T, T + 1, T + 2, T + 3
        for t, (aa, bb) in enumerate(((a0, b0), (a1, b1))):
            x = X + 4 * t
            A(f"v_max3_f32 {v(aa)}, {v(x)}, {v(x+1)}, {v(x+2)}")
            A(f"v_max3_f32 {v(bb)}, -{v(x)}, -{v(x+1)}, -{v(x+2)}")
            A(f"v_max_f32 {v(aa)}, {v(aa)}, {v(x+3)}")
            A(f"v_max_f32_e64 {v(bb)}, {v(bb)}, -{v(x+3)}")
        self.red4("v_max_f32", a0, b0, a1, b1)
        A(f"v_mul_f32 {v(a0)}, {s(sL2E)}, {v(a0)}")
        self.bcast4(a0, b0, a1, b1)
        for t, (aa, bb) in enumerate(((a0, b0), (a1, b1))):
            for r in range(4):
                A(f"v_fma_f32 {v(EP+4*t+r)}, {v(X+4*t+r)}, {s(sL2E)}, -{v(aa)}")
                A(f"v_fma_f32 {v(EN+4*t+r)}, -{v(X+4*t+r)}, {s(sL2E)}, -{v(bb)}")
        for i in range(8):
            A(f"v_exp_f32 {v(EP+i)}, {v(EP+i)}")
            A(f"v_exp_f32 {v(EN+i)}, {v(EN+i)}")
        for t, (aa, bb) in enumerate(((a0, b0), (a1, b1))):
            e, n = EP + 4 * t, EN + 4 * t
            A(f"v_add_f32 {v(aa)}, {v(e)}, {v(e+1)}")
            A(f"v_add_f32 {v(bb)}, {v(n)}, {v(n+1)}")
            A(f"v_add_f32 {v(T+4)}, {v(e+2)}, {v(e+3)}")
            A(f"v_add_f32 {v(T+5)}, {v(n+2)}, {v(n+3)}")
            A(f"v_add_f32 {v(aa)}, {v(aa)}, {v(T+4)}")
            A(f"v_add_f32 {v(bb)}, {v(bb)}, {v(T+5)}")
        self.red4("v_add_f32", a0, b0, a1, b1)
        A(f"v_rcp_f32 {v(a0)}, {v(a0)}")
        self.bcast4(a0, b0, a1, b1)
        for t, (aa, bb) in enumerate(((a0, b0), (a1, b1))):
            for r in range(4):
                A(f"v_mul_f32 {v(EP+4*t+r)}, {v(EP+4*t+r)}, {v(aa)}")
                A(f"v_mul_f32 {v(EN+4*t+r)}, {v(EN+4*t+r)}, {v(bb)}")
        for t in range(2):
            for h in range(2):
                A(f"v_cvt_pk_bf16_f32 {v(P+4*t+h)}, {v(EP+4*t+2*h)}, {v(EP+4*t+2*h+1)}")
                A(f"v_cvt_pk_bf16_f32 {v(P+4*t+2+h)}, {v(EN+4*t+2*h)}, {v(EN+4*t+2*h+1)}")

    def publish_flag(self, soff_expr_code, sc1=True):
        A = self.A
        L = A.uniq("L_pub")
        A("s_waitcnt vmcnt(0)")
        self.bar()
        A(f"s_cmp_lg_u32 {s(sW)}, 0")
        A(f"s_cbranch_scc1 {L}")
        A(soff_expr_code)
        A(f"v_mov_b32 v5, {s(sTAG)}")
        A("v_mov_b32 v6, 0")
        A("s_mov_b64 exec, 1")
        A(f"buffer_store_dword v5, v6, {s(S_WS,4)}, {s(sT0)} offen" + (" sc1" if sc1 else self.st))
        A("s_mov_b64 exec, -1")
        A.label(L)

    def wait_flags16(self, soff_expr_code):
        A = self.A
        L, Lp, Ld = A.uniq("L_wf"), A.uniq("L_poll"), A.uniq("L_pd")
        A(f"s_cmp_lg_u32 {s(sW)}, 0")
        A(f"s_cbranch_scc1 {L}")
        A(soff_expr_code)
        A("v_and_b32 v5, 15, v0")
        A("v_lshlrev_b32 v5, 7, v5")
        A(f"s_mov_b32 {s(sCNT)}, {SPIN}")
        A.label(Lp)
        A(f"buffer_load_dword v6, v5, {s(S_WS,4)}, {s(sT0)} offen sc1")
        A(f"s_sub_u32 {s(sCNT)}, {s(sCNT)}, 1")
        A(f"s_cbranch_scc1 {Ld}")
        A("s_waitcnt vmcnt(0)")
        A(f"v_cmp_ne_u32 vcc, {s(sTAG)}, v6")
        A(f"s_cbranch_vccnz {Lp}")
        A.label(Ld)
        A("s_waitcnt vmcnt(0)")
        A.label(L)
        self.bar()

    def prologue(self):
        A = self.A
        A("s_cmp_ge_u32 s2, 256")
        A("s_cbranch_scc1 L_end")
        if self.diag:
            A(f"s_memrealtime {s(sRT,2)}")
        self.ts("start")
        for r, off in ((S_WS, 96), (S_C, 64), (S_WM, 72), (S_X, 0), (S_W, 8), (S_PHI, 16), (S_WO, 24), (S_WG, 40), (S_WU, 48), (S_WD, 56), (S_OUT, 80)):
            A(f"s_load_dwordx2 {s(r,2)}, s[0:1], {off}")
        sizes = {S_WS: 0x10000000, S_C: 1024, S_WM: 512*6144, S_X: 2048*1024, S_W: 512*3072, S_PHI: 32*512, S_WO: 512*1024,
                 S_WG: 512*2752, S_WU: 512*2752, S_WD: 1376*1024, S_OUT: 2048*1024, S_GU: 512*2752}
        A("v_lshrrev_b32 v2, 6, v0")
        A("v_and_b32 v1, 63, v0")
        A(f"v_readfirstlane_b32 {s(sW)}, v2")
        for r, sz in sizes.items():
            A(f"s_mov_b32 {s(r+2)}, {sz:#x}")
            A(f"s_mov_b32 {s(r+3)}, 0x20000")
        A(f"s_and_b32 {s(sM)}, {s(sW)}, 3")
        A(f"s_lshr_b32 {s(sKH)}, {s(sW)}, 2")
        A(f"s_and_b32 {s(sRB)}, s2, 7")
        A(f"s_lshl_b32 {s(sRB)}, {s(sRB)}, 1")
        A(f"s_lshr_b32 {s(sT0)}, s2, 7")
        A(f"s_add_u32 {s(sRB)}, {s(sRB)}, {s(sT0)}")
        A(f"s_bfe_u32 {s(sJ)}, s2, 0x40003")
        A(f"s_lshl_b32 {s(sG)}, {s(sRB)}, 20")
        A(f"s_add_u32 {s(sG)}, {s(sG)}, {WS_G0:#x}")
        A(f"s_mov_b32 {s(sL2E)}, 0x3fb8aa3b")
        A(f"s_mov_b32 {s(sMASK)}, 0xffff0000")
        A(f"s_mov_b32 {s(sONES)}, 0x3f803f80")
        A("v_mov_b32 v7, 0")
        A("s_waitcnt lgkmcnt(0)")
        A(f"buffer_load_dword v126, v7, {s(S_WS,4)}, 0 offen sc1")
        A(f"s_bitcmp1_b32 {s(sW)}, 0")
        A(f"s_cselect_b32 {s(S_GU)}, {s(S_WU)}, {s(S_WG)}")
        A(f"s_cselect_b32 {s(S_GU+1)}, {s(S_WU+1)}, {s(S_WG+1)}")

    def p0_issue(self):
        A = self.A
        A("s_cmp_ge_u32 s2, 48")
        A("s_cbranch_scc1 L_p0a_skip")
        A("v_lshrrev_b32 v2, 3, v1")
        A("v_lshlrev_b32 v3, 4, v2")
        A(f"s_lshl_b32 {s(sT0)}, {s(sW)}, 7")
        A(f"buffer_load_dwordx4 v[8:11], v3, {s(S_C,4)}, {s(sT0)} offen")
        A("v_mul_u32_u24 v2, 49152, v2")
        A("v_and_b32 v3, 7, v1")
        A("v_lshl_add_u32 v2, v3, 4, v2")
        A(f"s_mul_i32 {s(sT0)}, {s(sW)}, {64*6144}")
        A(f"s_lshl_b32 {s(sT1)}, s2, 7")
        A(f"s_add_u32 {s(sT0)}, {s(sT0)}, {s(sT1)}")
        for i in range(8):
            A(f"buffer_load_dwordx4 {v(32+4*i,4)}, v2, {s(S_WM,4)}, {s(sT0)} offen")
            if i < 7:
                A(f"s_add_u32 {s(sT0)}, {s(sT0)}, 6144")
        A.label("L_p0a_skip")

    def x_dma(self):
        A = self.A
        A(f"v_xor_b32 v2, {s(sW)}, v1")
        A(f"s_lshl_b32 {s(sT0)}, {s(sRB)}, 17")
        A(f"s_lshl_b32 {s(sT1)}, {s(sW)}, 10")
        A(f"s_add_u32 {s(sT0)}, {s(sT0)}, {s(sT1)}")
        A(f"v_lshl_add_u32 v2, v2, 4, {s(sT0)}")
        A("v_xor_b32 v3, 0x80, v2")
        A(f"s_add_u32 {s(sT1)}, {s(sT1)}, {L_XS}")
        A(f"s_lshr_b32 {s(sT0)}, {s(sJ)}, 1")
        A(f"s_lshl_b32 {s(sT0)}, {s(sT0)}, 14")
        A(f"s_mov_b32 {s(sCNT)}, 8")
        A.label("L_xdma")
        A(f"s_add_u32 m0, {s(sT0)}, {s(sT1)}")
        A(f"s_add_u32 {s(sT2)}, {s(sT0)}, 8192")
        A(f"buffer_load_dwordx4 v2, {s(S_X,4)}, {s(sT0)} offen lds")
        A(f"s_add_u32 m0, {s(sT2)}, {s(sT1)}")
        A(f"s_add_u32 {s(sT0)}, {s(sT0)}, 16384")
        A(f"buffer_load_dwordx4 v3, {s(S_X,4)}, {s(sT2)} offen lds")
        A(f"s_and_b32 {s(sT0)}, {s(sT0)}, 0x1ffff")
        A(f"s_sub_u32 {s(sCNT)}, {s(sCNT)}, 1")
        A(f"s_cmp_lg_u32 {s(sCNT)}, 0")
        A("s_cbranch_scc1 L_xdma")

    def p0_compute(self):
        A = self.A
        A("s_cmp_ge_u32 s2, 48")
        A("s_cbranch_scc1 L_p0b_skip")
        A("s_waitcnt vmcnt(24)")
        A(f"v_readfirstlane_b32 {s(sTAG)}, v126")
        for i in range(4):
            A(f"v_lshlrev_b32 {v(16+2*i)}, 16, {v(8+i)}")
            A(f"v_and_b32 {v(17+2*i)}, {s(sMASK)}, {v(8+i)}")
        for i in range(8):
            A(f"v_mul_f32 {v(24+i)}, {s(sL2E)}, {v(16+i)}")
        for i in range(8):
            A(f"v_exp_f32_e64 {v(24+i)}, -{v(24+i)}")
        for i in range(8):
            A(f"v_add_f32 {v(24+i)}, 1.0, {v(24+i)}")
        for i in range(8):
            A(f"v_rcp_f32 {v(24+i)}, {v(24+i)}")
        for i in range(8):
            A(f"v_mul_f32 {v(16+i)}, {v(16+i)}, {v(24+i)}")
        for i in range(4):
            A(f"v_cvt_pk_bf16_f32 {v(8+i)}, {v(16+2*i)}, {v(17+2*i)}")
        for i in range(4):
            A(f"v_lshlrev_b32 {v(16+2*i)}, 16, {v(8+i)}")
            A(f"v_and_b32 {v(17+2*i)}, {s(sMASK)}, {v(8+i)}")
        A(f"s_add_u32 {s(sTAG)}, {s(sTAG)}, 1")
        for i in range(8):
            A(f"s_waitcnt vmcnt({16+7-i})")
            for q in range(4):
                A(f"v_lshlrev_b32 {v(8+2*q)}, 16, {v(32+4*i+q)}")
                A(f"v_and_b32 {v(9+2*q)}, {s(sMASK)}, {v(32+4*i+q)}")
            for c in range(8):
                if i == 0:
                    A(f"v_mul_f32 {v(24+c)}, {v(16+i)}, {v(8+c)}")
                else:
                    A(f"v_fmac_f32 {v(24+c)}, {v(16+i)}, {v(8+c)}")
        for c in range(4):
            A(f"v_permlane32_swap_b32 {v(24+c)}, {v(28+c)}")
        for c in range(4):
            A(f"v_add_f32 {v(24+c)}, {v(24+c)}, {v(28+c)}")
        for c in range(2):
            A(f"v_permlane16_swap_b32 {v(24+c)}, {v(26+c)}")
        for c in range(2):
            A(f"v_add_f32 {v(24+c)}, {v(24+c)}, {v(26+c)}")
        for c in range(2):
            A(f"v_add_f32_dpp {v(26+c)}, {v(24+c)}, {v(24+c)} row_ror:8 row_mask:0xf bank_mask:0xf")
        A("v_and_b32 v4, 7, v1")
        A("v_lshlrev_b32 v4, 5, v4")
        A("v_lshrrev_b32 v5, 4, v1")
        A("v_lshl_add_u32 v4, v5, 3, v4")
        A(f"s_lshl_b32 {s(sT0)}, {s(sW)}, 8")
        A(f"v_add_u32 v4, {s(sT0)}, v4")
        A(f"ds_write_b64 v4, v[26:27] offset:{L_WK}")
        A("s_waitcnt lgkmcnt(0)")
        self.bar()
        A(f"s_cmp_lg_u32 {s(sW)}, 0")
        A("s_cbranch_scc1 L_p0c_skip")
        A("v_lshlrev_b32 v4, 2, v1")
        for i in range(4):
            A(f"ds_read2st64_b32 {v(8+2*i,2)}, v4 offset0:{2*i} offset1:{2*i+1}")
        A("s_waitcnt lgkmcnt(0)")
        for i in range(4):
            A(f"v_add_f32 {v(8+i)}, {v(8+i)}, {v(12+i)}")
        A("v_add_f32 v8, v8, v9\nv_add_f32 v10, v10, v11\nv_add_f32 v8, v8, v10")
        A("v_cvt_pk_bf16_f32 v8, v8, v8")
        A(f"v_and_b32 v8, {s(sMASK)}, v8")
        A(f"v_mov_b32 v9, {s(sTAG)}")
        A("v_lshlrev_b32 v4, 3, v1")
        A(f"s_lshl_b32 {s(sT0)}, s2, 9")
        A(f"s_add_u32 {s(sT0)}, {s(sT0)}, {WS_MOD:#x}")
        A(f"buffer_store_dwordx2 v[8:9], v4, {s(S_WS,4)}, {s(sT0)} offen sc1")
        A.label("L_p0c_skip")
        self.bar()
        A.label("L_p0b_skip")

    def w_dma(self, mat, lbase):
        A = self.A
        A(f"s_mul_i32 {s(sT0)}, {s(sW)}, 49152")
        A(f"s_lshl_b32 {s(sT1)}, {s(sJ)}, 6")
        A(f"s_add_u32 {s(sT0)}, {s(sT0)}, {s(sT1)}")
        if mat:
            A(f"s_add_u32 {s(sT0)}, {s(sT0)}, {mat*1024}")
        A(f"s_lshl_b32 {s(sT1)}, {s(sW)}, 10")
        for i in range(4):
            A(f"s_add_u32 m0, {s(sT1)}, {lbase + i*8192}")
            if i:
                A(f"s_add_u32 {s(sT0)}, {s(sT0)}, {8*49152}")
            A(f"buffer_load_dwordx4 v7, {s(S_W,4)}, {s(sT0)} offen lds")

    def p1(self):
        A = self.A
        AF = lambda t, u: 64 + (u * 2 + t) * 4
        A("v_lshrrev_b32 v2, 2, v1")
        A("v_mul_u32_u24 v2, 3072, v2")
        A("v_lshrrev_b32 v3, 5, v1")
        A("v_lshlrev_b32 v3, 1, v3")
        A("v_and_b32 v4, 3, v1")
        A("v_xor_b32 v3, v3, v4")
        A("v_lshl_add_u32 v7, v3, 4, v2")
        self.w_dma(1, L_WK)
        A("v_lshrrev_b32 v8, 4, v1")
        A("v_and_b32 v9, 15, v1")
        A("v_xor_b32 v2, v8, v9")
        A("v_lshlrev_b32 v2, 4, v2")
        A("v_lshl_add_u32 v2, v9, 10, v2")
        A(f"s_lshl_b32 {s(sT0)}, {s(sM)}, 15")
        A(f"s_mul_i32 {s(sT1)}, {s(sKH)}, {512 + 16384}")
        A(f"s_add_u32 {s(sT0)}, {s(sT0)}, {s(sT1)}")
        A(f"s_add_u32 {s(sT0)}, {s(sT0)}, {L_XS}")
        A(f"v_add_u32 v2, {s(sT0)}, v2")
        for q in range(1, 4):
            A(f"v_xor_b32 {v(2+q)}, {64*q}, v2")
        for q in range(4):
            A(f"v_xor_b32 {v(10+q)}, 0x4000, {v(2+q)}")
        A("s_waitcnt vmcnt(4)")
        A(f"v_readfirstlane_b32 {s(sTAG)}, v126")
        self.bar()
        self.ts("x_landed")
        A(f"s_add_u32 {s(sTAG)}, {s(sTAG)}, 1")
        for u in range(8):
            for t in range(2):
                A(f"ds_read_b128 {v(AF(t,u),4)}, {v((2 if t == 0 else 10) + (u & 3))} offset:{(u >> 2)*256}")
        A("s_waitcnt lgkmcnt(0)")
        self.bar()
        self.w_dma(2, L_WV)
        A("v_lshlrev_b32 v2, 7, v8")
        A("v_lshl_add_u32 v2, v9, 1, v2")
        A(f"s_lshl_b32 {s(sT0)}, {s(sJ)}, 10")
        A(f"s_lshl_b32 {s(sT1)}, {s(sKH)}, 9")
        A(f"s_add_u32 {s(sT1)}, {s(sT1)}, {s(sT0)}")
        for h in range(2):
            for jj in range(4):
                A(f"buffer_load_ushort {v(40+4*h+jj)}, v2, {s(S_PHI,4)}, {s(sT0)} offen offset:{h*512+jj*32}")
        for jj in range(4):
            A(f"buffer_load_ushort {v(48+jj)}, v2, {s(S_PHI,4)}, {s(sT1)} offen offset:{jj*32}")
        for i in range(4):
            A(f"v_mov_b32 {v(16+i)}, 0")
        for u in range(8):
            for q in range(4):
                for t in range(2):
                    r = AF(t, u) + q
                    A(f"v_dot2c_f32_bf16 {v(16+2*t)}, {s(sONES)}, {v(r)}")
                    A(f"v_dot2c_f32_bf16 {v(17+2*t)}, {v(r)}, {v(r)}")
        self.red4("v_add_f32", 16, 17, 18, 19)
        A("v_lshlrev_b32 v2, 2, v0")
        A(f"v_add_u32 v2, {L_STX}, v2")
        A("ds_write_b32 v2, v16")
        A(f"v_xor_b32 v2, {1024 + 64}, v2")
        A("s_waitcnt lgkmcnt(0)")
        self.bar()
        A("ds_read_b32 v17, v2")
        A("s_waitcnt lgkmcnt(0)")
        A("v_add_f32 v16, v16, v17")
        A("v_mul_f32 v16, 0x3b000000, v16")
        self.bcast4(16, 17, 18, 19)
        for t in range(2):
            m_, e_ = 16 + 2 * t, 17 + 2 * t
            A(f"v_fma_f32 {v(e_)}, -{v(m_)}, {v(m_)}, {v(e_)}")
            A(f"v_max_f32 {v(e_)}, 0, {v(e_)}")
            A(f"v_add_f32 {v(e_)}, 0x3727c5ac, {v(e_)}")
            A(f"v_rsq_f32 {v(e_)}, {v(e_)}")
            A(f"v_mul_f32_e64 {v(m_)}, -{v(m_)}, {v(e_)}")
        for u in range(8):
            for q in range(4):
                r0, r1 = AF(0, u) + q, AF(1, u) + q
                A(f"v_lshlrev_b32 v20, 16, {v(r0)}")
                A(f"v_and_b32 v21, {s(sMASK)}, {v(r0)}")
                A(f"v_lshlrev_b32 v22, 16, {v(r1)}")
                A(f"v_and_b32 v23, {s(sMASK)}, {v(r1)}")
                A(f"v_fma_mixlo_f16 {v(r0)}, v20, v17, v16")
                A(f"v_fma_mixlo_f16 {v(r1)}, v22, v19, v18")
                A(f"v_fma_mixhi_f16 {v(r0)}, v21, v17, v16")
                A(f"v_fma_mixhi_f16 {v(r1)}, v23, v19, v18")
        self.ts("normed")
        A("v_lshlrev_b32 v2, 3, v0")
        A(f"s_and_b32 {s(sT0)}, {s(sJ)}, 7")
        A(f"s_lshl_b32 {s(sT0)}, {s(sT0)}, 9")
        A(f"s_lshl_b32 {s(sT1)}, {s(sM)}, 12")
        A(f"s_add_u32 {s(sT0)}, {s(sT0)}, {s(sT1)}")
        A(f"s_add_u32 {s(sT0)}, {s(sT0)}, {WS_MOD + 8192:#x}")
        A("v_lshlrev_b32 v3, 3, v1")
        A(f"s_mov_b32 {s(sT1)}, {WS_MOD:#x}")
        A(f"s_mov_b32 {s(sT2)}, {WS_MOD + 4096:#x}")
        A(f"s_mov_b32 {s(sCNT)}, {SPIN}")
        A.label("L_s0")
        A(f"buffer_load_dwordx2 v[20:21], v2, {s(S_WS,4)}, {s(sT1)} offen sc1")
        A(f"buffer_load_dwordx2 v[22:23], v2, {s(S_WS,4)}, {s(sT2)} offen sc1")
        A(f"buffer_load_dwordx2 v[24:25], v3, {s(S_WS,4)}, {s(sT0)} offen sc1")
        A(f"s_sub_u32 {s(sCNT)}, {s(sCNT)}, 1")
        A("s_cbranch_scc1 L_s0d")
        A("s_waitcnt vmcnt(0)")
        A(f"v_xor_b32 v21, {s(sTAG)}, v21")
        A(f"v_xor_b32 v23, {s(sTAG)}, v23")
        A(f"v_xor_b32 v25, {s(sTAG)}, v25")
        A("v_or3_b32 v21, v21, v23, v25")
        A("v_cmp_ne_u32 vcc, 0, v21")
        A("s_cbranch_vccnz L_s0")
        A.label("L_s0d")
        A("s_waitcnt vmcnt(0)")
        self.w_dma(0, L_WQ)
        A("v_add_f32 v22, 1.0, v22")
        A(f"s_cmp_eq_u32 {s(sM)}, 2")
        A(f"s_cselect_b32 {s(sT0)}, 1.0, 0")
        A(f"v_add_f32 v24, {s(sT0)}, v24")
        A("v_cvt_pk_bf16_f32 v22, v22, v24")
        A(f"v_and_b32 v24, {s(sMASK)}, v22")
        A("v_lshlrev_b32 v22, 16, v22")
        A("v_lshrrev_b32 v2, 3, v0")
        A("v_lshlrev_b32 v2, 6, v2")
        A("v_and_b32 v3, 7, v0")
        A("v_lshl_add_u32 v2, v3, 2, v2")
        A(f"v_add_u32 v2, {L_TAB}, v2")
        A("ds_write2_b32 v2, v22, v20 offset0:0 offset1:8")
        A("v_and_b32 v3, 255, v0")
        A("v_lshlrev_b32 v3, 2, v3")
        A(f"v_add_u32 v3, {L_MT}, v3")
        A("ds_write_b32 v3, v24")
        for i in range(6):
            A(f"v_lshl_or_b32 {v(40+2*i)}, {v(41+2*i)}, 16, {v(40+2*i)}")
        for i in range(6):
            A(f"v_accvgpr_write_b32 {a(32+i)}, {v(40+2*i)}")
        A("v_lshlrev_b32 v20, 2, v8")
        A("v_sub_u32 v20, v9, v20")
        A("v_mov_b32 v21, 0x3f80")
        A("v_mov_b32 v22, 0x3f800000")
        for reg in range(2):
            A(f"v_cmp_eq_u32 vcc, {2*reg}, v20")
            A("v_cndmask_b32 v23, 0, v21, vcc")
            A(f"v_cmp_eq_u32 vcc, {2*reg+1}, v20")
            A("v_cndmask_b32 v23, v23, v22, vcc")
            A(f"v_accvgpr_write_b32 {a(38+reg)}, v23")
        A(f"v_mov_b32 v23, {s(sONES)}")
        for i in range(4):
            A(f"v_accvgpr_write_b32 {a(40+i)}, v23")
        A("v_lshrrev_b32 v20, 2, v9")
        A("v_lshl_add_u32 v20, v8, 3, v20")
        A("v_lshlrev_b32 v20, 6, v20")
        A("v_and_b32 v21, 3, v1")
        A("v_lshl_add_u32 v20, v21, 3, v20")
        A("v_and_b32 v21, 1, v8")
        A(f"v_xor_b32 v21, {s(sKH)}, v21")
        A("v_lshl_add_u32 v20, v21, 5, v20")
        A(f"s_lshl_b32 {s(sT0)}, {s(sKH)}, 14")
        A(f"v_add_u32 v2, {s(sT0)}, v20")
        A("v_xor_b32 v3, 32, v2")
        A(f"s_lshl_b32 {s(sT0)}, {s(sKH)}, 11")
        A(f"s_add_u32 {s(sT0)}, {s(sT0)}, {L_TAB}")
        A(f"v_lshl_add_u32 v4, v8, 6, {s(sT0)}")
        A("s_waitcnt lgkmcnt(0)")
        self.bar()
        self.ts("s0_done")

        def rd_tab(u):
            for i in range(4):
                A(f"ds_read_b128 {v(16+4*i,4)}, v4 offset:{u*256 + i*16}")

        def rd_b(u):
            p = (u & 1) * 16
            for mi, base in enumerate((L_WK, L_WV)):
                for h in range(2):
                    for hh in range(2):
                        A(f"ds_read_b64_tr_b16 {a(p + (mi*2+h)*4 + hh*2, 2)}, {v(2+h)} offset:{base + u*2048 + hh*256}")
        rd_tab(0)
        rd_b(0)
        for u in range(8):
            A("s_waitcnt lgkmcnt(8)")
            for q in range(4):
                for t in range(2):
                    r = AF(t, u) + q
                    A(f"v_fma_mix_f32 {v(8+2*t)}, {v(r)}, {v(16+2*q)}, {v(24+2*q)} op_sel:[0,0,0] op_sel_hi:[1,0,0]")
                    A(f"v_fma_mix_f32 {v(9+2*t)}, {v(r)}, {v(17+2*q)}, {v(25+2*q)} op_sel:[1,0,0] op_sel_hi:[1,0,0]")
                for t in range(2):
                    A(f"v_cvt_pk_bf16_f32 {v(AF(t,u)+q)}, {v(8+2*t)}, {v(9+2*t)}")
            if u < 7:
                rd_tab(u + 1)
                rd_b(u + 1)
                A("s_waitcnt lgkmcnt(12)")
            else:
                A("s_waitcnt lgkmcnt(0)")
            p = (u & 1) * 16
            for h in range(2):
                for t in range(2):
                    d = 32 + (h * 2 + t) * 4
                    A(f"v_mfma_f32_16x16x32_bf16 {v(d,4)}, {a(p+h*4,4)}, {v(AF(t,u),4)}, {v(d,4) if u else 0}")
            for h in range(2):
                for t in range(2):
                    d = 48 + (h * 2 + t) * 4
                    A(f"v_mfma_f32_16x16x32_bf16 {v(d,4)}, {v(AF(t,u),4)}, {a(p+8+h*4,4)}, {v(d,4) if u else 0}")
        A(f"s_lshl_b32 {s(sT0)}, {s(sW)}, 12")
        A(f"s_add_u32 {s(sT0)}, {s(sT0)}, {L_EXC}")
        A(f"v_lshl_add_u32 v5, v1, 4, {s(sT0)}")
        A(f"s_xor_b32 {s(sT1)}, {s(sW)}, 4")
        A(f"s_lshl_b32 {s(sT1)}, {s(sT1)}, 12")
        A(f"s_add_u32 {s(sT1)}, {s(sT1)}, {L_EXC}")
        A(f"v_lshl_add_u32 v6, v1, 4, {s(sT1)}")
        for i, r in enumerate((40, 44, 56, 60)):
            A(f"ds_write_b128 v5, {v(r,4)} offset:{i*1024}")
        A("s_waitcnt lgkmcnt(0)")
        self.bar()
        for i, r in enumerate((20, 16, 28, 24)):
            A(f"ds_read_b128 {v(r,4)}, v6 offset:{i*1024}")
        self.slab_setup()
        self.slab_dma(S_WO, 0, 8, 0)
        A("s_waitcnt lgkmcnt(0)")
        for i in range(8):
            A(f"v_add_f32 {v(32+i)}, {v(32+i)}, {v(16+i)}")
        for i in range(8):
            A(f"v_add_f32 {v(48+i)}, {v(48+i)}, {v(24+i)}")
        self.ts("kv_gemm")
        for i in range(4):
            A(f"v_cvt_pk_bf16_f32 {v(8+i)}, {v(32+2*i)}, {v(33+2*i)}")
        for t in range(2):
            A(f"v_mfma_f32_16x16x16_bf16 {v(40+4*t,4)}, {a(36,2)}, {v(8+2*t,2)}, 0")
        for i in range(4):
            A(f"v_cvt_pk_bf16_f32 {v(32+i)}, {v(48+2*i)}, {v(49+2*i)}")
        self.softmax2(40, 16, 24, 8, 56)
        for (d, p) in ((16, 56), (20, 60), (24, 58), (28, 62)):
            A(f"v_mfma_f32_16x16x16_bf16 {v(d,4)}, {v(p,2)}, {a(38,2)}, 0")
        for i in range(8):
            A(f"v_cvt_pk_bf16_f32 {v(40+i)}, {v(16+2*i)}, {v(17+2*i)}")
        A(f"v_mfma_f32_16x16x32_bf16 v[16:19], v[40:43], v[32:35], 0")
        A(f"v_mfma_f32_16x16x32_bf16 v[20:23], v[44:47], v[32:35], 0")
        A(f"v_mfma_f32_16x16x32_bf16 v[24:27], v[40:43], a[40:43], 0")
        A(f"v_mfma_f32_16x16x32_bf16 v[28:31], v[44:47], a[40:43], 0")
        A(f"s_mul_i32 {s(sT0)}, {s(sW)}, 2304")
        A(f"s_add_u32 {s(sT0)}, {s(sT0)}, {L_KVR}")
        A(f"v_lshl_add_u32 v8, v1, 4, {s(sT0)}")
        A("v_and_b32 v9, 48, v1")
        A(f"v_add_u32 v9, {s(sT0)}, v9")
        A("ds_write_b128 v8, v[16:19]")
        A("ds_write_b128 v8, v[20:23] offset:1024")
        A("ds_write_b128 v9, v[24:27] offset:2048")
        A("ds_write_b128 v9, v[28:31] offset:2112")
        A("v_lshrrev_b32 v10, 7, v0")
        A("v_and_b32 v11, 127, v0")
        A("v_bfe_u32 v12, v0, 3, 1")
        A("v_and_b32 v13, 7, v0")
        A("v_add_u32 v13, 128, v13")
        A("v_cmp_gt_u32 vcc, 256, v0")
        A("v_cndmask_b32 v10, v12, v10, vcc")
        A("v_cndmask_b32 v11, v13, v11, vcc")
        A("v_mul_u32_u24 v10, 9216, v10")
        A("v_lshl_add_u32 v10, v11, 4, v10")
        A(f"v_add_u32 v10, {L_KVR}, v10")
        A("v_lshlrev_b32 v11, 4, v0")
        A("s_waitcnt lgkmcnt(0)")
        self.bar()
        A("v_cmp_gt_u32 vcc, 272, v0")
        A(f"s_and_saveexec_b64 {s(sEX,2)}, vcc")
        A("s_cbranch_execz L_kvred_skip")
        for i in range(4):
            A(f"ds_read_b128 {v(16+4*i,4)}, v10 offset:{i*2304}")
        A(f"s_lshl_b32 {s(sT0)}, {s(sJ)}, 4")
        A(f"s_add_u32 {s(sT0)}, {s(sT0)}, {s(sRB)}")
        A(f"s_mul_i32 {s(sT0)}, {s(sT0)}, {KVP_STRIDE}")
        A(f"s_add_u32 {s(sT0)}, {s(sT0)}, {WS_KVP:#x}")
        A("s_waitcnt lgkmcnt(0)")
        for i in range(4):
            A(f"v_add_f32 {v(16+i)}, {v(16+i)}, {v(20+i)}")
            A(f"v_add_f32 {v(24+i)}, {v(24+i)}, {v(28+i)}")
        for i in range(4):
            A(f"v_add_f32 {v(16+i)}, {v(16+i)}, {v(24+i)}")
        A(f"buffer_store_dwordx4 v[16:19], v11, {s(S_WS,4)}, {s(sT0)} offen sc1")
        A.label("L_kvred_skip")
        A(f"s_mov_b64 exec, {s(sEX,2)}")
        self.publish_flag(f"""s_lshl_b32 {s(sT0)}, {s(sJ)}, 4
            s_add_u32 {s(sT0)}, {s(sT0)}, {s(sRB)}
            s_lshl_b32 {s(sT0)}, {s(sT0)}, 7
            s_add_u32 {s(sT0)}, {s(sT0)}, {WS_FL1:#x}""")
        self.ts("kv_pub")
        A(f"s_lshl_b32 {s(sT0)}, {s(sKH)}, 5")
        A(f"v_xor_b32 v2, {s(sT0)}, v2")
        A(f"v_add_u32 v2, {L_WQ}, v2")
        A("v_xor_b32 v3, 32, v2")

        def rd_q(u):
            p = (u & 3) * 8
            for h in range(2):
                for hh in range(2):
                    A(f"ds_read_b64_tr_b16 {a(p + h*4 + hh*2, 2)}, {v(2+h)} offset:{u*2048 + hh*256}")
        rd_q(0); rd_q(1); rd_q(2)
        for u in range(8):
            A(f"s_waitcnt lgkmcnt({min(8, 4*(7-u))})")
            p = (u & 3) * 8
            for t in range(2):
                for h in range(2):
                    d = 32 + (t * 2 + h) * 4
                    A(f"v_mfma_f32_16x16x32_bf16 {v(d,4)}, {a(p+h*4,4)}, {v(AF(t,u),4)}, {v(d,4) if u else 0}")
            if u + 3 < 8:
                rd_q(u + 3)
        A(f"s_lshl_b32 {s(sT0)}, {s(sW)}, 12")
        A(f"s_add_u32 {s(sT0)}, {s(sT0)}, {L_EXC}")
        A(f"v_lshl_add_u32 v5, v1, 4, {s(sT0)}")
        A(f"s_xor_b32 {s(sT1)}, {s(sW)}, 4")
        A(f"s_lshl_b32 {s(sT1)}, {s(sT1)}, 12")
        A(f"s_add_u32 {s(sT1)}, {s(sT1)}, {L_EXC}")
        A(f"v_lshl_add_u32 v6, v1, 4, {s(sT1)}")
        A("ds_write_b128 v5, v[40:43]")
        A("ds_write_b128 v5, v[44:47] offset:1024")
        A("s_waitcnt lgkmcnt(0)")
        self.bar()
        A("ds_read_b128 v[16:19], v6")
        A("ds_read_b128 v[20:23], v6 offset:1024")
        A("s_waitcnt lgkmcnt(0)")
        self.bar()
        self.gu_setup()
        self.gu_dma_all([0, 2, 4])
        self.x_res_load()
        for i in range(8):
            A(f"v_add_f32 {v(32+i)}, {v(32+i)}, {v(16+i)}")
        for i in range(4):
            A(f"v_cvt_pk_bf16_f32 {v(8+i)}, {v(32+2*i)}, {v(33+2*i)}")
        for h in range(2):
            A(f"v_mfma_f32_16x16x16_bf16 {v(40+4*h,4)}, {a(32+2*h,2)}, {v(8+2*h,2)}, 0")
        self.softmax2(40, 16, 24, 8, 56)
        self.ts("q_done")
        self.wait_flags16(f"""s_lshl_b32 {s(sT0)}, {s(sJ)}, 11
            s_add_u32 {s(sT0)}, {s(sT0)}, {WS_FL1:#x}""")
        self.ts("s1_flags")
        A("v_lshlrev_b32 v11, 4, v0")
        A("v_lshrrev_b32 v8, 7, v0")
        A("v_lshlrev_b32 v8, 10, v8")
        A("v_lshl_add_u32 v8, v1, 4, v8")
        A("v_bfe_u32 v9, v0, 6, 1")
        A("v_lshl_add_u32 v8, v9, 3, v8")
        A("v_bfe_u32 v9, v0, 3, 1")
        A("v_lshlrev_b32 v9, 6, v9")
        A("v_and_b32 v10, 3, v0")
        A("v_lshl_add_u32 v9, v10, 4, v9")
        A("v_bfe_u32 v10, v0, 2, 1")
        A("v_lshl_add_u32 v9, v10, 3, v9")
        A("v_add_u32 v9, 2048, v9")
        A("v_cmp_gt_u32 vcc, 256, v0")
        A("v_cndmask_b32 v8, v9, v8, vcc")
        A(f"v_add_u32 v8, {L_KVF}, v8")
        A("v_cmp_gt_u32 vcc, 272, v0")
        A(f"s_and_saveexec_b64 {s(sEX,2)}, vcc")
        A("s_cbranch_execz L_kvg_skip")
        A(f"s_mul_i32 {s(sT0)}, {s(sJ)}, {16*KVP_STRIDE}")
        A(f"s_add_u32 {s(sT0)}, {s(sT0)}, {WS_KVP:#x}")
        for i in range(16):
            A(f"buffer_load_dwordx4 {v(64+4*i,4)}, v11, {s(S_WS,4)}, {s(sT0)} offen sc1")
            if i < 15:
                A(f"s_add_u32 {s(sT0)}, {s(sT0)}, {KVP_STRIDE}")
        for i in range(1, 16):
            A(f"s_waitcnt vmcnt({15-i})")
            for q in range(4):
                A(f"v_add_f32 {v(64+q)}, {v(64+q)}, {v(64+4*i+q)}")
        A("v_cvt_pk_bf16_f32 v64, v64, v65")
        A("v_cvt_pk_bf16_f32 v65, v66, v67")
        A("ds_write_b64 v8, v[64:65]")
        A.label("L_kvg_skip")
        A(f"s_mov_b64 exec, {s(sEX,2)}")
        A("v_lshlrev_b32 v8, 4, v1")
        A(f"v_add_u32 v8, {L_KVF}, v8")
        A("v_and_b32 v9, 48, v1")
        A(f"v_add_u32 v9, {L_KVF + 2048}, v9")
        A("s_waitcnt lgkmcnt(0)")
        self.bar()
        A("ds_read_b128 v[16:19], v8")
        A("ds_read_b128 v[20:23], v8 offset:1024")
        A("ds_read_b128 v[24:27], v9")
        A("ds_read_b128 v[28:31], v9 offset:64")
        A("s_waitcnt lgkmcnt(0)")
        for h in range(2):
            A(f"v_mfma_f32_16x16x32_bf16 {v(40+4*h,4)}, {v(24+4*h,4)}, {v(56+4*h,4)}, 0")
        for h in range(2):
            A(f"v_mfma_f32_16x16x32_bf16 {v(32+4*h,4)}, {v(16+4*h,4)}, {v(56+4*h,4)}, 0")
        A(f"s_lshl_b32 {s(sT0)}, {s(sM)}, 1")
        A(f"s_add_u32 {s(sT0)}, {s(sT0)}, {s(sKH)}")
        A(f"s_lshl_b32 {s(sT0)}, {s(sT0)}, 4")
        A(f"s_add_u32 {s(sT0)}, {s(sT0)}, {s(sJ)}")
        A(f"s_lshl_b32 {s(sT0)}, {s(sT0)}, 10")
        A(f"s_add_u32 {s(sT0)}, {s(sT0)}, {s(sG)}")
        A("v_lshlrev_b32 v8, 4, v1")
        for h in range(2):
            A(f"v_add_f32 {v(40+4*h)}, 0x358637bd, {v(40+4*h)}")
            A(f"v_rcp_f32 {v(40+4*h)}, {v(40+4*h)}")
        for h in range(2):
            for r in range(4):
                A(f"v_mul_f32 {v(32+4*h+r)}, {v(32+4*h+r)}, {v(40+4*h)}")
        for i in range(4):
            A(f"v_cvt_pk_bf16_f32 {v(16+i)}, {v(32+2*i)}, {v(33+2*i)}")
        A(f"buffer_store_dwordx4 v[16:19], v8, {s(S_WS,4)}, {s(sT0)} offen{self.st}")
        self.publish_flag(f"""s_lshl_b32 {s(sT0)}, {s(sJ)}, 7
            s_add_u32 {s(sT0)}, {s(sT0)}, {s(sG)}
            s_add_u32 {s(sT0)}, {s(sT0)}, {G_FLO:#x}""", sc1=False)
        self.ts("o_pub")

    def slab_setup(self):
        A = self.A
        A("v_lshrrev_b32 v7, 3, v1")
        A("v_lshlrev_b32 v7, 10, v7")
        A("v_lshrrev_b32 v12, 4, v1")
        A("v_lshlrev_b32 v12, 1, v12")
        A("v_and_b32 v13, 7, v1")
        A("v_xor_b32 v12, v12, v13")
        A("v_lshl_add_u32 v7, v12, 4, v7")

    def slab_dma(self, srd, row8_0, n, lbase, nwaves=8):
        A = self.A
        A(f"s_and_b32 {s(sT0)}, {s(sJ)}, 7")
        A(f"s_lshl_b32 {s(sT0)}, {s(sT0)}, 7")
        A(f"s_lshl_b32 {s(sT1)}, {s(sW)}, 13")
        A(f"s_add_u32 {s(sT0)}, {s(sT0)}, {s(sT1)}")
        if row8_0:
            A(f"s_add_u32 {s(sT0)}, {s(sT0)}, {row8_0*8192}")
        A(f"s_lshl_b32 {s(sT1)}, {s(sW)}, 10")
        for i in range(n):
            A(f"s_add_u32 m0, {s(sT1)}, {lbase + i*8192}")
            if i:
                A(f"s_add_u32 {s(sT0)}, {s(sT0)}, 65536")
            A(f"buffer_load_dwordx4 v7, {s(srd,4)}, {s(sT0)} offen lds")

    def gu_setup(self):
        A = self.A
        for i in range(3):
            A(f"v_add_u32 v12, {64*i}, v1")
            A("v_mul_u32_u24 v13, 0x5556, v12")
            A("v_lshrrev_b32 v13, 18, v13")
            A("v_mul_u32_u24 v14, 12, v13")
            A("v_sub_u32 v12, v12, v14")
            A("v_bfe_u32 v14, v13, 2, 1")
            A("v_lshlrev_b32 v14, 1, v14")
            A("v_xor_b32 v12, v12, v14")
            A("v_mul_u32_u24 v13, 2752, v13")
            A(f"v_lshl_add_u32 {v(48+i)}, v12, 4, v13")
        A(f"s_bfe_u32 {s(sT0)}, {s(sW)}, 0x10001")
        A(f"s_mul_i32 {s(sGUL)}, {s(sT0)}, 3072")
        A(f"s_mul_i32 {s(sGUS)}, {s(sT0)}, {16*2752}")
        A(f"s_mul_i32 {s(sT2)}, {s(sJ)}, 192")
        A(f"s_add_u32 {s(sGUS)}, {s(sGUS)}, {s(sT2)}")
        A(f"s_and_b32 {s(sT2)}, {s(sW)}, 1")
        A(f"s_mul_i32 {s(sT2)}, {s(sT2)}, 6144")
        A(f"s_add_u32 {s(sGUL)}, {s(sGUL)}, {s(sT2)}")

    def gu_dma(self, u_base, per_wave_parity=True, vo=48):
        A = self.A
        A(f"s_add_u32 {s(sT0)}, {s(sGUS)}, {u_base*32*2752}")
        A(f"s_add_u32 {s(sT1)}, {s(sGUL)}, {slot_addr(u_base)}")
        if per_wave_parity:
            A(f"s_mul_i32 {s(sT2)}, {s(sKH)}, {32*2752}")
            A(f"s_mul_i32 {s(sT3)}, {s(sKH)}, {slot_addr(u_base+1) - slot_addr(u_base)}")
            A(f"s_add_u32 {s(sT0)}, {s(sT0)}, {s(sT2)}")
            A(f"s_add_u32 {s(sT1)}, {s(sT1)}, {s(sT3)}")
        for i in range(3):
            A(f"s_add_u32 m0, {s(sT1)}, {i*1024}")
            A(f"buffer_load_dwordx4 {v(vo+i)}, {s(S_GU,4)}, {s(sT0)} offen lds")

    def gu_dma_all(self, ubases):
        for u in ubases:
            self.gu_dma(u)

    def rowmajor_addr(self, dst):
        A = self.A
        A(f"s_lshl_b32 {s(sT0)}, {s(sRB)}, 3")
        A(f"s_lshr_b32 {s(sT1)}, {s(sJ)}, 3")
        A(f"s_lshl_b32 {s(sT1)}, {s(sT1)}, 2")
        A(f"s_add_u32 {s(sT0)}, {s(sT0)}, {s(sT1)}")
        A(f"s_add_u32 {s(sT0)}, {s(sT0)}, {s(sM)}")
        A(f"s_lshl_b32 {s(sT0)}, {s(sT0)}, 14")
        A(f"s_and_b32 {s(sT1)}, {s(sJ)}, 7")
        A(f"s_lshl_b32 {s(sT1)}, {s(sT1)}, 7")
        A(f"s_add_u32 {s(sT0)}, {s(sT0)}, {s(sT1)}")
        A(f"s_lshl_b32 {s(sT1)}, {s(sKH)}, 6")
        A(f"s_add_u32 {s(sT0)}, {s(sT0)}, {s(sT1)}")
        A("v_and_b32 v12, 15, v1")
        A(f"v_lshl_add_u32 {v(dst)}, v12, 10, {s(sT0)}")
        A("v_bfe_u32 v12, v1, 4, 1")
        A(f"v_lshl_add_u32 {v(dst)}, v12, 5, {v(dst)}")
        A("v_lshrrev_b32 v12, 5, v1")
        A(f"v_lshl_add_u32 {v(dst)}, v12, 4, {v(dst)}")

    def x_res_load(self):
        self.rowmajor_addr(13)
        self.A(f"buffer_load_dwordx4 v[52:55], v13, {s(S_X,4)}, 0 offen")

    def slab_bases(self, khoff_code):
        A = self.A
        A(khoff_code)
        A("v_lshrrev_b32 v12, 2, v1")
        A(f"v_lshl_add_u32 v2, v12, 7, {s(sT0)}")
        A("v_and_b32 v13, 3, v1")
        A("v_lshl_add_u32 v2, v13, 3, v2")
        A("v_bfe_u32 v12, v1, 3, 2")
        A(f"s_lshl_b32 {s(sT1)}, {s(sKH)}, 1")
        A(f"v_xor_b32 v12, {s(sT1)}, v12")
        A("v_lshl_add_u32 v2, v12, 5, v2")
        for t in range(1, 4):
            A(f"v_xor_b32 {v(2+t)}, {32*t}, v2")

    def g64_step_reads(self, buf, off):
        A = self.A
        for t in range(4):
            for hh in range(2):
                A(f"ds_read_b64_tr_b16 {v(64 + buf*16 + t*4 + hh*2, 2)}, {v(2+t)} offset:{off + hh*2048}")

    def g64_exchange(self, base):
        A = self.A
        A(f"s_lshl_b32 {s(sT0)}, {s(sW)}, 11")
        A(f"s_add_u32 {s(sT0)}, {s(sT0)}, {base}")
        A(f"v_lshl_add_u32 v8, v1, 4, {s(sT0)}")
        A(f"s_xor_b32 {s(sT1)}, {s(sW)}, 4")
        A(f"s_lshl_b32 {s(sT1)}, {s(sT1)}, 11")
        A(f"s_add_u32 {s(sT1)}, {s(sT1)}, {base}")
        A(f"v_lshl_add_u32 v9, v1, 4, {s(sT1)}")
        A("ds_write_b128 v8, v[40:43]")
        A("ds_write_b128 v8, v[44:47] offset:1024")
        A("s_waitcnt lgkmcnt(0)")
        self.bar()
        A("ds_read_b128 v[40:43], v9")
        A("ds_read_b128 v[44:47], v9 offset:1024")

    def mt_addr(self, dst):
        A = self.A
        A(f"s_lshl_b32 {s(sT0)}, {s(sKH)}, 7")
        A(f"s_add_u32 {s(sT0)}, {s(sT0)}, {L_MT}")
        A(f"v_and_b32 {v(dst)}, 48, v1")
        A(f"v_add_u32 {v(dst)}, {s(sT0)}, {v(dst)}")

    def p2(self):
        A = self.A
        self.slab_bases(f"s_lshl_b32 {s(sT0)}, {s(sKH)}, 15")
        A("v_mov_b32 v14, v5")
        self.wait_flags16(f"""s_add_u32 {s(sT0)}, {s(sG)}, {G_FLO:#x}""")
        A("v_mov_b32 v5, v14")
        self.ts("o_flags")
        A("s_cmp_lg_u32 s2, 0")
        A("s_cbranch_scc1 L_ep_skip")
        A(f"v_mov_b32 v12, {s(sTAG)}")
        A("v_mov_b32 v13, 0")
        A(f"buffer_store_dword v12, v13, {s(S_WS,4)}, 0 offen sc1")
        A("s_waitcnt vmcnt(0)")
        A.label("L_ep_skip")
        A(f"s_lshr_b32 {s(sT0)}, {s(sJ)}, 3")
        A(f"s_lshl_b32 {s(sT0)}, {s(sT0)}, 2")
        A(f"s_add_u32 {s(sT0)}, {s(sT0)}, {s(sM)}")
        A(f"s_lshl_b32 {s(sT0)}, {s(sT0)}, 14")
        A(f"s_lshl_b32 {s(sT1)}, {s(sKH)}, 13")
        A(f"s_add_u32 {s(sT0)}, {s(sT0)}, {s(sT1)}")
        A(f"s_add_u32 {s(sT0)}, {s(sT0)}, {s(sG)}")
        A(f"s_add_u32 {s(sT1)}, {s(sT0)}, 4096")
        A("v_lshlrev_b32 v8, 4, v1")
        for i in range(8):
            A(f"buffer_load_dwordx4 {a(48+4*i,4)}, v8, {s(S_WS,4)}, {s(sT0 if i < 4 else sT1)} offen offset:{(i&3)*1024} sc1")
        self.g64_step_reads(0, 0)
        for u in range(8):
            if u < 7:
                self.g64_step_reads((u + 1) & 1, (u + 1) * 4096)
            A(f"s_waitcnt vmcnt({7-u}) lgkmcnt({8 if u < 7 else 0})")
            for t in range(4):
                d = 32 + 4 * t
                A(f"v_mfma_f32_16x16x32_bf16 {v(d,4)}, {v(64+(u&1)*16+t*4,4)}, {a(48+4*u,4)}, {v(d,4) if u else 0}")
        self.g64_exchange(L_EX2)
        self.gu_dma_all([6, 8])
        self.mt_addr(10)
        for vec in range(3):
            for t in range(2):
                A(f"ds_read_b128 {v(64+8*vec+4*t,4)}, v10 offset:{vec*256 + t*64}")
        A("v_permlane16_swap_b32 v52, v54")
        A("v_permlane16_swap_b32 v53, v55")
        for i in range(4):
            A(f"v_lshlrev_b32 {v(16+2*i)}, 16, {v(52+i)}")
            A(f"v_and_b32 {v(17+2*i)}, {s(sMASK)}, {v(52+i)}")
        A("s_waitcnt lgkmcnt(0)")
        for i in range(8):
            A(f"v_add_f32 {v(32+i)}, {v(32+i)}, {v(40+i)}")
        for i in range(8):
            A(f"v_fmac_f32 {v(16+i)}, {v(32+i)}, {v(64+i)}")
        for i in range(4):
            A(f"v_cvt_pk_bf16_f32 {v(52+i)}, {v(16+2*i)}, {v(17+2*i)}")
        A("v_mov_b32 v24, 0\nv_mov_b32 v25, 0")
        for i in range(4):
            A(f"v_dot2c_f32_bf16 v24, {s(sONES)}, {v(52+i)}")
            A(f"v_dot2c_f32_bf16 v25, {v(52+i)}, {v(52+i)}")
        for i in range(4):
            A(f"v_lshlrev_b32 {v(16+2*i)}, 16, {v(52+i)}")
            A(f"v_and_b32 {v(17+2*i)}, {s(sMASK)}, {v(52+i)}")
        A("v_permlane32_swap_b32 v24, v25")
        A("v_add_f32 v24, v24, v25")
        A("v_mov_b32 v25, v24")
        A("v_permlane16_swap_b32 v24, v25")
        A("v_add_f32 v24, v24, v25")
        A("v_mov_b32 v25, v24")
        A("v_permlane32_swap_b32 v24, v25")
        A(f"v_mov_b32 v26, {s(sTAG)}")
        A(f"v_mov_b32 v27, {s(sTAG)}")
        A(f"s_lshr_b32 {s(sT0)}, {s(sJ)}, 3")
        A(f"s_lshl_b32 {s(sT0)}, {s(sT0)}, 2")
        A(f"s_add_u32 {s(sT0)}, {s(sT0)}, {s(sM)}")
        A(f"s_lshl_b32 {s(sT3)}, {s(sT0)}, 14")
        A(f"s_lshl_b32 {s(sT0)}, {s(sT0)}, 12")
        A(f"s_add_u32 {s(sT0)}, {s(sT0)}, {s(sG)}")
        A(f"s_add_u32 {s(sT0)}, {s(sT0)}, {G_ST:#x}")
        A(f"s_and_b32 {s(sT1)}, {s(sJ)}, 7")
        A(f"s_lshl_b32 {s(sT1)}, {s(sT1)}, 1")
        A(f"s_add_u32 {s(sT1)}, {s(sT1)}, {s(sKH)}")
        A(f"s_lshl_b32 {s(sT2)}, {s(sT1)}, 10")
        A(f"s_add_u32 {s(sT3)}, {s(sT3)}, {s(sT2)}")
        A(f"s_add_u32 {s(sT3)}, {s(sT3)}, {s(sG)}")
        A(f"s_add_u32 {s(sT3)}, {s(sT3)}, {G_H2:#x}")
        A(f"s_lshl_b32 {s(sT1)}, {s(sT1)}, 8")
        A(f"s_add_u32 {s(sT1)}, {s(sT1)}, {s(sT0)}")
        A("v_lshlrev_b32 v8, 4, v1")
        A("s_mov_b64 exec, 0xffff")
        A(f"buffer_store_dwordx4 v[24:27], v8, {s(S_WS,4)}, {s(sT1)} offen{self.st}")
        A("s_mov_b64 exec, -1")
        A(f"s_mov_b32 {s(sCNT)}, {SPIN}")
        A.label("L_st")
        for i in range(4):
            A(f"buffer_load_dwordx4 {v(88+4*i,4)}, v8, {s(S_WS,4)}, {s(sT0)} offen offset:{i*1024} sc1")
        A(f"s_sub_u32 {s(sCNT)}, {s(sCNT)}, 1")
        A("s_cbranch_scc1 L_std")
        A("s_waitcnt vmcnt(0)")
        for i in range(4):
            A(f"v_xor_b32 {v(28+i)}, {s(sTAG)}, {v(90+4*i)}")
        A("v_or3_b32 v28, v28, v29, v30")
        A("v_or_b32 v28, v28, v31")
        A("v_cmp_ne_u32 vcc, 0, v28")
        A("s_cbranch_vccnz L_st")
        A.label("L_std")
        A("s_waitcnt vmcnt(0)")
        A("v_add_f32 v24, v88, v92\nv_add_f32 v25, v89, v93\nv_add_f32 v26, v96, v100\nv_add_f32 v27, v97, v101")
        A("v_add_f32 v24, v24, v26\nv_add_f32 v25, v25, v27")
        A("v_permlane32_swap_b32 v24, v25")
        A("v_add_f32 v24, v24, v25")
        A("v_mov_b32 v25, v24")
        A("v_permlane16_swap_b32 v24, v25")
        A("v_add_f32 v24, v24, v25")
        A("v_mul_f32 v24, 0x3b000000, v24")
        A("v_mov_b32 v25, v24")
        A("v_permlane32_swap_b32 v24, v25")
        A("v_fma_f32 v25, -v24, v24, v25")
        A("v_max_f32 v25, 0, v25")
        A("v_add_f32 v25, 0x3727c5ac, v25")
        A("v_rsq_f32 v25, v25")
        A("v_mul_f32_e64 v24, -v24, v25")
        for i in range(8):
            A(f"v_fma_f32 {v(16+i)}, {v(16+i)}, v25, v24")
        for i in range(8):
            A(f"v_fma_f32 {v(16+i)}, {v(16+i)}, {v(80+i)}, {v(72+i)}")
        for i in range(4):
            A(f"v_cvt_pk_bf16_f32 {v(28+i)}, {v(16+2*i)}, {v(17+2*i)}")
        A(f"buffer_store_dwordx4 v[28:31], v8, {s(S_WS,4)}, {s(sT3)} offen{self.st}")
        self.publish_flag(f"""s_lshl_b32 {s(sT0)}, {s(sJ)}, 7
            s_add_u32 {s(sT0)}, {s(sT0)}, {s(sG)}
            s_add_u32 {s(sT0)}, {s(sT0)}, {G_FL2:#x}""", sc1=False)
        self.gu_dma(10)
        A("v_lshlrev_b32 v8, 4, v0")
        A(f"v_add_u32 v8, {L_X1}, v8")
        A("ds_write_b128 v8, v[52:55]")
        self.ts("h2_pub")

    def p3(self):
        A = self.A
        A("s_waitcnt vmcnt(0) lgkmcnt(0)")
        self.wait_flags16(f"""s_add_u32 {s(sT0)}, {s(sG)}, {G_FL2:#x}""")
        self.ts("h2_flags")
        A(f"s_cmp_eq_u32 {s(sJ)}, 15")
        A("s_cbranch_scc1 L_p3_done")
        A(f"s_cmp_lg_u32 {s(sKH)}, 0")
        A("s_cbranch_scc1 L_p3_helper")
        A(f"s_lshl_b32 {s(sT0)}, {s(sM)}, 15")
        A(f"s_add_u32 {s(sT0)}, {s(sT0)}, {s(sG)}")
        A(f"s_add_u32 {s(sT0)}, {s(sT0)}, {G_H2:#x}")
        A(f"s_add_u32 {s(sT1)}, {s(sT0)}, 16384")
        A("v_lshlrev_b32 v4, 4, v1")
        for u in range(16):
            for t in range(2):
                A(f"buffer_load_dwordx4 {a((u*2+t)*4,4)}, v4, {s(S_WS,4)}, {s(sT0+t)} offen offset:{(u&3)*1024} sc1")
            if (u & 3) == 3 and u < 15:
                A(f"s_add_u32 {s(sT0)}, {s(sT0)}, 4096")
                A(f"s_add_u32 {s(sT1)}, {s(sT1)}, 4096")
        A("v_lshrrev_b32 v5, 2, v1")
        A("v_mul_u32_u24 v5, 192, v5")
        A("v_and_b32 v6, 3, v1")
        A("v_lshl_add_u32 v5, v6, 3, v5")
        A("v_bfe_u32 v6, v1, 4, 1")
        A("v_lshlrev_b32 v6, 5, v6")
        A("v_add_u32 v2, v5, v6")
        A("v_sub_u32 v3, v5, v6")
        A("v_add_u32 v3, 32, v3")
        seq = [(u, f, mt) for u in range(16) for f in range(6) for mt in range(2)]
        cur = {"base": 0}

        def rd(idx):
            u, f, mt = seq[idx]
            addr = slot_addr(u) + mt * 6144 + (f & ~1) * 32
            if not (0 <= addr - cur["base"] and addr - cur["base"] + 3072 < 65536):
                nb = slot_addr(u)
                d = nb - cur["base"]
                for r in (2, 3):
                    if d >= 0:
                        A(f"v_add_u32 {v(r)}, {d}, {v(r)}")
                    else:
                        A(f"v_subrev_u32 {v(r)}, {-d}, {v(r)}")
                cur["base"] = nb
            o = addr - cur["base"]
            b = 8 + (idx % 6) * 4
            for hh in range(2):
                A(f"ds_read_b64_tr_b16 {v(b+hh*2,2)}, {v(2 + (f & 1))} offset:{o + hh*3072}")
        NPF = 5
        for i in range(NPF):
            rd(i)
        for idx, (u, f, mt) in enumerate(seq):
            if f == 0 and mt == 0:
                if u == 5:
                    self.bar()
                if u == 11:
                    self.bar()
            nxt = idx + NPF
            left = min(NPF - 1, len(seq) - 1 - idx)
            w = f"lgkmcnt({2*left})"
            if f == 0 and mt == 0:
                w = f"vmcnt({30-2*u}) " + w
            A(f"s_waitcnt {w}")
            b = 8 + (idx % 6) * 4
            for t in range(2):
                d = 32 + ((mt * 2 + t) * 6 + f) * 4
                A(f"v_mfma_f32_16x16x32_bf16 {v(d,4)}, {v(b,4)}, {a((u*2+t)*4,4)}, {v(d,4) if u else 0}")
            if nxt < len(seq):
                rd(nxt)
        self.bar()
        A(f"s_mul_i32 {s(sT0)}, {s(sM)}, {2*48*1024}")
        A(f"s_mul_i32 {s(sT1)}, {s(sJ)}, 3072")
        A(f"s_add_u32 {s(sT0)}, {s(sT0)}, {s(sT1)}")
        A(f"s_add_u32 {s(sT0)}, {s(sT0)}, {s(sG)}")
        A(f"s_add_u32 {s(sT0)}, {s(sT0)}, {G_HH:#x}")
        A(f"s_add_u32 {s(sT1)}, {s(sT0)}, {48*1024}")
        for t in range(2):
            for e in range(3):
                g0 = 32 + (t * 6 + 2 * e) * 4
                u0 = 32 + ((2 + t) * 6 + 2 * e) * 4
                for i in range(8):
                    A(f"v_max_f32 {v(g0+i)}, 0, {v(g0+i)}")
                for i in range(8):
                    A(f"v_mul_f32 {v(g0+i)}, {v(g0+i)}, {v(u0+i)}")
                o = 8 + (t * 3 + e) * 4
                for i in range(4):
                    A(f"v_cvt_pk_bf16_f32 {v(o+i)}, {v(g0+2*i)}, {v(g0+2*i+1)}")
                A(f"buffer_store_dwordx4 {v(o,4)}, v4, {s(S_WS,4)}, {s(sT0+t)} offen offset:{e*1024}{self.st}")
        A("s_branch L_p3_done")
        A.label("L_p3_helper")
        self.bar()
        for u in range(12, 16):
            self.gu_dma(u, per_wave_parity=False)
        A("s_waitcnt vmcnt(0)")
        self.bar()
        self.bar()
        A.label("L_p3_done")
        self.publish_flag(f"""s_lshl_b32 {s(sT0)}, {s(sJ)}, 7
            s_add_u32 {s(sT0)}, {s(sT0)}, {s(sG)}
            s_add_u32 {s(sT0)}, {s(sT0)}, {G_FL3:#x}""", sc1=False)
        self.ts("hh_pub")

    def p4(self):
        A = self.A
        self.slab_setup()
        self.slab_dma(S_WD, 0, 9, 0)
        self.slab_dma(S_WD, 22 * 4, 9, 73728)
        self.slab_bases(f"s_mul_i32 {s(sT0)}, {s(sKH)}, 73728")
        A("v_mov_b32 v14, v5")
        A("s_waitcnt vmcnt(0)")
        self.wait_flags16(f"""s_add_u32 {s(sT0)}, {s(sG)}, {G_FL3:#x}""")
        A("v_mov_b32 v5, v14")
        self.ts("hh_flags")
        A(f"s_lshr_b32 {s(sT0)}, {s(sJ)}, 3")
        A(f"s_lshl_b32 {s(sT0)}, {s(sT0)}, 2")
        A(f"s_add_u32 {s(sT0)}, {s(sT0)}, {s(sM)}")
        A(f"s_mul_i32 {s(sT0)}, {s(sT0)}, {48*1024}")
        A(f"s_mul_i32 {s(sT1)}, {s(sKH)}, {22*1024}")
        A(f"s_add_u32 {s(sT0)}, {s(sT0)}, {s(sT1)}")
        A(f"s_add_u32 {s(sT0)}, {s(sT0)}, {s(sG)}")
        A(f"s_add_u32 {s(sT0)}, {s(sT0)}, {G_HH:#x}")
        A("v_lshlrev_b32 v8, 4, v1")
        for i in range(22):
            A(f"buffer_load_dwordx4 {a(4*i,4)}, v8, {s(S_WS,4)}, {s(sT0)} offen offset:{(i&3)*1024} sc1")
            if (i & 3) == 3:
                A(f"s_add_u32 {s(sT0)}, {s(sT0)}, 4096")
        cur = {"base": 0}

        def reads(i):
            off = (i % 18) * 4096
            if not (0 <= off - cur["base"] < 61440):
                d = off - cur["base"]
                for r in range(2, 6):
                    if d >= 0:
                        A(f"v_add_u32 {v(r)}, {d}, {v(r)}")
                    else:
                        A(f"v_subrev_u32 {v(r)}, {-d}, {v(r)}")
                cur["base"] = off
            self.g64_step_reads(i & 1, off - cur["base"])
        reads(0)
        extra = 0
        for i in range(22):
            if i == 5:
                self.bar()
                self.slab_dma(S_WD, 18 * 4, 2, 0)
                self.slab_dma(S_WD, 40 * 4, 2, 73728)
                extra = 4
            if i == 17:
                A("s_waitcnt vmcnt(0)")
                self.bar()
                extra = 0
            if i == 21:
                A(f"s_cmp_lg_u32 {s(sKH)}, 0")
                A("s_cbranch_scc1 L_p4_lastskip")
            if i < 21:
                reads(i + 1)
            A(f"s_waitcnt vmcnt({21-i+extra if i < 17 else 0}) lgkmcnt({8 if i < 21 else 0})")
            for t in range(4):
                d = 32 + 4 * t
                A(f"v_mfma_f32_16x16x32_bf16 {v(d,4)}, {v(64+(i&1)*16+t*4,4)}, {a(4*i,4)}, {v(d,4) if i else 0}")
        A.label("L_p4_lastskip")
        A("s_waitcnt lgkmcnt(0)")
        self.g64_exchange(24576)
        self.mt_addr(10)
        for t in range(2):
            A(f"ds_read_b128 {v(64+4*t,4)}, v10 offset:{3*256 + t*64}")
        A("v_lshlrev_b32 v8, 4, v0")
        A(f"v_add_u32 v8, {L_X1}, v8")
        A("ds_read_b128 v[52:55], v8")
        self.rowmajor_addr(13)
        A("s_waitcnt lgkmcnt(0)")
        for i in range(4):
            A(f"v_lshlrev_b32 {v(16+2*i)}, 16, {v(52+i)}")
            A(f"v_and_b32 {v(17+2*i)}, {s(sMASK)}, {v(52+i)}")
        for i in range(8):
            A(f"v_add_f32 {v(32+i)}, {v(32+i)}, {v(40+i)}")
        for i in range(8):
            A(f"v_fmac_f32 {v(16+i)}, {v(32+i)}, {v(64+i)}")
        for i in range(4):
            A(f"v_cvt_pk_bf16_f32 {v(28+i)}, {v(16+2*i)}, {v(17+2*i)}")
        A("v_permlane16_swap_b32 v28, v30")
        A("v_permlane16_swap_b32 v29, v31")
        A(f"buffer_store_dwordx4 v[28:31], v13, {s(S_OUT,4)}, 0 offen")
        A("s_waitcnt vmcnt(0)")
        self.ts("end")

    def finish(self):
        A = self.A
        A.label("L_fin")
        if self.diag:
            A("s_waitcnt vmcnt(0) lgkmcnt(0)")
            A(f"s_cmp_lg_u32 {s(sW)}, 0")
            A("s_cbranch_scc1 L_end")
            A(f"s_lshl_b32 {s(sT0)}, s2, 7")
            A(f"s_add_u32 {s(sT0)}, {s(sT0)}, {WS_TS:#x}")
            A("s_mov_b64 exec, 1")
            A("v_mov_b32 v6, 0")
            A(f"v_mov_b32 v8, {s(sRT)}")
            A(f"buffer_store_dword v8, v6, {s(S_WS,4)}, {s(sT0)} offen offset:124")
            for i in range(self.nts):
                A(f"v_mov_b32 {v(10+i)}, {s(sTS+2*i)}")
                A(f"buffer_store_dword {v(10+i)}, v6, {s(S_WS,4)}, {s(sT0)} offen offset:{4*i}")
            A("s_waitcnt vmcnt(0)")
            A("s_load_dwordx2 s[4:5], s[0:1], 88")
            A("s_memrealtime s[8:9]")
            A("s_mov_b32 s6, 256\ns_mov_b32 s7, 0x20000")
            A("s_waitcnt lgkmcnt(0)")
            A(f"s_not_b32 s10, {s(sRT)}")
            A("v_mov_b32 v8, s10\nv_mov_b32 v9, s8")
            A("buffer_atomic_umax v8, v6, s[4:7], 0 offen")
            A("buffer_atomic_umax v9, v6, s[4:7], 0 offen offset:4")
            for i in range(1, self.nts):
                A(f"v_sub_u32 {v(10+i)}, {v(10+i)}, v10")
                A(f"buffer_atomic_umax {v(10+i)}, v6, s[4:7], 0 offen offset:{4+4*i}")
            A("s_waitcnt vmcnt(0)")
        A.label("L_end")
        A("s_endpgm")

    def build(self):
        self.prologue()
        self.p0_issue()
        self.x_dma()
        self.p0_compute()
        self.p1()
        self.p2()
        self.p3()
        self.p4()
        self.finish()
        hdr = open("header.txt").read()
        return (hdr + "; @launch grid=(256,1,1) block=(512,1,1) lds=163840\n"
                + '.amdgcn_target "amdgcn-amd-amdhsa--gfx950"\n.text\n'
                + f".globl {KNAME}\n.p2align 8\n.type {KNAME},@function\n{KNAME}:\n"
                + self.A.text()
                + f"""
.section .rodata,"a"
.p2align 6
.amdhsa_kernel {KNAME}
  .amdhsa_next_free_vgpr 256
  .amdhsa_next_free_sgpr 102
  .amdhsa_accum_offset 128
  .amdhsa_group_segment_fixed_size 0
  .amdhsa_kernarg_size 104
  .amdhsa_user_sgpr_count 2
  .amdhsa_user_sgpr_kernarg_segment_ptr 1
  .amdhsa_system_sgpr_workgroup_id_x 1
.end_amdhsa_kernel
""")


if __name__ == "__main__":
    import argparse
    ap = argparse.ArgumentParser()
    ap.add_argument("-o", default="k1.s")
    ap.add_argument("--diag", action="store_true")
    ap.add_argument("--stop", default=None)
    ap.add_argument("--fast", action="store_true")
    args = ap.parse_args()
    g = Gen(diag=args.diag, stop=args.stop, sc1=not args.fast)
    t = g.build()
    open(args.o, "w").write(t)
    if args.diag:
        open(args.o + ".ts", "w").write("\n".join(g.tsnames))
    print("written", args.o, len(t.splitlines()), "lines")
```

```python
import sys
sys.path.insert(0, "gen")
from asmlib import *

KNAME = "adaLN_cond__linear_kernel_hedgehog__glu_gated_reglu__prompt_kernel"

WS_MODU = 0x4000
WS_MODL = 0x10000
WS_KVP = 0x40000
WS_G0 = 0x200000
RS = 0x20000
G_H, G_O, G_H2, G_HH = 0x0, 0x8000, 0x0, 0x8000
G_FL = 0x80000
G_FLH, G_FLO, G_FL2, G_FL3 = G_FL, G_FL + 512, G_FL + 1024, G_FL + 1536
G_ST = 0x81000
WS_TS = 0x1400000
L_WK, L_WV, L_WQ = 0, 32768, 65536
L_KVR, L_X1, L_KVF, L_SCR, L_STX, L_MT = 135168, 151552, 155648, 157824, 159872, 162816
L_TAB = 107520
KVR_W = 4352
L_CW, L_HW = 160384, 160400
L_XT, L_PHI = 98304, 106496
CV_S, CV_A2, CV_KV, CV_X2, CV_SX, CV_E = 1, 2, 3, 4, 5, 15
HV_W, HV_Q, HV_G = 1, 2, 3
L_SX = 160512
L_EX2 = (135168, 143360)
L_EX4 = (L_X1, 28672)


def slot_addr(u):
    return ((u + 8) % 12) * 12288


def wd_addr(i):
    return (i % 36) * 4096


S_X, S_W, S_WS, S_WM, S_C, S_PHI, S_WO, S_WG, S_WU, S_WD, S_OUT, S_GU = 4, 8, 12, 16, 20, 24, 28, 32, 36, 40, 44, 48
S_DBG = 48
sW, sM, sRB, sJ, sTAG, sG, sFAST = 52, 53, 54, 55, 56, 57, 58
sT0, sT1, sT2, sT3, sCNT = 59, 60, 61, 62, 63
sEX = 64
sA0, sA1, sA2, sA3, sA4, sA5, sA6, sA7, sA8, sA9 = range(66, 76)
sA10, sA11 = 76, 77
sTP = 78
sRT = 80
sTS = 82
SPIN = 0x40000
VMASK, VTAG = 126, 127
VP, VQ = 7, 4


def zip_streams(*streams):
    out = []
    n = max(len(x) for x in streams)
    for i in range(n):
        for x in streams:
            if i < len(x):
                out.append(x[i])
    return out


def weave(mfmas, others, per=2):
    out, o = [], list(others)
    n = len(mfmas)
    for i, m_ in enumerate(mfmas):
        out.append(m_)
        k = min(per, -(-len(o) // (n - i)))
        out += o[:k]
        o = o[k:]
    return out + o


class Gen:
    def __init__(self, diag=False, force_slow=False, opts=None):
        self.A = Asm()
        self.diag = diag
        self.names = {"C": [], "H": []}
        self.role = None
        self.force_slow = force_slow
        self.o = opts or {}

    def ts(self, name):
        if not self.diag:
            return
        roles = ["C", "H"] if self.role is None else [self.role]
        idx = max(len(self.names[r]) for r in roles)
        for r in roles:
            while len(self.names[r]) < idx:
                self.names[r].append("-")
            self.names[r].append(name)
        assert idx < 20
        self.A(f"s_memtime {s(sTP,2)}\ns_waitcnt lgkmcnt(0)\ns_mov_b32 {s(sTS+idx)}, {s(sTP)}")

    def bar(self):
        self.A("s_barrier")

    def dual(self, fn):
        A = self.A
        Ls, Ld = A.uniq("L_slow"), A.uniq("L_sd")
        A(f"s_cmp_eq_u32 {s(sFAST)}, 0")
        A(f"s_cbranch_scc1 {Ls}")
        fn("")
        A(f"s_branch {Ld}")
        A.label(Ls)
        fn(" sc1")
        A.label(Ld)

    def store_flag(self, stores, sflag, vz, vt, data_sc1=False):
        A = self.A

        if data_sc1:
            stores(" sc1")

        def f(sfx):
            if not data_sc1:
                stores(sfx)
            A("s_waitcnt vmcnt(0)")
            A("s_mov_b64 exec, 1")
            A(f"buffer_store_dword {v(vt)}, {v(vz)}, {s(S_WS,4)}, {s(sflag)} offen{sfx}")
            A("s_mov_b64 exec, -1")
        self.dual(f)

    def poll(self, voff, soff, vtmp, sleep=0):
        A = self.A
        Lp, Ld = A.uniq("L_poll"), A.uniq("L_pd")
        A(f"s_mov_b32 {s(sCNT)}, {SPIN}")
        A.label(Lp)
        if sleep:
            A(f"s_sleep {sleep}")
        A(f"buffer_load_dword {v(vtmp)}, {v(voff)}, {s(S_WS,4)}, {s(soff)} offen sc1")
        A(f"s_sub_u32 {s(sCNT)}, {s(sCNT)}, 1")
        A(f"s_cbranch_scc1 {Ld}")
        A("s_waitcnt vmcnt(0)")
        A(f"v_cmp_ne_u32 vcc, {s(sTAG)}, {v(vtmp)}")
        A(f"s_cbranch_vccnz {Lp}")
        A.label(Ld)

    def signal(self, vaddr, vtmp, val):
        self.A(f"v_mov_b32 {v(vtmp)}, {val}")
        self.A(f"ds_write_b32 {v(vaddr)}, {v(vtmp)}")

    def lwait(self, vaddr, vtmp, val, off=0, sleep=0, extra=None):
        A = self.A
        Lp, Ld = A.uniq("L_lw"), A.uniq("L_lwd")
        A(f"s_mov_b32 {s(sCNT)}, {SPIN*8}")
        A.label(Lp)
        A(f"ds_read_b32 {v(vtmp)}, {v(vaddr)} offset:{off}")
        self.emit(extra or [])
        A(f"s_sub_u32 {s(sCNT)}, {s(sCNT)}, 1")
        A(f"s_cbranch_scc1 {Ld}")
        A(f"s_waitcnt lgkmcnt({len(extra or [])})")
        A(f"v_cmp_gt_u32 vcc, {val}, {v(vtmp)}")
        if sleep:
            A(f"s_cbranch_vccz {Ld}")
            A(f"s_sleep {sleep}")
            A(f"s_branch {Lp}")
        else:
            A(f"s_cbranch_vccnz {Lp}")
        A.label(Ld)

    @staticmethod
    def red4(op, a0, b0, a1, b1):
        return [f"v_permlane32_swap_b32 {v(a0)}, {v(b0)}", f"v_permlane32_swap_b32 {v(a1)}, {v(b1)}",
                f"{op} {v(a0)}, {v(a0)}, {v(b0)}", f"{op} {v(a1)}, {v(a1)}, {v(b1)}",
                f"v_permlane16_swap_b32 {v(a0)}, {v(a1)}", f"{op} {v(a0)}, {v(a0)}, {v(a1)}"]

    @staticmethod
    def bcast4(a0, b0, a1, b1):
        return [f"v_mov_b32 {v(a1)}, {v(a0)}", f"v_permlane16_swap_b32 {v(a0)}, {v(a1)}",
                f"v_mov_b32 {v(b0)}, {v(a0)}", f"v_mov_b32 {v(b1)}, {v(a1)}",
                f"v_permlane32_swap_b32 {v(a0)}, {v(b0)}", f"v_permlane32_swap_b32 {v(a1)}, {v(b1)}"]

    def softmax2(self, X, EP, EN, T, P, L2):
        o = []
        a0, b0, a1, b1 = T, T + 1, T + 2, T + 3
        for t, (aa, bb) in enumerate(((a0, b0), (a1, b1))):
            x = X + 4 * t
            o += [f"v_max3_f32 {v(aa)}, {v(x)}, {v(x+1)}, {v(x+2)}", f"v_max3_f32 {v(bb)}, -{v(x)}, -{v(x+1)}, -{v(x+2)}"]
        for t, (aa, bb) in enumerate(((a0, b0), (a1, b1))):
            x = X + 4 * t
            o += [f"v_max_f32 {v(aa)}, {v(aa)}, {v(x+3)}", f"v_max_f32_e64 {v(bb)}, {v(bb)}, -{v(x+3)}"]
        o += self.red4("v_max_f32", a0, b0, a1, b1)
        o += [f"v_mul_f32 {v(a0)}, {v(L2)}, {v(a0)}"]
        o += self.bcast4(a0, b0, a1, b1)
        for t in range(2):
            m = T + 2 * t
            for h in range(2):
                x = X + 4 * t + 2 * h
                o += [f"v_pk_fma_f32 {v(EP+4*t+2*h,2)}, {v(x,2)}, {v(L2,2)}, {v(m,2)} op_sel:[0,0,0] op_sel_hi:[1,1,0] neg_lo:[0,0,1] neg_hi:[0,0,1]",
                      f"v_pk_fma_f32 {v(EN+4*t+2*h,2)}, {v(x,2)}, {v(L2,2)}, {v(m,2)} op_sel:[0,0,1] op_sel_hi:[1,1,1] neg_lo:[1,0,1] neg_hi:[1,0,1]"]
        for i in range(8):
            o += [f"v_exp_f32 {v(EP+i)}, {v(EP+i)}", f"v_exp_f32 {v(EN+i)}, {v(EN+i)}"]
        for t in range(2):
            e, n = EP + 4 * t, EN + 4 * t
            o += [f"v_pk_add_f32 {v(T+4,2)}, {v(e,2)}, {v(e+2,2)}", f"v_pk_add_f32 {v(T+6,2)}, {v(n,2)}, {v(n+2,2)}",
                  f"v_add_f32 {v(T+2*t)}, {v(T+4)}, {v(T+5)}", f"v_add_f32 {v(T+2*t+1)}, {v(T+6)}, {v(T+7)}"]
        o += self.red4("v_add_f32", a0, b0, a1, b1)
        o += [f"v_rcp_f32 {v(a0)}, {v(a0)}"]
        o += self.bcast4(a0, b0, a1, b1)
        for t in range(2):
            m = T + 2 * t
            for h in range(2):
                e, n = EP + 4 * t + 2 * h, EN + 4 * t + 2 * h
                o += [f"v_pk_mul_f32 {v(e,2)}, {v(e,2)}, {v(m,2)} op_sel:[0,0] op_sel_hi:[1,0]",
                      f"v_pk_mul_f32 {v(n,2)}, {v(n,2)}, {v(m,2)} op_sel:[0,1] op_sel_hi:[1,1]"]
        for t in range(2):
            for h in range(2):
                o += [f"v_cvt_pk_bf16_f32 {v(P+4*t+h)}, {v(EP+4*t+2*h)}, {v(EP+4*t+2*h+1)}",
                      f"v_cvt_pk_bf16_f32 {v(P+4*t+2+h)}, {v(EN+4*t+2*h)}, {v(EN+4*t+2*h+1)}"]
        return o

    def emit(self, lst):
        for l in lst:
            self.A(l)

    def srd_consts(self, regs):
        sizes = {S_WS: 0x10000000, S_C: 1024, S_WM: 512*6144, S_X: 2048*1024, S_W: 512*3072, S_PHI: 32*512, S_WO: 512*1024,
                 S_WG: 512*2752, S_WU: 512*2752, S_WD: 1376*1024, S_OUT: 2048*1024, S_DBG: 256}
        for r in regs:
            self.A(f"s_mov_b32 {s(r+2)}, {sizes[r]:#x}")
            self.A(f"s_mov_b32 {s(r+3)}, 0x20000")

    def gemv_issue(self, W):
        A = self.A
        A(f"s_and_b32 {s(sT0)}, s2, 1")
        A(f"s_lshl2_add_u32 {s(sT0)}, {s(sT0)}, {s(sM)}")
        A("v_and_b32 v13, 3, v0")
        A("v_lshlrev_b32 v13, 2, v13")
        A("v_lshl_add_u32 v13, v8, 4, v13")
        A(f"s_lshl_b32 {s(sT1)}, {s(sT0)}, 7")
        A(f"buffer_load_dword v12, v13, {s(S_C,4)}, {s(sT1)} offen")

    def gemv_issue2(self, W):
        A = self.A
        A("v_mul_u32_u24 v14, 49152, v8")
        A("v_lshl_add_u32 v14, v9, 4, v14")
        A(f"s_mul_i32 {s(sT0)}, {s(sT0)}, {64*6144}")
        A(f"s_lshr_b32 {s(sT1)}, s2, 1")
        A(f"s_lshl_b32 {s(sT1)}, {s(sT1)}, 7")
        A(f"s_add_u32 {s(sT0)}, {s(sT0)}, {s(sT1)}")
        for i in range(8):
            A(f"buffer_load_dwordx4 {v(W+4*i,4)}, v14, {s(S_WM,4)}, {s(sT0)} offen")
            if i < 7:
                A(f"s_add_u32 {s(sT0)}, {s(sT0)}, 6144")

    def gemv_compute(self, W, after):
        A = self.A
        A("v_lshlrev_b32 v13, 16, v12")
        A(f"v_and_b32 v14, {v(VMASK)}, v12")
        A("v_mul_f32 v15, 0xbfb8aa3b, v13\nv_mul_f32 v16, 0xbfb8aa3b, v14")
        A("v_exp_f32 v15, v15\nv_exp_f32 v16, v16")
        A(f"s_mov_b32 {s(sT0)}, 0x05040100\ns_mov_b32 {s(sT1)}, 0x07060302")
        A("v_add_f32 v15, 1.0, v15\nv_add_f32 v16, 1.0, v16")
        A("v_rcp_f32 v15, v15\nv_rcp_f32 v16, v16")
        for c in range(8):
            A(f"v_mov_b32 {v(24+c)}, 0")
        A("v_mul_f32 v13, v13, v15\nv_mul_f32 v14, v14, v16")
        A("v_cvt_pk_bf16_f32 v12, v13, v14")
        for q in range(4):
            A(f"v_mov_b32_dpp {v(16+q)}, v12 quad_perm:[{q},{q},{q},{q}] row_mask:0xf bank_mask:0xf")
        for q in range(4):
            if after is not None:
                A(f"s_waitcnt vmcnt({after + 6 - 2*q})")
            for d in range(0, 4, 2):
                for e in range(2):
                    ra, rb_ = W + 8*q + d + e, W + 8*q + 4 + d + e
                    A(f"v_perm_b32 {v(20+2*e)}, {v(rb_)}, {v(ra)}, {s(sT0)}")
                    A(f"v_perm_b32 {v(21+2*e)}, {v(rb_)}, {v(ra)}, {s(sT1)}")
                for e in range(4):
                    A(f"v_dot2c_f32_bf16 {v(24+2*d+e)}, {v(20+e)}, {v(16+q)}")
        for c in range(4):
            A(f"v_permlane32_swap_b32 {v(24+c)}, {v(28+c)}")
        A("v_pk_add_f32 v[24:25], v[24:25], v[28:29]\nv_pk_add_f32 v[26:27], v[26:27], v[30:31]")
        for c in range(2):
            A(f"v_permlane16_swap_b32 {v(24+c)}, {v(26+c)}")
        A("v_pk_add_f32 v[24:25], v[24:25], v[26:27]")
        for c in range(2):
            A(f"v_add_f32_dpp {v(26+c)}, {v(24+c)}, {v(24+c)} row_ror:8 row_mask:0xf bank_mask:0xf")

    def start(self):
        A = self.A
        A("s_cmp_ge_u32 s2, 256")
        A("s_cbranch_scc1 L_end")
        for r, off in ((S_WS, 96), (S_C, 64), (S_WM, 72), (S_X, 0), (S_W, 8), (S_DBG, 88), (S_PHI, 16)):
            A(f"s_load_dwordx2 {s(r,2)}, s[0:1], {off}")
        if self.diag:
            A(f"s_memrealtime {s(sRT,2)}")
            A(f"s_memtime {s(sTS,2)}")
            self.names["C"].append("start"); self.names["H"].append("start")
            self.names["C"].append("-"); self.names["H"].append("-")
        A("v_lshrrev_b32 v2, 6, v0")
        A("v_and_b32 v0, 63, v0")
        A(f"v_readfirstlane_b32 {s(sW)}, v2")
        A(f"s_and_b32 {s(sRB)}, s2, 7")
        A(f"s_lshr_b32 {s(sT0)}, s2, 7")
        A(f"s_lshl1_add_u32 {s(sRB)}, {s(sRB)}, {s(sT0)}")
        A(f"s_bfe_u32 {s(sJ)}, s2, 0x40003")
        A("v_mov_b32 v6, 0")
        A("v_lshrrev_b32 v8, 3, v0")
        A("v_and_b32 v9, 7, v0")
        A("v_lshlrev_b32 v1, 4, v0")
        A(f"v_mov_b32 {v(VMASK)}, 0xffff0000")
        A(f"s_and_b32 {s(sM)}, {s(sW)}, 3")
        A(f"s_lshl_b32 {s(sG)}, {s(sRB)}, 20")
        A(f"s_add_u32 {s(sG)}, {s(sG)}, {WS_G0:#x}")
        A(f"s_getreg_b32 {s(sFAST)}, hwreg(HW_REG_XCC_ID)")
        self.srd_consts([S_WS, S_C, S_WM, S_DBG])
        A(f"s_or_b32 {s(sFAST)}, {s(sFAST)}, 0x80")
        A(f"s_lshl2_add_u32 {s(sT0)}, {s(sW)}, {L_CW}")
        A(f"v_mov_b32 {v(VP)}, {s(sT0)}")
        A(f"ds_write_b32 {v(VP)}, v6")
        A(f"v_and_b32 {v(VQ)}, 3, v0")
        A(f"v_lshlrev_b32 {v(VQ)}, 2, {v(VQ)}")
        A(f"v_add_u32 {v(VQ)}, {L_CW}, {v(VQ)}")
        A(f"s_cmp_ge_u32 {s(sW)}, 4")
        A("s_cbranch_scc1 L_helper")

    PHIT, IDN, ONES, L2 = 112, 116, 120, 118

    def c_start(self):
        A = self.A
        self.srd_consts([S_X])
        A("v_lshlrev_b32 v2, 4, v9")
        A("v_lshl_add_u32 v3, v8, 10, v2")
        A(f"s_lshl4_add_u32 {s(sT2)}, {s(sRB)}, {s(sJ)}")
        A(f"s_lshl_b32 {s(sT2)}, {s(sT2)}, 13")
        A(f"s_lshl_b32 {s(sT3)}, {s(sM)}, 8")
        A(f"s_add_u32 {s(sT2)}, {s(sT2)}, {s(sT3)}")
        A(f"s_lshl_b32 {s(sA7)}, {s(sM)}, 11")
        A(f"s_add_u32 {s(sA7)}, {s(sA7)}, {L_XT}")
        A("s_waitcnt lgkmcnt(0)")
        A(f"buffer_load_dword {v(VTAG)}, v6, {s(S_WS,4)}, 0 offen sc1")
        A(f"s_mov_b32 m0, {s(sA7)}")
        A("s_cmp_ge_u32 s2, 32")
        A(f"buffer_load_dwordx4 v3, {s(S_X,4)}, {s(sT2)} offen lds")
        A(f"s_add_u32 m0, {s(sA7)}, {1024-128}")
        A("s_cmp_ge_u32 s2, 32")
        A(f"buffer_load_dwordx4 v3, {s(S_X,4)}, {s(sT2)} offen offset:128 lds")
        A("s_cbranch_scc1 L_p0a_skip")
        self.gemv_issue(32)
        self.gemv_issue2(32)
        A.label("L_p0a_skip")
        self.bar()
        A(f"s_load_dwordx2 {s(S_OUT,2)}, s[0:1], 80")
        A("v_lshrrev_b32 v10, 4, v0")
        A("v_and_b32 v11, 15, v0")
        self.srd_consts([S_OUT])
        A(f"v_lshl_add_u32 v90, v9, 7, {s(sA7)}")
        A("v_lshl_add_u32 v90, v8, 4, v90")
        A("v_lshlrev_b32 v2, 2, v10")
        A("v_sub_u32 v2, v11, v2")
        A("v_cmp_gt_u32 vcc, 4, v2")
        A("v_mov_b32 v20, 0x3f80")
        A("v_mov_b32 v21, 0")
        A("v_cndmask_b32 v20, 0, v20, vcc")
        A("v_lshlrev_b32 v2, 4, v2")
        A(f"v_lshlrev_b64 {v(self.IDN,2)}, v2, v[20:21]")
        for i in range(4):
            A(f"v_mov_b32 {v(self.ONES+i)}, 0x3f803f80")
        A(f"v_mov_b32 {v(self.L2)}, 0x3fb8aa3b")
        A(f"v_mov_b32 {v(self.L2+1)}, 0x3fb8aa3b")
        A("v_lshrrev_b32 v2, 2, v11")
        A("v_lshl_add_u32 v2, v10, 3, v2")
        A("v_lshlrev_b32 v2, 6, v2")
        A("v_and_b32 v3, 3, v0")
        A("v_lshl_add_u32 v2, v3, 3, v2")
        A("v_and_b32 v3, 1, v10")
        A("v_lshl_add_u32 v124, v3, 5, v2")
        A("v_xor_b32 v125, 32, v124")
        A("v_lshlrev_b32 v5, 2, v11")
        A("v_lshlrev_b32 v91, 5, v9")
        A("v_lshl_add_u32 v91, v10, 3, v91")
        A("v_lshlrev_b32 v92, 1, v91")
        A(f"s_add_u32 {s(sT0)}, {s(sT3)}, {L_SCR}")
        A(f"v_add_u32 v91, {s(sT0)}, v91")
        A("v_lshlrev_b32 v11, 4, v9")
        A(f"v_add_u32 v11, {L_STX}, v11")
        A("v_lshrrev_b32 v10, 5, v0")
        A("v_lshl_add_u32 v10, v10, 7, v11")
        A(f"s_lshl_b32 {s(sT0)}, {s(sM)}, 2")
        A(f"v_add_u32 v10, {s(sT0)}, v10")
        A(f"s_lshl_b32 {s(sA0)}, {s(sM)}, 10")
        A(f"s_add_u32 {s(sA7)}, {s(sA0)}, {L_TAB}")
        A(f"s_add_u32 {s(sA0)}, {s(sA0)}, {WS_MODU:#x}")
        A(f"s_add_u32 {s(sA8)}, {s(sA0)}, 4096")
        A(f"s_add_u32 {s(sA9)}, {s(sA0)}, 8192")
        A(f"s_add_u32 {s(sA10)}, {s(sA0)}, 12288")
        A(f"s_lshl_b32 {s(sA1)}, {s(sRB)}, 4")
        A(f"s_lshr_b32 {s(sA2)}, {s(sJ)}, 2")
        A(f"s_bfe_u32 {s(sT0)}, {s(sJ)}, 0x10001")
        A(f"s_lshl3_add_u32 {s(sA2)}, {s(sA2)}, {s(sT0)}")
        A(f"s_lshl2_add_u32 {s(sA2)}, {s(sA2)}, {s(sM)}")
        A(f"s_lshl_b32 {s(sA2)}, {s(sA2)}, 12")
        A(f"s_and_b32 {s(sT0)}, {s(sJ)}, 1")
        A(f"s_lshl_b32 {s(sT0)}, {s(sT0)}, 7")
        A(f"s_add_u32 {s(sA2)}, {s(sA2)}, {s(sT0)}")
        A(f"s_add_u32 {s(sA2)}, {s(sA2)}, {s(sG)}")
        A(f"s_lshr_b32 {s(sT0)}, {s(sJ)}, 2")
        A(f"s_lshl_b32 {s(sT0)}, {s(sT0)}, 7")
        A(f"s_and_b32 {s(sT1)}, {s(sJ)}, 3")
        A(f"s_lshl2_add_u32 {s(sT1)}, {s(sT1)}, {s(sM)}")
        A(f"s_lshl2_add_u32 {s(sT0)}, {s(sT1)}, {s(sT0)}")
        A(f"s_add_u32 {s(sA4)}, {s(sG)}, {G_FLH:#x}")
        A(f"s_add_u32 {s(sA3)}, {s(sA4)}, {s(sT0)}")
        A(f"s_lshl_b32 {s(sT0)}, {s(sM)}, 7")
        A(f"s_add_u32 {s(sA4)}, {s(sA4)}, {s(sT0)}")
        A(f"s_lshl_b32 {s(sA5)}, {s(sM)}, 17")
        A(f"s_add_u32 {s(sA5)}, {s(sA5)}, {s(sG)}")
        A(f"s_add_u32 {s(sA6)}, {s(sA5)}, 16384")
        A(f"s_lshl2_add_u32 {s(sA11)}, {s(sJ)}, {s(sM)}")
        A(f"s_lshl4_add_u32 {s(sA11)}, {s(sA11)}, {s(sRB)}")
        A(f"s_lshl_b32 {s(sA11)}, {s(sA11)}, 10")
        A(f"s_add_u32 {s(sA11)}, {s(sA11)}, {WS_KVP:#x}")
        A(f"s_mul_i32 {s(sFAST)}, {s(sFAST)}, 0x01010101")
        A("v_mov_b32 v72, 0\nv_mov_b32 v73, 0")
        A("s_cmp_ge_u32 s2, 32")
        A("s_cbranch_scc1 L_w1")
        A("s_waitcnt vmcnt(8)")
        A("s_branch L_w2")
        A.label("L_w1")
        A("s_waitcnt vmcnt(0)")
        A.label("L_w2")
        A("ds_read_b128 v[64:67], v90")
        A("ds_read_b128 v[68:71], v90 offset:1024")
        self.ts("x_land")
        A("s_waitcnt lgkmcnt(0)")
        for i in range(8):
            A(f"v_dot2c_f32_bf16 v72, {v(self.ONES)}, {v(64+i)}")
            A(f"v_dot2c_f32_bf16 v73, {v(64+i)}, {v(64+i)}")
        A(f"v_add_u32 {v(VTAG)}, 1, {v(VTAG)}")
        A("v_permlane32_swap_b32 v72, v73")
        A("v_add_f32 v72, v72, v73")
        A("v_mov_b32 v73, v72")
        A(f"v_readfirstlane_b32 {s(sTAG)}, {v(VTAG)}")
        A("v_permlane16_swap_b32 v72, v73")
        A("v_add_f32 v72, v72, v73")
        A("v_add_f32_dpp v73, v72, v72 row_ror:8 row_mask:0xf bank_mask:0xf")
        A("ds_write_b32 v10, v73")
        A("s_cbranch_scc1 L_p0b_skip")
        self.gemv_compute(32, 0)
        A("ds_write_b64 v91, v[26:27]")
        A.label("L_p0b_skip")
        self.signal(VP, 2, CV_S)
        self.lwait(VQ, 2, CV_S)
        A(f"s_lshr_b32 {s(sT0)}, s2, 5")
        A(f"s_or_b32 {s(sT0)}, {s(sT0)}, {s(sW)}")
        A("s_cbranch_scc1 L_p0c_skip")
        A("v_lshlrev_b32 v2, 2, v0")
        A(f"v_add_u32 v3, {L_SCR}, v2")
        A("ds_read2st64_b32 v[12:13], v3 offset0:0 offset1:1")
        A("ds_read2st64_b32 v[14:15], v3 offset0:2 offset1:3")
        A(f"s_lshr_b32 {s(sT0)}, s2, 4")
        A(f"s_and_b32 {s(sT1)}, s2, 1")
        A(f"s_lshl1_add_u32 {s(sT0)}, {s(sT0)}, {s(sT1)}")
        A(f"s_bfe_u32 {s(sT1)}, s2, 0x30001")
        A(f"s_lshl3_add_u32 {s(sT0)}, {s(sT0)}, {s(sT1)}")
        A(f"s_lshl_b32 {s(sT0)}, {s(sT0)}, 9")
        A(f"s_add_u32 {s(sT0)}, {s(sT0)}, {WS_MODU:#x}")
        A("v_lshlrev_b32 v2, 3, v0")
        A("s_waitcnt lgkmcnt(0)")
        A("v_pk_add_f32 v[12:13], v[12:13], v[14:15]")
        A("v_add_f32 v12, v12, v13")
        A(f"v_mov_b32 v13, {v(VTAG)}")
        A(f"buffer_store_dwordx2 v[12:13], v2, {s(S_WS,4)}, {s(sT0)} offen sc1")
        A.label("L_p0c_skip")
        self.ts("p0_done")
        A(f"s_sub_u32 {s(sT2)}, s2, 32")
        A(f"s_cmp_ge_u32 {s(sT2)}, 64")
        A("s_cbranch_scc1 L_lp_skip")
        self.gemv_issue(32)
        self.gemv_issue2(32)
        A.label("L_lp_skip")
        A("ds_read_b128 v[16:19], v11")
        A("ds_read_b128 v[20:23], v11 offset:128")
        for i in range(8):
            A(f"v_lshlrev_b32 {v(72+2*i)}, 16, {v(64+i)}")
            A(f"v_and_b32 {v(73+2*i)}, {v(VMASK)}, {v(64+i)}")
        A(f"v_lshl_add_u32 v2, v0, 3, {s(sA7)}")
        A(f"v_lshl_add_u32 v3, v8, 5, {s(sA7)}")
        A("v_lshlrev_b32 v93, 8, v8")
        A("v_lshl_add_u32 v93, v9, 4, v93")
        A("s_waitcnt lgkmcnt(0)")
        A("v_pk_add_f32 v[16:17], v[16:17], v[18:19]\nv_pk_add_f32 v[20:21], v[20:21], v[22:23]")
        A("v_add_f32 v16, v16, v17\nv_add_f32 v17, v20, v21")
        A("v_mul_f32 v16, 0x3b000000, v16\nv_mul_f32 v17, 0x3b000000, v17")
        A("v_fma_f32 v17, -v16, v16, v17")
        A("v_max_f32 v17, 0, v17")
        A("v_add_f32 v17, 0x3727c5ac, v17")
        A("v_rsq_f32 v17, v17")
        A("v_mul_f32_e64 v16, -v16, v17")
        for i in range(8):
            A(f"v_pk_fma_f32 {v(72+2*i,2)}, {v(72+2*i,2)}, v[16:17], v[16:17] op_sel:[0,1,0] op_sel_hi:[1,1,0]")
        A(f"s_cmp_ge_u32 {s(sT2)}, 64")
        A("s_cbranch_scc1 L_lp_skip2")
        A("s_waitcnt vmcnt(8)")
        self.gemv_compute(32, 0)
        A(f"s_lshl2_add_u32 {s(sT0)}, {s(sT2)}, {s(sM)}")
        A(f"s_lshl_b32 {s(sT0)}, {s(sT0)}, 9")
        A(f"s_add_u32 {s(sT0)}, {s(sT0)}, {WS_MODL:#x}")
        A(f"v_mov_b32 v62, v27\nv_mov_b32 v60, v26\nv_mov_b32 v61, {v(VTAG)}\nv_mov_b32 v63, {v(VTAG)}")
        A(f"buffer_store_dwordx4 v[60:63], v92, {s(S_WS,4)}, {s(sT0)} offen sc1")
        A.label("L_lp_skip2")
        A("v_mov_b32 v15, 0x80808080")
        A("v_lshlrev_b32 v14, 3, v0")
        A(f"v_add_u32 v14, {L_PHI}, v14")
        if self.o.get("s0late", 1):
            self.lwait(VQ, 13, HV_W, off=16, sleep=1)
        self.ts("s0_beg")
        A(f"s_mov_b32 {s(sCNT)}, {SPIN}")
        A("s_branch L_s0f")
        A.label("L_s0")
        A("s_sleep 4")
        A.label("L_s0f")
        for i, sr in enumerate((sA0, sA8, sA9, sA10)):
            A(f"buffer_load_dwordx4 {v(16+4*i,4)}, v1, {s(S_WS,4)}, {s(sr)} offen sc1")
        A(f"buffer_load_dwordx4 v[32:35], v6, {s(S_DBG,4)}, {s(sA1)} offen sc1")
        A(f"s_sub_u32 {s(sCNT)}, {s(sCNT)}, 1")
        A("s_cbranch_scc1 L_s0d")
        A("s_waitcnt vmcnt(0)")
        A("v_bitop3_b32 v36, v32, v33, v34 bitop3:0x80")
        A(f"v_xor_b32 v37, {v(VTAG)}, v17")
        A("v_bitop3_b32 v36, v36, v35, v15 bitop3:0x2a")
        for i in range(1, 8):
            acc = 36 + (i & 1)
            A(f"v_bitop3_b32 {v(acc)}, {v(acc)}, {v(17+2*i)}, {v(VTAG)} bitop3:0xf6")
        A("v_or_b32 v36, v36, v37")
        A("v_cmp_ne_u32 vcc, 0, v36")
        A("s_cbranch_vccnz L_s0")
        A.label("L_s0d")
        A("s_waitcnt vmcnt(0)")
        self.ts("s0_ok")
        A("v_add_f32 v24, v24, v28\nv_add_f32 v26, v26, v30\nv_add_f32 v16, v16, v20\nv_add_f32 v18, v18, v22")
        A("v_cvt_pk_bf16_f32 v24, v24, v26\nv_cvt_pk_bf16_f32 v16, v16, v18")
        A(f"v_and_b32 v25, {v(VMASK)}, v24\nv_lshlrev_b32 v24, 16, v24")
        A(f"v_and_b32 v17, {v(VMASK)}, v16\nv_lshlrev_b32 v16, 16, v16")
        A("v_add_f32 v24, 1.0, v24\nv_add_f32 v25, 1.0, v25")
        A("ds_write_b64 v2, v[16:17]")
        A("v_cvt_pk_bf16_f32 v24, v24, v25")
        A(f"v_and_b32 v25, {v(VMASK)}, v24\nv_lshlrev_b32 v24, 16, v24")
        A("ds_write_b64 v2, v[24:25] offset:512")
        A(f"v_xor_b32 v32, {s(sFAST)}, v32")
        for i in range(1, 4):
            A(f"v_bitop3_b32 v32, v32, {v(32+i)}, {s(sFAST)} bitop3:0xf6")
        for e in range(2):
            for q in range(2):
                A(f"ds_read_b128 {v(16+8*e+4*q,4)}, v3 offset:{e*256 + q*16}")
                A(f"ds_read_b128 {v(40+8*e+4*q,4)}, v3 offset:{512 + e*256 + q*16}")
        A("v_cmp_ne_u32 vcc, 0, v32")
        A("s_cmp_eq_u64 vcc, 0")
        A(f"s_cselect_b32 {s(sFAST)}, {0 if self.force_slow else 1}, 0")
        for q in range(4):
            A(f"s_waitcnt lgkmcnt({6-2*q})")
            for i in range(2):
                r = 4*q + 2*i
                A(f"v_pk_fma_f32 {v(16+r,2)}, {v(72+r,2)}, {v(40+r,2)}, {v(16+r,2)}")
            for i in range(2):
                r = 4*q + 2*i
                A(f"v_cvt_pk_bf16_f32 {v(32+r//2)}, {v(16+r)}, {v(17+r)}")

        def st(sfx):
            A(f"buffer_store_dwordx4 v[32:35], v93, {s(S_WS,4)}, {s(sA2)} offen{sfx}")
            A(f"buffer_store_dwordx4 v[36:39], v93, {s(S_WS,4)}, {s(sA2)} offen offset:2048{sfx}")
        self.store_flag(st, sA3, 6, VTAG)

    def c_p1(self):
        A = self.A
        PHIT, IDN, ONES, L2 = self.PHIT, self.IDN, self.ONES, self.L2
        if not self.o.get("s0late", 1):
            self.lwait(VQ, 13, HV_W, off=16, sleep=1)
        for h in range(2):
            A(f"ds_read_b64_tr_b16 {v(PHIT+2*h,2)}, v14 offset:{h*512}")
        A("s_waitcnt lgkmcnt(0)")
        LA = self.o.get("la1", 4)

        def ld(u):
            o = [f"buffer_load_dwordx4 {a((u*2+t)*4,4)}, v1, {s(S_WS,4)}, {s(sA5+t)} offen offset:{(u&3)*1024} sc1" for t in range(2)]
            if (u & 3) == 3 and u < 15:
                o += [f"s_add_u32 {s(sA5)}, {s(sA5)}, 4096", f"s_add_u32 {s(sA6)}, {s(sA6)}, 4096"]
            return o

        def rd_b(u):
            p = 64 + (u % 3) * 16
            return [f"ds_read_b64_tr_b16 {v(p + (mi*2+h)*4 + hh*2, 2)}, {v(124+h)} offset:{base + u*2048 + hh*256}"
                    for mi, base in enumerate((L_WK, L_WV)) for h in range(2) for hh in range(2)]
        self.emit(rd_b(0) + rd_b(1))
        self.poll(5, sA4, 10)
        for u in range(LA):
            self.emit(ld(u))
        self.ts("h_flags")
        for u in range(16):
            A(f"s_waitcnt vmcnt({2*(min(15, u+LA-1) - u)}) lgkmcnt({(8 if u < 15 else 0) + (1 if u + LA == 16 else 0)})")
            p = 64 + (u % 3) * 16
            mf = []
            for h in range(2):
                for t in range(2):
                    d = 32 + (h * 2 + t) * 4
                    mf.append(f"v_mfma_f32_16x16x32_bf16 {v(d,4)}, {v(p+h*4,4)}, {a((u*2+t)*4,4)}, {v(d,4) if u else 0}")
            for h in range(2):
                for t in range(2):
                    d = 48 + (h * 2 + t) * 4
                    mf.append(f"v_mfma_f32_16x16x32_bf16 {v(d,4)}, {a((u*2+t)*4,4)}, {v(p+8+h*4,4)}, {v(d,4) if u else 0}")
            self.emit(weave(mf, (ld(u + LA) if u + LA < 16 else []) + (rd_b(u + 2) if u + 2 < 16 else [])))
            if u + LA == 15:
                self.signal(VP, 10, CV_A2)
        A(f"s_mul_i32 {s(sT0)}, {s(sM)}, {KVR_W}")
        A(f"s_add_u32 {s(sT0)}, {s(sT0)}, {L_KVR}")
        A(f"v_add_u32 v2, {s(sT0)}, v1")
        A("v_and_b32 v3, 48, v0")
        A(f"v_add_u32 v3, {s(sT0)}, v3")
        self.ts("kv_gemm")
        for i in range(8):
            A(f"v_cvt_pk_bf16_f32 {v(8+i)}, {v(32+2*i)}, {v(33+2*i)}")
        for h in range(2):
            for t in range(2):
                A(f"v_mfma_f32_16x16x16_bf16 {v(64+8*h+4*t,4)}, {v(PHIT+2*h,2)}, {v(8+4*h+2*t,2)}, 0")
        for i in range(8):
            A(f"v_cvt_pk_bf16_f32 {v(48+i)}, {v(48+2*i)}, {v(49+2*i)}")
        self.emit(zip_streams(*[self.softmax2(64+8*h, 80+8*h, 96+8*h, 16+8*h, 32+8*h, L2) for h in range(2)]))
        for h in range(2):
            for i, p in enumerate((0, 4, 2, 6)):
                A(f"v_mfma_f32_16x16x16_bf16 {v(64+16*h+4*i,4)}, {v(32+8*h+p,2)}, {v(IDN,2)}, 0")
        for i in range(16):
            A(f"v_cvt_pk_bf16_f32 {v(96+i)}, {v(64+2*i)}, {v(65+2*i)}")
        for h in range(2):
            for sg in range(2):
                A(f"v_mfma_f32_16x16x32_bf16 {v(16+8*h+4*sg,4)}, {v(96+8*h+4*sg,4)}, {v(48+4*h,4)}, 0")
        for h in range(2):
            for sg in range(2):
                A(f"v_mfma_f32_16x16x32_bf16 {v(32+8*h+4*sg,4)}, {v(96+8*h+4*sg,4)}, {v(ONES,4)}, 0")
        for i in range(4):
            A(f"ds_write_b128 v2, {v(16+4*i,4)} offset:{i*1024}")
        for i in range(4):
            A(f"ds_write_b128 v3, {v(32+4*i,4)} offset:{4096 + i*64}")
        self.signal(VP, 8, CV_KV)
        A(f"s_lshl_b32 {s(sT0)}, {s(sM)}, 10")
        A(f"s_add_u32 {s(sT0)}, {s(sT0)}, {L_KVR}")
        A(f"v_add_u32 v10, {s(sT0)}, v1")
        A("v_and_b32 v11, 3, v0")
        A("v_and_b32 v9, 48, v0")
        A("v_lshl_add_u32 v11, v11, 2, v9")
        A(f"s_lshl_b32 {s(sT0)}, {s(sM)}, 6")
        A(f"s_add_u32 {s(sT0)}, {s(sT0)}, {L_KVR + 4096}")
        A(f"v_add_u32 v11, {s(sT0)}, v11")
        self.lwait(VQ, 9, CV_KV, extra=[f"ds_read_b128 {v(64+4*i,4)}, v10 offset:{i*KVR_W}" for i in range(4)]
                   + [f"ds_read_b32 {v(80+i)}, v11 offset:{i*KVR_W}" for i in range(4)])
        A(f"v_add_u32 v124, {L_WQ}, v124")
        A(f"v_add_u32 v125, {L_WQ}, v125")
        A(f"v_mov_b32 v15, {v(VTAG)}")
        A("s_waitcnt lgkmcnt(4)")
        for i in range(2):
            A(f"v_pk_add_f32 {v(64+2*i,2)}, {v(64+2*i,2)}, {v(68+2*i,2)}")
            A(f"v_pk_add_f32 {v(72+2*i,2)}, {v(72+2*i,2)}, {v(76+2*i,2)}")
        for i in range(2):
            A(f"v_pk_add_f32 {v(64+2*i,2)}, {v(64+2*i,2)}, {v(72+2*i,2)}")
        A("s_waitcnt lgkmcnt(0)")
        A("v_pk_add_f32 v[80:81], v[80:81], v[82:83]")
        A("v_cvt_pk_bf16_f32 v12, v64, v65\nv_cvt_pk_bf16_f32 v13, v66, v67")
        A("v_add_f32 v14, v80, v81")
        A(f"buffer_store_dwordx4 v[12:15], v1, {s(S_WS,4)}, {s(sA11)} offen sc1")
        self.ts("kv_pub")
        self.lwait(VQ, 9, HV_Q, off=16, sleep=1)

        def rd_q(u):
            p = 64 + (u & 3) * 8
            return [f"ds_read_b64_tr_b16 {v(p + h*4 + hh*2, 2)}, {v(124+h)} offset:{u*2048 + hh*256}" for h in range(2) for hh in range(2)]
        self.emit(rd_q(0) + rd_q(1) + rd_q(2))
        for u in range(16):
            A(f"s_waitcnt lgkmcnt({min(8, 4*(15-u))})")
            p = 64 + (u & 3) * 8
            mf = []
            for t in range(2):
                for h in range(2):
                    d = 32 + (t * 2 + h) * 4
                    mf.append(f"v_mfma_f32_16x16x32_bf16 {v(d,4)}, {v(p+h*4,4)}, {a((u*2+t)*4,4)}, {v(d,4) if u else 0}")
            self.emit(weave(mf, rd_q(u + 3) if u + 3 < 16 else []))
        self.c_addr_setup()
        for i in range(8):
            A(f"v_cvt_pk_bf16_f32 {v(8+i)}, {v(32+2*i)}, {v(33+2*i)}")
        for t in range(2):
            for h in range(2):
                A(f"v_mfma_f32_16x16x16_bf16 {v(64+8*t+4*h,4)}, {v(PHIT+2*h,2)}, {v(8+4*t+2*h,2)}, 0")
        self.emit(zip_streams(*[self.softmax2(64+8*t, 80+8*t, 96+8*t, 16+8*t, 32+8*t, L2) for t in range(2)]))
        A(f"v_add_u32 v8, {L_KVF}, v1")
        A("v_and_b32 v9, 48, v0")
        A(f"v_add_u32 v9, {L_KVF + 2048}, v9")
        self.ts("q_done")
        self.lwait(VQ, 10, HV_G, off=16, extra=["ds_read_b128 v[24:27], v9", "ds_read_b128 v[28:31], v9 offset:64",
                                                 "ds_read_b128 v[16:19], v8", "ds_read_b128 v[20:23], v8 offset:1024"])
        self.ts("kvf")
        A("s_waitcnt lgkmcnt(2)")
        for t in range(2):
            for h in range(2):
                A(f"v_mfma_f32_16x16x32_bf16 {v(80+8*t+4*h,4)}, {v(24+4*h,4)}, {v(32+8*t+4*h,4)}, 0")
        A("s_waitcnt lgkmcnt(0)")
        for t in range(2):
            for h in range(2):
                A(f"v_mfma_f32_16x16x32_bf16 {v(64+8*t+4*h,4)}, {v(16+4*h,4)}, {v(32+8*t+4*h,4)}, 0")
        for i in range(4):
            A(f"v_add_f32 {v(80+4*i)}, 0x358637bd, {v(80+4*i)}")
        for i in range(4):
            A(f"v_rcp_f32 {v(80+4*i)}, {v(80+4*i)}")
        for i in range(4):
            for h in range(2):
                A(f"v_pk_mul_f32 {v(64+4*i+2*h,2)}, {v(64+4*i+2*h,2)}, {v(80+4*i,2)} op_sel:[0,0] op_sel_hi:[1,0]")
        for i in range(8):
            A(f"v_cvt_pk_bf16_f32 {v(16+i)}, {v(64+2*i)}, {v(65+2*i)}")

        def st(sfx):
            A(f"buffer_store_dwordx4 v[16:19], v1, {s(S_WS,4)}, {s(sA0)} offen{sfx}")
            A(f"buffer_store_dwordx4 v[20:23], v1, {s(S_WS,4)}, {s(sA1)} offen{sfx}")
        self.store_flag(st, sA2, 6, VTAG)

    def c_addr_setup(self):
        A = self.A
        A(f"s_lshl_b32 {s(sT0)}, {s(sM)}, 7")
        A(f"s_add_u32 {s(sT1)}, {s(sT0)}, {s(sJ)}")
        A(f"s_lshl_b32 {s(sA0)}, {s(sT1)}, 10")
        A(f"s_add_u32 {s(sA0)}, {s(sA0)}, {s(sG)}")
        A(f"s_add_u32 {s(sA0)}, {s(sA0)}, {G_O:#x}")
        A(f"s_add_u32 {s(sA1)}, {s(sA0)}, 16384")
        A(f"s_add_u32 {s(sT0)}, {s(sT0)}, {s(sG)}")
        A(f"s_add_u32 {s(sA9)}, {s(sT0)}, {G_FL2:#x}")
        A(f"s_lshl2_add_u32 {s(sT0)}, {s(sJ)}, {s(sT0)}")
        A(f"s_add_u32 {s(sA2)}, {s(sT0)}, {G_FLO:#x}")
        A(f"s_add_u32 {s(sA10)}, {s(sT0)}, {G_FL3:#x}")
        A(f"s_lshr_b32 {s(sW)}, {s(sM)}, 1")
        A(f"s_lshr_b32 {s(sT1)}, {s(sJ)}, 3")
        A(f"s_and_b32 {s(sT0)}, {s(sM)}, 1")
        A(f"s_lshl1_add_u32 {s(sT1)}, {s(sT1)}, {s(sT0)}")
        A(f"s_and_b32 {s(sT2)}, {s(sJ)}, 7")
        A(f"s_lshl1_add_u32 {s(sT3)}, {s(sT2)}, {s(sW)}")
        A(f"s_lshl_b32 {s(sT0)}, {s(sT1)}, 7")
        A(f"s_add_u32 {s(sT0)}, {s(sT0)}, {s(sG)}")
        A(f"s_add_u32 {s(sA3)}, {s(sT0)}, {G_FLO:#x}")
        A(f"s_add_u32 {s(sA11)}, {s(sT0)}, {G_FL3:#x}")
        A(f"s_lshl2_add_u32 {s(sT0)}, {s(sT3)}, {s(sT0)}")
        A(f"s_add_u32 {s(sA8)}, {s(sT0)}, {G_FL2:#x}")
        A(f"s_lshl_b32 {s(sT0)}, {s(sT1)}, 12")
        A(f"s_add_u32 {s(sT0)}, {s(sT0)}, {s(sG)}")
        A(f"s_add_u32 {s(sA6)}, {s(sT0)}, {G_ST:#x}")
        A(f"s_lshl_b32 {s(sT0)}, {s(sT2)}, 9")
        A(f"s_add_u32 {s(sA7)}, {s(sA6)}, {s(sT0)}")
        A(f"s_lshl2_add_u32 {s(sT0)}, {s(sRB)}, {s(sT1)}")
        A(f"s_lshl_b32 s3, {s(sT0)}, 15")
        A(f"s_lshl_b32 {s(sT0)}, {s(sT3)}, 6")
        A(f"s_add_u32 s3, s3, {s(sT0)}")
        A(f"s_lshl_b32 {s(sEX)}, {s(sT1)}, 17")
        A(f"s_add_u32 {s(sEX)}, {s(sEX)}, {s(sG)}")
        A(f"s_lshl_b32 {s(sT0)}, {s(sW)}, 9")
        A(f"s_add_u32 {s(sA4)}, {s(sEX)}, {s(sT0)}")
        A(f"s_add_u32 {s(sA4)}, {s(sA4)}, {G_O:#x}")
        A(f"s_lshl_b32 {s(sT0)}, {s(sT3)}, 11")
        A(f"s_add_u32 {s(sA5)}, {s(sEX)}, {s(sT0)}")
        self.rot_setup()
        self.rm_voff(123)
        A(f"buffer_load_dwordx4 v[56:59], v123, {s(S_X,4)}, s3 offen")
        A(f"buffer_load_dwordx4 v[60:63], v123, {s(S_X,4)}, s3 offen offset:32")
        A("v_bfe_u32 v3, v0, 4, 1")
        A("v_lshlrev_b32 v122, 14, v3")
        A("v_lshl_add_u32 v122, v2, 8, v122")
        A("v_and_b32 v3, 15, v0")
        A("v_lshl_add_u32 v122, v3, 4, v122")
        self.slab_bases(120, 10)

    def rm_voff(self, d):
        A = self.A
        A(f"v_and_b32 {v(d)}, 31, v0")
        A(f"v_lshlrev_b32 {v(d)}, 10, {v(d)}")
        A("v_lshrrev_b32 v2, 5, v0")
        A(f"v_lshl_add_u32 {v(d)}, v2, 4, {v(d)}")

    def rot_setup(self):
        A = self.A
        A(f"s_lshr_b32 {s(sT1)}, {s(sRB)}, 1")
        A(f"s_lshl_b32 {s(sRB)}, {s(sT1)}, 1")
        A(f"s_mul_i32 {s(sEX+1)}, {s(sT1)}, 5")

    def slab_bases(self, dst, khshift):
        A = self.A
        A("v_lshrrev_b32 v2, 5, v0")
        A("v_bfe_u32 v3, v0, 2, 2")
        A("v_lshl_add_u32 v2, v2, 2, v3")
        A(f"s_lshl_b32 {s(sT0)}, {s(sW)}, {khshift}")
        A(f"v_lshl_add_u32 v2, v2, 7, {s(sT0)}")
        A("v_bfe_u32 v3, v0, 3, 1")
        A(f"v_xor_b32 v3, {s(sW)}, v3")
        A("v_lshl_add_u32 v2, v3, 6, v2")
        A("v_bfe_u32 v3, v0, 4, 1")
        A("v_lshl_add_u32 v2, v3, 5, v2")
        A("v_and_b32 v3, 3, v0")
        A(f"v_lshl_add_u32 {v(dst)}, v3, 3, v2")
        A(f"v_xor_b32 {v(dst+1)}, 64, {v(dst)}")

    def g32(self, n, AF, ld, LA, rd, ring=False):
        A = self.A
        q = [("rd", i) for i in range(3) for _ in range(4)]
        for i in range(n):
            last = max(k for k, x in enumerate(q) if x == ("rd", i))
            A(f"s_waitcnt vmcnt({min(n-1, i+LA-1) - i}) lgkmcnt({len(q) - 1 - last})")
            q = q[last + 1:]
            mf = [f"v_mfma_f32_32x32x16_bf16 {v(32+16*T,16)}, {v(self.BR + (i&3)*8 + 4*T,4)}, {AF(i)}, {v(32+16*T,16) if i else 0}" for T in range(2)]
            oth = ld(i + LA) if i + LA < n else []
            if ring and i % 3 == 2 and 16 + i // 3 <= 18:
                oth += [f"v_mov_b32 v25, {32 + i//3}", f"ds_write_b32 {v(VP)}, v25"]
                q.append(("sig", i))
            if i + 3 < n:
                if ring and (i + 3) % 3 == 0:
                    A(mf[0]); mf = mf[1:]
                    self.check(24, 32 + (i + 3) // 3)
                    oth += [f"ds_read_b32 v24, {v(VQ)} offset:16"]
                    q.append(("probe", i))
                r = rd(i + 3)
                oth += r
                q += [("rd", i + 3)] * 4
            self.emit(weave(mf, oth, per=5))

    def check(self, vtmp, val):
        A = self.A
        Ld = A.uniq("L_ck")
        A(f"v_cmp_gt_u32 vcc, {val}, {v(vtmp)}")
        A(f"s_cbranch_vccz {Ld}")
        self.lwait(VQ, vtmp, val, off=16)
        A.label(Ld)

    def exchange(self, base, val=None):
        A = self.A
        A(f"s_lshl_b32 {s(sT0)}, {s(sM)}, 11")
        A(f"v_add_u32 v2, {s(sT0)}, v1")
        A("v_xor_b32 v3, 0x1000, v2")
        A(f"v_add_u32 v26, {base[1]}, v2")
        A(f"v_add_u32 v27, {base[1]}, v3")
        A(f"v_add_u32 v2, {base[0]}, v2")
        A(f"v_add_u32 v3, {base[0]}, v3")
        for i in range(4):
            A(f"ds_write_b128 {v(2 if i < 2 else 26)}, {v(48+4*i,4)} offset:{(i&1)*1024}")
        rds = [f"ds_read_b128 {v(64+4*i,4)}, {v(3 if i < 2 else 27)} offset:{(i&1)*1024}" for i in range(4)]
        self.signal(VP, 24, val)
        self.lwait(VQ, 24, val, extra=rds)

    def mt_addr(self):
        A = self.A
        A(f"s_lshl_b32 {s(sT0)}, {s(sW)}, 7")
        A(f"s_add_u32 {s(sT0)}, {s(sT0)}, {L_MT}")
        A("v_lshrrev_b32 v123, 5, v0")
        A(f"v_lshl_add_u32 v123, v123, 4, {s(sT0)}")

    def c_p2(self):
        A = self.A
        self.BR = 64

        def rd(u):
            return [f"ds_read_b64_tr_b16 {v(64 + (u&3)*8 + T*4 + hh*2, 2)}, {v(120+T)} offset:{u*4096 + hh*2048}" for T in range(2) for hh in range(2)]

        def ld(i):
            o = [f"buffer_load_dwordx4 {a(4*i,4)}, v122, {s(S_WS,4)}, {s(sA4)} offen offset:{(i&3)*1024} sc1"]
            if (i & 3) == 3 and i < 15:
                o.append(f"s_add_u32 {s(sA4)}, {s(sA4)}, 4096")
            return o
        self.mt_addr()
        for q in range(4):
            A(f"ds_read_b128 {v(96+4*q,4)}, v123 offset:{q*32}")
        for e in range(2):
            A(f"v_permlane32_swap_b32 {v(56+4*e)}, {v(58+4*e)}")
            A(f"v_permlane32_swap_b32 {v(57+4*e)}, {v(59+4*e)}")
        self.emit(rd(0) + rd(1) + rd(2))
        for i in range(8):
            A(f"v_lshlrev_b32 {v(8+2*i)}, 16, {v(56+i)}")
            A(f"v_and_b32 {v(9+2*i)}, {v(VMASK)}, {v(56+i)}")
        LA = self.o.get("la2", 8)
        self.poll(5, sA3, 24)
        for i in range(LA):
            self.emit(ld(i))
        self.ts("o_flags")
        self.g32(16, lambda i: a(4*i, 4), ld, LA, rd)
        self.ts("p2_gemm")
        self.exchange(L_EX2, CV_X2)
        for vec in range(2):
            for q in range(4):
                A(f"ds_read_b128 {v(48+32*vec+4*q,4)}, v123 offset:{(vec+1)*256 + q*32}")
        A("v_mov_b32 v24, 0\nv_mov_b32 v25, 0\nv_mov_b32 v28, 0x3f803f80")
        A(f"v_mov_b32 v26, {v(VTAG)}\nv_mov_b32 v27, {v(VTAG)}")
        A(f"s_and_b32 {s(sT0)}, {s(sM)}, 1")
        A(f"s_lshl_b32 {s(sT0)}, {s(sT0)}, 8")
        A(f"s_add_u32 {s(sT0)}, {s(sT0)}, {L_SX}")
        A(f"v_lshl_add_u32 v29, v0, 2, {s(sT0)}")
        for q in range(4):
            A(f"s_waitcnt lgkmcnt({11-q})")
            for i in range(2*q, 2*q+2):
                A(f"v_pk_add_f32 {v(32+2*i,2)}, {v(32+2*i,2)}, {v(64+2*i,2)}")
            for i in range(2*q, 2*q+2):
                A(f"v_pk_fma_f32 {v(8+2*i,2)}, {v(32+2*i,2)}, {v(96+2*i,2)}, {v(8+2*i,2)}")
        for i in range(8):
            A(f"v_cvt_pk_bf16_f32 {v(112+i)}, {v(8+2*i)}, {v(9+2*i)}")
        for i in range(8):
            A(f"v_dot2c_f32_bf16 v24, v28, {v(112+i)}")
            A(f"v_dot2c_f32_bf16 v25, {v(112+i)}, {v(112+i)}")
        A("v_permlane32_swap_b32 v24, v25")
        A("v_add_f32 v24, v24, v25")
        A(f"s_cmp_eq_u32 {s(sW)}, 0")
        A("s_cbranch_scc1 L_sx0")
        A("ds_write_b32 v29, v24")
        self.signal(VP, 30, CV_SX)
        A("s_branch L_sx1")
        A.label("L_sx0")
        A(f"v_add_u32 v31, 8, {v(VP)}")
        self.lwait(31, 30, CV_SX, extra=["ds_read_b32 v25, v29"])
        A("s_waitcnt lgkmcnt(0)")
        A("v_add_f32 v24, v24, v25")
        A("v_mov_b32 v25, v24")
        A("v_permlane32_swap_b32 v24, v25")
        A("s_mov_b32 exec_hi, 0")
        self.dual(lambda sfx: A(f"buffer_store_dwordx4 v[24:27], v1, {s(S_WS,4)}, {s(sA7)} offen{sfx}"))
        A("s_mov_b64 exec, -1")
        A.label("L_sx1")
        for i in range(8):
            A(f"v_lshlrev_b32 {v(8+2*i)}, 16, {v(112+i)}")
            A(f"v_and_b32 {v(9+2*i)}, {v(VMASK)}, {v(112+i)}")
        A(f"s_lshl_b32 {s(sT0)}, {s(sM)}, 11")
        A(f"s_add_u32 {s(sT0)}, {s(sT0)}, {L_X1}")
        A(f"v_add_u32 v2, {s(sT0)}, v1")
        A("ds_write_b128 v2, v[112:115]")
        A("ds_write_b128 v2, v[116:119] offset:1024")
        A(f"s_mov_b32 {s(sCNT)}, {SPIN}")
        A.label("L_st")
        for i in range(4):
            A(f"buffer_load_dwordx4 {v(32+4*i,4)}, v1, {s(S_WS,4)}, {s(sA6)} offen offset:{i*1024} sc1")
        A(f"s_sub_u32 {s(sCNT)}, {s(sCNT)}, 1")
        A("s_cbranch_scc1 L_std")
        A("s_waitcnt vmcnt(0)")
        A(f"v_xor_b32 v28, {v(VTAG)}, v34")
        for i in range(1, 4):
            A(f"v_bitop3_b32 v28, v28, {v(34+4*i)}, {v(VTAG)} bitop3:0xf6")
        A("v_cmp_ne_u32 vcc, 0, v28")
        A("s_cbranch_vccnz L_st")
        A.label("L_std")
        A("s_waitcnt vmcnt(0) lgkmcnt(0)")
        A("v_pk_add_f32 v[32:33], v[32:33], v[36:37]\nv_pk_add_f32 v[40:41], v[40:41], v[44:45]")
        A("v_pk_add_f32 v[30:31], v[32:33], v[40:41]")
        A("v_permlane32_swap_b32 v30, v31")
        A("v_add_f32 v30, v30, v31")
        A("v_mul_f32 v30, 0x3b000000, v30")
        A("v_mov_b32 v31, v30")
        A("v_permlane32_swap_b32 v30, v31")
        A("v_fma_f32 v31, -v30, v30, v31")
        A("v_max_f32 v31, 0, v31")
        A("v_add_f32 v31, 0x3727c5ac, v31")
        A("v_rsq_f32 v31, v31")
        A("v_mul_f32_e64 v30, -v30, v31")
        for i in range(8):
            A(f"v_pk_fma_f32 {v(8+2*i,2)}, {v(8+2*i,2)}, v[30:31], v[30:31] op_sel:[0,1,0] op_sel_hi:[1,1,0]")
        for i in range(8):
            A(f"v_pk_fma_f32 {v(8+2*i,2)}, {v(8+2*i,2)}, {v(80+2*i,2)}, {v(48+2*i,2)}")
        for i in range(8):
            A(f"v_cvt_pk_bf16_f32 {v(32+i)}, {v(8+2*i)}, {v(9+2*i)}")

        def st(sfx):
            A(f"buffer_store_dwordx4 v[32:35], v1, {s(S_WS,4)}, {s(sA5)} offen{sfx}")
            A(f"buffer_store_dwordx4 v[36:39], v1, {s(S_WS,4)}, {s(sA5)} offen offset:1024{sfx}")
        self.store_flag(st, sA8, 6, VTAG)
        self.ts("h2_pub")

    def c_p3(self):
        A = self.A
        NE = self.o.get("ne", 3)
        A(f"s_lshl_b32 {s(sT1)}, {s(sM)}, 17")
        A(f"s_add_u32 {s(sT1)}, {s(sT1)}, {s(sG)}")
        A(f"v_add_u32 v3, {s(sT1)}, v1")
        A(f"s_lshl_b32 {s(sT0)}, {s(sRB)}, 11")
        A(f"s_mul_i32 {s(sT1)}, {s(sJ)}, 6144")
        A(f"s_add_u32 {s(sT1)}, {s(sT1)}, {G_HH:#x}")
        A(f"s_add_u32 {s(sT2)}, {s(sT1)}, 4096")
        A("v_lshrrev_b32 v2, 5, v0")
        A("v_bfe_u32 v1, v0, 2, 2")
        A("v_lshl_add_u32 v2, v2, 2, v1")
        A("v_mul_u32_u24 v2, 192, v2")
        A("v_bfe_u32 v1, v0, 4, 1")
        A("v_lshl_add_u32 v2, v1, 5, v2")
        A("v_and_b32 v1, 3, v0")
        A("v_lshl_add_u32 v2, v1, 3, v2")
        A(f"v_add_u32 v2, {slot_addr(0)}, v2")
        LA = self.o.get("la3", 6)

        def ld(k):
            A(f"buffer_load_dwordx4 {a(4*k,4)}, v3, {s(S_WS,4)}, {s(sT0)} offen offset:{(k&1)*1024} sc1")
            if k & 1 and k < 31:
                A(f"s_add_u32 {s(sT0)}, {s(sT0)}, 2048")
                A(f"s_and_b32 {s(sT0)}, {s(sT0)}, 0x7fff")
        seq = [(k, T, mt) for k in range(32) for T in range(3) for mt in range(2)]
        cur = {"base": slot_addr(0)}
        NB, NPF = 6, 5
        q = []

        def rd(idx):
            k, T, mt = seq[idx]
            u, st = k >> 1, k & 1
            if idx % 12 == 0 and u >= NE:
                self.check(5, 16 + u)
            if idx % 12 == 6 and NE <= u + 1 < 16:
                A(f"ds_read_b32 v5, {v(VQ)} offset:16")
                q.append(("probe", u + 1))
            addr = slot_addr(u) + mt * 6144 + st * 3072 + T * 64
            if not (0 <= addr - cur["base"] and addr - cur["base"] + 3072 < 65536):
                nb = slot_addr(u)
                d = nb - cur["base"]
                A(f"v_add_u32 v2, {d}, v2" if d >= 0 else f"v_subrev_u32 v2, {-d}, v2")
                cur["base"] = nb
            o = addr - cur["base"]
            b = 8 + (idx % NB) * 4
            for hh in range(2):
                A(f"ds_read_b64_tr_b16 {v(b+hh*2,2)}, v2 offset:{o + hh*1536}")
                q.append(("rd", idx))
        assert NE >= 1
        if self.o.get("e_early", 0):
            self.signal(VP, 1, CV_E)
        for i in range(NPF):
            rd(i)
        self.poll(5, sA9, 32)
        for k in range(LA):
            ld(k)
        if not self.o.get("e_early", 0):
            self.signal(VP, 1, CV_E)
            q.append(("sig", -1))
        self.ts("h2_flags")
        for idx, (k, T, mt) in enumerate(seq):
            last = max(i for i, x in enumerate(q) if x == ("rd", idx))
            w = f"lgkmcnt({len(q) - 1 - last})"
            del q[:last + 1]
            if T == 0 and mt == 0:
                w = f"vmcnt({min(31, k+LA-1) - k}) " + w
            A(f"s_waitcnt {w}")
            b = 8 + (idx % NB) * 4
            d = 32 + (mt * 3 + T) * 16
            A(f"v_mfma_f32_32x32x16_bf16 {v(d,16)}, {v(b,4)}, {a(4*k,4)}, {v(d,16) if k else 0}")
            if T == 0 and mt == 0 and k + LA < 32:
                ld(k + LA)
            if idx % 12 == 11:
                self.signal(VP, 1, 16 + (k >> 1))
                q.append(("sig", k))
            if idx + NPF < len(seq):
                rd(idx + NPF)
        A(f"v_mov_b32 v5, {s(sTAG)}")
        self.ts("p3_gemm")

        def st(sfx):
            for T in range(3):
                g0, u0 = 32 + T * 16, 80 + T * 16
                for hi in range(2):
                    for i in range(8):
                        A(f"v_max_f32 {v(g0+8*hi+i)}, 0, {v(g0+8*hi+i)}")
                    for i in range(4):
                        A(f"v_pk_mul_f32 {v(g0+8*hi+2*i,2)}, {v(g0+8*hi+2*i,2)}, {v(u0+8*hi+2*i,2)}")
                    n = T * 2 + hi
                    o = 8 + n * 4
                    for i in range(4):
                        A(f"v_cvt_pk_bf16_f32 {v(o+i)}, {v(g0+8*hi+2*i)}, {v(g0+8*hi+2*i+1)}")
                    A(f"buffer_store_dwordx4 {v(o,4)}, v3, {s(S_WS,4)}, {s(sT1 if n < 4 else sT2)} offen offset:{(n&3)*1024}{sfx}")
        self.store_flag(st, sA10, 6, 5, data_sc1=bool(self.o.get("hh_sc1", 1)))
        self.ts("hh_pub")

    def c_p4(self):
        A = self.A
        self.BR = 64
        A("v_lshlrev_b32 v1, 4, v0")
        A("v_and_b32 v122, 15, v0")
        A("v_lshlrev_b32 v122, 2, v122")
        self.rm_voff(127)
        self.slab_bases(124, 11)
        A(f"s_lshl_b32 {s(sT0)}, {s(sW)}, 10")
        A(f"s_add_u32 {s(sT0)}, {s(sT0)}, {s(sEX)}")
        A(f"s_add_u32 {s(sT0)}, {s(sT0)}, {G_HH:#x}")
        A(f"v_add_u32 v126, {s(sT0)}, v1")
        A(f"s_lshl_b32 {s(sT3)}, {s(sEX+1)}, 11")
        AF = lambda i: a(4 * (i % 32), 4)
        LA = self.o.get("la4", 8)

        def ld(i):
            o = [f"buffer_load_dwordx4 {AF(i)}, v126, {s(S_WS,4)}, {s(sT3)} offen sc1"]
            if i < 42:
                o += [f"s_add_u32 {s(sT3)}, {s(sT3)}, 2048", f"s_cmp_lg_u32 {s(sT3)}, {43*2048}", f"s_cselect_b32 {s(sT3)}, {s(sT3)}, 0"]
            return o
        cur = {"base": 0}

        def rd(i):
            o = []
            off = wd_addr(i)
            if not (0 <= off - cur["base"] < 61440):
                d = off - cur["base"]
                for r in (124, 125):
                    o.append(f"v_add_u32 {v(r)}, {d}, {v(r)}" if d >= 0 else f"v_subrev_u32 {v(r)}, {-d}, {v(r)}")
                cur["base"] = off
            return o + [f"ds_read_b64_tr_b16 {v(64 + (i&3)*8 + T*4 + hh*2, 2)}, {v(124+T)} offset:{off - cur['base'] + hh*1024}" for T in range(2) for hh in range(2)]
        self.mt_addr()
        A(f"s_lshl_b32 {s(sT0)}, {s(sM)}, 11")
        A(f"s_add_u32 {s(sT0)}, {s(sT0)}, {L_X1}")
        A(f"v_add_u32 v2, {s(sT0)}, v1")
        A("ds_read_b128 v[112:115], v2")
        A("ds_read_b128 v[116:119], v2 offset:1024")
        for q in range(4):
            A(f"ds_read_b128 {v(96+4*q,4)}, v123 offset:{3*256 + q*32}")
        A("v_mov_b32 v3, 0xffff0000")
        A("s_waitcnt lgkmcnt(4)")
        for i in range(8):
            A(f"v_lshlrev_b32 {v(8+2*i)}, 16, {v(112+i)}")
            A(f"v_and_b32 {v(9+2*i)}, v3, {v(112+i)}")
        self.lwait(VQ, 24, 32, off=16)
        self.emit(rd(0) + rd(1) + rd(2))
        self.poll(122, sA11, 25)
        for i in range(LA):
            self.emit(ld(i))
        self.ts("hh_flags")
        self.g32(43, AF, ld, LA, rd, ring=True)
        self.ts("p4_gemm")
        self.exchange(L_EX4, 60)
        for q in range(4):
            A(f"s_waitcnt lgkmcnt({3-q})")
            for i in range(2*q, 2*q+2):
                A(f"v_pk_add_f32 {v(32+2*i,2)}, {v(32+2*i,2)}, {v(64+2*i,2)}")
            for i in range(2*q, 2*q+2):
                A(f"v_pk_fma_f32 {v(8+2*i,2)}, {v(32+2*i,2)}, {v(96+2*i,2)}, {v(8+2*i,2)}")
        for i in range(8):
            A(f"v_cvt_pk_bf16_f32 {v(24+i)}, {v(8+2*i)}, {v(9+2*i)}")
        for e in range(2):
            A(f"v_permlane32_swap_b32 {v(24+4*e)}, {v(26+4*e)}")
            A(f"v_permlane32_swap_b32 {v(25+4*e)}, {v(27+4*e)}")
        A(f"buffer_store_dwordx4 v[24:27], v127, {s(S_OUT,4)}, s3 offen")
        A(f"buffer_store_dwordx4 v[28:31], v127, {s(S_OUT,4)}, s3 offen offset:32")
        if self.diag:
            A("s_waitcnt vmcnt(0)")
        self.ts("end")
        if self.diag:
            A(f"s_mov_b32 {s(sW)}, {s(sM)}")
        A("s_branch L_fin")

    def gu_unit(self):
        A = self.A
        A(f"s_mul_i32 {s(sT0)}, {s(sRB)}, {32*2752}")
        A(f"s_add_u32 {s(sT1)}, {s(sA7)}, {s(sA1)}")
        A(f"s_add_u32 {s(sT0)}, {s(sT0)}, {s(sA0)}")
        for i in range(3):
            A(f"s_add_u32 m0, {s(sT1)}, {i*1024}")
            A([f"s_add_u32 {s(sRB)}, {s(sRB)}, 1", f"s_and_b32 {s(sRB)}, {s(sRB)}, 15", f"s_add_u32 {s(sA7)}, {s(sA7)}, 12288"][i])
            A(f"buffer_load_dwordx4 {v(48+i)}, {s(S_GU,4)}, {s(sT0)} offen lds")
        A(f"s_cmp_lg_u32 {s(sA7)}, {12*12288}")
        A(f"s_cselect_b32 {s(sA7)}, {s(sA7)}, 0")

    def wd_unit(self):
        A = self.A
        A(f"s_add_u32 {s(sT1)}, {s(sA7)}, {s(sA3)}")
        for i in range(3):
            A(f"s_add_u32 m0, {s(sT1)}, {i*4096}")
            A(f"s_add_u32 {s(sT0)}, {s(sA4)}, 32768")
            A(f"buffer_load_dwordx4 v51, {s(S_WD,4)}, {s(sA4)} offen lds")
            A(f"s_cmp_lg_u32 {s(sT0)}, {43*32768}")
            A(f"s_cselect_b32 {s(sA4)}, {s(sT0)}, 0")
        A(f"s_add_u32 {s(sA7)}, {s(sA7)}, 12288")
        A(f"s_cmp_lg_u32 {s(sA7)}, {12*12288}")
        A(f"s_cselect_b32 {s(sA7)}, {s(sA7)}, 0")

    def w_dma_rot(self, mats):
        A = self.A
        L, Ld = A.uniq("L_wd"), A.uniq("L_wdd")
        A.label(L)
        A(f"s_sub_u32 {s(sCNT)}, {s(sCNT)}, 1")
        A(f"s_cbranch_scc1 {Ld}")
        A(f"s_mul_i32 {s(sT0)}, {s(sT2)}, {4*49152}")
        A(f"s_lshl_b32 {s(sT1)}, {s(sT2)}, 12")
        A(f"s_add_u32 {s(sT0)}, {s(sT0)}, {s(sA9)}")
        A(f"s_add_u32 {s(sT1)}, {s(sT1)}, {s(sA3)}")
        A(f"s_add_u32 {s(sT2)}, {s(sT2)}, 1")
        for mat, lbase in mats:
            A(f"s_add_u32 m0, {s(sT1)}, {lbase - mat*1024}")
            A(f"s_and_b32 {s(sT2)}, {s(sT2)}, 7")
            A(f"buffer_load_dwordx4 v45, {s(S_W,4)}, {s(sT0)} offen offset:{mat*1024} lds")
        A(f"s_branch {L}")
        A.label(Ld)

    def helper(self):
        A = self.A
        A.label("L_helper")
        self.srd_consts([S_W, S_PHI])
        A("v_lshrrev_b32 v12, 2, v0")
        A("v_mul_u32_u24 v12, 3072, v12")
        A("v_lshrrev_b32 v5, 4, v0")
        A("v_and_b32 v5, 2, v5")
        A("v_and_b32 v45, 3, v0")
        A("v_xor_b32 v5, v5, v45")
        A("v_lshl_add_u32 v45, v5, 4, v12")
        A(f"s_lshl_b32 {s(sA3)}, {s(sM)}, 10")
        A(f"s_mul_i32 {s(sA9)}, {s(sM)}, 49152")
        A(f"s_lshl_b32 {s(sT0)}, {s(sJ)}, 6")
        A(f"s_add_u32 {s(sA9)}, {s(sA9)}, {s(sT0)}")
        A(f"s_add_u32 {s(sA9)}, {s(sA9)}, 1024")
        A(f"s_lshr_b32 {s(sT2)}, {s(sRB)}, 1")
        A("s_waitcnt lgkmcnt(0)")
        self.bar()
        A("v_lshlrev_b32 v2, 7, v0")
        A(f"s_cmp_eq_u32 {s(sM)}, 1")
        A("s_cbranch_scc1 L_h1")
        A(f"s_cmp_eq_u32 {s(sM)}, 2")
        A("s_cbranch_scc1 L_h2")
        A(f"s_cmp_eq_u32 {s(sM)}, 3")
        A("s_cbranch_scc1 L_h4")
        A(f"v_mov_b32 v3, {s(sFAST)}")
        A(f"s_lshl4_add_u32 {s(sT0)}, {s(sRB)}, {s(sJ)}")
        A(f"s_mul_i32 {s(sT1)}, s2, 6144")
        A("s_waitcnt lgkmcnt(0)")
        A("s_mov_b64 exec, 1")
        A(f"buffer_store_byte v3, v6, {s(S_DBG,4)}, {s(sT0)} offen sc1")
        A("s_mov_b32 exec_lo, -1\ns_mov_b32 exec_hi, 0xffff")
        if self.o.get("wtouch", 1):
            A(f"buffer_load_dword v10, v2, {s(S_W,4)}, {s(sT1)} offen")
        A("s_mov_b64 exec, -1")
        A("s_branch L_h3")
        A.label("L_h1")
        A(f"s_lshr_b32 {s(sT0)}, {s(sJ)}, 2")
        A(f"s_bfe_u32 {s(sT1)}, {s(sJ)}, 0x10001")
        A(f"s_lshl3_add_u32 {s(sT0)}, {s(sT0)}, {s(sT1)}")
        A(f"s_lshl_b32 {s(sT0)}, {s(sT0)}, 14")
        A(f"s_and_b32 {s(sT1)}, {s(sJ)}, 1")
        A(f"s_lshl_b32 {s(sT1)}, {s(sT1)}, 7")
        A(f"s_add_u32 {s(sT0)}, {s(sT0)}, {s(sT1)}")
        A(f"s_add_u32 {s(sT0)}, {s(sT0)}, {s(sG)}")
        A("v_lshlrev_b32 v3, 8, v0")
        A("s_waitcnt lgkmcnt(0)")
        if self.o.get("pre_h", 1):
            A(f"buffer_load_dword v10, v3, {s(S_WS,4)}, {s(sT0)} offen")
        A("s_branch L_h3")
        A.label("L_h2")
        A(f"s_lshl_b32 {s(sT0)}, {s(sJ)}, 6")
        A(f"s_add_u32 {s(sT0)}, {s(sT0)}, {s(sRB)}")
        A(f"s_lshl_b32 {s(sT0)}, {s(sT0)}, 10")
        A(f"s_add_u32 {s(sT0)}, {s(sT0)}, {WS_KVP + 1020:#x}")
        A(f"v_lshl_add_u32 v3, v0, 14, {s(sT0)}")
        A(f"s_lshl_b32 {s(sT0)}, {s(sJ)}, 7")
        A(f"s_add_u32 {s(sT0)}, {s(sT0)}, {s(sG)}")
        A(f"s_add_u32 {s(sT0)}, {s(sT0)}, {G_FL:#x}")
        A(f"v_writelane_b32 v3, {s(sT0)}, 4")
        A(f"s_and_b32 {s(sT0)}, s2, 127")
        A(f"s_lshl_b32 {s(sT0)}, {s(sT0)}, 7")
        A(f"s_add_u32 {s(sT0)}, {s(sT0)}, {WS_MODU:#x}")
        A(f"v_writelane_b32 v3, {s(sT0)}, 5")
        A("s_waitcnt lgkmcnt(0)")
        A("s_mov_b64 exec, 63")
        A(f"buffer_load_dword v10, v3, {s(S_WS,4)}, 0 offen")
        A("s_mov_b64 exec, -1")
        A("s_branch L_h3")
        A.label("L_h4")
        A(f"s_mov_b32 m0, {L_PHI}")
        A(f"s_lshl_b32 {s(sT0)}, {s(sJ)}, 10")
        A(f"buffer_load_dwordx4 v1, {s(S_PHI,4)}, {s(sT0)} offen lds")
        A.label("L_h3")
        A(f"buffer_load_dword {v(VTAG)}, v6, {s(S_WS,4)}, 0 offen sc1")
        NB1 = self.o.get("nb1", 3)
        KV = [(0, L_WK), (1, L_WV)]
        for r, off in ((S_WO, 24), (S_WG, 40), (S_WU, 48), (S_WD, 56)):
            A(f"s_load_dwordx2 {s(r,2)}, s[0:1], {off}")
        A(f"s_cmp_ge_u32 s2, {self.o.get('hold', 32)}")
        A("s_cbranch_scc1 L_nohold")
        A("s_waitcnt lgkmcnt(0)")
        self.lwait(VQ, 12, CV_S, sleep=2)
        A.label("L_nohold")
        self.ts("iss1")
        A(f"s_mov_b32 {s(sCNT)}, 8")
        self.w_dma_rot(KV)
        self.ts("iss2")
        self.srd_consts([S_WO, S_WG, S_WU, S_WD])
        for i in range(3):
            A(f"v_add_u32 v12, {64*i}, v0")
            A("v_mul_u32_u24 v13, 0x5556, v12")
            A("v_lshrrev_b32 v13, 18, v13")
            A(f"v_mul_u32_u24 v13, {2752 - 192}, v13")
            A(f"v_lshl_add_u32 {v(48+i)}, v12, 4, v13")
        A(f"s_lshr_b32 {s(sT0)}, {s(sM)}, 1")
        A(f"s_mul_i32 {s(sA1)}, {s(sT0)}, 3072")
        A(f"s_mul_i32 {s(sA0)}, {s(sT0)}, {16*2752}")
        A(f"s_mul_i32 {s(sT1)}, {s(sJ)}, 192")
        A(f"s_add_u32 {s(sA0)}, {s(sA0)}, {s(sT1)}")
        A(f"s_and_b32 {s(sT1)}, {s(sM)}, 1")
        A(f"s_mul_i32 {s(sT1)}, {s(sT1)}, 6144")
        A(f"s_add_u32 {s(sA1)}, {s(sA1)}, {s(sT1)}")
        A("v_lshlrev_b32 v51, 10, v8")
        A("v_bfe_u32 v12, v0, 4, 1")
        A("v_lshlrev_b32 v13, 2, v12")
        A("v_xor_b32 v13, v13, v9")
        A("v_lshl_add_u32 v51, v13, 4, v51")
        A(f"s_and_b32 {s(sT3)}, {s(sJ)}, 7")
        A(f"s_lshl_b32 {s(sT1)}, {s(sT3)}, 7")
        A(f"s_lshl_b32 {s(sT0)}, {s(sM)}, 13")
        A(f"s_add_u32 {s(sT0)}, {s(sT0)}, {s(sT1)}")
        A(f"v_add_u32 v51, {s(sT0)}, v51")
        A(f"s_lshl2_add_u32 {s(sA6)}, {s(sJ)}, {s(sM)}")
        A(f"s_lshl_b32 {s(sA6)}, {s(sA6)}, 14")
        A(f"s_add_u32 {s(sA6)}, {s(sA6)}, {WS_KVP:#x}")
        A("v_and_b32 v5, 15, v0")
        A("v_lshlrev_b32 v5, 10, v5")
        A("v_add_u32 v5, 1020, v5")
        A("v_and_b32 v13, 3, v0")
        A("v_and_b32 v14, 48, v0")
        A(f"s_lshr_b32 {s(sT0)}, {s(sM)}, 1")
        A(f"s_and_b32 {s(sT1)}, {s(sM)}, 1")
        A(f"s_lshl_b32 {s(sT1)}, {s(sT1)}, 3")
        A(f"s_add_u32 {s(sT1)}, {s(sT1)}, {L_KVF}")
        A(f"s_lshl_b32 {s(sA7)}, {s(sT0)}, 10")
        A(f"s_add_u32 {s(sA7)}, {s(sA7)}, {s(sT1)}")
        A(f"v_add_u32 v56, {s(sA7)}, v1")
        A(f"s_lshl_b32 {s(sA7)}, {s(sT0)}, 6")
        A(f"s_add_u32 {s(sA7)}, {s(sA7)}, {s(sT1)}")
        A(f"s_add_u32 {s(sA7)}, {s(sA7)}, 2048")
        A("v_lshl_add_u32 v57, v13, 1, v14")
        A(f"v_add_u32 v57, {s(sA7)}, v57")
        A(f"s_lshl3_add_u32 {s(sA8)}, {s(sM)}, {s(sT3)}")
        A(f"s_lshl_b32 {s(sA8)}, {s(sA8)}, 12")
        A(f"s_add_u32 {s(sA8)}, {s(sA8)}, {WS_MODL:#x}")
        A("v_lshlrev_b32 v58, 3, v0")
        A(f"s_lshl_b32 {s(sT0)}, {s(sM)}, 8")
        A(f"s_add_u32 {s(sT0)}, {s(sT0)}, {L_MT}")
        A(f"v_lshl_add_u32 v59, v0, 2, {s(sT0)}")
        A(f"s_lshl_b32 {s(sT0)}, {s(sM)}, 7")
        A(f"s_add_u32 {s(sT0)}, {s(sT0)}, {s(sJ)}")
        A(f"s_lshl_b32 {s(sT0)}, {s(sT0)}, 10")
        A(f"s_add_u32 {s(sT0)}, {s(sT0)}, {G_O:#x}")
        A("v_lshlrev_b32 v53, 14, v8")
        A("v_lshl_add_u32 v53, v9, 7, v53")
        A(f"v_add_u32 v53, {s(sT0)}, v53")
        A(f"s_lshl2_add_u32 {s(sT0)}, {s(sJ)}, {s(sM)}")
        A(f"s_lshl_b32 {s(sT0)}, {s(sT0)}, 8")
        A(f"s_add_u32 {s(sT0)}, {s(sT0)}, {G_ST:#x}")
        A(f"v_writelane_b32 v53, {s(sT0)}, 16")
        A(f"s_add_u32 {s(sT0)}, {s(sT0)}, 128")
        A(f"v_writelane_b32 v53, {s(sT0)}, 17")
        self.rot_setup()
        A(f"s_mov_b32 {s(sA10)}, {s(sRB)}")
        A(f"s_lshl_b32 {s(sA4)}, {s(sEX+1)}, 15")
        A(f"s_mov_b32 {s(sA7)}, {slot_addr(0)}")
        A("s_waitcnt lgkmcnt(0)")
        A(f"s_bitcmp1_b32 {s(sM)}, 0")
        A(f"s_cselect_b64 {s(S_GU,2)}, {s(S_WU,2)}, {s(S_WG,2)}")
        A(f"s_mov_b32 {s(S_GU+2)}, {512*2752}")
        A("v_mov_b32 v46, 0x3f80\nv_mov_b32 v47, 1.0")
        A(f"s_sub_u32 {s(sA9)}, {s(sA9)}, 1024")
        A("s_waitcnt vmcnt(0)")
        self.signal(VP, 12, HV_W)
        A(f"v_add_u32 {v(VTAG)}, 1, {v(VTAG)}")
        A(f"v_readfirstlane_b32 {s(sTAG)}, {v(VTAG)}")
        self.ts("w_land")
        self.lwait(VQ, 12, CV_A2, sleep=2)
        self.ts("a2")
        NE = self.o.get("ne", 3)
        A("s_mov_b64 exec, 0x3ffff")
        A(f"buffer_load_dword v11, v53, {s(S_WS,4)}, {s(sG)} offen")
        A("s_mov_b64 exec, -1")
        A(f"s_mov_b32 {s(sCNT)}, 8")
        self.w_dma_rot([(0, L_WQ)])
        self.gu_unit()
        A("s_waitcnt vmcnt(3)")
        self.signal(VP, 12, HV_Q)
        self.ts("wq_land")
        NE1 = self.o.get("ne1", NE)
        for u in range(1, NE1):
            self.gu_unit()
        self.lwait(VQ, 12, CV_KV, sleep=2)
        self.ts("kv")
        A(f"s_mov_b32 {s(sCNT)}, 16")
        A.label("L_wo")
        A(f"s_lshl_b32 {s(sT1)}, {s(sA10)}, 12")
        A(f"s_lshl_b32 {s(sT0)}, {s(sA10)}, 15")
        A(f"s_add_u32 m0, {s(sT1)}, {s(sA3)}")
        A(f"s_add_u32 {s(sA10)}, {s(sA10)}, 1")
        A(f"buffer_load_dwordx4 v51, {s(S_WO,4)}, {s(sT0)} offen lds")
        A(f"s_and_b32 {s(sA10)}, {s(sA10)}, 15")
        A(f"s_sub_u32 {s(sCNT)}, {s(sCNT)}, 1")
        A(f"s_cmp_lg_u32 {s(sCNT)}, 0")
        A("s_cbranch_scc1 L_wo")
        for u in range(NE1, NE):
            self.gu_unit()
        if self.o.get("probe", 1):
            self.poll(5, sA6, 10, sleep=2)
        self.ts("s1_probe")
        A(f"s_mov_b32 {s(sCNT)}, {SPIN}")
        A.label("L_gat")
        A(f"s_mov_b32 {s(sT0)}, {s(sA6)}")
        for i in range(16):
            A(f"buffer_load_dwordx4 {v(60+4*i,4)}, v1, {s(S_WS,4)}, {s(sT0)} offen offset:{(i&3)*1024} sc1")
            if (i & 3) == 3 and i < 15:
                A(f"s_add_u32 {s(sT0)}, {s(sT0)}, 4096")
        for i in range(8):
            A(f"buffer_load_dwordx2 {v(24+2*i,2)}, v58, {s(S_WS,4)}, {s(sA8)} offen offset:{i*512} sc1")
        for i in range(6):
            A(f"v_mov_b32 {v(16+i)}, 0")
        for i in range(16):
            A(f"s_waitcnt vmcnt({15-i+8})")
            r = 60 + 4 * i
            A(f"v_dot2c_f32_bf16 v16, {v(r)}, v46\nv_dot2c_f32_bf16 v17, {v(r)}, v47")
            A(f"v_dot2c_f32_bf16 v18, {v(r+1)}, v46\nv_dot2c_f32_bf16 v19, {v(r+1)}, v47")
            A(f"v_add_f32 v20, v20, {v(r+2)}")
            A(f"v_bitop3_b32 v21, v21, {v(r+3)}, {v(VTAG)} bitop3:0xf6")
        A("v_cvt_pk_bf16_f32 v20, v20, v20")
        A("v_cvt_pk_bf16_f32 v16, v16, v17\nv_cvt_pk_bf16_f32 v17, v18, v19")
        A("ds_write_b16 v57, v20")
        A("ds_write_b64 v56, v[16:17]")
        A("s_waitcnt vmcnt(0)")
        for i in range(8):
            A(f"v_bitop3_b32 v21, v21, {v(25+2*i)}, {v(VTAG)} bitop3:0xf6")
            if i:
                A(f"v_add_f32 v24, v24, {v(24+2*i)}")
        A(f"s_sub_u32 {s(sCNT)}, {s(sCNT)}, 1")
        A("s_cbranch_scc1 L_gatd")
        A("v_cmp_ne_u32 vcc, 0, v21")
        A("s_cbranch_vccnz L_gat")
        A.label("L_gatd")
        A(f"s_cmp_eq_u32 {s(sM)}, 2")
        A(f"s_cselect_b32 {s(sT0)}, 1.0, 0")
        A("v_cvt_pk_bf16_f32 v24, v24, v24")
        A(f"v_and_b32 v24, {v(VMASK)}, v24")
        A(f"v_add_f32 v24, {s(sT0)}, v24")
        A("v_cvt_pk_bf16_f32 v24, v24, v24")
        A(f"v_and_b32 v24, {v(VMASK)}, v24")
        A("ds_write_b32 v59, v24")
        self.signal(VP, 12, HV_G)
        self.ts("gather")
        self.lwait(VQ, 12, CV_E, sleep=2)
        self.ts("e")
        A("s_cmp_lg_u32 s2, 0")
        A("s_cbranch_scc1 L_ep_skip")
        A(f"buffer_store_dword {v(VTAG)}, v6, {s(S_WS,4)}, 0 offen sc1")
        A.label("L_ep_skip")
        D = self.o.get("d", 3)
        A(f"s_mov_b32 {s(sA8)}, {NE + 4}")
        A(f"v_mov_b32 v13, {16 + NE - D}")
        for name, unit, end in (("gu", self.gu_unit, 16 + 4), ("wd", self.wd_unit, 31 + 4)):
            A.label(f"L_ring_{name}")
            self.lwait(VQ, 12, s(sA8), sleep=2)
            unit()
            A("v_add_u32 v13, 1, v13")
            A(f"s_add_u32 {s(sA8)}, {s(sA8)}, 1")
            A(f"s_waitcnt vmcnt({3*(D-1)})")
            A(f"ds_write_b32 {v(VP)}, v13")
            A(f"s_cmp_lg_u32 {s(sA8)}, {end}")
            A(f"s_cbranch_scc1 L_ring_{name}")
            self.ts(name + "_iss")
        for i in range(D - 1):
            A("v_add_u32 v13, 1, v13")
            A(f"s_waitcnt vmcnt({3*(D-2-i)})")
            A(f"ds_write_b32 {v(VP)}, v13")
        A("s_waitcnt lgkmcnt(0)")
        self.ts("wd_done")

    def finish(self):
        A = self.A
        A.label("L_fin")
        if self.diag:
            A("s_waitcnt vmcnt(0) lgkmcnt(0)")
            A(f"s_cmp_lg_u32 {s(sM)}, 0")
            A("s_cbranch_scc1 L_end")
            A(f"s_lshl_b32 {s(sT0)}, s2, 8")
            A(f"s_lshl_b32 {s(sT1)}, {s(sW)}, 5")
            A(f"s_add_u32 {s(sT0)}, {s(sT0)}, {s(sT1)}")
            A(f"s_add_u32 {s(sT0)}, {s(sT0)}, {WS_TS:#x}")
            A("s_mov_b64 exec, 1")
            A("v_mov_b32 v6, 0")
            A(f"v_mov_b32 v8, {s(sRT)}")
            A(f"buffer_store_dword v8, v6, {s(S_WS,4)}, {s(sT0)} offen offset:124")
            A(f"v_mov_b32 v9, {s(sFAST)}")
            A(f"buffer_store_dword v9, v6, {s(S_WS,4)}, {s(sT0)} offen offset:120")
            for i in range(20):
                A(f"v_mov_b32 {v(10+i)}, {s(sTS+i)}")
                A(f"buffer_store_dword {v(10+i)}, v6, {s(S_WS,4)}, {s(sT0)} offen offset:{4*i}")
            A("s_waitcnt vmcnt(0)")
        A.label("L_end")
        A("s_endpgm")

    def build(self):
        self.start()
        self.role = "C"
        self.c_start()
        self.c_p1()
        self.c_p2()
        self.c_p3()
        self.c_p4()
        self.role = "H"
        self.helper()
        self.finish()
        hdr = open("header.txt").read()
        return (hdr + "; @launch grid=(256,1,1) block=(512,1,1) lds=163840\n"
                + '.amdgcn_target "amdgcn-amd-amdhsa--gfx950"\n.text\n'
                + f".globl {KNAME}\n.p2align 8\n.type {KNAME},@function\n{KNAME}:\n"
                + self.A.text()
                + f"""
.section .rodata,"a"
.p2align 6
.amdhsa_kernel {KNAME}
  .amdhsa_next_free_vgpr 256
  .amdhsa_next_free_sgpr 102
  .amdhsa_accum_offset 128
  .amdhsa_group_segment_fixed_size 0
  .amdhsa_kernarg_size 104
  .amdhsa_user_sgpr_count 2
  .amdhsa_user_sgpr_kernarg_segment_ptr 1
  .amdhsa_system_sgpr_workgroup_id_x 1
.end_amdhsa_kernel
""")


if __name__ == "__main__":
    import argparse, json
    ap = argparse.ArgumentParser()
    ap.add_argument("-o", default="k5.s")
    ap.add_argument("--diag", action="store_true")
    ap.add_argument("--slow", action="store_true")
    ap.add_argument("--opt", default="")
    args = ap.parse_args()
    opts = {kv.split("=")[0]: int(kv.split("=")[1]) for kv in args.opt.split(",") if kv}
    g = Gen(diag=args.diag, force_slow=args.slow, opts=opts)
    t = g.build()
    open(args.o, "w").write(t)
    if args.diag:
        json.dump(g.names, open(args.o + ".ts", "w"))
    print("written", args.o, len(t.splitlines()), "lines")
```

```python
import sys
sys.path.insert(0, "gen")
from asmlib import *

KNAME = "adaLN_cond__linear_kernel_hedgehog__glu_gated_reglu__prompt_kernel"

WS_MODU = 0x4000
WS_MODL = 0x10000
WS_KV2 = 0x30000
WS_KVP = 0x40000
WS_G0 = 0x200000
RS = 0x20000
G_H, G_O, G_H2, G_HH = 0x0, 0x8000, 0x0, 0x8000
G_FL = 0x80000
G_FLH, G_FLO, G_FL2, G_FL3 = G_FL, G_FL + 512, G_FL + 1024, G_FL + 1536
G_ST = 0x81000
WS_TS = 0x1400000
L_WK, L_WV, L_WQ = 0, 32768, 65536
L_KVR, L_X1, L_KVF, L_SCR, L_STX, L_MT = 135168, 151552, 155648, 157824, 159872, 162816
L_TAB = 107520
KVR_W = 4352
L_CW, L_HW = 160384, 160400
L_XT, L_PHI = 98304, 106496
CV_G, CV_S, CV_A2, CV_KV, CV_H1, CV_O, CV_P2L, CV_X2, CV_SX, CV_ST, CV_E = 1, 2, 3, 4, 5, 6, 7, 8, 9, 10, 15
HV_W, HV_Q, HV_G = 1, 2, 16
sB0, sB1, sB2 = 16, 17, 18
L_SX = 160512
L_EX2 = (135168, 143360)
L_EX4 = (L_X1, 28672)


def slot_addr(u):
    return ((u + 8) % 12) * 12288


def wd_addr(i):
    return (i % 36) * 4096


S_X, S_W, S_WS, S_WM, S_C, S_PHI, S_WO, S_WG, S_WU, S_WD, S_OUT, S_GU = 4, 8, 12, 16, 20, 24, 28, 32, 36, 40, 44, 48
S_DBG = 48
sW, sM, sRB, sJ, sTAG, sG, sFAST = 52, 53, 54, 55, 56, 57, 58
sT0, sT1, sT2, sT3, sCNT = 59, 60, 61, 62, 63
sEX = 64
sA0, sA1, sA2, sA3, sA4, sA5, sA6, sA7, sA8, sA9 = range(66, 76)
sA10, sA11 = 76, 77
sTP = 78
sRT = 80
sTS = 82
SPIN = 0x40000
VMASK, VTAG = 126, 127
VP, VQ = 7, 4


def zip_streams(*streams):
    out = []
    n = max(len(x) for x in streams)
    for i in range(n):
        for x in streams:
            if i < len(x):
                out.append(x[i])
    return out


def weave(mfmas, others, per=2):
    out, o = [], list(others)
    n = len(mfmas)
    for i, m_ in enumerate(mfmas):
        out.append(m_)
        k = min(per, -(-len(o) // (n - i)))
        out += o[:k]
        o = o[k:]
    return out + o


class Gen:
    def __init__(self, diag=False, force_slow=False, opts=None, sched=None, leak=None):
        self.leak = leak
        self.A = Asm()
        self.diag = diag
        self.names = {"C": [], "H": []}
        self.role = None
        self.force_slow = force_slow
        self.o = opts or {}
        self.sched = sched or "wA2 @a2 sq li pre pkv tq so sg sigQ @wq lc wKV to u u u @t2 wH1 sg sg mt @g wE @e"

    def ts(self, name):
        if self.leak == name:
            self.A(f"s_cselect_b32 {s(sTS+3)}, 1, 0\ns_memrealtime {s(sTP,2)}\ns_waitcnt lgkmcnt(0)\ns_sub_u32 {s(sTS+2)}, {s(sTP)}, {s(sRT)}\ns_cmp_lg_u32 {s(sTS+3)}, 0")
        if not self.diag:
            return
        roles = ["C", "H"] if self.role is None else [self.role]
        idx = max(len(self.names[r]) for r in roles)
        for r in roles:
            while len(self.names[r]) < idx:
                self.names[r].append("-")
            self.names[r].append(name)
        assert idx < 20
        self.A(f"s_memtime {s(sTP,2)}\ns_waitcnt lgkmcnt(0)\ns_mov_b32 {s(sTS+idx)}, {s(sTP)}")

    def bar(self):
        self.A("s_barrier")

    def dual(self, fn):
        A = self.A
        Ls, Ld = A.uniq("L_slow"), A.uniq("L_sd")
        A(f"s_cmp_eq_u32 {s(sFAST)}, 0")
        A(f"s_cbranch_scc1 {Ls}")
        fn("")
        A(f"s_branch {Ld}")
        A.label(Ls)
        fn(" sc1")
        A.label(Ld)

    def store_flag(self, stores, sflag, vz, vt, data_sc1=False):
        A = self.A

        if data_sc1:
            stores(" sc1")

        def f(sfx):
            if not data_sc1:
                stores(sfx)
            A("s_waitcnt vmcnt(0)")
            A("s_mov_b64 exec, 1")
            A(f"buffer_store_dword {v(vt)}, {v(vz)}, {s(S_WS,4)}, {s(sflag)} offen{sfx}")
            A("s_mov_b64 exec, -1")
        self.dual(f)

    def poll(self, voff, soff, vtmp, sleep=0):
        A = self.A
        Lp, Ld = A.uniq("L_poll"), A.uniq("L_pd")
        A(f"s_mov_b32 {s(sCNT)}, {SPIN}")
        A.label(Lp)
        if sleep:
            A(f"s_sleep {sleep}")
        A(f"buffer_load_dword {v(vtmp)}, {v(voff)}, {s(S_WS,4)}, {s(soff)} offen sc1")
        A(f"s_sub_u32 {s(sCNT)}, {s(sCNT)}, 1")
        A(f"s_cbranch_scc1 {Ld}")
        A("s_waitcnt vmcnt(0)")
        A(f"v_cmp_ne_u32 vcc, {s(sTAG)}, {v(vtmp)}")
        A(f"s_cbranch_vccnz {Lp}")
        A.label(Ld)

    def signal(self, vaddr, vtmp, val):
        self.A(f"v_mov_b32 {v(vtmp)}, {val}")
        self.A(f"ds_write_b32 {v(vaddr)}, {v(vtmp)}")

    def lwait(self, vaddr, vtmp, val, off=0, sleep=0, extra=None):
        A = self.A
        Lp, Ld = A.uniq("L_lw"), A.uniq("L_lwd")
        A(f"s_mov_b32 {s(sCNT)}, {SPIN*8}")
        A.label(Lp)
        A(f"ds_read_b32 {v(vtmp)}, {v(vaddr)} offset:{off}")
        self.emit(extra or [])
        A(f"s_sub_u32 {s(sCNT)}, {s(sCNT)}, 1")
        A(f"s_cbranch_scc1 {Ld}")
        A(f"s_waitcnt lgkmcnt({len(extra or [])})")
        A(f"v_cmp_gt_u32 vcc, {val}, {v(vtmp)}")
        if sleep:
            A(f"s_cbranch_vccz {Ld}")
            A(f"s_sleep {sleep}")
            A(f"s_branch {Lp}")
        else:
            A(f"s_cbranch_vccnz {Lp}")
        A.label(Ld)

    @staticmethod
    def red4(op, a0, b0, a1, b1):
        return [f"v_permlane32_swap_b32 {v(a0)}, {v(b0)}", f"v_permlane32_swap_b32 {v(a1)}, {v(b1)}",
                f"{op} {v(a0)}, {v(a0)}, {v(b0)}", f"{op} {v(a1)}, {v(a1)}, {v(b1)}",
                f"v_permlane16_swap_b32 {v(a0)}, {v(a1)}", f"{op} {v(a0)}, {v(a0)}, {v(a1)}"]

    @staticmethod
    def bcast4(a0, b0, a1, b1):
        return [f"v_mov_b32 {v(a1)}, {v(a0)}", f"v_permlane16_swap_b32 {v(a0)}, {v(a1)}",
                f"v_mov_b32 {v(b0)}, {v(a0)}", f"v_mov_b32 {v(b1)}, {v(a1)}",
                f"v_permlane32_swap_b32 {v(a0)}, {v(b0)}", f"v_permlane32_swap_b32 {v(a1)}, {v(b1)}"]

    def softmax2(self, X, EP, EN, T, P, L2):
        o = []
        a0, b0, a1, b1 = T, T + 1, T + 2, T + 3
        for t, (aa, bb) in enumerate(((a0, b0), (a1, b1))):
            x = X + 4 * t
            o += [f"v_max3_f32 {v(aa)}, {v(x)}, {v(x+1)}, {v(x+2)}", f"v_max3_f32 {v(bb)}, -{v(x)}, -{v(x+1)}, -{v(x+2)}"]
        for t, (aa, bb) in enumerate(((a0, b0), (a1, b1))):
            x = X + 4 * t
            o += [f"v_max_f32 {v(aa)}, {v(aa)}, {v(x+3)}", f"v_max_f32_e64 {v(bb)}, {v(bb)}, -{v(x+3)}"]
        o += self.red4("v_max_f32", a0, b0, a1, b1)
        o += [f"v_mul_f32 {v(a0)}, {v(L2)}, {v(a0)}"]
        o += self.bcast4(a0, b0, a1, b1)
        for t in range(2):
            m = T + 2 * t
            for h in range(2):
                x = X + 4 * t + 2 * h
                o += [f"v_pk_fma_f32 {v(EP+4*t+2*h,2)}, {v(x,2)}, {v(L2,2)}, {v(m,2)} op_sel:[0,0,0] op_sel_hi:[1,1,0] neg_lo:[0,0,1] neg_hi:[0,0,1]",
                      f"v_pk_fma_f32 {v(EN+4*t+2*h,2)}, {v(x,2)}, {v(L2,2)}, {v(m,2)} op_sel:[0,0,1] op_sel_hi:[1,1,1] neg_lo:[1,0,1] neg_hi:[1,0,1]"]
        for i in range(8):
            o += [f"v_exp_f32 {v(EP+i)}, {v(EP+i)}", f"v_exp_f32 {v(EN+i)}, {v(EN+i)}"]
        for t in range(2):
            e, n = EP + 4 * t, EN + 4 * t
            o += [f"v_pk_add_f32 {v(T+4,2)}, {v(e,2)}, {v(e+2,2)}", f"v_pk_add_f32 {v(T+6,2)}, {v(n,2)}, {v(n+2,2)}",
                  f"v_add_f32 {v(T+2*t)}, {v(T+4)}, {v(T+5)}", f"v_add_f32 {v(T+2*t+1)}, {v(T+6)}, {v(T+7)}"]
        o += self.red4("v_add_f32", a0, b0, a1, b1)
        o += [f"v_rcp_f32 {v(a0)}, {v(a0)}"]
        o += self.bcast4(a0, b0, a1, b1)
        for t in range(2):
            m = T + 2 * t
            for h in range(2):
                e, n = EP + 4 * t + 2 * h, EN + 4 * t + 2 * h
                o += [f"v_pk_mul_f32 {v(e,2)}, {v(e,2)}, {v(m,2)} op_sel:[0,0] op_sel_hi:[1,0]",
                      f"v_pk_mul_f32 {v(n,2)}, {v(n,2)}, {v(m,2)} op_sel:[0,1] op_sel_hi:[1,1]"]
        for t in range(2):
            for h in range(2):
                o += [f"v_cvt_pk_bf16_f32 {v(P+4*t+h)}, {v(EP+4*t+2*h)}, {v(EP+4*t+2*h+1)}",
                      f"v_cvt_pk_bf16_f32 {v(P+4*t+2+h)}, {v(EN+4*t+2*h)}, {v(EN+4*t+2*h+1)}"]
        return o

    def emit(self, lst):
        for l in lst:
            self.A(l)

    def srd_consts(self, regs):
        sizes = {S_WS: 0x10000000 - (self.o.get('wsoff', 0) << 20), S_C: 1024, S_WM: 512*6144, S_X: 2048*1024, S_W: 512*3072, S_PHI: 32*512, S_WO: 512*1024,
                 S_WG: 512*2752, S_WU: 512*2752, S_WD: 1376*1024, S_OUT: 2048*1024, S_DBG: 256}
        for r in regs:
            self.A(f"s_mov_b32 {s(r+2)}, {sizes[r]:#x}")
            self.A(f"s_mov_b32 {s(r+3)}, 0x20000")

    def wsoff(self):
        off = self.o.get("wsoff", 0) << 20
        if off:
            self.A(f"s_add_u32 {s(S_WS)}, {s(S_WS)}, {off:#x}\ns_addc_u32 {s(S_WS+1)}, {s(S_WS+1)}, 0")

    def gemv_issue(self, W, late=False):
        A = self.A
        if late:
            A(f"s_and_b32 {s(sT0)}, s2, 7")
        else:
            A(f"s_and_b32 {s(sT0)}, s2, 1")
            A(f"s_lshl2_add_u32 {s(sT0)}, {s(sT0)}, {s(sM)}")
        A("v_and_b32 v13, 3, v0")
        A("v_lshlrev_b32 v13, 2, v13")
        A("v_lshl_add_u32 v13, v8, 4, v13")
        A(f"s_lshl_b32 {s(sT1)}, {s(sT0)}, 7")
        A(f"buffer_load_dword v12, v13, {s(S_C,4)}, {s(sT1)} offen")

    def gemv_issue2(self, W, late=False):
        A = self.A
        A("v_mul_u32_u24 v14, 49152, v8")
        A("v_lshl_add_u32 v14, v9, 4, v14")
        A(f"s_mul_i32 {s(sT0)}, {s(sT0)}, {64*6144}")
        A(f"s_lshr_b32 {s(sT1)}, s2, {3 if late else 1}")
        if late:
            A(f"s_add_u32 {s(sT1)}, {s(sT1)}, 16")
        A(f"s_lshl_b32 {s(sT1)}, {s(sT1)}, 7")
        A(f"s_add_u32 {s(sT0)}, {s(sT0)}, {s(sT1)}")
        for i in range(8):
            A(f"buffer_load_dwordx4 {v(W+4*i,4)}, v14, {s(S_WM,4)}, {s(sT0)} offen")
            if i < 7:
                A(f"s_add_u32 {s(sT0)}, {s(sT0)}, 6144")

    def gemv_compute(self, W, after):
        A = self.A
        A("v_lshlrev_b32 v13, 16, v12")
        A(f"v_and_b32 v14, {v(VMASK)}, v12")
        A("v_mul_f32 v15, 0xbfb8aa3b, v13\nv_mul_f32 v16, 0xbfb8aa3b, v14")
        A("v_exp_f32 v15, v15\nv_exp_f32 v16, v16")
        A(f"s_mov_b32 {s(sT0)}, 0x05040100\ns_mov_b32 {s(sT1)}, 0x07060302")
        A("v_add_f32 v15, 1.0, v15\nv_add_f32 v16, 1.0, v16")
        A("v_rcp_f32 v15, v15\nv_rcp_f32 v16, v16")
        for c in range(8):
            A(f"v_mov_b32 {v(24+c)}, 0")
        A("v_mul_f32 v13, v13, v15\nv_mul_f32 v14, v14, v16")
        A("v_cvt_pk_bf16_f32 v12, v13, v14")
        for q in range(4):
            A(f"v_mov_b32_dpp {v(16+q)}, v12 quad_perm:[{q},{q},{q},{q}] row_mask:0xf bank_mask:0xf")
        for q in range(4):
            if after is not None:
                A(f"s_waitcnt vmcnt({after + 6 - 2*q})")
            for d in range(0, 4, 2):
                for e in range(2):
                    ra, rb_ = W + 8*q + d + e, W + 8*q + 4 + d + e
                    A(f"v_perm_b32 {v(20+2*e)}, {v(rb_)}, {v(ra)}, {s(sT0)}")
                    A(f"v_perm_b32 {v(21+2*e)}, {v(rb_)}, {v(ra)}, {s(sT1)}")
                for e in range(4):
                    A(f"v_dot2c_f32_bf16 {v(24+2*d+e)}, {v(20+e)}, {v(16+q)}")
        for c in range(4):
            A(f"v_permlane32_swap_b32 {v(24+c)}, {v(28+c)}")
        A("v_pk_add_f32 v[24:25], v[24:25], v[28:29]\nv_pk_add_f32 v[26:27], v[26:27], v[30:31]")
        for c in range(2):
            A(f"v_permlane16_swap_b32 {v(24+c)}, {v(26+c)}")
        A("v_pk_add_f32 v[24:25], v[24:25], v[26:27]")
        for c in range(2):
            A(f"v_add_f32_dpp {v(26+c)}, {v(24+c)}, {v(24+c)} row_ror:8 row_mask:0xf bank_mask:0xf")

    def start(self):
        A = self.A
        A("s_cmp_ge_u32 s2, 256")
        A("s_cbranch_scc1 L_end")
        for r, off in ((S_WS, 96), (S_C, 64), (S_WM, 72), (S_X, 0), (S_W, 8), (S_DBG, 88), (S_PHI, 16)):
            A(f"s_load_dwordx2 {s(r,2)}, s[0:1], {off}")
        if self.leak:
            A(f"s_memrealtime {s(sRT,2)}\ns_mov_b32 {s(sTS+2)}, 0")
        if self.diag:
            A(f"s_memrealtime {s(sRT,2)}")
            A(f"s_memtime {s(sTS,2)}")
            self.names["C"].append("start"); self.names["H"].append("start")
            self.names["C"].append("-"); self.names["H"].append("-")
        A("v_lshrrev_b32 v2, 6, v0")
        A("v_and_b32 v0, 63, v0")
        A(f"v_readfirstlane_b32 {s(sW)}, v2")
        A(f"s_and_b32 {s(sRB)}, s2, 7")
        A(f"s_lshr_b32 {s(sT0)}, s2, 7")
        A(f"s_lshl1_add_u32 {s(sRB)}, {s(sRB)}, {s(sT0)}")
        A(f"s_bfe_u32 {s(sJ)}, s2, 0x40003")
        A("v_mov_b32 v6, 0")
        A("v_lshrrev_b32 v8, 3, v0")
        A("v_and_b32 v9, 7, v0")
        A("v_lshlrev_b32 v1, 4, v0")
        A(f"v_mov_b32 {v(VMASK)}, 0xffff0000")
        A(f"s_and_b32 {s(sM)}, {s(sW)}, 3")
        A(f"s_lshl_b32 {s(sG)}, {s(sRB)}, 20")
        A(f"s_add_u32 {s(sG)}, {s(sG)}, {WS_G0:#x}")
        A(f"s_getreg_b32 {s(sFAST)}, hwreg(HW_REG_XCC_ID)")
        self.srd_consts([S_WS, S_C, S_WM, S_DBG])
        A(f"s_or_b32 {s(sFAST)}, {s(sFAST)}, 0x80")
        A(f"s_lshl2_add_u32 {s(sT0)}, {s(sW)}, {L_CW}")
        A(f"v_mov_b32 {v(VP)}, {s(sT0)}")
        A(f"ds_write_b32 {v(VP)}, v6")
        A(f"v_and_b32 {v(VQ)}, 3, v0")
        A(f"v_lshlrev_b32 {v(VQ)}, 2, {v(VQ)}")
        A(f"v_add_u32 {v(VQ)}, {L_CW}, {v(VQ)}")
        A(f"s_cmp_ge_u32 {s(sW)}, 4")
        A("s_cbranch_scc1 L_helper")

    PHIT, IDN, ONES, L2 = 112, 116, 120, 118

    def c_start(self):
        A = self.A
        self.srd_consts([S_X])
        A("v_lshlrev_b32 v2, 4, v9")
        A("v_lshl_add_u32 v89, v8, 10, v2")
        A(f"s_lshl4_add_u32 {s(sT2)}, {s(sRB)}, {s(sJ)}")
        A(f"s_lshl_b32 {s(sT2)}, {s(sT2)}, 13")
        A(f"s_lshl_b32 {s(sT3)}, {s(sM)}, 8")
        A(f"s_add_u32 {s(sT2)}, {s(sT2)}, {s(sT3)}")
        A(f"s_lshl_b32 {s(sEX)}, {s(sM)}, 11")
        A(f"s_add_u32 {s(sEX)}, {s(sEX)}, {L_XT}")
        A("s_waitcnt lgkmcnt(0)")
        self.wsoff()
        A(f"buffer_load_dword {v(VTAG)}, v6, {s(S_WS,4)}, 0 offen sc1")
        XL = self.o.get("xlate", 1)
        PH = self.o.get("pre_h", 1)

        def xdma():
            A(f"s_mov_b32 m0, {s(sEX)}")
            A(f"buffer_load_dwordx4 v89, {s(S_X,4)}, {s(sT2)} offen lds")
            A(f"s_add_u32 m0, {s(sEX)}, {1024-128}")
            A(f"buffer_load_dwordx4 v89, {s(S_X,4)}, {s(sT2)} offen offset:128 lds")
        A("s_cmp_ge_u32 s2, 32")
        A("s_cbranch_scc1 L_p0a_skip")
        self.gemv_issue(32)
        self.gemv_issue2(32)
        A.label("L_p0a_skip")
        if not XL:
            xdma()
        self.bar()
        A(f"s_load_dwordx2 {s(S_OUT,2)}, s[0:1], 80")
        A("v_lshrrev_b32 v10, 4, v0")
        A("v_and_b32 v11, 15, v0")
        self.srd_consts([S_OUT])
        A(f"v_lshl_add_u32 v90, v9, 7, {s(sEX)}")
        A("v_lshl_add_u32 v90, v8, 4, v90")
        A("v_lshlrev_b32 v2, 2, v10")
        A("v_sub_u32 v2, v11, v2")
        A("v_cmp_gt_u32 vcc, 4, v2")
        A("v_mov_b32 v20, 0x3f80")
        A("v_mov_b32 v21, 0")
        A("v_cndmask_b32 v20, 0, v20, vcc")
        A("v_lshlrev_b32 v2, 4, v2")
        A(f"v_lshlrev_b64 {v(self.IDN,2)}, v2, v[20:21]")
        for i in range(4):
            A(f"v_mov_b32 {v(self.ONES+i)}, 0x3f803f80")
        A(f"v_mov_b32 {v(self.L2)}, 0x3fb8aa3b")
        A(f"v_mov_b32 {v(self.L2+1)}, 0x3fb8aa3b")
        A("v_lshrrev_b32 v2, 2, v11")
        A("v_lshl_add_u32 v2, v10, 3, v2")
        A("v_lshlrev_b32 v2, 6, v2")
        A("v_and_b32 v3, 3, v0")
        A("v_lshl_add_u32 v2, v3, 3, v2")
        A("v_and_b32 v3, 1, v10")
        A("v_lshl_add_u32 v124, v3, 5, v2")
        A("v_xor_b32 v125, 32, v124")
        A("v_lshlrev_b32 v5, 2, v11")
        A("v_lshlrev_b32 v91, 5, v9")
        A("v_lshl_add_u32 v91, v10, 3, v91")
        A("v_lshlrev_b32 v92, 1, v91")
        A(f"s_add_u32 {s(sT0)}, {s(sT3)}, {L_SCR}")
        A(f"v_add_u32 v91, {s(sT0)}, v91")
        A("v_lshlrev_b32 v11, 4, v9")
        A(f"v_add_u32 v11, {L_STX}, v11")
        A("v_lshrrev_b32 v10, 5, v0")
        A("v_lshl_add_u32 v10, v10, 7, v11")
        A(f"s_lshl_b32 {s(sT0)}, {s(sM)}, 2")
        A(f"v_add_u32 v10, {s(sT0)}, v10")
        A(f"s_lshl_b32 {s(sA0)}, {s(sM)}, 10")
        A(f"s_add_u32 {s(sA7)}, {s(sA0)}, {L_TAB}")
        A(f"s_add_u32 {s(sA0)}, {s(sA0)}, {WS_MODU:#x}")
        A(f"s_add_u32 {s(sA8)}, {s(sA0)}, 4096")
        A(f"s_add_u32 {s(sA9)}, {s(sA0)}, 8192")
        A(f"s_add_u32 {s(sA10)}, {s(sA0)}, 12288")
        A(f"s_lshl_b32 {s(sA1)}, {s(sRB)}, 4")
        A(f"s_lshr_b32 {s(sA2)}, {s(sJ)}, 2")
        A(f"s_bfe_u32 {s(sT0)}, {s(sJ)}, 0x10001")
        A(f"s_lshl3_add_u32 {s(sA2)}, {s(sA2)}, {s(sT0)}")
        A(f"s_lshl2_add_u32 {s(sA2)}, {s(sA2)}, {s(sM)}")
        A(f"s_lshl_b32 {s(sA2)}, {s(sA2)}, 12")
        A(f"s_and_b32 {s(sT0)}, {s(sJ)}, 1")
        A(f"s_lshl_b32 {s(sT0)}, {s(sT0)}, 7")
        A(f"s_add_u32 {s(sA2)}, {s(sA2)}, {s(sT0)}")
        A(f"s_add_u32 {s(sA2)}, {s(sA2)}, {s(sG)}")
        A(f"s_lshr_b32 {s(sT0)}, {s(sJ)}, 2")
        A(f"s_lshl_b32 {s(sT0)}, {s(sT0)}, 7")
        A(f"s_and_b32 {s(sT1)}, {s(sJ)}, 3")
        A(f"s_lshl2_add_u32 {s(sT1)}, {s(sT1)}, {s(sM)}")
        A(f"s_lshl2_add_u32 {s(sT0)}, {s(sT1)}, {s(sT0)}")
        A(f"s_add_u32 {s(sA4)}, {s(sG)}, {G_FLH:#x}")
        A(f"s_add_u32 {s(sA3)}, {s(sA4)}, {s(sT0)}")
        A(f"s_lshl_b32 {s(sT0)}, {s(sM)}, 7")
        A(f"s_add_u32 {s(sA4)}, {s(sA4)}, {s(sT0)}")
        A(f"s_lshl_b32 {s(sA5)}, {s(sM)}, 17")
        A(f"s_add_u32 {s(sA5)}, {s(sA5)}, {s(sG)}")
        A(f"s_add_u32 {s(sA6)}, {s(sA5)}, 16384")
        A(f"s_lshl2_add_u32 {s(sA11)}, {s(sJ)}, {s(sM)}")
        A(f"s_lshl4_add_u32 {s(sA11)}, {s(sA11)}, {s(sRB)}")
        A(f"s_lshl_b32 {s(sA11)}, {s(sA11)}, 10")
        A(f"s_add_u32 {s(sA11)}, {s(sA11)}, {WS_KVP:#x}")
        A(f"s_mul_i32 {s(sFAST)}, {s(sFAST)}, 0x01010101")
        A("v_mov_b32 v72, 0\nv_mov_b32 v73, 0")
        A("v_lshlrev_b32 v88, 8, v0")
        nx = 0 if XL else 2
        A("s_cmp_ge_u32 s2, 32")
        A("s_cbranch_scc1 L_w1")
        A(f"s_waitcnt vmcnt({8 + nx})")
        A("s_branch L_w2")
        A.label("L_w1")
        A(f"s_waitcnt vmcnt({nx})")
        A.label("L_w2")
        if XL:
            xdma()
        if PH:
            A("s_mov_b64 exec, 0xffff")
            A(f"buffer_load_dword v88, v88, {s(S_WS,4)}, {s(sA2)} offen")
            A("s_mov_b64 exec, -1")
        A(f"v_add_u32 {v(VTAG)}, 1, {v(VTAG)}")
        A(f"v_readfirstlane_b32 {s(sTAG)}, {v(VTAG)}")
        self.ts("tag")
        A("s_cmp_ge_u32 s2, 32")
        A("s_cbranch_scc1 L_p0c_skip")
        self.gemv_compute(32, 2 + PH)
        A("ds_write_b64 v91, v[26:27]")
        self.signal(VP, 2, CV_G)
        A(f"s_cmp_lg_u32 {s(sW)}, 0")
        A("s_cbranch_scc1 L_p0c_skip")
        A("v_lshlrev_b32 v2, 2, v0")
        A(f"v_add_u32 v3, {L_SCR}, v2")
        A(f"s_lshr_b32 {s(sT0)}, s2, 4")
        A(f"s_and_b32 {s(sT1)}, s2, 1")
        A(f"s_lshl1_add_u32 {s(sT0)}, {s(sT0)}, {s(sT1)}")
        A(f"s_bfe_u32 {s(sT1)}, s2, 0x30001")
        A(f"s_lshl3_add_u32 {s(sT0)}, {s(sT0)}, {s(sT1)}")
        A(f"s_lshl_b32 {s(sT0)}, {s(sT0)}, 9")
        A(f"s_add_u32 {s(sT0)}, {s(sT0)}, {WS_MODU:#x}")
        self.lwait(VQ, 2, CV_G, extra=["ds_read2st64_b32 v[12:13], v3 offset0:0 offset1:1", "ds_read2st64_b32 v[14:15], v3 offset0:2 offset1:3"])
        A("v_lshlrev_b32 v2, 3, v0")
        A("s_waitcnt lgkmcnt(0)")
        A("v_pk_add_f32 v[12:13], v[12:13], v[14:15]")
        A("v_add_f32 v12, v12, v13")
        A(f"v_mov_b32 v13, {v(VTAG)}")
        A(f"buffer_store_dwordx2 v[12:13], v2, {s(S_WS,4)}, {s(sT0)} offen sc1")
        self.ts("p0_done")
        A(f"s_waitcnt vmcnt({1 + PH})")
        A("s_branch L_xw")
        A.label("L_p0c_skip")
        A(f"s_waitcnt vmcnt({PH})")
        A.label("L_xw")
        A("ds_read_b128 v[64:67], v90")
        A("ds_read_b128 v[68:71], v90 offset:1024")
        self.ts("x_land")
        A("s_waitcnt lgkmcnt(0)")
        for i in range(8):
            A(f"v_dot2c_f32_bf16 v72, {v(self.ONES)}, {v(64+i)}")
            A(f"v_dot2c_f32_bf16 v73, {v(64+i)}, {v(64+i)}")
        A("v_permlane32_swap_b32 v72, v73")
        A("v_add_f32 v72, v72, v73")
        A("v_mov_b32 v73, v72")
        A("v_permlane16_swap_b32 v72, v73")
        A("v_add_f32 v72, v72, v73")
        A("v_add_f32_dpp v73, v72, v72 row_ror:8 row_mask:0xf bank_mask:0xf")
        A("ds_write_b32 v10, v73")
        self.signal(VP, 2, CV_S)
        self.lwait(VQ, 2, CV_S)
        A("ds_read_b128 v[16:19], v11")
        A("ds_read_b128 v[20:23], v11 offset:128")
        for i in range(8):
            A(f"v_lshlrev_b32 {v(72+2*i)}, 16, {v(64+i)}")
            A(f"v_and_b32 {v(73+2*i)}, {v(VMASK)}, {v(64+i)}")
        A(f"v_lshl_add_u32 v2, v0, 3, {s(sA7)}")
        A(f"v_lshl_add_u32 v3, v8, 5, {s(sA7)}")
        A("v_lshlrev_b32 v93, 8, v8")
        A("v_lshl_add_u32 v93, v9, 4, v93")
        A("s_waitcnt lgkmcnt(0)")
        A("v_pk_add_f32 v[16:17], v[16:17], v[18:19]\nv_pk_add_f32 v[20:21], v[20:21], v[22:23]")
        A("v_add_f32 v16, v16, v17\nv_add_f32 v17, v20, v21")
        A("v_mul_f32 v16, 0x3b000000, v16\nv_mul_f32 v17, 0x3b000000, v17")
        A("v_fma_f32 v17, -v16, v16, v17")
        A("v_max_f32 v17, 0, v17")
        A("v_add_f32 v17, 0x3727c5ac, v17")
        A("v_rsq_f32 v17, v17")
        A("v_mul_f32_e64 v16, -v16, v17")
        for i in range(8):
            A(f"v_pk_fma_f32 {v(72+2*i,2)}, {v(72+2*i,2)}, v[16:17], v[16:17] op_sel:[0,1,0] op_sel_hi:[1,1,0]")
        A("v_mov_b32 v15, 0x80808080")
        A("v_lshlrev_b32 v14, 3, v0")
        A(f"v_add_u32 v14, {L_PHI}, v14")
        if self.o.get("s0late", 1):
            self.lwait(VQ, 13, HV_W, off=16, sleep=1)
        A(f"s_mov_b32 {s(sCNT)}, {SPIN}")
        A("s_branch L_s0f")
        A.label("L_s0")
        A("s_sleep 4")
        A.label("L_s0f")
        for i, sr in enumerate((sA0, sA8, sA9, sA10)):
            A(f"buffer_load_dwordx4 {v(16+4*i,4)}, v1, {s(S_WS,4)}, {s(sr)} offen sc1")
        A(f"buffer_load_dwordx4 v[32:35], v6, {s(S_DBG,4)}, {s(sA1)} offen sc1")
        A(f"s_sub_u32 {s(sCNT)}, {s(sCNT)}, 1")
        A("s_cbranch_scc1 L_s0d")
        A("s_waitcnt vmcnt(0)")
        A("v_bitop3_b32 v36, v32, v33, v34 bitop3:0x80")
        A(f"v_xor_b32 v37, {v(VTAG)}, v17")
        A("v_bitop3_b32 v36, v36, v35, v15 bitop3:0x2a")
        for i in range(1, 8):
            acc = 36 + (i & 1)
            A(f"v_bitop3_b32 {v(acc)}, {v(acc)}, {v(17+2*i)}, {v(VTAG)} bitop3:0xf6")
        A("v_or_b32 v36, v36, v37")
        A("v_cmp_ne_u32 vcc, 0, v36")
        A("s_cbranch_vccnz L_s0")
        A.label("L_s0d")
        A("s_waitcnt vmcnt(0)")
        self.ts("s0_ok")
        A("v_add_f32 v24, v24, v28\nv_add_f32 v26, v26, v30\nv_add_f32 v16, v16, v20\nv_add_f32 v18, v18, v22")
        A("v_cvt_pk_bf16_f32 v24, v24, v26\nv_cvt_pk_bf16_f32 v16, v16, v18")
        A(f"v_and_b32 v25, {v(VMASK)}, v24\nv_lshlrev_b32 v24, 16, v24")
        A(f"v_and_b32 v17, {v(VMASK)}, v16\nv_lshlrev_b32 v16, 16, v16")
        A("v_add_f32 v24, 1.0, v24\nv_add_f32 v25, 1.0, v25")
        A("ds_write_b64 v2, v[16:17]")
        A("v_cvt_pk_bf16_f32 v24, v24, v25")
        A(f"v_and_b32 v25, {v(VMASK)}, v24\nv_lshlrev_b32 v24, 16, v24")
        A("ds_write_b64 v2, v[24:25] offset:512")
        A(f"v_xor_b32 v32, {s(sFAST)}, v32")
        for i in range(1, 4):
            A(f"v_bitop3_b32 v32, v32, {v(32+i)}, {s(sFAST)} bitop3:0xf6")
        for e in range(2):
            for q in range(2):
                A(f"ds_read_b128 {v(16+8*e+4*q,4)}, v3 offset:{e*256 + q*16}")
                A(f"ds_read_b128 {v(40+8*e+4*q,4)}, v3 offset:{512 + e*256 + q*16}")
        A("v_cmp_ne_u32 vcc, 0, v32")
        A("s_cmp_eq_u64 vcc, 0")
        A(f"s_cselect_b32 {s(sFAST)}, {0 if self.force_slow else 1}, 0")
        for q in range(4):
            A(f"s_waitcnt lgkmcnt({6-2*q})")
            for i in range(2):
                r = 4*q + 2*i
                A(f"v_pk_fma_f32 {v(16+r,2)}, {v(72+r,2)}, {v(40+r,2)}, {v(16+r,2)}")
            for i in range(2):
                r = 4*q + 2*i
                A(f"v_cvt_pk_bf16_f32 {v(32+r//2)}, {v(16+r)}, {v(17+r)}")

        def st(sfx):
            A(f"buffer_store_dwordx4 v[32:35], v93, {s(S_WS,4)}, {s(sA2)} offen{sfx}")
            A(f"buffer_store_dwordx4 v[36:39], v93, {s(S_WS,4)}, {s(sA2)} offen offset:2048{sfx}")
        self.store_flag(st, sA3, 6, VTAG, data_sc1=not PH)

    def c_p1(self):
        A = self.A
        PHIT, IDN, ONES, L2 = self.PHIT, self.IDN, self.ONES, self.L2
        if not self.o.get("s0late", 1):
            self.lwait(VQ, 13, HV_W, off=16, sleep=1)
        for h in range(2):
            A(f"ds_read_b64_tr_b16 {v(PHIT+2*h,2)}, v14 offset:{h*512}")
        A("s_waitcnt lgkmcnt(0)")
        LA = self.o.get("la1", 4)

        def ld(u):
            o = [f"buffer_load_dwordx4 {a((u*2+t)*4,4)}, v1, {s(S_WS,4)}, {s(sA5+t)} offen offset:{(u&3)*1024} sc1" for t in range(2)]
            if (u & 3) == 3 and u < 15:
                o += [f"s_add_u32 {s(sA5)}, {s(sA5)}, 4096", f"s_add_u32 {s(sA6)}, {s(sA6)}, 4096"]
            return o

        def rd_b(u):
            p = 64 + (u % 3) * 16
            return [f"ds_read_b64_tr_b16 {v(p + (mi*2+h)*4 + hh*2, 2)}, {v(124+h)} offset:{base + u*2048 + hh*256}"
                    for mi, base in enumerate((L_WK, L_WV)) for h in range(2) for hh in range(2)]
        self.emit(rd_b(0) + rd_b(1))
        self.poll(5, sA4, 10)
        for u in range(LA):
            self.emit(ld(u))
        self.ts("h_flags")
        for u in range(16):
            A(f"s_waitcnt vmcnt({2*(min(15, u+LA-1) - u)}) lgkmcnt({(8 if u < 15 else 0) + (1 if u + LA == 16 else 0)})")
            p = 64 + (u % 3) * 16
            mf = []
            for h in range(2):
                for t in range(2):
                    d = 32 + (h * 2 + t) * 4
                    mf.append(f"v_mfma_f32_16x16x32_bf16 {v(d,4)}, {v(p+h*4,4)}, {a((u*2+t)*4,4)}, {v(d,4) if u else 0}")
            for h in range(2):
                for t in range(2):
                    d = 48 + (h * 2 + t) * 4
                    mf.append(f"v_mfma_f32_16x16x32_bf16 {v(d,4)}, {a((u*2+t)*4,4)}, {v(p+8+h*4,4)}, {v(d,4) if u else 0}")
            self.emit(weave(mf, (ld(u + LA) if u + LA < 16 else []) + (rd_b(u + 2) if u + 2 < 16 else [])))
            if u + LA == 15:
                self.signal(VP, 10, CV_A2)
        A(f"s_mul_i32 {s(sT0)}, {s(sM)}, {KVR_W}")
        A(f"s_add_u32 {s(sT0)}, {s(sT0)}, {L_KVR}")
        A(f"v_add_u32 v2, {s(sT0)}, v1")
        A("v_and_b32 v3, 48, v0")
        A(f"v_add_u32 v3, {s(sT0)}, v3")
        self.ts("kv_gemm")
        for i in range(8):
            A(f"v_cvt_pk_bf16_f32 {v(8+i)}, {v(32+2*i)}, {v(33+2*i)}")
        for h in range(2):
            for t in range(2):
                A(f"v_mfma_f32_16x16x16_bf16 {v(64+8*h+4*t,4)}, {v(PHIT+2*h,2)}, {v(8+4*h+2*t,2)}, 0")
        for i in range(8):
            A(f"v_cvt_pk_bf16_f32 {v(48+i)}, {v(48+2*i)}, {v(49+2*i)}")
        self.emit(zip_streams(*[self.softmax2(64+8*h, 80+8*h, 96+8*h, 16+8*h, 32+8*h, L2) for h in range(2)]))
        for h in range(2):
            for i, p in enumerate((0, 4, 2, 6)):
                A(f"v_mfma_f32_16x16x16_bf16 {v(64+16*h+4*i,4)}, {v(32+8*h+p,2)}, {v(IDN,2)}, 0")
        for i in range(16):
            A(f"v_cvt_pk_bf16_f32 {v(96+i)}, {v(64+2*i)}, {v(65+2*i)}")
        for h in range(2):
            for sg in range(2):
                A(f"v_mfma_f32_16x16x32_bf16 {v(16+8*h+4*sg,4)}, {v(96+8*h+4*sg,4)}, {v(48+4*h,4)}, 0")
        for h in range(2):
            for sg in range(2):
                A(f"v_mfma_f32_16x16x32_bf16 {v(32+8*h+4*sg,4)}, {v(96+8*h+4*sg,4)}, {v(ONES,4)}, 0")
        for i in range(4):
            A(f"ds_write_b128 v2, {v(16+4*i,4)} offset:{i*1024}")
        for i in range(4):
            A(f"ds_write_b128 v3, {v(32+4*i,4)} offset:{4096 + i*64}")
        self.signal(VP, 8, CV_KV)
        A(f"s_lshl_b32 {s(sT0)}, {s(sM)}, 10")
        A(f"s_add_u32 {s(sT0)}, {s(sT0)}, {L_KVR}")
        A(f"v_add_u32 v10, {s(sT0)}, v1")
        A("v_and_b32 v11, 3, v0")
        A("v_and_b32 v9, 48, v0")
        A("v_lshl_add_u32 v11, v11, 2, v9")
        A(f"s_lshl_b32 {s(sT0)}, {s(sM)}, 6")
        A(f"s_add_u32 {s(sT0)}, {s(sT0)}, {L_KVR + 4096}")
        A(f"v_add_u32 v11, {s(sT0)}, v11")
        self.lwait(VQ, 9, CV_KV, extra=[f"ds_read_b128 {v(64+4*i,4)}, v10 offset:{i*KVR_W}" for i in range(4)]
                   + [f"ds_read_b32 {v(80+i)}, v11 offset:{i*KVR_W}" for i in range(4)])
        A(f"v_add_u32 v124, {L_WQ}, v124")
        A(f"v_add_u32 v125, {L_WQ}, v125")
        A(f"v_mov_b32 v15, {v(VTAG)}")
        A("s_waitcnt lgkmcnt(4)")
        for i in range(2):
            A(f"v_pk_add_f32 {v(64+2*i,2)}, {v(64+2*i,2)}, {v(68+2*i,2)}")
            A(f"v_pk_add_f32 {v(72+2*i,2)}, {v(72+2*i,2)}, {v(76+2*i,2)}")
        for i in range(2):
            A(f"v_pk_add_f32 {v(64+2*i,2)}, {v(64+2*i,2)}, {v(72+2*i,2)}")
        A("s_waitcnt lgkmcnt(0)")
        A("v_pk_add_f32 v[80:81], v[80:81], v[82:83]")
        A("v_cvt_pk_bf16_f32 v12, v64, v65\nv_cvt_pk_bf16_f32 v13, v66, v67")
        A("v_add_f32 v14, v80, v81")
        A(f"buffer_store_dwordx4 v[12:15], v1, {s(S_WS,4)}, {s(sA11)} offen sc1")
        self.ts("kv_pub")
        self.c_addr_setup()
        self.lwait(VQ, 9, HV_Q, off=16, sleep=1)

        def rd_q(u):
            p = 64 + (u & 3) * 8
            return [f"ds_read_b64_tr_b16 {v(p + h*4 + hh*2, 2)}, {v(124+h)} offset:{u*2048 + hh*256}" for h in range(2) for hh in range(2)]
        self.emit(rd_q(0) + rd_q(1) + rd_q(2))
        for u in range(16):
            A(f"s_waitcnt lgkmcnt({min(8, 4*(15-u))})")
            p = 64 + (u & 3) * 8
            mf = []
            for t in range(2):
                for h in range(2):
                    d = 32 + (t * 2 + h) * 4
                    mf.append(f"v_mfma_f32_16x16x32_bf16 {v(d,4)}, {v(p+h*4,4)}, {a((u*2+t)*4,4)}, {v(d,4) if u else 0}")
            self.emit(weave(mf, rd_q(u + 3) if u + 3 < 16 else []))
        for i in range(8):
            A(f"v_cvt_pk_bf16_f32 {v(8+i)}, {v(32+2*i)}, {v(33+2*i)}")
        for t in range(2):
            for h in range(2):
                A(f"v_mfma_f32_16x16x16_bf16 {v(64+8*t+4*h,4)}, {v(PHIT+2*h,2)}, {v(8+4*t+2*h,2)}, 0")
        self.ts("q_gemm")
        A(f"s_mov_b32 {s(sCNT)}, {SPIN}")
        A.label("L_h1p")
        A(f"buffer_load_dwordx4 v[8:11], v48, {s(S_WS,4)}, {s(sB0)} offen sc1")
        A(f"s_sub_u32 {s(sCNT)}, {s(sCNT)}, 1")
        A("s_cbranch_scc1 L_h1d")
        A("s_waitcnt vmcnt(0)")
        A(f"v_cmp_ne_u32 vcc, {s(sTAG)}, v11")
        A("s_cbranch_vccnz L_h1p")
        A.label("L_h1d")
        A("s_waitcnt vmcnt(0)")
        self.ts("hop1")
        A(f"v_lshlrev_b32 v12, 16, v8\nv_lshlrev_b32 v14, 16, v9\nv_and_b32 v13, {v(VMASK)}, v8\nv_and_b32 v15, {v(VMASK)}, v9")
        zs = ["v_mov_b32 v16, v10", "v_permlane32_swap_b32 v10, v16", "v_add_f32 v10, v10, v16", "v_mov_b32 v16, v10",
              "v_permlane16_swap_b32 v10, v16", "v_add_f32 v10, v10, v16",
              "v_add_f32_dpp v16, v10, v10 row_ror:4 row_mask:0xf bank_mask:0xf", "v_add_f32_dpp v10, v16, v16 row_ror:8 row_mask:0xf bank_mask:0xf",
              "v_mov_b32_dpp v16, v10 quad_perm:[0,2,0,2] row_mask:0xf bank_mask:0xf", "v_mov_b32_dpp v17, v10 quad_perm:[1,3,1,3] row_mask:0xf bank_mask:0xf",
              "v_cvt_pk_bf16_f32 v10, v16, v17"]
        ks = (self.red4("v_add_f32", 12, 14, 13, 15)
              + ["v_add_f32_dpp v13, v12, v12 row_ror:4 row_mask:0xf bank_mask:0xf", "v_add_f32_dpp v12, v13, v13 row_ror:8 row_mask:0xf bank_mask:0xf"]
              + self.bcast4(12, 14, 13, 15) + ["v_cvt_pk_bf16_f32 v8, v12, v13", "v_cvt_pk_bf16_f32 v9, v14, v15"])
        self.emit(zip_streams(ks, zs))
        A("s_mov_b64 exec, 15")
        A(f"buffer_store_dwordx4 v[8:11], v1, {s(S_WS,4)}, {s(sB1)} offen sc1")
        A("s_mov_b64 exec, -1")
        self.signal(VP, 18, CV_H1)
        self.emit(zip_streams(*[self.softmax2(64+8*t, 80+8*t, 96+8*t, 16+8*t, 32+8*t, L2) for t in range(2)]))
        A(f"s_mov_b32 {s(sCNT)}, {SPIN}")
        A("s_branch L_h2f")
        A.label("L_h2p")
        A(f"s_sleep {self.o.get('h2sleep', 2)}")
        A.label("L_h2f")
        for i in range(4):
            A(f"buffer_load_dwordx4 {v(16+4*i,4)}, v1, {s(S_WS,4)}, {s(sB2)} offen offset:{i*1024} sc1")
        A(f"s_sub_u32 {s(sCNT)}, {s(sCNT)}, 1")
        A("s_cbranch_scc1 L_h2d")
        A("s_waitcnt vmcnt(0)")
        A(f"v_xor_b32 v12, {v(VTAG)}, v19")
        for i in range(1, 4):
            A(f"v_bitop3_b32 v12, v12, {v(19+4*i)}, {v(VTAG)} bitop3:0xf6")
        A("v_cmp_ne_u32 vcc, 0, v12")
        A("s_cbranch_vccnz L_h2p")
        A.label("L_h2d")
        A("s_waitcnt vmcnt(0)")
        self.ts("kvf")
        self.signal(VP, 12, CV_O)
        for i in range(4):
            for e in range(2):
                A(f"v_mov_b32_dpp {v(48+2*i+e)}, {v(18+4*i)} quad_perm:[{e},{e},{e},{e}] row_mask:0xf bank_mask:0xf")
        for h in range(2):
            A(f"v_mov_b32 {v(18+8*h)}, {v(20+8*h)}\nv_mov_b32 {v(19+8*h)}, {v(21+8*h)}")
        for t in range(2):
            for h in range(2):
                A(f"v_mfma_f32_16x16x32_bf16 {v(80+8*t+4*h,4)}, {v(48+4*h,4)}, {v(32+8*t+4*h,4)}, 0")
        for t in range(2):
            for h in range(2):
                A(f"v_mfma_f32_16x16x32_bf16 {v(64+8*t+4*h,4)}, {v(16+8*h,4)}, {v(32+8*t+4*h,4)}, 0")
        for i in range(4):
            A(f"v_add_f32 {v(80+4*i)}, 0x358637bd, {v(80+4*i)}")
        for i in range(4):
            A(f"v_rcp_f32 {v(80+4*i)}, {v(80+4*i)}")
        for i in range(4):
            for h in range(2):
                A(f"v_pk_mul_f32 {v(64+4*i+2*h,2)}, {v(64+4*i+2*h,2)}, {v(80+4*i,2)} op_sel:[0,0] op_sel_hi:[1,0]")
        for i in range(8):
            A(f"v_cvt_pk_bf16_f32 {v(16+i)}, {v(64+2*i)}, {v(65+2*i)}")

        def st(sfx):
            A(f"buffer_store_dwordx4 v[16:19], v1, {s(S_WS,4)}, {s(sA0)} offen{sfx}")
            A(f"buffer_store_dwordx4 v[20:23], v1, {s(S_WS,4)}, {s(sA1)} offen{sfx}")
        self.store_flag(st, sA2, 6, VTAG, data_sc1=bool(self.o.get('o_sc1', 0)))

    def c_addr_setup(self):
        A = self.A
        A(f"s_lshl2_add_u32 {s(sT0)}, {s(sJ)}, {s(sM)}")
        A(f"s_lshl_b32 {s(sT1)}, {s(sRB)}, 6")
        A(f"s_lshl_b32 {s(sB0)}, {s(sT0)}, 14")
        A(f"s_add_u32 {s(sB0)}, {s(sB0)}, {s(sT1)}")
        A(f"s_add_u32 {s(sB0)}, {s(sB0)}, {WS_KVP:#x}")
        A(f"s_lshl_b32 {s(sB1)}, {s(sT0)}, 10")
        A(f"s_add_u32 {s(sB1)}, {s(sB1)}, {s(sT1)}")
        A(f"s_add_u32 {s(sB1)}, {s(sB1)}, {WS_KV2:#x}")
        A(f"s_lshl_b32 {s(sB2)}, {s(sJ)}, 12")
        A(f"s_add_u32 {s(sB2)}, {s(sB2)}, {WS_KV2:#x}")
        A("v_lshrrev_b32 v48, 2, v0")
        A("v_lshlrev_b32 v48, 10, v48")
        A("v_and_b32 v49, 3, v0")
        A("v_lshl_add_u32 v48, v49, 4, v48")
        A(f"s_lshl_b32 {s(sT0)}, {s(sM)}, 7")
        A(f"s_add_u32 {s(sT1)}, {s(sT0)}, {s(sJ)}")
        A(f"s_lshl_b32 {s(sA0)}, {s(sT1)}, 10")
        A(f"s_add_u32 {s(sA0)}, {s(sA0)}, {s(sG)}")
        A(f"s_add_u32 {s(sA0)}, {s(sA0)}, {G_O:#x}")
        A(f"s_add_u32 {s(sA1)}, {s(sA0)}, 16384")
        A(f"s_add_u32 {s(sT0)}, {s(sT0)}, {s(sG)}")
        A(f"s_add_u32 {s(sA9)}, {s(sT0)}, {G_FL2:#x}")
        A(f"s_lshl2_add_u32 {s(sT0)}, {s(sJ)}, {s(sT0)}")
        A(f"s_add_u32 {s(sA2)}, {s(sT0)}, {G_FLO:#x}")
        A(f"s_add_u32 {s(sA10)}, {s(sT0)}, {G_FL3:#x}")
        A(f"s_lshr_b32 {s(sW)}, {s(sM)}, 1")
        A(f"s_lshr_b32 {s(sT1)}, {s(sJ)}, 3")
        A(f"s_and_b32 {s(sT0)}, {s(sM)}, 1")
        A(f"s_lshl1_add_u32 {s(sT1)}, {s(sT1)}, {s(sT0)}")
        A(f"s_and_b32 {s(sT2)}, {s(sJ)}, 7")
        A(f"s_lshl1_add_u32 {s(sT3)}, {s(sT2)}, {s(sW)}")
        A(f"s_lshl_b32 {s(sT0)}, {s(sT1)}, 7")
        A(f"s_add_u32 {s(sT0)}, {s(sT0)}, {s(sG)}")
        A(f"s_add_u32 {s(sA3)}, {s(sT0)}, {G_FLO:#x}")
        A(f"s_add_u32 {s(sA11)}, {s(sT0)}, {G_FL3:#x}")
        A(f"s_lshl2_add_u32 {s(sT0)}, {s(sT3)}, {s(sT0)}")
        A(f"s_add_u32 {s(sA8)}, {s(sT0)}, {G_FL2:#x}")
        A(f"s_lshl_b32 {s(sT0)}, {s(sT1)}, 12")
        A(f"s_add_u32 {s(sT0)}, {s(sT0)}, {s(sG)}")
        A(f"s_add_u32 {s(sA6)}, {s(sT0)}, {G_ST:#x}")
        A(f"s_lshl_b32 {s(sT0)}, {s(sT2)}, 9")
        A(f"s_add_u32 {s(sA7)}, {s(sA6)}, {s(sT0)}")
        A(f"s_lshl2_add_u32 {s(sT0)}, {s(sRB)}, {s(sT1)}")
        A(f"s_lshl_b32 s3, {s(sT0)}, 15")
        A(f"s_lshl_b32 {s(sT0)}, {s(sT3)}, 6")
        A(f"s_add_u32 s3, s3, {s(sT0)}")
        A(f"s_lshl_b32 {s(sEX)}, {s(sT1)}, 17")
        A(f"s_add_u32 {s(sEX)}, {s(sEX)}, {s(sG)}")
        A(f"s_lshl_b32 {s(sT0)}, {s(sW)}, 9")
        A(f"s_add_u32 {s(sA4)}, {s(sEX)}, {s(sT0)}")
        A(f"s_add_u32 {s(sA4)}, {s(sA4)}, {G_O:#x}")
        A(f"s_lshl_b32 {s(sT0)}, {s(sT3)}, 11")
        A(f"s_add_u32 {s(sA5)}, {s(sEX)}, {s(sT0)}")
        self.rot_setup()
        self.rm_voff(123)
        A(f"buffer_load_dwordx4 v[56:59], v123, {s(S_X,4)}, s3 offen")
        A(f"buffer_load_dwordx4 v[60:63], v123, {s(S_X,4)}, s3 offen offset:32")
        A("v_bfe_u32 v3, v0, 4, 1")
        A("v_lshlrev_b32 v122, 14, v3")
        A("v_lshl_add_u32 v122, v2, 8, v122")
        A("v_and_b32 v3, 15, v0")
        A("v_lshl_add_u32 v122, v3, 4, v122")
        self.slab_bases(120, 10)

    def rm_voff(self, d):
        A = self.A
        A(f"v_and_b32 {v(d)}, 31, v0")
        A(f"v_lshlrev_b32 {v(d)}, 10, {v(d)}")
        A("v_lshrrev_b32 v2, 5, v0")
        A(f"v_lshl_add_u32 {v(d)}, v2, 4, {v(d)}")

    def rot_setup(self):
        A = self.A
        A(f"s_lshr_b32 {s(sT1)}, {s(sRB)}, 1")
        A(f"s_lshl_b32 {s(sRB)}, {s(sT1)}, 1")
        A(f"s_lshl_b32 {s(sEX+1)}, {s(sT1)}, 2")

    def slab_bases(self, dst, khshift):
        A = self.A
        A("v_lshrrev_b32 v2, 5, v0")
        A("v_bfe_u32 v3, v0, 2, 2")
        A("v_lshl_add_u32 v2, v2, 2, v3")
        A(f"s_lshl_b32 {s(sT0)}, {s(sW)}, {khshift}")
        A(f"v_lshl_add_u32 v2, v2, 7, {s(sT0)}")
        A("v_bfe_u32 v3, v0, 3, 1")
        A(f"v_xor_b32 v3, {s(sW)}, v3")
        A("v_lshl_add_u32 v2, v3, 6, v2")
        A("v_bfe_u32 v3, v0, 4, 1")
        A("v_lshl_add_u32 v2, v3, 5, v2")
        A("v_and_b32 v3, 3, v0")
        A(f"v_lshl_add_u32 {v(dst)}, v3, 3, v2")
        A(f"v_xor_b32 {v(dst+1)}, 64, {v(dst)}")

    def g32(self, n, AF, ld, LA, rd, ring=False):
        A = self.A
        q = [("rd", i) for i in range(3) for _ in range(4)]
        for i in range(n):
            last = max(k for k, x in enumerate(q) if x == ("rd", i))
            A(f"s_waitcnt vmcnt({min(n-1, i+LA-1) - i}) lgkmcnt({len(q) - 1 - last})")
            q = q[last + 1:]
            mf = [f"v_mfma_f32_32x32x16_bf16 {v(32+16*T,16)}, {v(self.BR + (i&3)*8 + 4*T,4)}, {AF(i)}, {v(32+16*T,16) if i else 0}" for T in range(2)]
            oth = ld(i + LA) if i + LA < n else []
            if not ring and i + LA == n - 1:
                oth += [f"v_mov_b32 v25, {CV_P2L}", f"ds_write_b32 {v(VP)}, v25"]
                q.append(("sig", i))
            if ring and i % 3 == 2 and 16 + i // 3 <= 18:
                oth += [f"v_mov_b32 v25, {32 + i//3}", f"ds_write_b32 {v(VP)}, v25"]
                q.append(("sig", i))
            if i + 3 < n:
                if ring and (i + 3) % 3 == 0:
                    A(mf[0]); mf = mf[1:]
                    self.check(24, 32 + (i + 3) // 3)
                    oth += [f"ds_read_b32 v24, {v(VQ)} offset:16"]
                    q.append(("probe", i))
                r = rd(i + 3)
                oth += r
                q += [("rd", i + 3)] * 4
            self.emit(weave(mf, oth, per=5))

    def check(self, vtmp, val):
        A = self.A
        Ld = A.uniq("L_ck")
        A(f"v_cmp_gt_u32 vcc, {val}, {v(vtmp)}")
        A(f"s_cbranch_vccz {Ld}")
        self.lwait(VQ, vtmp, val, off=16)
        A.label(Ld)

    def exchange(self, base, val=None):
        A = self.A
        A(f"s_lshl_b32 {s(sT0)}, {s(sM)}, 11")
        A(f"v_add_u32 v2, {s(sT0)}, v1")
        A("v_xor_b32 v3, 0x1000, v2")
        A(f"v_add_u32 v26, {base[1]}, v2")
        A(f"v_add_u32 v27, {base[1]}, v3")
        A(f"v_add_u32 v2, {base[0]}, v2")
        A(f"v_add_u32 v3, {base[0]}, v3")
        for i in range(4):
            A(f"ds_write_b128 {v(2 if i < 2 else 26)}, {v(48+4*i,4)} offset:{(i&1)*1024}")
        rds = [f"ds_read_b128 {v(64+4*i,4)}, {v(3 if i < 2 else 27)} offset:{(i&1)*1024}" for i in range(4)]
        self.signal(VP, 24, val)
        self.lwait(VQ, 24, val, extra=rds)

    def mt_addr(self):
        A = self.A
        A(f"s_lshl_b32 {s(sT0)}, {s(sW)}, 7")
        A(f"s_add_u32 {s(sT0)}, {s(sT0)}, {L_MT}")
        A("v_lshrrev_b32 v123, 5, v0")
        A(f"v_lshl_add_u32 v123, v123, 4, {s(sT0)}")

    def c_p2(self):
        A = self.A
        self.BR = 64

        def rd(u):
            return [f"ds_read_b64_tr_b16 {v(64 + (u&3)*8 + T*4 + hh*2, 2)}, {v(120+T)} offset:{u*4096 + hh*2048}" for T in range(2) for hh in range(2)]

        def ld(i):
            o = [f"buffer_load_dwordx4 {a(4*i,4)}, v122, {s(S_WS,4)}, {s(sA4)} offen offset:{(i&3)*1024} sc1"]
            if (i & 3) == 3 and i < 15:
                o.append(f"s_add_u32 {s(sA4)}, {s(sA4)}, 4096")
            return o
        self.mt_addr()
        self.lwait(VQ, 24, HV_G, off=16)
        for q in range(4):
            A(f"ds_read_b128 {v(96+4*q,4)}, v123 offset:{q*32}")
        for e in range(2):
            A(f"v_permlane32_swap_b32 {v(56+4*e)}, {v(58+4*e)}")
            A(f"v_permlane32_swap_b32 {v(57+4*e)}, {v(59+4*e)}")
        self.emit(rd(0) + rd(1) + rd(2))
        for i in range(8):
            A(f"v_lshlrev_b32 {v(8+2*i)}, 16, {v(56+i)}")
            A(f"v_and_b32 {v(9+2*i)}, {v(VMASK)}, {v(56+i)}")
        LA = self.o.get("la2", 8)
        self.poll(5, sA3, 24)
        for i in range(LA):
            self.emit(ld(i))
        self.ts("o_flags")
        self.g32(16, lambda i: a(4*i, 4), ld, LA, rd)
        self.ts("p2_gemm")
        self.exchange(L_EX2, CV_X2)
        for vec in range(2):
            for q in range(4):
                A(f"ds_read_b128 {v(48+32*vec+4*q,4)}, v123 offset:{(vec+1)*256 + q*32}")
        A("v_mov_b32 v24, 0\nv_mov_b32 v25, 0\nv_mov_b32 v28, 0x3f803f80")
        A(f"v_mov_b32 v26, {v(VTAG)}\nv_mov_b32 v27, {v(VTAG)}")
        A(f"s_and_b32 {s(sT0)}, {s(sM)}, 1")
        A(f"s_lshl_b32 {s(sT0)}, {s(sT0)}, 8")
        A(f"s_add_u32 {s(sT0)}, {s(sT0)}, {L_SX}")
        A(f"v_lshl_add_u32 v29, v0, 2, {s(sT0)}")
        for q in range(4):
            A(f"s_waitcnt lgkmcnt({11-q})")
            for i in range(2*q, 2*q+2):
                A(f"v_pk_add_f32 {v(32+2*i,2)}, {v(32+2*i,2)}, {v(64+2*i,2)}")
            for i in range(2*q, 2*q+2):
                A(f"v_pk_fma_f32 {v(8+2*i,2)}, {v(32+2*i,2)}, {v(96+2*i,2)}, {v(8+2*i,2)}")
        for i in range(8):
            A(f"v_cvt_pk_bf16_f32 {v(112+i)}, {v(8+2*i)}, {v(9+2*i)}")
        for i in range(8):
            A(f"v_dot2c_f32_bf16 v24, v28, {v(112+i)}")
            A(f"v_dot2c_f32_bf16 v25, {v(112+i)}, {v(112+i)}")
        A("v_permlane32_swap_b32 v24, v25")
        A("v_add_f32 v24, v24, v25")
        A(f"s_cmp_eq_u32 {s(sW)}, 0")
        A("s_cbranch_scc1 L_sx0")
        A("ds_write_b32 v29, v24")
        self.signal(VP, 30, CV_SX)
        A("s_branch L_sx1")
        A.label("L_sx0")
        A(f"v_add_u32 v31, 8, {v(VP)}")
        self.lwait(31, 30, CV_SX, extra=["ds_read_b32 v25, v29"])
        A("s_waitcnt lgkmcnt(0)")
        A("v_add_f32 v24, v24, v25")
        A("v_mov_b32 v25, v24")
        A("v_permlane32_swap_b32 v24, v25")
        A("s_mov_b32 exec_hi, 0")
        self.dual(lambda sfx: A(f"buffer_store_dwordx4 v[24:27], v1, {s(S_WS,4)}, {s(sA7)} offen{sfx}"))
        A("s_mov_b64 exec, -1")
        A.label("L_sx1")
        for i in range(8):
            A(f"v_lshlrev_b32 {v(8+2*i)}, 16, {v(112+i)}")
            A(f"v_and_b32 {v(9+2*i)}, {v(VMASK)}, {v(112+i)}")
        A(f"s_lshl_b32 {s(sT0)}, {s(sM)}, 11")
        A(f"s_add_u32 {s(sT0)}, {s(sT0)}, {L_X1}")
        A(f"v_add_u32 v2, {s(sT0)}, v1")
        A("ds_write_b128 v2, v[112:115]")
        A("ds_write_b128 v2, v[116:119] offset:1024")
        A(f"s_mov_b32 {s(sCNT)}, {SPIN}")
        A.label("L_st")
        for i in range(4):
            A(f"buffer_load_dwordx4 {v(32+4*i,4)}, v1, {s(S_WS,4)}, {s(sA6)} offen offset:{i*1024} sc1")
        A(f"s_sub_u32 {s(sCNT)}, {s(sCNT)}, 1")
        A("s_cbranch_scc1 L_std")
        A("s_waitcnt vmcnt(0)")
        A(f"v_xor_b32 v28, {v(VTAG)}, v34")
        for i in range(1, 4):
            A(f"v_bitop3_b32 v28, v28, {v(34+4*i)}, {v(VTAG)} bitop3:0xf6")
        A("v_cmp_ne_u32 vcc, 0, v28")
        A("s_cbranch_vccnz L_st")
        A.label("L_std")
        A("s_waitcnt vmcnt(0) lgkmcnt(0)")
        self.signal(VP, 28, CV_ST)
        A("v_pk_add_f32 v[32:33], v[32:33], v[36:37]\nv_pk_add_f32 v[40:41], v[40:41], v[44:45]")
        A("v_pk_add_f32 v[30:31], v[32:33], v[40:41]")
        A("v_permlane32_swap_b32 v30, v31")
        A("v_add_f32 v30, v30, v31")
        A("v_mul_f32 v30, 0x3b000000, v30")
        A("v_mov_b32 v31, v30")
        A("v_permlane32_swap_b32 v30, v31")
        A("v_fma_f32 v31, -v30, v30, v31")
        A("v_max_f32 v31, 0, v31")
        A("v_add_f32 v31, 0x3727c5ac, v31")
        A("v_rsq_f32 v31, v31")
        A("v_mul_f32_e64 v30, -v30, v31")
        for i in range(8):
            A(f"v_pk_fma_f32 {v(8+2*i,2)}, {v(8+2*i,2)}, v[30:31], v[30:31] op_sel:[0,1,0] op_sel_hi:[1,1,0]")
        for i in range(8):
            A(f"v_pk_fma_f32 {v(8+2*i,2)}, {v(8+2*i,2)}, {v(80+2*i,2)}, {v(48+2*i,2)}")
        for i in range(8):
            A(f"v_cvt_pk_bf16_f32 {v(32+i)}, {v(8+2*i)}, {v(9+2*i)}")

        def st(sfx):
            A(f"buffer_store_dwordx4 v[32:35], v1, {s(S_WS,4)}, {s(sA5)} offen{sfx}")
            A(f"buffer_store_dwordx4 v[36:39], v1, {s(S_WS,4)}, {s(sA5)} offen offset:1024{sfx}")
        self.store_flag(st, sA8, 6, VTAG)
        self.ts("h2_pub")

    def c_p3(self):
        A = self.A
        NE = 1
        A(f"s_lshl_b32 {s(sT1)}, {s(sM)}, 17")
        A(f"s_add_u32 {s(sT1)}, {s(sT1)}, {s(sG)}")
        A(f"v_add_u32 v3, {s(sT1)}, v1")
        A(f"s_lshl_b32 {s(sT0)}, {s(sRB)}, 11")
        A(f"s_mul_i32 {s(sT1)}, {s(sJ)}, 6144")
        A(f"s_add_u32 {s(sT1)}, {s(sT1)}, {G_HH:#x}")
        A(f"s_add_u32 {s(sT2)}, {s(sT1)}, 4096")
        A("v_lshrrev_b32 v2, 5, v0")
        A("v_bfe_u32 v1, v0, 2, 2")
        A("v_lshl_add_u32 v2, v2, 2, v1")
        A("v_mul_u32_u24 v2, 192, v2")
        A("v_bfe_u32 v1, v0, 4, 1")
        A("v_lshl_add_u32 v2, v1, 5, v2")
        A("v_and_b32 v1, 3, v0")
        A("v_lshl_add_u32 v2, v1, 3, v2")
        A(f"v_add_u32 v2, {slot_addr(0)}, v2")
        LA = self.o.get("la3", 6)

        def ld(k):
            A(f"buffer_load_dwordx4 {a(4*k,4)}, v3, {s(S_WS,4)}, {s(sT0)} offen offset:{(k&1)*1024} sc1")
            if k & 1 and k < 31:
                A(f"s_add_u32 {s(sT0)}, {s(sT0)}, 2048")
                A(f"s_and_b32 {s(sT0)}, {s(sT0)}, 0x7fff")
        seq = [(k, T, mt) for k in range(32) for T in range(3) for mt in range(2)]
        cur = {"base": slot_addr(0)}
        NB, NPF = 6, 5
        q = []

        def rd(idx):
            k, T, mt = seq[idx]
            u, st = k >> 1, k & 1
            if idx % 12 == 0 and u >= NE:
                self.check(5, 16 + u)
            if idx % 12 == 6 and NE <= u + 1 < 16:
                A(f"ds_read_b32 v5, {v(VQ)} offset:16")
                q.append(("probe", u + 1))
            addr = slot_addr(u) + mt * 6144 + st * 3072 + T * 64
            if not (0 <= addr - cur["base"] and addr - cur["base"] + 3072 < 65536):
                nb = slot_addr(u)
                d = nb - cur["base"]
                A(f"v_add_u32 v2, {d}, v2" if d >= 0 else f"v_subrev_u32 v2, {-d}, v2")
                cur["base"] = nb
            o = addr - cur["base"]
            b = 8 + (idx % NB) * 4
            for hh in range(2):
                A(f"ds_read_b64_tr_b16 {v(b+hh*2,2)}, v2 offset:{o + hh*1536}")
                q.append(("rd", idx))
        assert NE >= 1
        if self.o.get("e_early", 0):
            self.signal(VP, 1, CV_E)
        for i in range(NPF):
            rd(i)
        self.poll(5, sA9, 32)
        for k in range(LA):
            ld(k)
        if not self.o.get("e_early", 0):
            self.signal(VP, 1, CV_E)
            q.append(("sig", -1))
        self.ts("h2_flags")
        for idx, (k, T, mt) in enumerate(seq):
            last = max(i for i, x in enumerate(q) if x == ("rd", idx))
            w = f"lgkmcnt({len(q) - 1 - last})"
            del q[:last + 1]
            if T == 0 and mt == 0:
                w = f"vmcnt({min(31, k+LA-1) - k}) " + w
            A(f"s_waitcnt {w}")
            b = 8 + (idx % NB) * 4
            d = 32 + (mt * 3 + T) * 16
            A(f"v_mfma_f32_32x32x16_bf16 {v(d,16)}, {v(b,4)}, {a(4*k,4)}, {v(d,16) if k else 0}")
            if T == 0 and mt == 0 and k + LA < 32:
                ld(k + LA)
            if idx % 12 == 11:
                self.signal(VP, 1, 16 + (k >> 1))
                q.append(("sig", k))
            if idx + NPF < len(seq):
                rd(idx + NPF)
        A(f"v_mov_b32 v5, {s(sTAG)}")
        self.ts("p3_gemm")

        def st(sfx):
            for T in range(3):
                g0, u0 = 32 + T * 16, 80 + T * 16
                for hi in range(2):
                    for i in range(8):
                        A(f"v_max_f32 {v(g0+8*hi+i)}, 0, {v(g0+8*hi+i)}")
                    for i in range(4):
                        A(f"v_pk_mul_f32 {v(g0+8*hi+2*i,2)}, {v(g0+8*hi+2*i,2)}, {v(u0+8*hi+2*i,2)}")
                    n = T * 2 + hi
                    o = 8 + n * 4
                    for i in range(4):
                        A(f"v_cvt_pk_bf16_f32 {v(o+i)}, {v(g0+8*hi+2*i)}, {v(g0+8*hi+2*i+1)}")
                    A(f"buffer_store_dwordx4 {v(o,4)}, v3, {s(S_WS,4)}, {s(sT1 if n < 4 else sT2)} offen offset:{(n&3)*1024}{sfx}")
        self.store_flag(st, sA10, 6, 5, data_sc1=bool(self.o.get("hh_sc1", 1)))
        self.ts("hh_pub")

    def c_p4(self):
        A = self.A
        self.BR = 64
        A("v_lshlrev_b32 v1, 4, v0")
        A("v_and_b32 v122, 15, v0")
        A("v_lshlrev_b32 v122, 2, v122")
        self.rm_voff(127)
        self.slab_bases(124, 11)
        A(f"s_lshl_b32 {s(sT0)}, {s(sW)}, 10")
        A(f"s_add_u32 {s(sT0)}, {s(sT0)}, {s(sEX)}")
        A(f"s_add_u32 {s(sT0)}, {s(sT0)}, {G_HH:#x}")
        A(f"v_add_u32 v126, {s(sT0)}, v1")
        A(f"s_lshl_b32 {s(sT3)}, {s(sEX+1)}, 11")
        AF = lambda i: a(4 * (i % 32), 4)
        LA = self.o.get("la4", 8)

        def ld(i):
            o = [f"buffer_load_dwordx4 {AF(i)}, v126, {s(S_WS,4)}, {s(sT3)} offen sc1"]
            if i < 42:
                o += [f"s_add_u32 {s(sT3)}, {s(sT3)}, 2048", f"s_cmp_lg_u32 {s(sT3)}, {43*2048}", f"s_cselect_b32 {s(sT3)}, {s(sT3)}, 0"]
            return o
        cur = {"base": 0}

        def rd(i):
            o = []
            off = wd_addr(i)
            if not (0 <= off - cur["base"] < 61440):
                d = off - cur["base"]
                for r in (124, 125):
                    o.append(f"v_add_u32 {v(r)}, {d}, {v(r)}" if d >= 0 else f"v_subrev_u32 {v(r)}, {-d}, {v(r)}")
                cur["base"] = off
            return o + [f"ds_read_b64_tr_b16 {v(64 + (i&3)*8 + T*4 + hh*2, 2)}, {v(124+T)} offset:{off - cur['base'] + hh*1024}" for T in range(2) for hh in range(2)]
        self.mt_addr()
        A(f"s_lshl_b32 {s(sT0)}, {s(sM)}, 11")
        A(f"s_add_u32 {s(sT0)}, {s(sT0)}, {L_X1}")
        A(f"v_add_u32 v2, {s(sT0)}, v1")
        A("ds_read_b128 v[112:115], v2")
        A("ds_read_b128 v[116:119], v2 offset:1024")
        for q in range(4):
            A(f"ds_read_b128 {v(96+4*q,4)}, v123 offset:{3*256 + q*32}")
        A("v_mov_b32 v3, 0xffff0000")
        A("s_waitcnt lgkmcnt(4)")
        for i in range(8):
            A(f"v_lshlrev_b32 {v(8+2*i)}, 16, {v(112+i)}")
            A(f"v_and_b32 {v(9+2*i)}, v3, {v(112+i)}")
        self.lwait(VQ, 24, 32, off=16)
        self.emit(rd(0) + rd(1) + rd(2))
        self.poll(122, sA11, 25)
        for i in range(LA):
            self.emit(ld(i))
        self.ts("hh_flags")
        self.g32(43, AF, ld, LA, rd, ring=True)
        self.exchange(L_EX4, 60)
        for q in range(4):
            A(f"s_waitcnt lgkmcnt({3-q})")
            for i in range(2*q, 2*q+2):
                A(f"v_pk_add_f32 {v(32+2*i,2)}, {v(32+2*i,2)}, {v(64+2*i,2)}")
            for i in range(2*q, 2*q+2):
                A(f"v_pk_fma_f32 {v(8+2*i,2)}, {v(32+2*i,2)}, {v(96+2*i,2)}, {v(8+2*i,2)}")
        for i in range(8):
            A(f"v_cvt_pk_bf16_f32 {v(24+i)}, {v(8+2*i)}, {v(9+2*i)}")
        for e in range(2):
            A(f"v_permlane32_swap_b32 {v(24+4*e)}, {v(26+4*e)}")
            A(f"v_permlane32_swap_b32 {v(25+4*e)}, {v(27+4*e)}")
        A(f"buffer_store_dwordx4 v[24:27], v127, {s(S_OUT,4)}, s3 offen")
        A(f"buffer_store_dwordx4 v[28:31], v127, {s(S_OUT,4)}, s3 offen offset:32")
        if self.diag or self.leak:
            A("s_waitcnt vmcnt(0)")
        self.ts("end")
        if self.diag:
            A(f"s_mov_b32 {s(sW)}, {s(sM)}")
        A("s_branch L_fin")

    def gu_unit(self):
        A = self.A
        A(f"s_mul_i32 {s(sT0)}, {s(sRB)}, {32*2752}")
        A(f"s_add_u32 {s(sT1)}, {s(sA7)}, {s(sA1)}")
        A(f"s_add_u32 {s(sT0)}, {s(sT0)}, {s(sA0)}")
        for i in range(3):
            A(f"s_add_u32 m0, {s(sT1)}, {i*1024}")
            A([f"s_add_u32 {s(sRB)}, {s(sRB)}, 1", f"s_and_b32 {s(sRB)}, {s(sRB)}, 15", f"s_add_u32 {s(sA7)}, {s(sA7)}, 12288"][i])
            A(f"buffer_load_dwordx4 {v(48+i)}, {s(S_GU,4)}, {s(sT0)} offen lds")
        A(f"s_cmp_lg_u32 {s(sA7)}, {12*12288}")
        A(f"s_cselect_b32 {s(sA7)}, {s(sA7)}, 0")

    def wd_unit(self):
        A = self.A
        A(f"s_add_u32 {s(sT1)}, {s(sA7)}, {s(sA3)}")
        for i in range(3):
            A(f"s_add_u32 m0, {s(sT1)}, {i*4096}")
            A(f"s_add_u32 {s(sT0)}, {s(sA4)}, 32768")
            A(f"buffer_load_dwordx4 v51, {s(S_WD,4)}, {s(sA4)} offen lds")
            A(f"s_cmp_lg_u32 {s(sT0)}, {43*32768}")
            A(f"s_cselect_b32 {s(sA4)}, {s(sT0)}, 0")
        A(f"s_add_u32 {s(sA7)}, {s(sA7)}, 12288")
        A(f"s_cmp_lg_u32 {s(sA7)}, {12*12288}")
        A(f"s_cselect_b32 {s(sA7)}, {s(sA7)}, 0")

    def w_dma_rot(self, mats):
        A = self.A
        L, Ld = A.uniq("L_wd"), A.uniq("L_wdd")
        A.label(L)
        A(f"s_sub_u32 {s(sCNT)}, {s(sCNT)}, 1")
        A(f"s_cbranch_scc1 {Ld}")
        A(f"s_mul_i32 {s(sT0)}, {s(sT2)}, {4*49152}")
        A(f"s_lshl_b32 {s(sT1)}, {s(sT2)}, 12")
        A(f"s_add_u32 {s(sT0)}, {s(sT0)}, {s(sA9)}")
        A(f"s_add_u32 {s(sT1)}, {s(sT1)}, {s(sA3)}")
        A(f"s_add_u32 {s(sT2)}, {s(sT2)}, 1")
        for mat, lbase in mats:
            A(f"s_add_u32 m0, {s(sT1)}, {lbase - mat*1024}")
            A(f"s_and_b32 {s(sT2)}, {s(sT2)}, 7")
            A(f"buffer_load_dwordx4 v45, {s(S_W,4)}, {s(sT0)} offen offset:{mat*1024} lds")
        A(f"s_branch {L}")
        A.label(Ld)

    def helper(self):
        A = self.A
        A.label("L_helper")
        self.srd_consts([S_W, S_PHI])
        A("v_lshrrev_b32 v12, 2, v0")
        A("v_mul_u32_u24 v12, 3072, v12")
        A("v_lshrrev_b32 v5, 4, v0")
        A("v_and_b32 v5, 2, v5")
        A("v_and_b32 v45, 3, v0")
        A("v_xor_b32 v5, v5, v45")
        A("v_lshl_add_u32 v45, v5, 4, v12")
        A(f"s_lshl_b32 {s(sA3)}, {s(sM)}, 10")
        A(f"s_mul_i32 {s(sA9)}, {s(sM)}, 49152")
        A(f"s_lshl_b32 {s(sT0)}, {s(sJ)}, 6")
        A(f"s_add_u32 {s(sA9)}, {s(sA9)}, {s(sT0)}")
        A(f"s_add_u32 {s(sA9)}, {s(sA9)}, 1024")
        A(f"s_lshr_b32 {s(sT2)}, {s(sRB)}, 1")
        A("s_waitcnt lgkmcnt(0)")
        self.wsoff()
        self.bar()
        A("v_lshlrev_b32 v2, 7, v0")
        A(f"s_cmp_eq_u32 {s(sM)}, 1")
        A("s_cbranch_scc1 L_h3")
        A(f"s_cmp_eq_u32 {s(sM)}, 2")
        A("s_cbranch_scc1 L_h2")
        A(f"s_cmp_eq_u32 {s(sM)}, 3")
        A("s_cbranch_scc1 L_h4")
        A(f"v_mov_b32 v3, {s(sFAST)}")
        A(f"s_lshl4_add_u32 {s(sT0)}, {s(sRB)}, {s(sJ)}")
        A(f"s_mul_i32 {s(sT1)}, s2, 6144")
        A("s_waitcnt lgkmcnt(0)")
        A("s_mov_b64 exec, 1")
        A(f"buffer_store_byte v3, v6, {s(S_DBG,4)}, {s(sT0)} offen sc1")
        A("s_mov_b32 exec_lo, -1\ns_mov_b32 exec_hi, 0xffff")
        if self.o.get("wtouch", 0):
            A(f"buffer_load_dword v10, v2, {s(S_W,4)}, {s(sT1)} offen")
        A("s_mov_b64 exec, -1")
        A("s_branch L_h3")
        A.label("L_h2")
        A(f"s_lshl_b32 {s(sT0)}, s2, 8")
        A(f"s_add_u32 {s(sT0)}, {s(sT0)}, {WS_KV2:#x}")
        A(f"v_add_u32 v3, {s(sT0)}, v2")
        A(f"s_lshl_b32 {s(sT0)}, {s(sJ)}, 7")
        A(f"s_add_u32 {s(sT0)}, {s(sT0)}, {s(sG)}")
        A(f"s_add_u32 {s(sT0)}, {s(sT0)}, {G_FL:#x}")
        A(f"v_writelane_b32 v3, {s(sT0)}, 2")
        A(f"s_and_b32 {s(sT0)}, s2, 127")
        A(f"s_lshl_b32 {s(sT0)}, {s(sT0)}, 7")
        A(f"s_add_u32 {s(sT0)}, {s(sT0)}, {WS_MODU:#x}")
        A(f"v_writelane_b32 v3, {s(sT0)}, 3")
        A("s_waitcnt lgkmcnt(0)")
        A("s_mov_b64 exec, 15")
        A(f"buffer_load_dword v10, v3, {s(S_WS,4)}, 0 offen")
        A("s_mov_b64 exec, -1")
        A("s_branch L_h3")
        A.label("L_h4")
        A(f"s_mov_b32 m0, {L_PHI}")
        A(f"s_lshl_b32 {s(sT0)}, {s(sJ)}, 10")
        A(f"buffer_load_dwordx4 v1, {s(S_PHI,4)}, {s(sT0)} offen lds")
        A.label("L_h3")
        A(f"buffer_load_dword {v(VTAG)}, v6, {s(S_WS,4)}, 0 offen sc1")
        NB1 = self.o.get("nb1", 3)
        KV = [(0, L_WK), (1, L_WV)]
        for r, off in ((S_WO, 24), (S_WG, 40), (S_WU, 48), (S_WD, 56)):
            A(f"s_load_dwordx2 {s(r,2)}, s[0:1], {off}")
        A(f"s_lshr_b32 {s(sA2)}, s2, 3")
        A(f"s_lshl2_add_u32 {s(sT0)}, {s(sA2)}, {s(sM)}")
        A(f"s_mul_i32 {s(sA5)}, {s(sT0)}, {4*3072}")
        A("v_lshrrev_b32 v12, 4, v0")
        A("v_mul_u32_u24 v12, 3072, v12")
        A("v_and_b32 v13, 15, v0")
        A("v_lshl_add_u32 v44, v13, 7, v12")
        if self.o.get("wshare", 1):
            A(f"buffer_load_dword v10, v44, {s(S_W,4)}, {s(sA5)} offen offset:1024")
        A(f"s_cmp_ge_u32 s2, {self.o.get('hold', 32)}")
        A("s_cbranch_scc1 L_nohold")
        A("s_waitcnt lgkmcnt(0)")
        self.lwait(VQ, 12, CV_G, sleep=2)
        A.label("L_nohold")
        self.ts("iss1")
        A(f"s_mov_b32 {s(sCNT)}, 8")
        self.w_dma_rot(KV)
        self.ts("iss2")
        self.srd_consts([S_WO, S_WG, S_WU, S_WD])
        for i in range(3):
            A(f"v_add_u32 v12, {64*i}, v0")
            A("v_mul_u32_u24 v13, 0x5556, v12")
            A("v_lshrrev_b32 v13, 18, v13")
            A(f"v_mul_u32_u24 v13, {2752 - 192}, v13")
            A(f"v_lshl_add_u32 {v(48+i)}, v12, 4, v13")
        A(f"s_lshr_b32 {s(sT0)}, {s(sM)}, 1")
        A(f"s_mul_i32 {s(sA1)}, {s(sT0)}, 3072")
        A(f"s_mul_i32 {s(sA0)}, {s(sT0)}, {16*2752}")
        A(f"s_mul_i32 {s(sT1)}, {s(sJ)}, 192")
        A(f"s_add_u32 {s(sA0)}, {s(sA0)}, {s(sT1)}")
        A(f"s_and_b32 {s(sT1)}, {s(sM)}, 1")
        A(f"s_mul_i32 {s(sT1)}, {s(sT1)}, 6144")
        A(f"s_add_u32 {s(sA1)}, {s(sA1)}, {s(sT1)}")
        A("v_lshlrev_b32 v51, 10, v8")
        A("v_bfe_u32 v12, v0, 4, 1")
        A("v_lshlrev_b32 v13, 2, v12")
        A("v_xor_b32 v13, v13, v9")
        A("v_lshl_add_u32 v51, v13, 4, v51")
        A(f"s_and_b32 {s(sT3)}, {s(sJ)}, 7")
        A(f"s_lshl_b32 {s(sT1)}, {s(sT3)}, 7")
        A(f"s_lshl_b32 {s(sT0)}, {s(sM)}, 13")
        A(f"s_add_u32 {s(sT0)}, {s(sT0)}, {s(sT1)}")
        A(f"v_add_u32 v51, {s(sT0)}, v51")
        A("v_and_b32 v14, 48, v0")
        A("v_lshl_add_u32 v52, v9, 6, v14")
        A("v_lshrrev_b32 v54, 5, v0")
        A(f"v_lshl_add_u32 v54, v54, 5, {s(sA2)}")
        A("v_mul_u32_u24 v54, 2752, v54")
        A("v_and_b32 v13, 31, v0")
        A("v_lshlrev_b32 v13, 7, v13")
        A("v_min_u32 v13, 2748, v13")
        A("v_add_u32 v54, v54, v13")
        A(f"v_lshl_add_u32 v56, v8, 5, {s(sA2)}")
        A("v_lshlrev_b32 v56, 10, v56")
        A("v_lshl_add_u32 v56, v9, 7, v56")
        A(f"s_lshl2_add_u32 {s(sT0)}, {s(sJ)}, {s(sM)}")
        A(f"s_lshl4_add_u32 {s(sT0)}, {s(sT0)}, {s(sRB)}")
        A(f"s_lshl_b32 {s(sT0)}, {s(sT0)}, 10")
        A(f"s_add_u32 {s(sT0)}, {s(sT0)}, {WS_KVP:#x}")
        A(f"v_add_u32 v55, {s(sT0)}, v2")
        A(f"s_lshl3_add_u32 {s(sA8)}, {s(sM)}, {s(sT3)}")
        A(f"s_lshl_b32 {s(sA8)}, {s(sA8)}, 12")
        A(f"s_add_u32 {s(sA8)}, {s(sA8)}, {WS_MODL:#x}")
        A("v_lshlrev_b32 v58, 3, v0")
        A(f"s_lshl_b32 {s(sT0)}, {s(sM)}, 8")
        A(f"s_add_u32 {s(sT0)}, {s(sT0)}, {L_MT}")
        A(f"v_lshl_add_u32 v59, v0, 2, {s(sT0)}")
        A(f"s_lshl_b32 {s(sT0)}, {s(sM)}, 7")
        A(f"s_add_u32 {s(sT0)}, {s(sT0)}, {s(sJ)}")
        A(f"s_lshl_b32 {s(sT0)}, {s(sT0)}, 10")
        A(f"s_add_u32 {s(sT0)}, {s(sT0)}, {G_O:#x}")
        A("v_lshlrev_b32 v53, 14, v8")
        A("v_lshl_add_u32 v53, v9, 7, v53")
        A(f"v_add_u32 v53, {s(sT0)}, v53")
        A(f"s_lshl2_add_u32 {s(sT0)}, {s(sJ)}, {s(sM)}")
        A(f"s_lshl_b32 {s(sT0)}, {s(sT0)}, 8")
        A(f"s_add_u32 {s(sT0)}, {s(sT0)}, {G_ST:#x}")
        A(f"v_writelane_b32 v53, {s(sT0)}, 16")
        A(f"s_add_u32 {s(sT0)}, {s(sT0)}, 128")
        A(f"v_writelane_b32 v53, {s(sT0)}, 17")
        A(f"s_lshl_b32 {s(sT0)}, {s(sM)}, 17")
        A(f"s_mul_i32 {s(sT1)}, {s(sJ)}, 6144")
        A(f"s_add_u32 {s(sT0)}, {s(sT0)}, {s(sT1)}")
        A(f"s_add_u32 {s(sT0)}, {s(sT0)}, {G_HH:#x}")
        A(f"v_add_u32 v57, {s(sT0)}, v2")
        self.rot_setup()
        A(f"s_and_b32 {s(sT0)}, {s(sM)}, 2")
        A(f"s_add_u32 {s(sA6)}, {s(sRB)}, {s(sT0)}")
        A(f"s_lshl2_add_u32 {s(sA11)}, {s(sM)}, {s(sEX+1)}")
        A(f"s_mov_b32 {s(sA10)}, {s(sRB)}")
        A(f"s_lshl_b32 {s(sA4)}, {s(sEX+1)}, 15")
        A(f"s_mov_b32 {s(sA7)}, {slot_addr(0)}")
        A("s_waitcnt lgkmcnt(0)")
        A(f"s_bitcmp1_b32 {s(sM)}, 0")
        A(f"s_cselect_b64 {s(S_GU,2)}, {s(S_WU,2)}, {s(S_WG,2)}")
        A(f"s_mov_b32 {s(S_GU+2)}, {512*2752}")
        A(f"s_sub_u32 {s(sA9)}, {s(sA9)}, 1024")
        A("s_waitcnt vmcnt(0)")
        self.signal(VP, 12, HV_W)
        A(f"v_add_u32 {v(VTAG)}, 1, {v(VTAG)}")
        A(f"v_readfirstlane_b32 {s(sTAG)}, {v(VTAG)}")
        self.ts("w_land")
        CVS = dict(A2=CV_A2, KV=CV_KV, H1=CV_H1, O=CV_O, P2L=CV_P2L, X2=CV_X2, ST=CV_ST, E=CV_E)
        NE = 0
        since_tq = None

        def masked(mask_lo, mask_hi, ins):
            A(f"s_mov_b32 exec_lo, {mask_lo:#x}\ns_mov_b32 exec_hi, {mask_hi:#x}")
            A(ins)
            A("s_mov_b64 exec, -1")

        def share_g():
            A(f"s_and_b32 {s(sT0)}, {s(sA6)}, 15")
            A(f"s_mul_i32 {s(sT0)}, {s(sT0)}, {32*2752}")
            A(f"s_add_u32 {s(sA6)}, {s(sA6)}, 4")
            masked(0x7fffff, 0x7fffff, f"buffer_load_dword v10, v54, {s(S_GU,4)}, {s(sT0)} offen")

        def share_d():
            A(f"s_sub_u32 {s(sT0)}, {s(sA11)}, 44")
            A(f"s_cselect_b32 {s(sA11)}, {s(sA11)}, {s(sT0)}")
            A(f"s_lshl_b32 {s(sT0)}, {s(sA11)}, 15")
            A(f"s_add_u32 {s(sA11)}, {s(sA11)}, 16")
            masked(0xffffffff, 0, f"buffer_load_dword v10, v56, {s(S_WD,4)}, {s(sT0)} offen")
        for act in self.sched.split():
            n = 0
            if act.startswith("w"):
                self.lwait(VQ, 15, CVS[act[1:]], sleep=2)
            elif act.startswith("@"):
                self.ts(act[1:])
            elif act == "sq":
                masked(0x00ff00ff, 0x00ff00ff, f"buffer_load_dword v10, v44, {s(S_W,4)}, {s(sA5)} offen"); n = 1
            elif act == "so":
                A(f"s_lshl2_add_u32 {s(sT0)}, {s(sA2)}, {s(sM)}")
                A(f"s_lshl_b32 {s(sT0)}, {s(sT0)}, 12")
                masked(0xffffffff, 0, f"buffer_load_dword v10, v2, {s(S_WO,4)}, {s(sT0)} offen"); n = 1
            elif act == "sg":
                share_g(); n = 1
            elif act == "sd":
                share_d(); n = 1
            elif act == "pre":
                masked(0x3ffff, 0, f"buffer_load_dword v10, v53, {s(S_WS,4)}, {s(sG)} offen"); n = 1
            elif act == "pkv":
                masked(0xff, 0, f"buffer_load_dword v10, v55, {s(S_WS,4)}, 0 offen"); n = 1
            elif act == "phh":
                masked(0xffffffff, 0xffff, f"buffer_load_dword v10, v57, {s(S_WS,4)}, {s(sG)} offen"); n = 1
            elif act == "li":
                assert since_tq is None
                A(f"s_cmp_lg_u32 {s(sM)}, 0")
                A("s_cbranch_scc1 L_li")
                self.gemv_issue(64, late=True)
                self.gemv_issue2(64, late=True)
                A.label("L_li")
            elif act == "lc":
                A(f"s_cmp_lg_u32 {s(sM)}, 0")
                A("s_cbranch_scc1 L_lc")
                self.gemv_compute(64, None)
                A(f"s_lshl_b32 {s(sT0)}, s2, 9")
                A(f"s_add_u32 {s(sT0)}, {s(sT0)}, {WS_MODL:#x}")
                A(f"v_mov_b32 v28, v27\nv_mov_b32 v27, {v(VTAG)}\nv_mov_b32 v29, {v(VTAG)}")
                A(f"buffer_store_dwordx4 v[26:29], v52, {s(S_WS,4)}, {s(sT0)} offen sc1")
                A.label("L_lc")
            elif act == "tq":
                A(f"s_mov_b32 {s(sCNT)}, 8")
                self.w_dma_rot([(0, L_WQ)])
                since_tq = 0
            elif act == "sigQ":
                A(f"s_waitcnt vmcnt({since_tq})")
                self.signal(VP, 15, HV_Q)
            elif act == "to":
                A(f"s_mov_b32 {s(sCNT)}, 16")
                A.label("L_wo")
                A(f"s_lshl_b32 {s(sT1)}, {s(sA10)}, 12")
                A(f"s_lshl_b32 {s(sT0)}, {s(sA10)}, 15")
                A(f"s_add_u32 m0, {s(sT1)}, {s(sA3)}")
                A(f"s_add_u32 {s(sA10)}, {s(sA10)}, 1")
                A(f"buffer_load_dwordx4 v51, {s(S_WO,4)}, {s(sT0)} offen lds")
                A(f"s_and_b32 {s(sA10)}, {s(sA10)}, 15")
                A(f"s_sub_u32 {s(sCNT)}, {s(sCNT)}, 1")
                A(f"s_cmp_lg_u32 {s(sCNT)}, 0")
                A("s_cbranch_scc1 L_wo")
                n = 16
            elif act == "u":
                self.gu_unit(); NE += 1; n = 3
            elif act == "v0":
                A("s_waitcnt vmcnt(0)")
            elif act == "mt":
                A(f"s_mov_b32 {s(sCNT)}, {SPIN}")
                A("s_branch L_gat1")
                A.label("L_gat")
                A("s_sleep 8")
                A.label("L_gat1")
                for i in range(8):
                    A(f"buffer_load_dwordx2 {v(24+2*i,2)}, v58, {s(S_WS,4)}, {s(sA8)} offen offset:{i*512} sc1")
                A("v_mov_b32 v21, 0")
                A("s_waitcnt vmcnt(0)")
                for i in range(8):
                    A(f"v_bitop3_b32 v21, v21, {v(25+2*i)}, {v(VTAG)} bitop3:0xf6")
                    if i:
                        A(f"v_add_f32 v24, v24, {v(24+2*i)}")
                A(f"s_sub_u32 {s(sCNT)}, {s(sCNT)}, 1")
                A("s_cbranch_scc1 L_gatd")
                A("v_cmp_ne_u32 vcc, 0, v21")
                A("s_cbranch_vccnz L_gat")
                A.label("L_gatd")
                A(f"s_cmp_eq_u32 {s(sM)}, 2")
                A(f"s_cselect_b32 {s(sT0)}, 1.0, 0")
                A("v_cvt_pk_bf16_f32 v24, v24, v24")
                A(f"v_and_b32 v24, {v(VMASK)}, v24")
                A(f"v_add_f32 v24, {s(sT0)}, v24")
                A("v_cvt_pk_bf16_f32 v24, v24, v24")
                A(f"v_and_b32 v24, {v(VMASK)}, v24")
                A("ds_write_b32 v59, v24")
                assert 1 <= NE <= 3
                A(f"v_mov_b32 v14, {15 + NE}")
                A(f"ds_write_b32 {v(VP)}, v14")
            else:
                raise ValueError(act)
            if since_tq is not None:
                since_tq += n
        A("s_cmp_lg_u32 s2, 0")
        A("s_cbranch_scc1 L_ep_skip")
        A(f"buffer_store_dword {v(VTAG)}, v6, {s(S_WS,4)}, 0 offen sc1")
        A.label("L_ep_skip")
        D = self.o.get("d", 3)
        A(f"s_mov_b32 {s(sA8)}, {NE + 4}")
        A(f"v_subrev_u32 v13, {D - 1}, v14")
        for name, unit, end in (("gu", self.gu_unit, 16 + 4), ("wd", self.wd_unit, 31 + 4)):
            A.label(f"L_ring_{name}")
            self.lwait(VQ, 12, s(sA8), sleep=2)
            unit()
            A("v_add_u32 v13, 1, v13")
            A(f"s_add_u32 {s(sA8)}, {s(sA8)}, 1")
            A("v_max_u32 v15, v13, v14")
            A(f"s_waitcnt vmcnt({3*(D-1)})")
            A(f"ds_write_b32 {v(VP)}, v15")
            A(f"s_cmp_lg_u32 {s(sA8)}, {end}")
            A(f"s_cbranch_scc1 L_ring_{name}")
            self.ts(name + "_iss")
        for i in range(D - 1):
            A("v_add_u32 v13, 1, v13")
            A(f"s_waitcnt vmcnt({3*(D-2-i)})")
            A(f"ds_write_b32 {v(VP)}, v13")
        A("s_waitcnt lgkmcnt(0)")
        self.ts("wd_done")

    def finish(self):
        A = self.A
        A.label("L_fin")
        if self.leak:
            A(f"s_lshl3_add_u32 {s(sRT)}, {s(sTS+2)}, {s(sRT)}")
            A(f"s_add_u32 {s(sRT)}, {s(sRT)}, 5000")
            A.label("L_leak")
            A(f"s_sleep 2\ns_memrealtime {s(sTP,2)}\ns_waitcnt lgkmcnt(0)\ns_sub_u32 {s(sT0)}, {s(sTP)}, {s(sRT)}\ns_cmp_lt_i32 {s(sT0)}, 0\ns_cbranch_scc1 L_leak")
        if self.diag:
            A("s_waitcnt vmcnt(0) lgkmcnt(0)")
            A(f"s_cmp_lg_u32 {s(sM)}, 0")
            A("s_cbranch_scc1 L_end")
            A(f"s_lshl_b32 {s(sT0)}, s2, 8")
            A(f"s_lshl_b32 {s(sT1)}, {s(sW)}, 5")
            A(f"s_add_u32 {s(sT0)}, {s(sT0)}, {s(sT1)}")
            A(f"s_add_u32 {s(sT0)}, {s(sT0)}, {WS_TS:#x}")
            A("s_mov_b64 exec, 1")
            A("v_mov_b32 v6, 0")
            A(f"v_mov_b32 v8, {s(sRT)}")
            A(f"buffer_store_dword v8, v6, {s(S_WS,4)}, {s(sT0)} offen offset:124")
            A(f"v_mov_b32 v9, {s(sFAST)}")
            A(f"buffer_store_dword v9, v6, {s(S_WS,4)}, {s(sT0)} offen offset:120")
            for i in range(20):
                A(f"v_mov_b32 {v(10+i)}, {s(sTS+i)}")
                A(f"buffer_store_dword {v(10+i)}, v6, {s(S_WS,4)}, {s(sT0)} offen offset:{4*i}")
            A("s_waitcnt vmcnt(0)")
        A.label("L_end")
        A("s_endpgm")

    def build(self):
        self.start()
        self.role = "C"
        self.c_start()
        self.c_p1()
        self.c_p2()
        self.c_p3()
        self.c_p4()
        self.role = "H"
        self.helper()
        self.finish()
        hdr = open("header.txt").read()
        return (hdr + "; @launch grid=(256,1,1) block=(512,1,1) lds=163840\n"
                + '.amdgcn_target "amdgcn-amd-amdhsa--gfx950"\n.text\n'
                + f".globl {KNAME}\n.p2align 8\n.type {KNAME},@function\n{KNAME}:\n"
                + self.A.text()
                + f"""
.section .rodata,"a"
.p2align 6
.amdhsa_kernel {KNAME}
  .amdhsa_next_free_vgpr 256
  .amdhsa_next_free_sgpr 102
  .amdhsa_accum_offset 128
  .amdhsa_group_segment_fixed_size 0
  .amdhsa_kernarg_size 104
  .amdhsa_user_sgpr_count 2
  .amdhsa_user_sgpr_kernarg_segment_ptr 1
  .amdhsa_system_sgpr_workgroup_id_x 1
.end_amdhsa_kernel
""")


if __name__ == "__main__":
    import argparse, json
    ap = argparse.ArgumentParser()
    ap.add_argument("-o", default="k7.s")
    ap.add_argument("--diag", action="store_true")
    ap.add_argument("--slow", action="store_true")
    ap.add_argument("--opt", default="")
    ap.add_argument("--leak", default=None)
    args = ap.parse_args()
    o, _, sched = args.opt.partition("|")
    opts = {kv.split("=")[0]: int(kv.split("=")[1]) for kv in o.split(",") if kv}
    g = Gen(diag=args.diag, force_slow=args.slow, opts=opts, sched=sched or None, leak=args.leak)
    t = g.build()
    open(args.o, "w").write(t)
    if args.diag:
        json.dump(g.names, open(args.o + ".ts", "w"))
    print("written", args.o, len(t.splitlines()), "lines")
```

```python
import sys
sys.path.insert(0, "gen")
from asmlib import *

KNAME = "adaLN_cond__linear_kernel_hedgehog__glu_gated_reglu__prompt_kernel"

WS_MODU = 0x4000
WS_MODL = 0x10000
WS_KV2 = 0x30000
WS_KVP = 0x40000
WS_G0 = 0x200000
RS = 0x20000
G_H, G_O, G_H2, G_HH = 0x0, 0x8000, 0x0, 0x8000
G_FL = 0x80000
G_FLH, G_FLO, G_FL2, G_FL3 = G_FL, G_FL + 512, G_FL + 1024, G_FL + 1536
G_ST = 0x81000
WS_TS = 0x1400000
L_WK, L_WV, L_WQ = 0, 32768, 65536
L_KVR, L_X1, L_KVF, L_SCR, L_STX, L_MT = 135168, 151552, 155648, 157824, 159872, 162816
L_TAB = 107520
KVR_W = 4352
L_CW, L_HW = 160384, 160400
L_XT, L_PHI = 98304, 106496
CV_G, CV_S, CV_A2, CV_KV, CV_H1, CV_O, CV_P2L, CV_X2, CV_SX, CV_ST, CV_E = 1, 2, 3, 4, 5, 6, 7, 8, 9, 10, 15
HV_W, HV_Q, HV_G = 1, 2, 16
sB0, sB1, sB2 = 16, 17, 18
L_SX = 160512
L_EX2 = (135168, 143360)
L_EX4 = (L_X1, 28672)


def slot_addr(u):
    return ((u + 8) % 12) * 12288


def wd_addr(i):
    return (i % 36) * 4096


S_X, S_W, S_WS, S_WM, S_C, S_PHI, S_WO, S_WG, S_WU, S_WD, S_OUT, S_GU = 4, 8, 12, 16, 20, 24, 28, 32, 36, 40, 44, 48
S_DBG = 48
sW, sM, sRB, sJ, sTAG, sG, sFAST = 52, 53, 54, 55, 56, 57, 58
sT0, sT1, sT2, sT3, sCNT = 59, 60, 61, 62, 63
sEX = 64
sA0, sA1, sA2, sA3, sA4, sA5, sA6, sA7, sA8, sA9 = range(66, 76)
sA10, sA11 = 76, 77
sTP = 78
sRT = 80
sTS = 82
SPIN = 0x40000
VMASK, VTAG = 126, 127
VP, VQ = 7, 4


def zip_streams(*streams):
    out = []
    n = max(len(x) for x in streams)
    for i in range(n):
        for x in streams:
            if i < len(x):
                out.append(x[i])
    return out


def weave(mfmas, others, per=2):
    out, o = [], list(others)
    n = len(mfmas)
    for i, m_ in enumerate(mfmas):
        out.append(m_)
        k = min(per, -(-len(o) // (n - i)))
        out += o[:k]
        o = o[k:]
    return out + o


class Gen:
    def __init__(self, diag=False, force_slow=False, opts=None, sched=None, leak=None):
        self.leak = leak
        self.A = Asm()
        self.diag = diag
        self.names = {"C": [], "H": []}
        self.role = None
        self.force_slow = force_slow
        self.o = opts or {}
        self.sched = sched or "wA2 @a2 sq li pre pkv tq so sg sigQ @wq lc wKV to u u u @t2 wH1 sg sg mt @g wE @e"

    def ts(self, name):
        if self.leak == name:
            self.A(f"s_cselect_b32 {s(sTS+3)}, 1, 0\ns_memrealtime {s(sTP,2)}\ns_waitcnt lgkmcnt(0)\ns_sub_u32 {s(sTS+2)}, {s(sTP)}, {s(sRT)}\ns_cmp_lg_u32 {s(sTS+3)}, 0")
        if not self.diag:
            return
        roles = ["C", "H"] if self.role is None else [self.role]
        idx = max(len(self.names[r]) for r in roles)
        for r in roles:
            while len(self.names[r]) < idx:
                self.names[r].append("-")
            self.names[r].append(name)
        assert idx < 20
        self.A(f"s_memtime {s(sTP,2)}\ns_waitcnt lgkmcnt(0)\ns_mov_b32 {s(sTS+idx)}, {s(sTP)}")

    def bar(self):
        self.A("s_barrier")

    def dual(self, fn):
        A = self.A
        Ls, Ld = A.uniq("L_slow"), A.uniq("L_sd")
        A(f"s_cmp_eq_u32 {s(sFAST)}, 0")
        A(f"s_cbranch_scc1 {Ls}")
        fn("")
        A(f"s_branch {Ld}")
        A.label(Ls)
        fn(" sc1")
        A.label(Ld)

    def store_flag(self, stores, sflag, vz, vt, data_sc1=False):
        A = self.A

        if data_sc1:
            stores(" sc1")

        def f(sfx):
            if not data_sc1:
                stores(sfx)
            A("s_waitcnt vmcnt(0)")
            A("s_mov_b64 exec, 1")
            A(f"buffer_store_dword {v(vt)}, {v(vz)}, {s(S_WS,4)}, {s(sflag)} offen{sfx}")
            A("s_mov_b64 exec, -1")
        self.dual(f)

    def poll(self, voff, soff, vtmp, sleep=0):
        A = self.A
        Lp, Ld = A.uniq("L_poll"), A.uniq("L_pd")
        A(f"s_mov_b32 {s(sCNT)}, {SPIN}")
        A.label(Lp)
        if sleep:
            A(f"s_sleep {sleep}")
        A(f"buffer_load_dword {v(vtmp)}, {v(voff)}, {s(S_WS,4)}, {s(soff)} offen sc1")
        A(f"s_sub_u32 {s(sCNT)}, {s(sCNT)}, 1")
        A(f"s_cbranch_scc1 {Ld}")
        A("s_waitcnt vmcnt(0)")
        A(f"v_cmp_ne_u32 vcc, {s(sTAG)}, {v(vtmp)}")
        A(f"s_cbranch_vccnz {Lp}")
        A.label(Ld)

    def signal(self, vaddr, vtmp, val):
        self.A(f"v_mov_b32 {v(vtmp)}, {val}")
        self.A(f"ds_write_b32 {v(vaddr)}, {v(vtmp)}")

    def lwait(self, vaddr, vtmp, val, off=0, sleep=0, extra=None):
        A = self.A
        Lp, Ld = A.uniq("L_lw"), A.uniq("L_lwd")
        A(f"s_mov_b32 {s(sCNT)}, {SPIN*8}")
        A.label(Lp)
        A(f"ds_read_b32 {v(vtmp)}, {v(vaddr)} offset:{off}")
        self.emit(extra or [])
        A(f"s_sub_u32 {s(sCNT)}, {s(sCNT)}, 1")
        A(f"s_cbranch_scc1 {Ld}")
        A(f"s_waitcnt lgkmcnt({len(extra or [])})")
        A(f"v_cmp_gt_u32 vcc, {val}, {v(vtmp)}")
        if sleep:
            A(f"s_cbranch_vccz {Ld}")
            A(f"s_sleep {sleep}")
            A(f"s_branch {Lp}")
        else:
            A(f"s_cbranch_vccnz {Lp}")
        A.label(Ld)

    @staticmethod
    def red4(op, a0, b0, a1, b1):
        return [f"v_permlane32_swap_b32 {v(a0)}, {v(b0)}", f"v_permlane32_swap_b32 {v(a1)}, {v(b1)}",
                f"{op} {v(a0)}, {v(a0)}, {v(b0)}", f"{op} {v(a1)}, {v(a1)}, {v(b1)}",
                f"v_permlane16_swap_b32 {v(a0)}, {v(a1)}", f"{op} {v(a0)}, {v(a0)}, {v(a1)}"]

    @staticmethod
    def bcast4(a0, b0, a1, b1):
        return [f"v_mov_b32 {v(a1)}, {v(a0)}", f"v_permlane16_swap_b32 {v(a0)}, {v(a1)}",
                f"v_mov_b32 {v(b0)}, {v(a0)}", f"v_mov_b32 {v(b1)}, {v(a1)}",
                f"v_permlane32_swap_b32 {v(a0)}, {v(b0)}", f"v_permlane32_swap_b32 {v(a1)}, {v(b1)}"]

    def softmax2(self, X, EP, EN, T, P, L2):
        o = []
        a0, b0, a1, b1 = T, T + 1, T + 2, T + 3
        for t, (aa, bb) in enumerate(((a0, b0), (a1, b1))):
            x = X + 4 * t
            o += [f"v_max3_f32 {v(aa)}, {v(x)}, {v(x+1)}, {v(x+2)}", f"v_max3_f32 {v(bb)}, -{v(x)}, -{v(x+1)}, -{v(x+2)}"]
        for t, (aa, bb) in enumerate(((a0, b0), (a1, b1))):
            x = X + 4 * t
            o += [f"v_max_f32 {v(aa)}, {v(aa)}, {v(x+3)}", f"v_max_f32_e64 {v(bb)}, {v(bb)}, -{v(x+3)}"]
        o += self.red4("v_max_f32", a0, b0, a1, b1)
        o += [f"v_mul_f32 {v(a0)}, {v(L2)}, {v(a0)}"]
        o += self.bcast4(a0, b0, a1, b1)
        for t in range(2):
            m = T + 2 * t
            for h in range(2):
                x = X + 4 * t + 2 * h
                o += [f"v_pk_fma_f32 {v(EP+4*t+2*h,2)}, {v(x,2)}, {v(L2,2)}, {v(m,2)} op_sel:[0,0,0] op_sel_hi:[1,1,0] neg_lo:[0,0,1] neg_hi:[0,0,1]",
                      f"v_pk_fma_f32 {v(EN+4*t+2*h,2)}, {v(x,2)}, {v(L2,2)}, {v(m,2)} op_sel:[0,0,1] op_sel_hi:[1,1,1] neg_lo:[1,0,1] neg_hi:[1,0,1]"]
        for i in range(8):
            o += [f"v_exp_f32 {v(EP+i)}, {v(EP+i)}", f"v_exp_f32 {v(EN+i)}, {v(EN+i)}"]
        for t in range(2):
            e, n = EP + 4 * t, EN + 4 * t
            o += [f"v_pk_add_f32 {v(T+4,2)}, {v(e,2)}, {v(e+2,2)}", f"v_pk_add_f32 {v(T+6,2)}, {v(n,2)}, {v(n+2,2)}",
                  f"v_add_f32 {v(T+2*t)}, {v(T+4)}, {v(T+5)}", f"v_add_f32 {v(T+2*t+1)}, {v(T+6)}, {v(T+7)}"]
        o += self.red4("v_add_f32", a0, b0, a1, b1)
        o += [f"v_rcp_f32 {v(a0)}, {v(a0)}"]
        o += self.bcast4(a0, b0, a1, b1)
        for t in range(2):
            m = T + 2 * t
            for h in range(2):
                e, n = EP + 4 * t + 2 * h, EN + 4 * t + 2 * h
                o += [f"v_pk_mul_f32 {v(e,2)}, {v(e,2)}, {v(m,2)} op_sel:[0,0] op_sel_hi:[1,0]",
                      f"v_pk_mul_f32 {v(n,2)}, {v(n,2)}, {v(m,2)} op_sel:[0,1] op_sel_hi:[1,1]"]
        for t in range(2):
            for h in range(2):
                o += [f"v_cvt_pk_bf16_f32 {v(P+4*t+h)}, {v(EP+4*t+2*h)}, {v(EP+4*t+2*h+1)}",
                      f"v_cvt_pk_bf16_f32 {v(P+4*t+2+h)}, {v(EN+4*t+2*h)}, {v(EN+4*t+2*h+1)}"]
        return o

    def emit(self, lst):
        for l in lst:
            self.A(l)

    def srd_consts(self, regs):
        sizes = {S_WS: 0x10000000 - (self.o.get('wsoff', 0) << 20), S_C: 1024, S_WM: 512*6144, S_X: 2048*1024, S_W: 512*3072, S_PHI: 32*512, S_WO: 512*1024,
                 S_WG: 512*2752, S_WU: 512*2752, S_WD: 1376*1024, S_OUT: 2048*1024, S_DBG: 256}
        for r in regs:
            self.A(f"s_mov_b32 {s(r+2)}, {sizes[r]:#x}")
            self.A(f"s_mov_b32 {s(r+3)}, 0x20000")

    def wsoff(self):
        off = self.o.get("wsoff", 0) << 20
        if off:
            self.A(f"s_add_u32 {s(S_WS)}, {s(S_WS)}, {off:#x}\ns_addc_u32 {s(S_WS+1)}, {s(S_WS+1)}, 0")

    def gemv_issue(self, W, late=False):
        A = self.A
        if late:
            A(f"s_and_b32 {s(sT0)}, s2, 7")
        else:
            A(f"s_and_b32 {s(sT0)}, s2, 1")
            A(f"s_lshl2_add_u32 {s(sT0)}, {s(sT0)}, {s(sM)}")
        A("v_and_b32 v13, 3, v0")
        A("v_lshlrev_b32 v13, 2, v13")
        A("v_lshl_add_u32 v13, v8, 4, v13")
        A(f"s_lshl_b32 {s(sT1)}, {s(sT0)}, 7")
        A(f"buffer_load_dword v12, v13, {s(S_C,4)}, {s(sT1)} offen")

    def gemv_issue2(self, W, late=False):
        A = self.A
        A("v_mul_u32_u24 v14, 49152, v8")
        A("v_lshl_add_u32 v14, v9, 4, v14")
        A(f"s_mul_i32 {s(sT0)}, {s(sT0)}, {64*6144}")
        A(f"s_lshr_b32 {s(sT1)}, s2, {3 if late else 1}")
        if late:
            A(f"s_add_u32 {s(sT1)}, {s(sT1)}, 16")
        A(f"s_lshl_b32 {s(sT1)}, {s(sT1)}, 7")
        A(f"s_add_u32 {s(sT0)}, {s(sT0)}, {s(sT1)}")
        for i in range(8):
            A(f"buffer_load_dwordx4 {v(W+4*i,4)}, v14, {s(S_WM,4)}, {s(sT0)} offen")
            if i < 7:
                A(f"s_add_u32 {s(sT0)}, {s(sT0)}, 6144")

    def gemv_compute(self, W, after):
        A = self.A
        A("v_lshlrev_b32 v13, 16, v12")
        A(f"v_and_b32 v14, {v(VMASK)}, v12")
        A("v_mul_f32 v15, 0xbfb8aa3b, v13\nv_mul_f32 v16, 0xbfb8aa3b, v14")
        A("v_exp_f32 v15, v15\nv_exp_f32 v16, v16")
        A(f"s_mov_b32 {s(sT0)}, 0x05040100\ns_mov_b32 {s(sT1)}, 0x07060302")
        A("v_add_f32 v15, 1.0, v15\nv_add_f32 v16, 1.0, v16")
        A("v_rcp_f32 v15, v15\nv_rcp_f32 v16, v16")
        for c in range(8):
            A(f"v_mov_b32 {v(24+c)}, 0")
        A("v_mul_f32 v13, v13, v15\nv_mul_f32 v14, v14, v16")
        A("v_cvt_pk_bf16_f32 v12, v13, v14")
        for q in range(4):
            A(f"v_mov_b32_dpp {v(16+q)}, v12 quad_perm:[{q},{q},{q},{q}] row_mask:0xf bank_mask:0xf")
        for q in range(4):
            if after is not None:
                A(f"s_waitcnt vmcnt({after + 6 - 2*q})")
            for d in range(0, 4, 2):
                for e in range(2):
                    ra, rb_ = W + 8*q + d + e, W + 8*q + 4 + d + e
                    A(f"v_perm_b32 {v(20+2*e)}, {v(rb_)}, {v(ra)}, {s(sT0)}")
                    A(f"v_perm_b32 {v(21+2*e)}, {v(rb_)}, {v(ra)}, {s(sT1)}")
                for e in range(4):
                    A(f"v_dot2c_f32_bf16 {v(24+2*d+e)}, {v(20+e)}, {v(16+q)}")
        for c in range(4):
            A(f"v_permlane32_swap_b32 {v(24+c)}, {v(28+c)}")
        A("v_pk_add_f32 v[24:25], v[24:25], v[28:29]\nv_pk_add_f32 v[26:27], v[26:27], v[30:31]")
        for c in range(2):
            A(f"v_permlane16_swap_b32 {v(24+c)}, {v(26+c)}")
        A("v_pk_add_f32 v[24:25], v[24:25], v[26:27]")
        for c in range(2):
            A(f"v_add_f32_dpp {v(26+c)}, {v(24+c)}, {v(24+c)} row_ror:8 row_mask:0xf bank_mask:0xf")

    def start(self):
        A = self.A
        A("s_cmp_ge_u32 s2, 256")
        A("s_cbranch_scc1 L_end")
        for r, off in ((S_WS, 96), (S_C, 64), (S_WM, 72), (S_X, 0), (S_W, 8), (S_DBG, 88), (S_PHI, 16)):
            A(f"s_load_dwordx2 {s(r,2)}, s[0:1], {off}")
        if self.leak:
            A(f"s_memrealtime {s(sRT,2)}\ns_mov_b32 {s(sTS+2)}, 0")
        if self.diag:
            A(f"s_memrealtime {s(sRT,2)}")
            A(f"s_memtime {s(sTS,2)}")
            self.names["C"].append("start"); self.names["H"].append("start")
            self.names["C"].append("-"); self.names["H"].append("-")
        A("v_lshrrev_b32 v2, 6, v0")
        A("v_and_b32 v0, 63, v0")
        A(f"v_readfirstlane_b32 {s(sW)}, v2")
        A(f"s_and_b32 {s(sRB)}, s2, 7")
        A(f"s_lshr_b32 {s(sT0)}, s2, 7")
        A(f"s_lshl1_add_u32 {s(sRB)}, {s(sRB)}, {s(sT0)}")
        A(f"s_bfe_u32 {s(sJ)}, s2, 0x40003")
        A("v_mov_b32 v6, 0")
        A("v_lshrrev_b32 v8, 3, v0")
        A("v_and_b32 v9, 7, v0")
        A("v_lshlrev_b32 v1, 4, v0")
        A(f"v_mov_b32 {v(VMASK)}, 0xffff0000")
        A(f"s_and_b32 {s(sM)}, {s(sW)}, 3")
        A(f"s_lshl_b32 {s(sG)}, {s(sRB)}, 20")
        A(f"s_add_u32 {s(sG)}, {s(sG)}, {WS_G0:#x}")
        A(f"s_getreg_b32 {s(sFAST)}, hwreg(HW_REG_XCC_ID)")
        self.srd_consts([S_WS, S_C, S_WM, S_DBG])
        A(f"s_or_b32 {s(sFAST)}, {s(sFAST)}, 0x80")
        A(f"s_lshl2_add_u32 {s(sT0)}, {s(sW)}, {L_CW}")
        A(f"v_mov_b32 {v(VP)}, {s(sT0)}")
        A(f"ds_write_b32 {v(VP)}, v6")
        A(f"v_and_b32 {v(VQ)}, 3, v0")
        A(f"v_lshlrev_b32 {v(VQ)}, 2, {v(VQ)}")
        A(f"v_add_u32 {v(VQ)}, {L_CW}, {v(VQ)}")
        A(f"s_cmp_ge_u32 {s(sW)}, 4")
        A("s_cbranch_scc1 L_helper")

    PHIT, IDN, ONES, L2 = 112, 116, 120, 118

    def c_start(self):
        A = self.A
        self.srd_consts([S_X])
        A("v_lshlrev_b32 v2, 4, v9")
        A("v_lshl_add_u32 v89, v8, 10, v2")
        A(f"s_lshl4_add_u32 {s(sT2)}, {s(sRB)}, {s(sJ)}")
        A(f"s_lshl_b32 {s(sT2)}, {s(sT2)}, 13")
        A(f"s_lshl_b32 {s(sT3)}, {s(sM)}, 8")
        A(f"s_add_u32 {s(sT2)}, {s(sT2)}, {s(sT3)}")
        A(f"s_lshl_b32 {s(sEX)}, {s(sM)}, 11")
        A(f"s_add_u32 {s(sEX)}, {s(sEX)}, {L_XT}")
        A("s_waitcnt lgkmcnt(0)")
        self.wsoff()
        A(f"buffer_load_dword {v(VTAG)}, v6, {s(S_WS,4)}, 0 offen sc1")
        XL = self.o.get("xlate", 1)
        PH = self.o.get("pre_h", 1)

        def xdma():
            A(f"s_mov_b32 m0, {s(sEX)}")
            A(f"buffer_load_dwordx4 v89, {s(S_X,4)}, {s(sT2)} offen lds")
            A(f"s_add_u32 m0, {s(sEX)}, {1024-128}")
            A(f"buffer_load_dwordx4 v89, {s(S_X,4)}, {s(sT2)} offen offset:128 lds")
        A("s_cmp_ge_u32 s2, 32")
        A("s_cbranch_scc1 L_p0a_skip")
        self.gemv_issue(32)
        self.gemv_issue2(32)
        A.label("L_p0a_skip")
        if not XL:
            xdma()
        self.bar()
        A(f"s_load_dwordx2 {s(S_OUT,2)}, s[0:1], 80")
        A("v_lshrrev_b32 v10, 4, v0")
        A("v_and_b32 v11, 15, v0")
        self.srd_consts([S_OUT])
        A(f"v_lshl_add_u32 v90, v9, 7, {s(sEX)}")
        A("v_lshl_add_u32 v90, v8, 4, v90")
        A("v_lshlrev_b32 v2, 2, v10")
        A("v_sub_u32 v2, v11, v2")
        A("v_cmp_gt_u32 vcc, 4, v2")
        A("v_mov_b32 v20, 0x3f80")
        A("v_mov_b32 v21, 0")
        A("v_cndmask_b32 v20, 0, v20, vcc")
        A("v_lshlrev_b32 v2, 4, v2")
        A(f"v_lshlrev_b64 {v(self.IDN,2)}, v2, v[20:21]")
        for i in range(4):
            A(f"v_mov_b32 {v(self.ONES+i)}, 0x3f803f80")
        A(f"v_mov_b32 {v(self.L2)}, 0x3fb8aa3b")
        A(f"v_mov_b32 {v(self.L2+1)}, 0x3fb8aa3b")
        A("v_lshrrev_b32 v2, 2, v11")
        A("v_lshl_add_u32 v2, v10, 3, v2")
        A("v_lshlrev_b32 v2, 6, v2")
        A("v_and_b32 v3, 3, v0")
        A("v_lshl_add_u32 v2, v3, 3, v2")
        A("v_and_b32 v3, 1, v10")
        A("v_lshl_add_u32 v124, v3, 5, v2")
        A("v_xor_b32 v125, 32, v124")
        A("v_lshlrev_b32 v5, 2, v11")
        A("v_lshlrev_b32 v91, 5, v9")
        A("v_lshl_add_u32 v91, v10, 3, v91")
        A("v_lshlrev_b32 v92, 1, v91")
        A(f"s_add_u32 {s(sT0)}, {s(sT3)}, {L_SCR}")
        A(f"v_add_u32 v91, {s(sT0)}, v91")
        A("v_lshlrev_b32 v11, 4, v9")
        A(f"v_add_u32 v11, {L_STX}, v11")
        A("v_lshrrev_b32 v10, 5, v0")
        A("v_lshl_add_u32 v10, v10, 7, v11")
        A(f"s_lshl_b32 {s(sT0)}, {s(sM)}, 2")
        A(f"v_add_u32 v10, {s(sT0)}, v10")
        A(f"s_lshl_b32 {s(sA0)}, {s(sM)}, 10")
        A(f"s_add_u32 {s(sA7)}, {s(sA0)}, {L_TAB}")
        A(f"s_add_u32 {s(sA0)}, {s(sA0)}, {WS_MODU:#x}")
        A(f"s_add_u32 {s(sA8)}, {s(sA0)}, 4096")
        A(f"s_add_u32 {s(sA9)}, {s(sA0)}, 8192")
        A(f"s_add_u32 {s(sA10)}, {s(sA0)}, 12288")
        A(f"s_lshl_b32 {s(sA1)}, {s(sRB)}, 4")
        A(f"s_lshr_b32 {s(sA2)}, {s(sJ)}, 2")
        A(f"s_bfe_u32 {s(sT0)}, {s(sJ)}, 0x10001")
        A(f"s_lshl3_add_u32 {s(sA2)}, {s(sA2)}, {s(sT0)}")
        A(f"s_lshl2_add_u32 {s(sA2)}, {s(sA2)}, {s(sM)}")
        A(f"s_lshl_b32 {s(sA2)}, {s(sA2)}, 12")
        A(f"s_and_b32 {s(sT0)}, {s(sJ)}, 1")
        A(f"s_lshl_b32 {s(sT0)}, {s(sT0)}, 7")
        A(f"s_add_u32 {s(sA2)}, {s(sA2)}, {s(sT0)}")
        A(f"s_add_u32 {s(sA2)}, {s(sA2)}, {s(sG)}")
        A(f"s_lshr_b32 {s(sT0)}, {s(sJ)}, 2")
        A(f"s_lshl_b32 {s(sT0)}, {s(sT0)}, 7")
        A(f"s_and_b32 {s(sT1)}, {s(sJ)}, 3")
        A(f"s_lshl2_add_u32 {s(sT1)}, {s(sT1)}, {s(sM)}")
        A(f"s_lshl2_add_u32 {s(sT0)}, {s(sT1)}, {s(sT0)}")
        A(f"s_add_u32 {s(sA4)}, {s(sG)}, {G_FLH:#x}")
        A(f"s_add_u32 {s(sA3)}, {s(sA4)}, {s(sT0)}")
        A(f"s_lshl_b32 {s(sT0)}, {s(sM)}, 7")
        A(f"s_add_u32 {s(sA4)}, {s(sA4)}, {s(sT0)}")
        A(f"s_lshl_b32 {s(sA5)}, {s(sM)}, 17")
        A(f"s_add_u32 {s(sA5)}, {s(sA5)}, {s(sG)}")
        A(f"s_add_u32 {s(sA6)}, {s(sA5)}, 16384")
        A(f"s_lshl2_add_u32 {s(sA11)}, {s(sJ)}, {s(sM)}")
        A(f"s_lshl4_add_u32 {s(sA11)}, {s(sA11)}, {s(sRB)}")
        A(f"s_lshl_b32 {s(sA11)}, {s(sA11)}, 10")
        A(f"s_add_u32 {s(sA11)}, {s(sA11)}, {WS_KVP:#x}")
        A(f"s_mul_i32 {s(sFAST)}, {s(sFAST)}, 0x01010101")
        A("v_mov_b32 v72, 0\nv_mov_b32 v73, 0")
        A("v_lshlrev_b32 v88, 8, v0")
        nx = 0 if XL else 2
        A("s_cmp_ge_u32 s2, 32")
        A("s_cbranch_scc1 L_w1")
        A(f"s_waitcnt vmcnt({8 + nx})")
        A("s_branch L_w2")
        A.label("L_w1")
        A(f"s_waitcnt vmcnt({nx})")
        A.label("L_w2")
        if XL:
            xdma()
        if PH:
            A("s_mov_b64 exec, 0xffff")
            A(f"buffer_load_dword v88, v88, {s(S_WS,4)}, {s(sA2)} offen")
            A("s_mov_b64 exec, -1")
        A(f"v_add_u32 {v(VTAG)}, 1, {v(VTAG)}")
        A(f"v_readfirstlane_b32 {s(sTAG)}, {v(VTAG)}")
        self.ts("tag")
        A("s_cmp_ge_u32 s2, 32")
        A("s_cbranch_scc1 L_p0c_skip")
        self.gemv_compute(32, 2 + PH)
        A("ds_write_b64 v91, v[26:27]")
        self.signal(VP, 2, CV_G)
        A(f"s_cmp_lg_u32 {s(sW)}, 0")
        A("s_cbranch_scc1 L_p0c_skip")
        A("v_lshlrev_b32 v2, 2, v0")
        A(f"v_add_u32 v3, {L_SCR}, v2")
        A(f"s_lshr_b32 {s(sT0)}, s2, 4")
        A(f"s_and_b32 {s(sT1)}, s2, 1")
        A(f"s_lshl1_add_u32 {s(sT0)}, {s(sT0)}, {s(sT1)}")
        A(f"s_bfe_u32 {s(sT1)}, s2, 0x30001")
        A(f"s_lshl3_add_u32 {s(sT0)}, {s(sT0)}, {s(sT1)}")
        A(f"s_lshl_b32 {s(sT0)}, {s(sT0)}, 9")
        A(f"s_add_u32 {s(sT0)}, {s(sT0)}, {WS_MODU:#x}")
        self.lwait(VQ, 2, CV_G, extra=["ds_read2st64_b32 v[12:13], v3 offset0:0 offset1:1", "ds_read2st64_b32 v[14:15], v3 offset0:2 offset1:3"])
        A("v_lshlrev_b32 v2, 3, v0")
        A("s_waitcnt lgkmcnt(0)")
        A("v_pk_add_f32 v[12:13], v[12:13], v[14:15]")
        A("v_add_f32 v12, v12, v13")
        A(f"v_mov_b32 v13, {v(VTAG)}")
        A(f"buffer_store_dwordx2 v[12:13], v2, {s(S_WS,4)}, {s(sT0)} offen sc1")
        self.ts("p0_done")
        A(f"s_waitcnt vmcnt({1 + PH})")
        A("s_branch L_xw")
        A.label("L_p0c_skip")
        A(f"s_waitcnt vmcnt({PH})")
        A.label("L_xw")
        A("ds_read_b128 v[64:67], v90")
        A("ds_read_b128 v[68:71], v90 offset:1024")
        self.ts("x_land")
        A("s_waitcnt lgkmcnt(0)")
        for i in range(8):
            A(f"v_dot2c_f32_bf16 v72, {v(self.ONES)}, {v(64+i)}")
            A(f"v_dot2c_f32_bf16 v73, {v(64+i)}, {v(64+i)}")
        A("v_permlane32_swap_b32 v72, v73")
        A("v_add_f32 v72, v72, v73")
        A("v_mov_b32 v73, v72")
        A("v_permlane16_swap_b32 v72, v73")
        A("v_add_f32 v72, v72, v73")
        A("v_add_f32_dpp v73, v72, v72 row_ror:8 row_mask:0xf bank_mask:0xf")
        A("ds_write_b32 v10, v73")
        self.signal(VP, 2, CV_S)
        self.lwait(VQ, 2, CV_S)
        A("ds_read_b128 v[16:19], v11")
        A("ds_read_b128 v[20:23], v11 offset:128")
        for i in range(8):
            A(f"v_lshlrev_b32 {v(72+2*i)}, 16, {v(64+i)}")
            A(f"v_and_b32 {v(73+2*i)}, {v(VMASK)}, {v(64+i)}")
        A(f"v_lshl_add_u32 v2, v0, 3, {s(sA7)}")
        A(f"v_lshl_add_u32 v3, v8, 5, {s(sA7)}")
        A("v_lshlrev_b32 v93, 8, v8")
        A("v_lshl_add_u32 v93, v9, 4, v93")
        A("s_waitcnt lgkmcnt(0)")
        A("v_pk_add_f32 v[16:17], v[16:17], v[18:19]\nv_pk_add_f32 v[20:21], v[20:21], v[22:23]")
        A("v_add_f32 v16, v16, v17\nv_add_f32 v17, v20, v21")
        A("v_mul_f32 v16, 0x3b000000, v16\nv_mul_f32 v17, 0x3b000000, v17")
        A("v_fma_f32 v17, -v16, v16, v17")
        A("v_max_f32 v17, 0, v17")
        A("v_add_f32 v17, 0x3727c5ac, v17")
        A("v_rsq_f32 v17, v17")
        A("v_mul_f32_e64 v16, -v16, v17")
        for i in range(8):
            A(f"v_pk_fma_f32 {v(72+2*i,2)}, {v(72+2*i,2)}, v[16:17], v[16:17] op_sel:[0,1,0] op_sel_hi:[1,1,0]")
        A("v_mov_b32 v15, 0x80808080")
        A("v_lshlrev_b32 v14, 3, v0")
        A(f"v_add_u32 v14, {L_PHI}, v14")
        if self.o.get("s0late", 1):
            self.lwait(VQ, 13, HV_W, off=16, sleep=1)
        A(f"s_mov_b32 {s(sCNT)}, {SPIN}")
        A("s_branch L_s0f")
        A.label("L_s0")
        A("s_sleep 4")
        A.label("L_s0f")
        for i, sr in enumerate((sA0, sA8, sA9, sA10)):
            A(f"buffer_load_dwordx4 {v(16+4*i,4)}, v1, {s(S_WS,4)}, {s(sr)} offen sc1")
        A(f"buffer_load_dwordx4 v[32:35], v6, {s(S_DBG,4)}, {s(sA1)} offen sc1")
        A(f"s_sub_u32 {s(sCNT)}, {s(sCNT)}, 1")
        A("s_cbranch_scc1 L_s0d")
        A("s_waitcnt vmcnt(0)")
        A("v_bitop3_b32 v36, v32, v33, v34 bitop3:0x80")
        A(f"v_xor_b32 v37, {v(VTAG)}, v17")
        A("v_bitop3_b32 v36, v36, v35, v15 bitop3:0x2a")
        for i in range(1, 8):
            acc = 36 + (i & 1)
            A(f"v_bitop3_b32 {v(acc)}, {v(acc)}, {v(17+2*i)}, {v(VTAG)} bitop3:0xf6")
        A("v_or_b32 v36, v36, v37")
        A("v_cmp_ne_u32 vcc, 0, v36")
        A("s_cbranch_vccnz L_s0")
        A.label("L_s0d")
        A("s_waitcnt vmcnt(0)")
        self.ts("s0_ok")
        A("v_add_f32 v24, v24, v28\nv_add_f32 v26, v26, v30\nv_add_f32 v16, v16, v20\nv_add_f32 v18, v18, v22")
        A("v_cvt_pk_bf16_f32 v24, v24, v26\nv_cvt_pk_bf16_f32 v16, v16, v18")
        A(f"v_and_b32 v25, {v(VMASK)}, v24\nv_lshlrev_b32 v24, 16, v24")
        A(f"v_and_b32 v17, {v(VMASK)}, v16\nv_lshlrev_b32 v16, 16, v16")
        A("v_add_f32 v24, 1.0, v24\nv_add_f32 v25, 1.0, v25")
        A("ds_write_b64 v2, v[16:17]")
        A("v_cvt_pk_bf16_f32 v24, v24, v25")
        A(f"v_and_b32 v25, {v(VMASK)}, v24\nv_lshlrev_b32 v24, 16, v24")
        A("ds_write_b64 v2, v[24:25] offset:512")
        A(f"v_xor_b32 v32, {s(sFAST)}, v32")
        for i in range(1, 4):
            A(f"v_bitop3_b32 v32, v32, {v(32+i)}, {s(sFAST)} bitop3:0xf6")
        for e in range(2):
            for q in range(2):
                A(f"ds_read_b128 {v(16+8*e+4*q,4)}, v3 offset:{e*256 + q*16}")
                A(f"ds_read_b128 {v(40+8*e+4*q,4)}, v3 offset:{512 + e*256 + q*16}")
        A("v_cmp_ne_u32 vcc, 0, v32")
        A("s_cmp_eq_u64 vcc, 0")
        A(f"s_cselect_b32 {s(sFAST)}, {0 if self.force_slow else 1}, 0")
        for q in range(4):
            A(f"s_waitcnt lgkmcnt({6-2*q})")
            for i in range(2):
                r = 4*q + 2*i
                A(f"v_pk_fma_f32 {v(16+r,2)}, {v(72+r,2)}, {v(40+r,2)}, {v(16+r,2)}")
            for i in range(2):
                r = 4*q + 2*i
                A(f"v_cvt_pk_bf16_f32 {v(32+r//2)}, {v(16+r)}, {v(17+r)}")

        def st(sfx):
            A(f"buffer_store_dwordx4 v[32:35], v93, {s(S_WS,4)}, {s(sA2)} offen{sfx}")
            A(f"buffer_store_dwordx4 v[36:39], v93, {s(S_WS,4)}, {s(sA2)} offen offset:2048{sfx}")
        self.store_flag(st, sA3, 6, VTAG, data_sc1=not PH)

    def c_p1(self):
        A = self.A
        PHIT, IDN, ONES, L2 = self.PHIT, self.IDN, self.ONES, self.L2
        if not self.o.get("s0late", 1):
            self.lwait(VQ, 13, HV_W, off=16, sleep=1)
        for h in range(2):
            A(f"ds_read_b64_tr_b16 {v(PHIT+2*h,2)}, v14 offset:{h*512}")
        A("s_waitcnt lgkmcnt(0)")
        LA = self.o.get("la1", 4)

        def ld(u):
            o = [f"buffer_load_dwordx4 {a((u*2+t)*4,4)}, v1, {s(S_WS,4)}, {s(sA5+t)} offen offset:{(u&3)*1024} sc1" for t in range(2)]
            if (u & 3) == 3 and u < 15:
                o += [f"s_add_u32 {s(sA5)}, {s(sA5)}, 4096", f"s_add_u32 {s(sA6)}, {s(sA6)}, 4096"]
            return o

        def rd_b(u):
            p = 64 + (u % 3) * 16
            return [f"ds_read_b64_tr_b16 {v(p + (mi*2+h)*4 + hh*2, 2)}, {v(124+h)} offset:{base + u*2048 + hh*256}"
                    for mi, base in enumerate((L_WK, L_WV)) for h in range(2) for hh in range(2)]
        self.emit(rd_b(0) + rd_b(1))
        self.poll(5, sA4, 10)
        for u in range(LA):
            self.emit(ld(u))
        self.ts("h_flags")
        for u in range(16):
            A(f"s_waitcnt vmcnt({2*(min(15, u+LA-1) - u)}) lgkmcnt({(8 if u < 15 else 0) + (1 if u + LA == 16 else 0)})")
            p = 64 + (u % 3) * 16
            mf = []
            for h in range(2):
                for t in range(2):
                    d = 32 + (h * 2 + t) * 4
                    mf.append(f"v_mfma_f32_16x16x32_bf16 {v(d,4)}, {v(p+h*4,4)}, {a((u*2+t)*4,4)}, {v(d,4) if u else 0}")
            for h in range(2):
                for t in range(2):
                    d = 48 + (h * 2 + t) * 4
                    mf.append(f"v_mfma_f32_16x16x32_bf16 {v(d,4)}, {a((u*2+t)*4,4)}, {v(p+8+h*4,4)}, {v(d,4) if u else 0}")
            self.emit(weave(mf, (ld(u + LA) if u + LA < 16 else []) + (rd_b(u + 2) if u + 2 < 16 else [])))
            if u + LA == 15:
                self.signal(VP, 10, CV_A2)
        A(f"s_mul_i32 {s(sT0)}, {s(sM)}, {KVR_W}")
        A(f"s_add_u32 {s(sT0)}, {s(sT0)}, {L_KVR}")
        A(f"v_add_u32 v2, {s(sT0)}, v1")
        A("v_and_b32 v3, 48, v0")
        A(f"v_add_u32 v3, {s(sT0)}, v3")
        self.ts("kv_gemm")
        for i in range(8):
            A(f"v_cvt_pk_bf16_f32 {v(8+i)}, {v(32+2*i)}, {v(33+2*i)}")
        for h in range(2):
            for t in range(2):
                A(f"v_mfma_f32_16x16x16_bf16 {v(64+8*h+4*t,4)}, {v(PHIT+2*h,2)}, {v(8+4*h+2*t,2)}, 0")
        for i in range(8):
            A(f"v_cvt_pk_bf16_f32 {v(48+i)}, {v(48+2*i)}, {v(49+2*i)}")
        self.emit(zip_streams(*[self.softmax2(64+8*h, 80+8*h, 96+8*h, 16+8*h, 32+8*h, L2) for h in range(2)]))
        for h in range(2):
            for i, p in enumerate((0, 4, 2, 6)):
                A(f"v_mfma_f32_16x16x16_bf16 {v(64+16*h+4*i,4)}, {v(32+8*h+p,2)}, {v(IDN,2)}, 0")
        for i in range(16):
            A(f"v_cvt_pk_bf16_f32 {v(96+i)}, {v(64+2*i)}, {v(65+2*i)}")
        for h in range(2):
            for sg in range(2):
                A(f"v_mfma_f32_16x16x32_bf16 {v(16+8*h+4*sg,4)}, {v(96+8*h+4*sg,4)}, {v(48+4*h,4)}, 0")
        for h in range(2):
            for sg in range(2):
                A(f"v_mfma_f32_16x16x32_bf16 {v(32+8*h+4*sg,4)}, {v(96+8*h+4*sg,4)}, {v(ONES,4)}, 0")
        for i in range(4):
            A(f"ds_write_b128 v2, {v(16+4*i,4)} offset:{i*1024}")
        for i in range(4):
            A(f"ds_write_b128 v3, {v(32+4*i,4)} offset:{4096 + i*64}")
        self.signal(VP, 8, CV_KV)
        A(f"s_lshl_b32 {s(sT0)}, {s(sM)}, 10")
        A(f"s_add_u32 {s(sT0)}, {s(sT0)}, {L_KVR}")
        A(f"v_add_u32 v10, {s(sT0)}, v1")
        A("v_and_b32 v11, 3, v0")
        A("v_and_b32 v9, 48, v0")
        A("v_lshl_add_u32 v11, v11, 2, v9")
        A(f"s_lshl_b32 {s(sT0)}, {s(sM)}, 6")
        A(f"s_add_u32 {s(sT0)}, {s(sT0)}, {L_KVR + 4096}")
        A(f"v_add_u32 v11, {s(sT0)}, v11")
        self.lwait(VQ, 9, CV_KV, extra=[f"ds_read_b128 {v(64+4*i,4)}, v10 offset:{i*KVR_W}" for i in range(4)]
                   + [f"ds_read_b32 {v(80+i)}, v11 offset:{i*KVR_W}" for i in range(4)])
        A(f"v_add_u32 v124, {L_WQ}, v124")
        A(f"v_add_u32 v125, {L_WQ}, v125")
        A(f"v_mov_b32 v15, {v(VTAG)}")
        A("s_waitcnt lgkmcnt(4)")
        for i in range(2):
            A(f"v_pk_add_f32 {v(64+2*i,2)}, {v(64+2*i,2)}, {v(68+2*i,2)}")
            A(f"v_pk_add_f32 {v(72+2*i,2)}, {v(72+2*i,2)}, {v(76+2*i,2)}")
        for i in range(2):
            A(f"v_pk_add_f32 {v(64+2*i,2)}, {v(64+2*i,2)}, {v(72+2*i,2)}")
        A("s_waitcnt lgkmcnt(0)")
        A("v_pk_add_f32 v[80:81], v[80:81], v[82:83]")
        A("v_cvt_pk_bf16_f32 v12, v64, v65\nv_cvt_pk_bf16_f32 v13, v66, v67")
        A("v_add_f32 v14, v80, v81")
        A(f"buffer_store_dwordx4 v[12:15], v1, {s(S_WS,4)}, {s(sA11)} offen sc1")
        self.ts("kv_pub")
        self.c_addr_setup()
        self.lwait(VQ, 9, HV_Q, off=16, sleep=1)

        def rd_q(u):
            p = 64 + (u & 3) * 8
            return [f"ds_read_b64_tr_b16 {v(p + h*4 + hh*2, 2)}, {v(124+h)} offset:{u*2048 + hh*256}" for h in range(2) for hh in range(2)]
        self.emit(rd_q(0) + rd_q(1) + rd_q(2))
        for u in range(16):
            A(f"s_waitcnt lgkmcnt({min(8, 4*(15-u))})")
            p = 64 + (u & 3) * 8
            mf = []
            for t in range(2):
                for h in range(2):
                    d = 32 + (t * 2 + h) * 4
                    mf.append(f"v_mfma_f32_16x16x32_bf16 {v(d,4)}, {v(p+h*4,4)}, {a((u*2+t)*4,4)}, {v(d,4) if u else 0}")
            self.emit(weave(mf, rd_q(u + 3) if u + 3 < 16 else []))
        for i in range(8):
            A(f"v_cvt_pk_bf16_f32 {v(8+i)}, {v(32+2*i)}, {v(33+2*i)}")
        for t in range(2):
            for h in range(2):
                A(f"v_mfma_f32_16x16x16_bf16 {v(64+8*t+4*h,4)}, {v(PHIT+2*h,2)}, {v(8+4*t+2*h,2)}, 0")
        self.ts("q_gemm")
        A(f"s_mov_b32 {s(sCNT)}, {SPIN}")
        A.label("L_h1p")
        A(f"buffer_load_dwordx4 v[8:11], v48, {s(S_WS,4)}, {s(sB0)} offen sc1")
        A(f"s_sub_u32 {s(sCNT)}, {s(sCNT)}, 1")
        A("s_cbranch_scc1 L_h1d")
        A("s_waitcnt vmcnt(0)")
        A(f"v_cmp_ne_u32 vcc, {s(sTAG)}, v11")
        A("s_cbranch_vccnz L_h1p")
        A.label("L_h1d")
        A("s_waitcnt vmcnt(0)")
        self.ts("hop1")
        A(f"v_lshlrev_b32 v12, 16, v8\nv_lshlrev_b32 v14, 16, v9\nv_and_b32 v13, {v(VMASK)}, v8\nv_and_b32 v15, {v(VMASK)}, v9")
        zs = ["v_mov_b32 v16, v10", "v_permlane32_swap_b32 v10, v16", "v_add_f32 v10, v10, v16", "v_mov_b32 v16, v10",
              "v_permlane16_swap_b32 v10, v16", "v_add_f32 v10, v10, v16",
              "v_add_f32_dpp v16, v10, v10 row_ror:4 row_mask:0xf bank_mask:0xf", "v_add_f32_dpp v10, v16, v16 row_ror:8 row_mask:0xf bank_mask:0xf",
              "v_mov_b32_dpp v16, v10 quad_perm:[0,2,0,2] row_mask:0xf bank_mask:0xf", "v_mov_b32_dpp v17, v10 quad_perm:[1,3,1,3] row_mask:0xf bank_mask:0xf",
              "v_cvt_pk_bf16_f32 v10, v16, v17"]
        ks = (self.red4("v_add_f32", 12, 14, 13, 15)
              + ["v_add_f32_dpp v13, v12, v12 row_ror:4 row_mask:0xf bank_mask:0xf", "v_add_f32_dpp v12, v13, v13 row_ror:8 row_mask:0xf bank_mask:0xf"]
              + self.bcast4(12, 14, 13, 15) + ["v_cvt_pk_bf16_f32 v8, v12, v13", "v_cvt_pk_bf16_f32 v9, v14, v15"])
        self.emit(zip_streams(ks, zs))
        A("s_mov_b64 exec, 15")
        A(f"buffer_store_dwordx4 v[8:11], v1, {s(S_WS,4)}, {s(sB1)} offen sc1")
        A("s_mov_b64 exec, -1")
        self.signal(VP, 18, CV_H1)
        self.emit(zip_streams(*[self.softmax2(64+8*t, 80+8*t, 96+8*t, 16+8*t, 32+8*t, L2) for t in range(2)]))
        A(f"s_mov_b32 {s(sCNT)}, {SPIN}")
        A("s_branch L_h2f")
        A.label("L_h2p")
        A(f"s_sleep {self.o.get('h2sleep', 2)}")
        A.label("L_h2f")
        for i in range(4):
            A(f"buffer_load_dwordx4 {v(16+4*i,4)}, v1, {s(S_WS,4)}, {s(sB2)} offen offset:{i*1024} sc1")
        A(f"s_sub_u32 {s(sCNT)}, {s(sCNT)}, 1")
        A("s_cbranch_scc1 L_h2d")
        A("s_waitcnt vmcnt(0)")
        A(f"v_xor_b32 v12, {v(VTAG)}, v19")
        for i in range(1, 4):
            A(f"v_bitop3_b32 v12, v12, {v(19+4*i)}, {v(VTAG)} bitop3:0xf6")
        A("v_cmp_ne_u32 vcc, 0, v12")
        A("s_cbranch_vccnz L_h2p")
        A.label("L_h2d")
        A("s_waitcnt vmcnt(0)")
        self.ts("kvf")
        self.signal(VP, 12, CV_O)
        for i in range(4):
            for e in range(2):
                A(f"v_mov_b32_dpp {v(48+2*i+e)}, {v(18+4*i)} quad_perm:[{e},{e},{e},{e}] row_mask:0xf bank_mask:0xf")
        for h in range(2):
            A(f"v_mov_b32 {v(18+8*h)}, {v(20+8*h)}\nv_mov_b32 {v(19+8*h)}, {v(21+8*h)}")
        for t in range(2):
            for h in range(2):
                A(f"v_mfma_f32_16x16x32_bf16 {v(80+8*t+4*h,4)}, {v(48+4*h,4)}, {v(32+8*t+4*h,4)}, 0")
        for t in range(2):
            for h in range(2):
                A(f"v_mfma_f32_16x16x32_bf16 {v(64+8*t+4*h,4)}, {v(16+8*h,4)}, {v(32+8*t+4*h,4)}, 0")
        for i in range(4):
            A(f"v_add_f32 {v(80+4*i)}, 0x358637bd, {v(80+4*i)}")
        for i in range(4):
            A(f"v_rcp_f32 {v(80+4*i)}, {v(80+4*i)}")
        for i in range(4):
            for h in range(2):
                A(f"v_pk_mul_f32 {v(64+4*i+2*h,2)}, {v(64+4*i+2*h,2)}, {v(80+4*i,2)} op_sel:[0,0] op_sel_hi:[1,0]")
        for i in range(8):
            A(f"v_cvt_pk_bf16_f32 {v(16+i)}, {v(64+2*i)}, {v(65+2*i)}")

        def st(sfx):
            A(f"buffer_store_dwordx4 v[16:19], v1, {s(S_WS,4)}, {s(sA0)} offen{sfx}")
            A(f"buffer_store_dwordx4 v[20:23], v1, {s(S_WS,4)}, {s(sA1)} offen{sfx}")
        self.store_flag(st, sA2, 6, VTAG, data_sc1=bool(self.o.get('o_sc1', 0)))

    def c_addr_setup(self):
        A = self.A
        A(f"s_lshl2_add_u32 {s(sT0)}, {s(sJ)}, {s(sM)}")
        A(f"s_lshl_b32 {s(sT1)}, {s(sRB)}, 6")
        A(f"s_lshl_b32 {s(sB0)}, {s(sT0)}, 14")
        A(f"s_add_u32 {s(sB0)}, {s(sB0)}, {s(sT1)}")
        A(f"s_add_u32 {s(sB0)}, {s(sB0)}, {WS_KVP:#x}")
        A(f"s_lshl_b32 {s(sB1)}, {s(sT0)}, 10")
        A(f"s_add_u32 {s(sB1)}, {s(sB1)}, {s(sT1)}")
        A(f"s_add_u32 {s(sB1)}, {s(sB1)}, {WS_KV2:#x}")
        A(f"s_lshl_b32 {s(sB2)}, {s(sJ)}, 12")
        A(f"s_add_u32 {s(sB2)}, {s(sB2)}, {WS_KV2:#x}")
        A("v_lshrrev_b32 v48, 2, v0")
        A("v_lshlrev_b32 v48, 10, v48")
        A("v_and_b32 v49, 3, v0")
        A("v_lshl_add_u32 v48, v49, 4, v48")
        A(f"s_lshl_b32 {s(sT0)}, {s(sM)}, 7")
        A(f"s_add_u32 {s(sT1)}, {s(sT0)}, {s(sJ)}")
        A(f"s_lshl_b32 {s(sA0)}, {s(sT1)}, 10")
        A(f"s_add_u32 {s(sA0)}, {s(sA0)}, {s(sG)}")
        A(f"s_add_u32 {s(sA0)}, {s(sA0)}, {G_O:#x}")
        A(f"s_add_u32 {s(sA1)}, {s(sA0)}, 16384")
        A(f"s_add_u32 {s(sT0)}, {s(sT0)}, {s(sG)}")
        A(f"s_add_u32 {s(sA9)}, {s(sT0)}, {G_FL2:#x}")
        A(f"s_lshl2_add_u32 {s(sT0)}, {s(sJ)}, {s(sT0)}")
        A(f"s_add_u32 {s(sA2)}, {s(sT0)}, {G_FLO:#x}")
        A(f"s_add_u32 {s(sA10)}, {s(sT0)}, {G_FL3:#x}")
        A(f"s_lshr_b32 {s(sW)}, {s(sM)}, 1")
        A(f"s_lshr_b32 {s(sT1)}, {s(sJ)}, 3")
        A(f"s_and_b32 {s(sT0)}, {s(sM)}, 1")
        A(f"s_lshl1_add_u32 {s(sT1)}, {s(sT1)}, {s(sT0)}")
        A(f"s_and_b32 {s(sT2)}, {s(sJ)}, 7")
        A(f"s_lshl1_add_u32 {s(sT3)}, {s(sT2)}, {s(sW)}")
        A(f"s_lshl_b32 {s(sT0)}, {s(sT1)}, 7")
        A(f"s_add_u32 {s(sT0)}, {s(sT0)}, {s(sG)}")
        A(f"s_add_u32 {s(sA3)}, {s(sT0)}, {G_FLO:#x}")
        A(f"s_add_u32 {s(sA11)}, {s(sT0)}, {G_FL3:#x}")
        A(f"s_lshl2_add_u32 {s(sT0)}, {s(sT3)}, {s(sT0)}")
        A(f"s_add_u32 {s(sA8)}, {s(sT0)}, {G_FL2:#x}")
        A(f"s_lshl_b32 {s(sT0)}, {s(sT1)}, 12")
        A(f"s_add_u32 {s(sT0)}, {s(sT0)}, {s(sG)}")
        A(f"s_add_u32 {s(sA6)}, {s(sT0)}, {G_ST:#x}")
        A(f"s_lshl_b32 {s(sT0)}, {s(sT2)}, 9")
        A(f"s_add_u32 {s(sA7)}, {s(sA6)}, {s(sT0)}")
        A(f"s_lshl2_add_u32 {s(sT0)}, {s(sRB)}, {s(sT1)}")
        A(f"s_lshl_b32 s3, {s(sT0)}, 15")
        A(f"s_lshl_b32 {s(sT0)}, {s(sT3)}, 6")
        A(f"s_add_u32 s3, s3, {s(sT0)}")
        A(f"s_lshl_b32 {s(sEX)}, {s(sT1)}, 17")
        A(f"s_add_u32 {s(sEX)}, {s(sEX)}, {s(sG)}")
        A(f"s_lshl_b32 {s(sT0)}, {s(sW)}, 9")
        A(f"s_add_u32 {s(sA4)}, {s(sEX)}, {s(sT0)}")
        A(f"s_add_u32 {s(sA4)}, {s(sA4)}, {G_O:#x}")
        A(f"s_lshl_b32 {s(sT0)}, {s(sT3)}, 11")
        A(f"s_add_u32 {s(sA5)}, {s(sEX)}, {s(sT0)}")
        self.rot_setup()
        self.rm_voff(123)
        A(f"buffer_load_dwordx4 v[56:59], v123, {s(S_X,4)}, s3 offen")
        A(f"buffer_load_dwordx4 v[60:63], v123, {s(S_X,4)}, s3 offen offset:32")
        A("v_bfe_u32 v3, v0, 4, 1")
        A("v_lshlrev_b32 v122, 14, v3")
        A("v_lshl_add_u32 v122, v2, 8, v122")
        A("v_and_b32 v3, 15, v0")
        A("v_lshl_add_u32 v122, v3, 4, v122")
        self.slab_bases(120, 10)

    def rm_voff(self, d):
        A = self.A
        A(f"v_and_b32 {v(d)}, 31, v0")
        A(f"v_lshlrev_b32 {v(d)}, 10, {v(d)}")
        A("v_lshrrev_b32 v2, 5, v0")
        A(f"v_lshl_add_u32 {v(d)}, v2, 4, {v(d)}")

    def rot_setup(self):
        A = self.A
        A(f"s_lshr_b32 {s(sT1)}, {s(sRB)}, 1")
        A(f"s_lshl_b32 {s(sRB)}, {s(sT1)}, 1")
        A(f"s_lshl_b32 {s(sEX+1)}, {s(sT1)}, 2")

    def slab_bases(self, dst, khshift):
        A = self.A
        A("v_lshrrev_b32 v2, 5, v0")
        A("v_bfe_u32 v3, v0, 2, 2")
        A("v_lshl_add_u32 v2, v2, 2, v3")
        A(f"s_lshl_b32 {s(sT0)}, {s(sW)}, {khshift}")
        A(f"v_lshl_add_u32 v2, v2, 7, {s(sT0)}")
        A("v_bfe_u32 v3, v0, 3, 1")
        A(f"v_xor_b32 v3, {s(sW)}, v3")
        A("v_lshl_add_u32 v2, v3, 6, v2")
        A("v_bfe_u32 v3, v0, 4, 1")
        A("v_lshl_add_u32 v2, v3, 5, v2")
        A("v_and_b32 v3, 3, v0")
        A(f"v_lshl_add_u32 {v(dst)}, v3, 3, v2")
        A(f"v_xor_b32 {v(dst+1)}, 64, {v(dst)}")

    def g32(self, n, AF, ld, LA, rd, ring=False):
        A = self.A
        q = [("rd", i) for i in range(3) for _ in range(4)]
        for i in range(n):
            last = max(k for k, x in enumerate(q) if x == ("rd", i))
            A(f"s_waitcnt vmcnt({min(n-1, i+LA-1) - i}) lgkmcnt({len(q) - 1 - last})")
            q = q[last + 1:]
            mf = [f"v_mfma_f32_32x32x16_bf16 {v(32+16*T,16)}, {v(self.BR + (i&3)*8 + 4*T,4)}, {AF(i)}, {v(32+16*T,16) if i else 0}" for T in range(2)]
            oth = ld(i + LA) if i + LA < n else []
            if not ring and i + LA == n - 1:
                oth += [f"v_mov_b32 v25, {CV_P2L}", f"ds_write_b32 {v(VP)}, v25"]
                q.append(("sig", i))
            if ring and i % 3 == 2 and 16 + i // 3 <= 18:
                oth += [f"v_mov_b32 v25, {32 + i//3}", f"ds_write_b32 {v(VP)}, v25"]
                q.append(("sig", i))
            if i + 3 < n:
                if ring and (i + 3) % 3 == 0:
                    A(mf[0]); mf = mf[1:]
                    self.check(24, 32 + (i + 3) // 3)
                    oth += [f"ds_read_b32 v24, {v(VQ)} offset:16"]
                    q.append(("probe", i))
                r = rd(i + 3)
                oth += r
                q += [("rd", i + 3)] * 4
            self.emit(weave(mf, oth, per=5))

    def check(self, vtmp, val):
        A = self.A
        Ld = A.uniq("L_ck")
        A(f"v_cmp_gt_u32 vcc, {val}, {v(vtmp)}")
        A(f"s_cbranch_vccz {Ld}")
        self.lwait(VQ, vtmp, val, off=16)
        A.label(Ld)

    def exchange(self, base, val=None):
        A = self.A
        A(f"s_lshl_b32 {s(sT0)}, {s(sM)}, 11")
        A(f"v_add_u32 v2, {s(sT0)}, v1")
        A("v_xor_b32 v3, 0x1000, v2")
        A(f"v_add_u32 v26, {base[1]}, v2")
        A(f"v_add_u32 v27, {base[1]}, v3")
        A(f"v_add_u32 v2, {base[0]}, v2")
        A(f"v_add_u32 v3, {base[0]}, v3")
        for i in range(4):
            A(f"ds_write_b128 {v(2 if i < 2 else 26)}, {v(48+4*i,4)} offset:{(i&1)*1024}")
        rds = [f"ds_read_b128 {v(64+4*i,4)}, {v(3 if i < 2 else 27)} offset:{(i&1)*1024}" for i in range(4)]
        self.signal(VP, 24, val)
        self.lwait(VQ, 24, val, extra=rds)

    def mt_addr(self):
        A = self.A
        A(f"s_lshl_b32 {s(sT0)}, {s(sW)}, 7")
        A(f"s_add_u32 {s(sT0)}, {s(sT0)}, {L_MT}")
        A("v_lshrrev_b32 v123, 5, v0")
        A(f"v_lshl_add_u32 v123, v123, 4, {s(sT0)}")

    def c_p2(self):
        A = self.A
        self.BR = 64

        def rd(u):
            return [f"ds_read_b64_tr_b16 {v(64 + (u&3)*8 + T*4 + hh*2, 2)}, {v(120+T)} offset:{u*4096 + hh*2048}" for T in range(2) for hh in range(2)]

        def ld(i):
            o = [f"buffer_load_dwordx4 {a(4*i,4)}, v122, {s(S_WS,4)}, {s(sA4)} offen offset:{(i&3)*1024} sc1"]
            if (i & 3) == 3 and i < 15:
                o.append(f"s_add_u32 {s(sA4)}, {s(sA4)}, 4096")
            return o
        self.mt_addr()
        self.lwait(VQ, 24, HV_G, off=16)
        for q in range(4):
            A(f"ds_read_b128 {v(96+4*q,4)}, v123 offset:{q*32}")
        for e in range(2):
            A(f"v_permlane32_swap_b32 {v(56+4*e)}, {v(58+4*e)}")
            A(f"v_permlane32_swap_b32 {v(57+4*e)}, {v(59+4*e)}")
        self.emit(rd(0) + rd(1) + rd(2))
        for i in range(8):
            A(f"v_lshlrev_b32 {v(8+2*i)}, 16, {v(56+i)}")
            A(f"v_and_b32 {v(9+2*i)}, {v(VMASK)}, {v(56+i)}")
        LA = self.o.get("la2", 8)
        self.poll(5, sA3, 24)
        for i in range(LA):
            self.emit(ld(i))
        self.ts("o_flags")
        self.g32(16, lambda i: a(4*i, 4), ld, LA, rd)
        self.ts("p2_gemm")
        self.exchange(L_EX2, CV_X2)
        for vec in range(2):
            for q in range(4):
                A(f"ds_read_b128 {v(48+32*vec+4*q,4)}, v123 offset:{(vec+1)*256 + q*32}")
        A("v_mov_b32 v24, 0\nv_mov_b32 v25, 0\nv_mov_b32 v28, 0x3f803f80")
        A(f"v_mov_b32 v26, {v(VTAG)}\nv_mov_b32 v27, {v(VTAG)}")
        A(f"s_and_b32 {s(sT0)}, {s(sM)}, 1")
        A(f"s_lshl_b32 {s(sT0)}, {s(sT0)}, 8")
        A(f"s_add_u32 {s(sT0)}, {s(sT0)}, {L_SX}")
        A(f"v_lshl_add_u32 v29, v0, 2, {s(sT0)}")
        for q in range(4):
            A(f"s_waitcnt lgkmcnt({11-q})")
            for i in range(2*q, 2*q+2):
                A(f"v_pk_add_f32 {v(32+2*i,2)}, {v(32+2*i,2)}, {v(64+2*i,2)}")
            for i in range(2*q, 2*q+2):
                A(f"v_pk_fma_f32 {v(8+2*i,2)}, {v(32+2*i,2)}, {v(96+2*i,2)}, {v(8+2*i,2)}")
        for i in range(8):
            A(f"v_cvt_pk_bf16_f32 {v(112+i)}, {v(8+2*i)}, {v(9+2*i)}")
        for i in range(8):
            A(f"v_dot2c_f32_bf16 v24, v28, {v(112+i)}")
            A(f"v_dot2c_f32_bf16 v25, {v(112+i)}, {v(112+i)}")
        A("v_permlane32_swap_b32 v24, v25")
        A("v_add_f32 v24, v24, v25")
        A(f"s_cmp_eq_u32 {s(sW)}, 0")
        A("s_cbranch_scc1 L_sx0")
        A("ds_write_b32 v29, v24")
        self.signal(VP, 30, CV_SX)
        A("s_branch L_sx1")
        A.label("L_sx0")
        A(f"v_add_u32 v31, 8, {v(VP)}")
        self.lwait(31, 30, CV_SX, extra=["ds_read_b32 v25, v29"])
        A("s_waitcnt lgkmcnt(0)")
        A("v_add_f32 v24, v24, v25")
        A("v_mov_b32 v25, v24")
        A("v_permlane32_swap_b32 v24, v25")
        A("s_mov_b32 exec_hi, 0")
        self.dual(lambda sfx: A(f"buffer_store_dwordx4 v[24:27], v1, {s(S_WS,4)}, {s(sA7)} offen{sfx}"))
        A("s_mov_b64 exec, -1")
        A.label("L_sx1")
        for i in range(8):
            A(f"v_lshlrev_b32 {v(8+2*i)}, 16, {v(112+i)}")
            A(f"v_and_b32 {v(9+2*i)}, {v(VMASK)}, {v(112+i)}")
        A(f"s_lshl_b32 {s(sT0)}, {s(sM)}, 11")
        A(f"s_add_u32 {s(sT0)}, {s(sT0)}, {L_X1}")
        A(f"v_add_u32 v2, {s(sT0)}, v1")
        A("ds_write_b128 v2, v[112:115]")
        A("ds_write_b128 v2, v[116:119] offset:1024")
        A(f"s_mov_b32 {s(sCNT)}, {SPIN}")
        A.label("L_st")
        for i in range(4):
            A(f"buffer_load_dwordx4 {v(32+4*i,4)}, v1, {s(S_WS,4)}, {s(sA6)} offen offset:{i*1024} sc1")
        A(f"s_sub_u32 {s(sCNT)}, {s(sCNT)}, 1")
        A("s_cbranch_scc1 L_std")
        A("s_waitcnt vmcnt(0)")
        A(f"v_xor_b32 v28, {v(VTAG)}, v34")
        for i in range(1, 4):
            A(f"v_bitop3_b32 v28, v28, {v(34+4*i)}, {v(VTAG)} bitop3:0xf6")
        A("v_cmp_ne_u32 vcc, 0, v28")
        A("s_cbranch_vccnz L_st")
        A.label("L_std")
        A("s_waitcnt vmcnt(0) lgkmcnt(0)")
        self.signal(VP, 28, CV_ST)
        A("v_pk_add_f32 v[32:33], v[32:33], v[36:37]\nv_pk_add_f32 v[40:41], v[40:41], v[44:45]")
        A("v_pk_add_f32 v[30:31], v[32:33], v[40:41]")
        A("v_permlane32_swap_b32 v30, v31")
        A("v_add_f32 v30, v30, v31")
        A("v_mul_f32 v30, 0x3b000000, v30")
        A("v_mov_b32 v31, v30")
        A("v_permlane32_swap_b32 v30, v31")
        A("v_fma_f32 v31, -v30, v30, v31")
        A("v_max_f32 v31, 0, v31")
        A("v_add_f32 v31, 0x3727c5ac, v31")
        A("v_rsq_f32 v31, v31")
        A("v_mul_f32_e64 v30, -v30, v31")
        for i in range(8):
            A(f"v_pk_fma_f32 {v(8+2*i,2)}, {v(8+2*i,2)}, v[30:31], v[30:31] op_sel:[0,1,0] op_sel_hi:[1,1,0]")
        for i in range(8):
            A(f"v_pk_fma_f32 {v(8+2*i,2)}, {v(8+2*i,2)}, {v(80+2*i,2)}, {v(48+2*i,2)}")
        for i in range(8):
            A(f"v_cvt_pk_bf16_f32 {v(32+i)}, {v(8+2*i)}, {v(9+2*i)}")

        def st(sfx):
            A(f"buffer_store_dwordx4 v[32:35], v1, {s(S_WS,4)}, {s(sA5)} offen{sfx}")
            A(f"buffer_store_dwordx4 v[36:39], v1, {s(S_WS,4)}, {s(sA5)} offen offset:1024{sfx}")
        self.store_flag(st, sA8, 6, VTAG)
        self.ts("h2_pub")

    def c_p3(self):
        A = self.A
        NE = 1
        A(f"s_lshl_b32 {s(sT1)}, {s(sM)}, 17")
        A(f"s_add_u32 {s(sT1)}, {s(sT1)}, {s(sG)}")
        A(f"v_add_u32 v3, {s(sT1)}, v1")
        A(f"s_lshl_b32 {s(sT0)}, {s(sRB)}, 11")
        A(f"s_mul_i32 {s(sT1)}, {s(sJ)}, 6144")
        A(f"s_add_u32 {s(sT1)}, {s(sT1)}, {G_HH:#x}")
        A(f"s_add_u32 {s(sT2)}, {s(sT1)}, 4096")
        A("v_lshrrev_b32 v2, 5, v0")
        A("v_bfe_u32 v1, v0, 2, 2")
        A("v_lshl_add_u32 v2, v2, 2, v1")
        A("v_mul_u32_u24 v2, 192, v2")
        A("v_bfe_u32 v1, v0, 4, 1")
        A("v_lshl_add_u32 v2, v1, 5, v2")
        A("v_and_b32 v1, 3, v0")
        A("v_lshl_add_u32 v2, v1, 3, v2")
        A(f"v_add_u32 v2, {slot_addr(0)}, v2")
        LA = self.o.get("la3", 6)

        def ld(k):
            A(f"buffer_load_dwordx4 {a(4*k,4)}, v3, {s(S_WS,4)}, {s(sT0)} offen offset:{(k&1)*1024} sc1")
            if k & 1 and k < 31:
                A(f"s_add_u32 {s(sT0)}, {s(sT0)}, 2048")
                A(f"s_and_b32 {s(sT0)}, {s(sT0)}, 0x7fff")
        seq = [(k, T, mt) for k in range(32) for T in range(3) for mt in range(2)]
        cur = {"base": slot_addr(0)}
        NB, NPF = 6, 5
        q = []

        def rd(idx):
            k, T, mt = seq[idx]
            u, st = k >> 1, k & 1
            if idx % 12 == 0 and u >= NE:
                self.check(5, 16 + u)
            if idx % 12 == 6 and NE <= u + 1 < 16:
                A(f"ds_read_b32 v5, {v(VQ)} offset:16")
                q.append(("probe", u + 1))
            addr = slot_addr(u) + mt * 6144 + st * 3072 + T * 64
            if not (0 <= addr - cur["base"] and addr - cur["base"] + 3072 < 65536):
                nb = slot_addr(u)
                d = nb - cur["base"]
                A(f"v_add_u32 v2, {d}, v2" if d >= 0 else f"v_subrev_u32 v2, {-d}, v2")
                cur["base"] = nb
            o = addr - cur["base"]
            b = 8 + (idx % NB) * 4
            for hh in range(2):
                A(f"ds_read_b64_tr_b16 {v(b+hh*2,2)}, v2 offset:{o + hh*1536}")
                q.append(("rd", idx))
        assert NE >= 1
        if self.o.get("e_early", 0):
            self.signal(VP, 1, CV_E)
        for i in range(NPF):
            rd(i)
        self.poll(5, sA9, 32)
        for k in range(LA):
            ld(k)
        if not self.o.get("e_early", 0):
            self.signal(VP, 1, CV_E)
            q.append(("sig", -1))
        self.ts("h2_flags")
        for idx, (k, T, mt) in enumerate(seq):
            last = max(i for i, x in enumerate(q) if x == ("rd", idx))
            w = f"lgkmcnt({len(q) - 1 - last})"
            del q[:last + 1]
            if T == 0 and mt == 0:
                w = f"vmcnt({min(31, k+LA-1) - k}) " + w
            A(f"s_waitcnt {w}")
            b = 8 + (idx % NB) * 4
            d = 32 + (mt * 3 + T) * 16
            A(f"v_mfma_f32_32x32x16_bf16 {v(d,16)}, {v(b,4)}, {a(4*k,4)}, {v(d,16) if k else 0}")
            if T == 0 and mt == 0 and k + LA < 32:
                ld(k + LA)
            if idx % 12 == 11:
                self.signal(VP, 1, 16 + (k >> 1))
                q.append(("sig", k))
            if idx + NPF < len(seq):
                rd(idx + NPF)
        A(f"v_mov_b32 v5, {s(sTAG)}")
        self.ts("p3_gemm")

        def st(sfx):
            for T in range(3):
                g0, u0 = 32 + T * 16, 80 + T * 16
                for hi in range(2):
                    for i in range(8):
                        A(f"v_max_f32 {v(g0+8*hi+i)}, 0, {v(g0+8*hi+i)}")
                    for i in range(4):
                        A(f"v_pk_mul_f32 {v(g0+8*hi+2*i,2)}, {v(g0+8*hi+2*i,2)}, {v(u0+8*hi+2*i,2)}")
                    n = T * 2 + hi
                    o = 8 + n * 4
                    for i in range(4):
                        A(f"v_cvt_pk_bf16_f32 {v(o+i)}, {v(g0+8*hi+2*i)}, {v(g0+8*hi+2*i+1)}")
                    A(f"buffer_store_dwordx4 {v(o,4)}, v3, {s(S_WS,4)}, {s(sT1 if n < 4 else sT2)} offen offset:{(n&3)*1024}{sfx}")
        self.store_flag(st, sA10, 6, 5, data_sc1=bool(self.o.get("hh_sc1", 1)))
        self.ts("hh_pub")

    def c_p4(self):
        A = self.A
        self.BR = 64
        A("v_lshlrev_b32 v1, 4, v0")
        A("v_and_b32 v122, 15, v0")
        A("v_lshlrev_b32 v122, 2, v122")
        self.rm_voff(127)
        self.slab_bases(124, 11)
        A(f"s_lshl_b32 {s(sT0)}, {s(sW)}, 10")
        A(f"s_add_u32 {s(sT0)}, {s(sT0)}, {s(sEX)}")
        A(f"s_add_u32 {s(sT0)}, {s(sT0)}, {G_HH:#x}")
        A(f"v_add_u32 v126, {s(sT0)}, v1")
        A(f"s_lshl_b32 {s(sT3)}, {s(sEX+1)}, 11")
        AF = lambda i: a(4 * (i % 32), 4)
        LA = self.o.get("la4", 8)

        def ld(i):
            o = [f"buffer_load_dwordx4 {AF(i)}, v126, {s(S_WS,4)}, {s(sT3)} offen sc1"]
            if i < 42:
                o += [f"s_add_u32 {s(sT3)}, {s(sT3)}, 2048", f"s_cmp_lg_u32 {s(sT3)}, {43*2048}", f"s_cselect_b32 {s(sT3)}, {s(sT3)}, 0"]
            return o
        cur = {"base": 0}

        def rd(i):
            o = []
            off = wd_addr(i)
            if not (0 <= off - cur["base"] < 61440):
                d = off - cur["base"]
                for r in (124, 125):
                    o.append(f"v_add_u32 {v(r)}, {d}, {v(r)}" if d >= 0 else f"v_subrev_u32 {v(r)}, {-d}, {v(r)}")
                cur["base"] = off
            return o + [f"ds_read_b64_tr_b16 {v(64 + (i&3)*8 + T*4 + hh*2, 2)}, {v(124+T)} offset:{off - cur['base'] + hh*1024}" for T in range(2) for hh in range(2)]
        self.mt_addr()
        A(f"s_lshl_b32 {s(sT0)}, {s(sM)}, 11")
        A(f"s_add_u32 {s(sT0)}, {s(sT0)}, {L_X1}")
        A(f"v_add_u32 v2, {s(sT0)}, v1")
        A("ds_read_b128 v[112:115], v2")
        A("ds_read_b128 v[116:119], v2 offset:1024")
        for q in range(4):
            A(f"ds_read_b128 {v(96+4*q,4)}, v123 offset:{3*256 + q*32}")
        A("v_mov_b32 v3, 0xffff0000")
        A("s_waitcnt lgkmcnt(4)")
        for i in range(8):
            A(f"v_lshlrev_b32 {v(8+2*i)}, 16, {v(112+i)}")
            A(f"v_and_b32 {v(9+2*i)}, v3, {v(112+i)}")
        self.lwait(VQ, 24, 32, off=16)
        self.emit(rd(0) + rd(1) + rd(2))
        self.poll(122, sA11, 25)
        for i in range(LA):
            self.emit(ld(i))
        self.ts("hh_flags")
        self.g32(43, AF, ld, LA, rd, ring=True)
        self.exchange(L_EX4, 60)
        for q in range(4):
            A(f"s_waitcnt lgkmcnt({3-q})")
            for i in range(2*q, 2*q+2):
                A(f"v_pk_add_f32 {v(32+2*i,2)}, {v(32+2*i,2)}, {v(64+2*i,2)}")
            for i in range(2*q, 2*q+2):
                A(f"v_pk_fma_f32 {v(8+2*i,2)}, {v(32+2*i,2)}, {v(96+2*i,2)}, {v(8+2*i,2)}")
        for i in range(8):
            A(f"v_cvt_pk_bf16_f32 {v(24+i)}, {v(8+2*i)}, {v(9+2*i)}")
        for e in range(2):
            A(f"v_permlane32_swap_b32 {v(24+4*e)}, {v(26+4*e)}")
            A(f"v_permlane32_swap_b32 {v(25+4*e)}, {v(27+4*e)}")
        A(f"buffer_store_dwordx4 v[24:27], v127, {s(S_OUT,4)}, s3 offen")
        A(f"buffer_store_dwordx4 v[28:31], v127, {s(S_OUT,4)}, s3 offen offset:32")
        if self.diag or self.leak:
            A("s_waitcnt vmcnt(0)")
        self.ts("end")
        if self.diag:
            A(f"s_mov_b32 {s(sW)}, {s(sM)}")
        A("s_branch L_fin")

    def gu_unit(self):
        A = self.A
        A(f"s_mul_i32 {s(sT0)}, {s(sRB)}, {32*2752}")
        A(f"s_add_u32 {s(sT1)}, {s(sA7)}, {s(sA1)}")
        A(f"s_add_u32 {s(sT0)}, {s(sT0)}, {s(sA0)}")
        for i in range(3):
            A(f"s_add_u32 m0, {s(sT1)}, {i*1024}")
            A([f"s_add_u32 {s(sRB)}, {s(sRB)}, 1", f"s_and_b32 {s(sRB)}, {s(sRB)}, 15", f"s_add_u32 {s(sA7)}, {s(sA7)}, 12288"][i])
            A(f"buffer_load_dwordx4 {v(48+i)}, {s(S_GU,4)}, {s(sT0)} offen lds")
        A(f"s_cmp_lg_u32 {s(sA7)}, {12*12288}")
        A(f"s_cselect_b32 {s(sA7)}, {s(sA7)}, 0")

    def wd_unit(self):
        A = self.A
        A(f"s_add_u32 {s(sT1)}, {s(sA7)}, {s(sA3)}")
        for i in range(3):
            A(f"s_add_u32 m0, {s(sT1)}, {i*4096}")
            A(f"s_add_u32 {s(sT0)}, {s(sA4)}, 32768")
            A(f"buffer_load_dwordx4 v51, {s(S_WD,4)}, {s(sA4)} offen lds")
            A(f"s_cmp_lg_u32 {s(sT0)}, {43*32768}")
            A(f"s_cselect_b32 {s(sA4)}, {s(sT0)}, 0")
        A(f"s_add_u32 {s(sA7)}, {s(sA7)}, 12288")
        A(f"s_cmp_lg_u32 {s(sA7)}, {12*12288}")
        A(f"s_cselect_b32 {s(sA7)}, {s(sA7)}, 0")

    def w_dma_rot(self, mats):
        A = self.A
        L, Ld = A.uniq("L_wd"), A.uniq("L_wdd")
        A.label(L)
        A(f"s_sub_u32 {s(sCNT)}, {s(sCNT)}, 1")
        A(f"s_cbranch_scc1 {Ld}")
        A(f"s_mul_i32 {s(sT0)}, {s(sT2)}, {4*49152}")
        A(f"s_lshl_b32 {s(sT1)}, {s(sT2)}, 12")
        A(f"s_add_u32 {s(sT0)}, {s(sT0)}, {s(sA9)}")
        A(f"s_add_u32 {s(sT1)}, {s(sT1)}, {s(sA3)}")
        A(f"s_add_u32 {s(sT2)}, {s(sT2)}, 1")
        for mat, lbase in mats:
            A(f"s_add_u32 m0, {s(sT1)}, {lbase - mat*1024}")
            A(f"s_and_b32 {s(sT2)}, {s(sT2)}, 7")
            A(f"buffer_load_dwordx4 v45, {s(S_W,4)}, {s(sT0)} offen offset:{mat*1024} lds")
        A(f"s_branch {L}")
        A.label(Ld)

    def helper(self):
        A = self.A
        A.label("L_helper")
        self.srd_consts([S_W, S_PHI])
        A("v_lshrrev_b32 v12, 2, v0")
        A("v_mul_u32_u24 v12, 3072, v12")
        A("v_lshrrev_b32 v5, 4, v0")
        A("v_and_b32 v5, 2, v5")
        A("v_and_b32 v45, 3, v0")
        A("v_xor_b32 v5, v5, v45")
        A("v_lshl_add_u32 v45, v5, 4, v12")
        A(f"s_lshl_b32 {s(sA3)}, {s(sM)}, 10")
        A(f"s_mul_i32 {s(sA9)}, {s(sM)}, 49152")
        A(f"s_lshl_b32 {s(sT0)}, {s(sJ)}, 6")
        A(f"s_add_u32 {s(sA9)}, {s(sA9)}, {s(sT0)}")
        A(f"s_add_u32 {s(sA9)}, {s(sA9)}, 1024")
        A(f"s_lshr_b32 {s(sT2)}, {s(sRB)}, 1")
        A("s_waitcnt lgkmcnt(0)")
        self.wsoff()
        self.bar()
        A("v_lshlrev_b32 v2, 7, v0")
        A(f"s_cmp_eq_u32 {s(sM)}, 1")
        A("s_cbranch_scc1 L_h1")
        A(f"s_cmp_eq_u32 {s(sM)}, 2")
        A("s_cbranch_scc1 L_h2")
        A(f"s_cmp_eq_u32 {s(sM)}, 3")
        A("s_cbranch_scc1 L_h4")
        A(f"v_mov_b32 v3, {s(sFAST)}")
        A(f"s_lshl4_add_u32 {s(sT0)}, {s(sRB)}, {s(sJ)}")
        A(f"s_mul_i32 {s(sT1)}, s2, 6144")
        A("s_waitcnt lgkmcnt(0)")
        A("s_mov_b64 exec, 1")
        A(f"buffer_store_byte v3, v6, {s(S_DBG,4)}, {s(sT0)} offen sc1")
        A("s_mov_b32 exec_lo, -1\ns_mov_b32 exec_hi, 0xffff")
        if self.o.get("wtouch", 0):
            A(f"buffer_load_dword v10, v2, {s(S_W,4)}, {s(sT1)} offen")
        A("s_mov_b64 exec, -1")
        A("s_branch L_h3")
        A.label("L_h1")
        if self.o.get("cpf", 1):
            A(f"s_getpc_b64 {s(sEX,2)}")
            A.label("L_pc")
            A(f"s_sub_u32 {s(sEX)}, {s(sEX)}, L_pc-{KNAME}")
            A(f"s_subb_u32 {s(sEX+1)}, {s(sEX+1)}, 0")
            if self.o.get("cpf", 1) == 1:
                A(f"s_lshr_b32 {s(sT0)}, s2, 3")
                A(f"s_lshl_b32 {s(sT0)}, {s(sT0)}, 10")
                A(f"v_add_u32 v3, {s(sT0)}, v2")
                A(f"v_min_u32 v3, L_end-{KNAME}, v3")
                A("s_mov_b64 exec, 0xff")
                A(f"global_load_dword v10, v3, {s(sEX,2)}")
                A("s_mov_b64 exec, -1")
        A("s_branch L_h3")
        A.label("L_h2")
        A(f"s_lshl_b32 {s(sT0)}, s2, 8")
        A(f"s_add_u32 {s(sT0)}, {s(sT0)}, {WS_KV2:#x}")
        A(f"v_add_u32 v3, {s(sT0)}, v2")
        A(f"s_lshl_b32 {s(sT0)}, {s(sJ)}, 7")
        A(f"s_add_u32 {s(sT0)}, {s(sT0)}, {s(sG)}")
        A(f"s_add_u32 {s(sT0)}, {s(sT0)}, {G_FL:#x}")
        A(f"v_writelane_b32 v3, {s(sT0)}, 2")
        A(f"s_and_b32 {s(sT0)}, s2, 127")
        A(f"s_lshl_b32 {s(sT0)}, {s(sT0)}, 7")
        A(f"s_add_u32 {s(sT0)}, {s(sT0)}, {WS_MODU:#x}")
        A(f"v_writelane_b32 v3, {s(sT0)}, 3")
        A("s_waitcnt lgkmcnt(0)")
        A("s_mov_b64 exec, 15")
        A(f"buffer_load_dword v10, v3, {s(S_WS,4)}, 0 offen")
        A("s_mov_b64 exec, -1")
        A("s_branch L_h3")
        A.label("L_h4")
        A(f"s_mov_b32 m0, {L_PHI}")
        A(f"s_lshl_b32 {s(sT0)}, {s(sJ)}, 10")
        A(f"buffer_load_dwordx4 v1, {s(S_PHI,4)}, {s(sT0)} offen lds")
        A.label("L_h3")
        A(f"buffer_load_dword {v(VTAG)}, v6, {s(S_WS,4)}, 0 offen sc1")
        NB1 = self.o.get("nb1", 3)
        KV = [(0, L_WK), (1, L_WV)]
        for r, off in ((S_WO, 24), (S_WG, 40), (S_WU, 48), (S_WD, 56)):
            A(f"s_load_dwordx2 {s(r,2)}, s[0:1], {off}")
        A(f"s_lshr_b32 {s(sA2)}, s2, 3")
        A(f"s_lshl2_add_u32 {s(sT0)}, {s(sA2)}, {s(sM)}")
        A(f"s_mul_i32 {s(sA5)}, {s(sT0)}, {4*3072}")
        A("v_lshrrev_b32 v12, 4, v0")
        A("v_mul_u32_u24 v12, 3072, v12")
        A("v_and_b32 v13, 15, v0")
        A("v_lshl_add_u32 v44, v13, 7, v12")
        if self.o.get("wshare", 1):
            A(f"buffer_load_dword v10, v44, {s(S_W,4)}, {s(sA5)} offen offset:1024")
        A(f"s_cmp_ge_u32 s2, {self.o.get('hold', 32)}")
        A("s_cbranch_scc1 L_nohold")
        A("s_waitcnt lgkmcnt(0)")
        self.lwait(VQ, 12, CV_G, sleep=2)
        A.label("L_nohold")
        self.ts("iss1")
        A(f"s_mov_b32 {s(sCNT)}, 8")
        self.w_dma_rot(KV)
        self.ts("iss2")
        self.srd_consts([S_WO, S_WG, S_WU, S_WD])
        for i in range(3):
            A(f"v_add_u32 v12, {64*i}, v0")
            A("v_mul_u32_u24 v13, 0x5556, v12")
            A("v_lshrrev_b32 v13, 18, v13")
            A(f"v_mul_u32_u24 v13, {2752 - 192}, v13")
            A(f"v_lshl_add_u32 {v(48+i)}, v12, 4, v13")
        A(f"s_lshr_b32 {s(sT0)}, {s(sM)}, 1")
        A(f"s_mul_i32 {s(sA1)}, {s(sT0)}, 3072")
        A(f"s_mul_i32 {s(sA0)}, {s(sT0)}, {16*2752}")
        A(f"s_mul_i32 {s(sT1)}, {s(sJ)}, 192")
        A(f"s_add_u32 {s(sA0)}, {s(sA0)}, {s(sT1)}")
        A(f"s_and_b32 {s(sT1)}, {s(sM)}, 1")
        A(f"s_mul_i32 {s(sT1)}, {s(sT1)}, 6144")
        A(f"s_add_u32 {s(sA1)}, {s(sA1)}, {s(sT1)}")
        A("v_lshlrev_b32 v51, 10, v8")
        A("v_bfe_u32 v12, v0, 4, 1")
        A("v_lshlrev_b32 v13, 2, v12")
        A("v_xor_b32 v13, v13, v9")
        A("v_lshl_add_u32 v51, v13, 4, v51")
        A(f"s_and_b32 {s(sT3)}, {s(sJ)}, 7")
        A(f"s_lshl_b32 {s(sT1)}, {s(sT3)}, 7")
        A(f"s_lshl_b32 {s(sT0)}, {s(sM)}, 13")
        A(f"s_add_u32 {s(sT0)}, {s(sT0)}, {s(sT1)}")
        A(f"v_add_u32 v51, {s(sT0)}, v51")
        A("v_and_b32 v14, 48, v0")
        A("v_lshl_add_u32 v52, v9, 6, v14")
        A("v_lshrrev_b32 v54, 5, v0")
        A(f"v_lshl_add_u32 v54, v54, 5, {s(sA2)}")
        A("v_mul_u32_u24 v54, 2752, v54")
        A("v_and_b32 v13, 31, v0")
        A("v_lshlrev_b32 v13, 7, v13")
        A("v_min_u32 v13, 2748, v13")
        A("v_add_u32 v54, v54, v13")
        A(f"v_lshl_add_u32 v56, v8, 5, {s(sA2)}")
        A("v_lshlrev_b32 v56, 10, v56")
        A("v_lshl_add_u32 v56, v9, 7, v56")
        A(f"s_lshl2_add_u32 {s(sT0)}, {s(sJ)}, {s(sM)}")
        A(f"s_lshl4_add_u32 {s(sT0)}, {s(sT0)}, {s(sRB)}")
        A(f"s_lshl_b32 {s(sT0)}, {s(sT0)}, 10")
        A(f"s_add_u32 {s(sT0)}, {s(sT0)}, {WS_KVP:#x}")
        A(f"v_add_u32 v55, {s(sT0)}, v2")
        A(f"s_lshl3_add_u32 {s(sA8)}, {s(sM)}, {s(sT3)}")
        A(f"s_lshl_b32 {s(sA8)}, {s(sA8)}, 12")
        A(f"s_add_u32 {s(sA8)}, {s(sA8)}, {WS_MODL:#x}")
        A("v_lshlrev_b32 v58, 3, v0")
        A(f"s_lshl_b32 {s(sT0)}, {s(sM)}, 8")
        A(f"s_add_u32 {s(sT0)}, {s(sT0)}, {L_MT}")
        A(f"v_lshl_add_u32 v59, v0, 2, {s(sT0)}")
        A(f"s_lshl_b32 {s(sT0)}, {s(sM)}, 7")
        A(f"s_add_u32 {s(sT0)}, {s(sT0)}, {s(sJ)}")
        A(f"s_lshl_b32 {s(sT0)}, {s(sT0)}, 10")
        A(f"s_add_u32 {s(sT0)}, {s(sT0)}, {G_O:#x}")
        A("v_lshlrev_b32 v53, 14, v8")
        A("v_lshl_add_u32 v53, v9, 7, v53")
        A(f"v_add_u32 v53, {s(sT0)}, v53")
        A(f"s_lshl2_add_u32 {s(sT0)}, {s(sJ)}, {s(sM)}")
        A(f"s_lshl_b32 {s(sT0)}, {s(sT0)}, 8")
        A(f"s_add_u32 {s(sT0)}, {s(sT0)}, {G_ST:#x}")
        A(f"v_writelane_b32 v53, {s(sT0)}, 16")
        A(f"s_add_u32 {s(sT0)}, {s(sT0)}, 128")
        A(f"v_writelane_b32 v53, {s(sT0)}, 17")
        A(f"s_lshl_b32 {s(sT0)}, {s(sM)}, 17")
        A(f"s_mul_i32 {s(sT1)}, {s(sJ)}, 6144")
        A(f"s_add_u32 {s(sT0)}, {s(sT0)}, {s(sT1)}")
        A(f"s_add_u32 {s(sT0)}, {s(sT0)}, {G_HH:#x}")
        A(f"v_add_u32 v57, {s(sT0)}, v2")
        self.rot_setup()
        A(f"s_and_b32 {s(sT0)}, {s(sM)}, 2")
        A(f"s_add_u32 {s(sA6)}, {s(sRB)}, {s(sT0)}")
        A(f"s_lshl2_add_u32 {s(sA11)}, {s(sM)}, {s(sEX+1)}")
        A(f"s_mov_b32 {s(sA10)}, {s(sRB)}")
        A(f"s_lshl_b32 {s(sA4)}, {s(sEX+1)}, 15")
        A(f"s_mov_b32 {s(sA7)}, {slot_addr(0)}")
        A("s_waitcnt lgkmcnt(0)")
        A(f"s_bitcmp1_b32 {s(sM)}, 0")
        A(f"s_cselect_b64 {s(S_GU,2)}, {s(S_WU,2)}, {s(S_WG,2)}")
        A(f"s_mov_b32 {s(S_GU+2)}, {512*2752}")
        A(f"s_sub_u32 {s(sA9)}, {s(sA9)}, 1024")
        A("s_waitcnt vmcnt(0)")
        self.signal(VP, 12, HV_W)
        A(f"v_add_u32 {v(VTAG)}, 1, {v(VTAG)}")
        A(f"v_readfirstlane_b32 {s(sTAG)}, {v(VTAG)}")
        self.ts("w_land")
        CVS = dict(A2=CV_A2, KV=CV_KV, H1=CV_H1, O=CV_O, P2L=CV_P2L, X2=CV_X2, ST=CV_ST, E=CV_E)
        NE = 0
        since_tq = None

        def masked(mask_lo, mask_hi, ins):
            A(f"s_mov_b32 exec_lo, {mask_lo:#x}\ns_mov_b32 exec_hi, {mask_hi:#x}")
            A(ins)
            A("s_mov_b64 exec, -1")

        def share_g():
            A(f"s_and_b32 {s(sT0)}, {s(sA6)}, 15")
            A(f"s_mul_i32 {s(sT0)}, {s(sT0)}, {32*2752}")
            A(f"s_add_u32 {s(sA6)}, {s(sA6)}, 4")
            masked(0x7fffff, 0x7fffff, f"buffer_load_dword v10, v54, {s(S_GU,4)}, {s(sT0)} offen")

        def share_d():
            A(f"s_sub_u32 {s(sT0)}, {s(sA11)}, 44")
            A(f"s_cselect_b32 {s(sA11)}, {s(sA11)}, {s(sT0)}")
            A(f"s_lshl_b32 {s(sT0)}, {s(sA11)}, 15")
            A(f"s_add_u32 {s(sA11)}, {s(sA11)}, 16")
            masked(0xffffffff, 0, f"buffer_load_dword v10, v56, {s(S_WD,4)}, {s(sT0)} offen")
        for act in self.sched.split():
            n = 0
            if act.startswith("w"):
                self.lwait(VQ, 15, CVS[act[1:]], sleep=2)
            elif act.startswith("@"):
                self.ts(act[1:])
            elif act == "sq":
                masked(0x00ff00ff, 0x00ff00ff, f"buffer_load_dword v10, v44, {s(S_W,4)}, {s(sA5)} offen"); n = 1
            elif act == "so":
                A(f"s_lshl2_add_u32 {s(sT0)}, {s(sA2)}, {s(sM)}")
                A(f"s_lshl_b32 {s(sT0)}, {s(sT0)}, 12")
                masked(0xffffffff, 0, f"buffer_load_dword v10, v2, {s(S_WO,4)}, {s(sT0)} offen"); n = 1
            elif act == "sg":
                share_g(); n = 1
            elif act == "sd":
                share_d(); n = 1
            elif act == "pre":
                masked(0x3ffff, 0, f"buffer_load_dword v10, v53, {s(S_WS,4)}, {s(sG)} offen"); n = 1
            elif act == "pkv":
                masked(0xff, 0, f"buffer_load_dword v10, v55, {s(S_WS,4)}, 0 offen"); n = 1
            elif act == "phh":
                masked(0xffffffff, 0xffff, f"buffer_load_dword v10, v57, {s(S_WS,4)}, {s(sG)} offen"); n = 1
            elif act == "li":
                assert since_tq is None
                A(f"s_cmp_lg_u32 {s(sM)}, 0")
                A("s_cbranch_scc1 L_li")
                self.gemv_issue(64, late=True)
                self.gemv_issue2(64, late=True)
                A.label("L_li")
            elif act == "lc":
                A(f"s_cmp_lg_u32 {s(sM)}, 0")
                A("s_cbranch_scc1 L_lc")
                self.gemv_compute(64, None)
                A(f"s_lshl_b32 {s(sT0)}, s2, 9")
                A(f"s_add_u32 {s(sT0)}, {s(sT0)}, {WS_MODL:#x}")
                A(f"v_mov_b32 v28, v27\nv_mov_b32 v27, {v(VTAG)}\nv_mov_b32 v29, {v(VTAG)}")
                A(f"buffer_store_dwordx4 v[26:29], v52, {s(S_WS,4)}, {s(sT0)} offen sc1")
                A.label("L_lc")
            elif act == "tq":
                A(f"s_mov_b32 {s(sCNT)}, 8")
                self.w_dma_rot([(0, L_WQ)])
                since_tq = 0
            elif act == "sigQ":
                A(f"s_waitcnt vmcnt({since_tq})")
                self.signal(VP, 15, HV_Q)
            elif act == "to":
                A(f"s_mov_b32 {s(sCNT)}, 16")
                A.label("L_wo")
                A(f"s_lshl_b32 {s(sT1)}, {s(sA10)}, 12")
                A(f"s_lshl_b32 {s(sT0)}, {s(sA10)}, 15")
                A(f"s_add_u32 m0, {s(sT1)}, {s(sA3)}")
                A(f"s_add_u32 {s(sA10)}, {s(sA10)}, 1")
                A(f"buffer_load_dwordx4 v51, {s(S_WO,4)}, {s(sT0)} offen lds")
                A(f"s_and_b32 {s(sA10)}, {s(sA10)}, 15")
                A(f"s_sub_u32 {s(sCNT)}, {s(sCNT)}, 1")
                A(f"s_cmp_lg_u32 {s(sCNT)}, 0")
                A("s_cbranch_scc1 L_wo")
                n = 16
            elif act == "u":
                self.gu_unit(); NE += 1; n = 3
            elif act == "v0":
                A("s_waitcnt vmcnt(0)")
            elif act == "mt":
                A(f"s_mov_b32 {s(sCNT)}, {SPIN}")
                A("s_branch L_gat1")
                A.label("L_gat")
                A("s_sleep 8")
                A.label("L_gat1")
                for i in range(8):
                    A(f"buffer_load_dwordx2 {v(24+2*i,2)}, v58, {s(S_WS,4)}, {s(sA8)} offen offset:{i*512} sc1")
                A("v_mov_b32 v21, 0")
                A("s_waitcnt vmcnt(0)")
                for i in range(8):
                    A(f"v_bitop3_b32 v21, v21, {v(25+2*i)}, {v(VTAG)} bitop3:0xf6")
                    if i:
                        A(f"v_add_f32 v24, v24, {v(24+2*i)}")
                A(f"s_sub_u32 {s(sCNT)}, {s(sCNT)}, 1")
                A("s_cbranch_scc1 L_gatd")
                A("v_cmp_ne_u32 vcc, 0, v21")
                A("s_cbranch_vccnz L_gat")
                A.label("L_gatd")
                A(f"s_cmp_eq_u32 {s(sM)}, 2")
                A(f"s_cselect_b32 {s(sT0)}, 1.0, 0")
                A("v_cvt_pk_bf16_f32 v24, v24, v24")
                A(f"v_and_b32 v24, {v(VMASK)}, v24")
                A(f"v_add_f32 v24, {s(sT0)}, v24")
                A("v_cvt_pk_bf16_f32 v24, v24, v24")
                A(f"v_and_b32 v24, {v(VMASK)}, v24")
                A("ds_write_b32 v59, v24")
                assert 1 <= NE <= 3
                A(f"v_mov_b32 v14, {15 + NE}")
                A(f"ds_write_b32 {v(VP)}, v14")
            else:
                raise ValueError(act)
            if since_tq is not None:
                since_tq += n
        A("s_cmp_lg_u32 s2, 0")
        A("s_cbranch_scc1 L_ep_skip")
        A(f"buffer_store_dword {v(VTAG)}, v6, {s(S_WS,4)}, 0 offen sc1")
        A.label("L_ep_skip")
        D = self.o.get("d", 3)
        A(f"s_mov_b32 {s(sA8)}, {NE + 4}")
        A(f"v_subrev_u32 v13, {D - 1}, v14")
        for name, unit, end in (("gu", self.gu_unit, 16 + 4), ("wd", self.wd_unit, 31 + 4)):
            A.label(f"L_ring_{name}")
            self.lwait(VQ, 12, s(sA8), sleep=2)
            unit()
            A("v_add_u32 v13, 1, v13")
            A(f"s_add_u32 {s(sA8)}, {s(sA8)}, 1")
            A("v_max_u32 v15, v13, v14")
            A(f"s_waitcnt vmcnt({3*(D-1)})")
            A(f"ds_write_b32 {v(VP)}, v15")
            A(f"s_cmp_lg_u32 {s(sA8)}, {end}")
            A(f"s_cbranch_scc1 L_ring_{name}")
            self.ts(name + "_iss")
        for i in range(D - 1):
            A("v_add_u32 v13, 1, v13")
            A(f"s_waitcnt vmcnt({3*(D-2-i)})")
            A(f"ds_write_b32 {v(VP)}, v13")
        A("s_waitcnt lgkmcnt(0)")
        self.ts("wd_done")

    def finish(self):
        A = self.A
        A.label("L_fin")
        if self.leak:
            A(f"s_lshl3_add_u32 {s(sRT)}, {s(sTS+2)}, {s(sRT)}")
            A(f"s_add_u32 {s(sRT)}, {s(sRT)}, 5000")
            A.label("L_leak")
            A(f"s_sleep 2\ns_memrealtime {s(sTP,2)}\ns_waitcnt lgkmcnt(0)\ns_sub_u32 {s(sT0)}, {s(sTP)}, {s(sRT)}\ns_cmp_lt_i32 {s(sT0)}, 0\ns_cbranch_scc1 L_leak")
        if self.diag:
            A("s_waitcnt vmcnt(0) lgkmcnt(0)")
            A(f"s_cmp_lg_u32 {s(sM)}, 0")
            A("s_cbranch_scc1 L_end")
            A(f"s_lshl_b32 {s(sT0)}, s2, 8")
            A(f"s_lshl_b32 {s(sT1)}, {s(sW)}, 5")
            A(f"s_add_u32 {s(sT0)}, {s(sT0)}, {s(sT1)}")
            A(f"s_add_u32 {s(sT0)}, {s(sT0)}, {WS_TS:#x}")
            A("s_mov_b64 exec, 1")
            A("v_mov_b32 v6, 0")
            A(f"v_mov_b32 v8, {s(sRT)}")
            A(f"buffer_store_dword v8, v6, {s(S_WS,4)}, {s(sT0)} offen offset:124")
            A(f"s_memrealtime {s(sTP,2)}\ns_waitcnt lgkmcnt(0)\nv_mov_b32 v9, {s(sTP)}")
            A(f"buffer_store_dword v9, v6, {s(S_WS,4)}, {s(sT0)} offen offset:116")
            A(f"v_mov_b32 v9, {s(sFAST)}")
            A(f"buffer_store_dword v9, v6, {s(S_WS,4)}, {s(sT0)} offen offset:120")
            for i in range(20):
                A(f"v_mov_b32 {v(10+i)}, {s(sTS+i)}")
                A(f"buffer_store_dword {v(10+i)}, v6, {s(S_WS,4)}, {s(sT0)} offen offset:{4*i}")
            A("s_waitcnt vmcnt(0)")
        A.label("L_end")
        A("s_endpgm")

    def build(self):
        self.start()
        self.role = "C"
        self.c_start()
        self.c_p1()
        self.c_p2()
        self.c_p3()
        self.c_p4()
        self.role = "H"
        self.helper()
        self.finish()
        hdr = open("header.txt").read()
        return (hdr + "; @launch grid=(256,1,1) block=(512,1,1) lds=163840\n"
                + '.amdgcn_target "amdgcn-amd-amdhsa--gfx950"\n.text\n'
                + f".globl {KNAME}\n.p2align 8\n.type {KNAME},@function\n{KNAME}:\n"
                + self.A.text()
                + f"""
.section .rodata,"a"
.p2align 6
.amdhsa_kernel {KNAME}
  .amdhsa_next_free_vgpr 256
  .amdhsa_next_free_sgpr 102
  .amdhsa_accum_offset 128
  .amdhsa_group_segment_fixed_size 0
  .amdhsa_kernarg_size 104
  .amdhsa_user_sgpr_count 2
  .amdhsa_user_sgpr_kernarg_segment_ptr 1
  .amdhsa_system_sgpr_workgroup_id_x 1
.end_amdhsa_kernel
""")


if __name__ == "__main__":
    import argparse, json
    ap = argparse.ArgumentParser()
    ap.add_argument("-o", default="k7.s")
    ap.add_argument("--diag", action="store_true")
    ap.add_argument("--slow", action="store_true")
    ap.add_argument("--opt", default="")
    ap.add_argument("--leak", default=None)
    args = ap.parse_args()
    o, _, sched = args.opt.partition("|")
    opts = {kv.split("=")[0]: int(kv.split("=")[1]) for kv in o.split(",") if kv}
    g = Gen(diag=args.diag, force_slow=args.slow, opts=opts, sched=sched or None, leak=args.leak)
    t = g.build()
    open(args.o, "w").write(t)
    if args.diag:
        json.dump(g.names, open(args.o + ".ts", "w"))
    print("written", args.o, len(t.splitlines()), "lines")
```

```python
import sys
sys.path.insert(0, "gen")
from asmlib import *

KNAME = "adaLN_cond__linear_kernel_hedgehog__glu_gated_reglu__prompt_kernel"

WS_MODU = 0x4000
WS_MODL = 0x10000
WS_KV2 = 0x30000
WS_KVP = 0x40000
WS_G0 = 0x200000
RS = 0x20000
G_H, G_O, G_H2, G_HH = 0x0, 0x8000, 0x0, 0x8000
G_FL = 0x80000
G_FLH, G_FLO, G_FL2, G_FL3 = G_FL, G_FL + 512, G_FL + 1024, G_FL + 1536
G_ST = 0x81000
WS_TS = 0x1400000
L_WK, L_WV, L_WQ = 0, 32768, 65536
L_KVR, L_X1, L_KVF, L_SCR, L_STX, L_MT = 135168, 151552, 155648, 157824, 159872, 162816
L_TAB = 107520
KVR_W = 4352
L_CW, L_HW = 160384, 160400
L_XT, L_PHI = 98304, 106496
CV_G, CV_S, CV_A2, CV_KV, CV_H1, CV_O, CV_P2L, CV_X2, CV_SX, CV_ST, CV_E = 1, 2, 3, 4, 5, 6, 7, 8, 9, 10, 15
HV_W, HV_Q, HV_G = 1, 2, 16
sB0, sB1, sB2 = 16, 17, 18
L_SX = 160512
L_EX2 = (81920, 90112)
L_EX4 = (L_X1, 28672)


def slot_addr(u):
    return ((u + 8) % 12) * 12288


def wd_addr(i):
    return (i % 36) * 4096


S_X, S_W, S_WS, S_WM, S_C, S_PHI, S_WO, S_WG, S_WU, S_WD, S_OUT, S_GU = 4, 8, 12, 16, 20, 24, 28, 32, 36, 40, 44, 48
S_DBG = 48
sW, sM, sRB, sJ, sTAG, sG, sFAST = 52, 53, 54, 55, 56, 57, 58
sT0, sT1, sT2, sT3, sCNT = 59, 60, 61, 62, 63
sEX = 64
sA0, sA1, sA2, sA3, sA4, sA5, sA6, sA7, sA8, sA9 = range(66, 76)
sA10, sA11 = 76, 77
sTP = 78
sRT = 80
sTS = 82
SPIN = 0x40000
VMASK, VTAG = 126, 127
VP, VQ = 7, 4


def zip_streams(*streams):
    out = []
    n = max(len(x) for x in streams)
    for i in range(n):
        for x in streams:
            if i < len(x):
                out.append(x[i])
    return out


def weave(mfmas, others, per=2):
    out, o = [], list(others)
    n = len(mfmas)
    for i, m_ in enumerate(mfmas):
        out.append(m_)
        k = min(per, -(-len(o) // (n - i)))
        out += o[:k]
        o = o[k:]
    return out + o


class Gen:
    def __init__(self, diag=False, force_slow=False, opts=None, sched=None, leak=None):
        self.leak = leak
        self.A = Asm()
        self.diag = diag
        self.names = {"C": [], "H": []}
        self.role = None
        self.force_slow = force_slow
        self.o = opts or {}
        sched, _, segs = (sched or "").partition("|")
        self.sched = sched or "wA2 @a2 li pst tq sigQ @wq lc wKV to sg sg @t2 wH1 u u u u mt @g wX2 u u u u sigU wE @e"
        self.o_segs = (segs or "q o g4-16 d22").split()

    def ts(self, name):
        if self.leak == name:
            self.A(f"s_cselect_b32 {s(sTS+3)}, 1, 0\ns_memrealtime {s(sTP,2)}\ns_waitcnt lgkmcnt(0)\ns_sub_u32 {s(sTS+2)}, {s(sTP)}, {s(sRT)}\ns_cmp_lg_u32 {s(sTS+3)}, 0")
        if not self.diag:
            return
        roles = ["C", "H"] if self.role is None else [self.role]
        idx = max(len(self.names[r]) for r in roles)
        for r in roles:
            while len(self.names[r]) < idx:
                self.names[r].append("-")
            self.names[r].append(name)
        assert idx < 20
        self.A(f"{'s_memtime' if self.o.get('cyc', 0) else 's_memrealtime'} {s(sTP,2)}\ns_waitcnt lgkmcnt(0)\ns_mov_b32 {s(sTS+idx)}, {s(sTP)}")

    def bar(self):
        self.A("s_barrier")

    def dual(self, fn):
        A = self.A
        Ls, Ld = A.uniq("L_slow"), A.uniq("L_sd")
        A(f"s_cmp_eq_u32 {s(sFAST)}, 0")
        A(f"s_cbranch_scc1 {Ls}")
        fn("")
        A(f"s_branch {Ld}")
        A.label(Ls)
        fn(" sc1")
        A.label(Ld)

    def store_flag(self, stores, sflag, vz, vt, data_sc1=False):
        A = self.A

        if data_sc1:
            stores(" sc1")

        def f(sfx):
            if not data_sc1:
                stores(sfx)
            A("s_waitcnt vmcnt(0)")
            A("s_mov_b64 exec, 1")
            A(f"buffer_store_dword {v(vt)}, {v(vz)}, {s(S_WS,4)}, {s(sflag)} offen{sfx}")
            A("s_mov_b64 exec, -1")
        self.dual(f)

    def poll(self, voff, soff, vtmp, sleep=0):
        A = self.A
        Lp, Ld = A.uniq("L_poll"), A.uniq("L_pd")
        A(f"s_mov_b32 {s(sCNT)}, {SPIN}")
        A.label(Lp)
        if sleep:
            A(f"s_sleep {sleep}")
        A(f"buffer_load_dword {v(vtmp)}, {v(voff)}, {s(S_WS,4)}, {s(soff)} offen sc1")
        A(f"s_sub_u32 {s(sCNT)}, {s(sCNT)}, 1")
        A(f"s_cbranch_scc1 {Ld}")
        A("s_waitcnt vmcnt(0)")
        A(f"v_cmp_ne_u32 vcc, {s(sTAG)}, {v(vtmp)}")
        A(f"s_cbranch_vccnz {Lp}")
        A.label(Ld)

    def signal(self, vaddr, vtmp, val):
        self.A(f"v_mov_b32 {v(vtmp)}, {val}")
        self.A(f"ds_write_b32 {v(vaddr)}, {v(vtmp)}")

    def lwait(self, vaddr, vtmp, val, off=0, sleep=0, extra=None):
        A = self.A
        Lp, Ld = A.uniq("L_lw"), A.uniq("L_lwd")
        A(f"s_mov_b32 {s(sCNT)}, {SPIN*8}")
        A.label(Lp)
        A(f"ds_read_b32 {v(vtmp)}, {v(vaddr)} offset:{off}")
        self.emit(extra or [])
        A(f"s_sub_u32 {s(sCNT)}, {s(sCNT)}, 1")
        A(f"s_cbranch_scc1 {Ld}")
        A(f"s_waitcnt lgkmcnt({len(extra or [])})")
        A(f"v_cmp_gt_u32 vcc, {val}, {v(vtmp)}")
        if sleep:
            A(f"s_cbranch_vccz {Ld}")
            A(f"s_sleep {sleep}")
            A(f"s_branch {Lp}")
        else:
            A(f"s_cbranch_vccnz {Lp}")
        A.label(Ld)

    @staticmethod
    def red4(op, a0, b0, a1, b1):
        return [f"v_permlane32_swap_b32 {v(a0)}, {v(b0)}", f"v_permlane32_swap_b32 {v(a1)}, {v(b1)}",
                f"{op} {v(a0)}, {v(a0)}, {v(b0)}", f"{op} {v(a1)}, {v(a1)}, {v(b1)}",
                f"v_permlane16_swap_b32 {v(a0)}, {v(a1)}", f"{op} {v(a0)}, {v(a0)}, {v(a1)}"]

    @staticmethod
    def bcast4(a0, b0, a1, b1):
        return [f"v_mov_b32 {v(a1)}, {v(a0)}", f"v_permlane16_swap_b32 {v(a0)}, {v(a1)}",
                f"v_mov_b32 {v(b0)}, {v(a0)}", f"v_mov_b32 {v(b1)}, {v(a1)}",
                f"v_permlane32_swap_b32 {v(a0)}, {v(b0)}", f"v_permlane32_swap_b32 {v(a1)}, {v(b1)}"]

    def softmax2(self, X, EP, EN, T, P, L2):
        o = []
        a0, b0, a1, b1 = T, T + 1, T + 2, T + 3
        for t, (aa, bb) in enumerate(((a0, b0), (a1, b1))):
            x = X + 4 * t
            o += [f"v_max3_f32 {v(aa)}, {v(x)}, {v(x+1)}, {v(x+2)}", f"v_max3_f32 {v(bb)}, -{v(x)}, -{v(x+1)}, -{v(x+2)}"]
        for t, (aa, bb) in enumerate(((a0, b0), (a1, b1))):
            x = X + 4 * t
            o += [f"v_max_f32 {v(aa)}, {v(aa)}, {v(x+3)}", f"v_max_f32_e64 {v(bb)}, {v(bb)}, -{v(x+3)}"]
        o += self.red4("v_max_f32", a0, b0, a1, b1)
        o += [f"v_mul_f32 {v(a0)}, {v(L2)}, {v(a0)}"]
        o += self.bcast4(a0, b0, a1, b1)
        for t in range(2):
            m = T + 2 * t
            for h in range(2):
                x = X + 4 * t + 2 * h
                o += [f"v_pk_fma_f32 {v(EP+4*t+2*h,2)}, {v(x,2)}, {v(L2,2)}, {v(m,2)} op_sel:[0,0,0] op_sel_hi:[1,1,0] neg_lo:[0,0,1] neg_hi:[0,0,1]",
                      f"v_pk_fma_f32 {v(EN+4*t+2*h,2)}, {v(x,2)}, {v(L2,2)}, {v(m,2)} op_sel:[0,0,1] op_sel_hi:[1,1,1] neg_lo:[1,0,1] neg_hi:[1,0,1]"]
        for i in range(8):
            o += [f"v_exp_f32 {v(EP+i)}, {v(EP+i)}", f"v_exp_f32 {v(EN+i)}, {v(EN+i)}"]
        for t in range(2):
            e, n = EP + 4 * t, EN + 4 * t
            o += [f"v_pk_add_f32 {v(T+4,2)}, {v(e,2)}, {v(e+2,2)}", f"v_pk_add_f32 {v(T+6,2)}, {v(n,2)}, {v(n+2,2)}",
                  f"v_add_f32 {v(T+2*t)}, {v(T+4)}, {v(T+5)}", f"v_add_f32 {v(T+2*t+1)}, {v(T+6)}, {v(T+7)}"]
        o += self.red4("v_add_f32", a0, b0, a1, b1)
        o += [f"v_rcp_f32 {v(a0)}, {v(a0)}"]
        o += self.bcast4(a0, b0, a1, b1)
        for t in range(2):
            m = T + 2 * t
            for h in range(2):
                e, n = EP + 4 * t + 2 * h, EN + 4 * t + 2 * h
                o += [f"v_pk_mul_f32 {v(e,2)}, {v(e,2)}, {v(m,2)} op_sel:[0,0] op_sel_hi:[1,0]",
                      f"v_pk_mul_f32 {v(n,2)}, {v(n,2)}, {v(m,2)} op_sel:[0,1] op_sel_hi:[1,1]"]
        for t in range(2):
            for h in range(2):
                o += [f"v_cvt_pk_bf16_f32 {v(P+4*t+h)}, {v(EP+4*t+2*h)}, {v(EP+4*t+2*h+1)}",
                      f"v_cvt_pk_bf16_f32 {v(P+4*t+2+h)}, {v(EN+4*t+2*h)}, {v(EN+4*t+2*h+1)}"]
        return o

    def emit(self, lst):
        for l in lst:
            self.A(l)

    def srd_consts(self, regs):
        sizes = {S_WS: 0x10000000 - (self.o.get('wsoff', 0) << 20), S_C: 1024, S_WM: 512*6144, S_X: 2048*1024, S_W: 512*3072, S_PHI: 32*512, S_WO: 512*1024,
                 S_WG: 512*2752, S_WU: 512*2752, S_WD: 1376*1024, S_OUT: 2048*1024, S_DBG: 256}
        for r in regs:
            self.A(f"s_mov_b32 {s(r+2)}, {sizes[r]:#x}")
            self.A(f"s_mov_b32 {s(r+3)}, 0x20000")

    def wsoff(self):
        off = self.o.get("wsoff", 0) << 20
        if off:
            self.A(f"s_add_u32 {s(S_WS)}, {s(S_WS)}, {off:#x}\ns_addc_u32 {s(S_WS+1)}, {s(S_WS+1)}, 0")

    def gemv_issue(self, W, late=False):
        A = self.A
        if late:
            A(f"s_and_b32 {s(sT0)}, s2, 7")
        else:
            A(f"s_and_b32 {s(sT0)}, s2, 1")
            A(f"s_lshl2_add_u32 {s(sT0)}, {s(sT0)}, {s(sM)}")
        A("v_and_b32 v13, 3, v0")
        A("v_lshlrev_b32 v13, 2, v13")
        A("v_lshl_add_u32 v13, v8, 4, v13")
        A(f"s_lshl_b32 {s(sT1)}, {s(sT0)}, 7")
        A(f"buffer_load_dword v12, v13, {s(S_C,4)}, {s(sT1)} offen")

    def gemv_issue2(self, W, late=False):
        A = self.A
        A("v_mul_u32_u24 v14, 49152, v8")
        A("v_lshl_add_u32 v14, v9, 4, v14")
        A(f"s_mul_i32 {s(sT0)}, {s(sT0)}, {64*6144}")
        A(f"s_lshr_b32 {s(sT1)}, s2, {3 if late else 1}")
        if late:
            A(f"s_add_u32 {s(sT1)}, {s(sT1)}, 16")
        A(f"s_lshl_b32 {s(sT1)}, {s(sT1)}, 7")
        A(f"s_add_u32 {s(sT0)}, {s(sT0)}, {s(sT1)}")
        for i in range(8):
            A(f"buffer_load_dwordx4 {v(W+4*i,4)}, v14, {s(S_WM,4)}, {s(sT0)} offen")
            if i < 7:
                A(f"s_add_u32 {s(sT0)}, {s(sT0)}, 6144")

    def gemv_compute(self, W, after):
        A = self.A
        A("v_lshlrev_b32 v13, 16, v12")
        A(f"v_and_b32 v14, {v(VMASK)}, v12")
        A("v_mul_f32 v15, 0xbfb8aa3b, v13\nv_mul_f32 v16, 0xbfb8aa3b, v14")
        A("v_exp_f32 v15, v15\nv_exp_f32 v16, v16")
        A(f"s_mov_b32 {s(sT0)}, 0x05040100\ns_mov_b32 {s(sT1)}, 0x07060302")
        A("v_add_f32 v15, 1.0, v15\nv_add_f32 v16, 1.0, v16")
        A("v_rcp_f32 v15, v15\nv_rcp_f32 v16, v16")
        for c in range(8):
            A(f"v_mov_b32 {v(24+c)}, 0")
        A("v_mul_f32 v13, v13, v15\nv_mul_f32 v14, v14, v16")
        A("v_cvt_pk_bf16_f32 v12, v13, v14")
        for q in range(4):
            A(f"v_mov_b32_dpp {v(16+q)}, v12 quad_perm:[{q},{q},{q},{q}] row_mask:0xf bank_mask:0xf")
        for q in range(4):
            if after is not None:
                A(f"s_waitcnt vmcnt({after + 6 - 2*q})")
            for d in range(0, 4, 2):
                for e in range(2):
                    ra, rb_ = W + 8*q + d + e, W + 8*q + 4 + d + e
                    A(f"v_perm_b32 {v(20+2*e)}, {v(rb_)}, {v(ra)}, {s(sT0)}")
                    A(f"v_perm_b32 {v(21+2*e)}, {v(rb_)}, {v(ra)}, {s(sT1)}")
                for e in range(4):
                    A(f"v_dot2c_f32_bf16 {v(24+2*d+e)}, {v(20+e)}, {v(16+q)}")
        for c in range(4):
            A(f"v_permlane32_swap_b32 {v(24+c)}, {v(28+c)}")
        A("v_pk_add_f32 v[24:25], v[24:25], v[28:29]\nv_pk_add_f32 v[26:27], v[26:27], v[30:31]")
        for c in range(2):
            A(f"v_permlane16_swap_b32 {v(24+c)}, {v(26+c)}")
        A("v_pk_add_f32 v[24:25], v[24:25], v[26:27]")
        for c in range(2):
            A(f"v_add_f32_dpp {v(26+c)}, {v(24+c)}, {v(24+c)} row_ror:8 row_mask:0xf bank_mask:0xf")

    def start(self):
        A = self.A
        A("s_cmp_ge_u32 s2, 256")
        A("s_cbranch_scc1 L_end")
        for r, off in ((S_WS, 96), (S_C, 64), (S_WM, 72), (S_X, 0), (S_W, 8), (S_DBG, 88), (S_PHI, 16)):
            A(f"s_load_dwordx2 {s(r,2)}, s[0:1], {off}")
        if self.leak:
            A(f"s_memrealtime {s(sRT,2)}\ns_mov_b32 {s(sTS+2)}, 0")
        if self.diag:
            A(f"s_memrealtime {s(sRT,2)}")
            A(f"{'s_memtime' if self.o.get('cyc', 0) else 's_memrealtime'} {s(sTS,2)}")
            self.names["cyc"] = self.o.get("cyc", 0)
            self.names["C"].append("start"); self.names["H"].append("start")
            self.names["C"].append("-"); self.names["H"].append("-")
        A("v_lshrrev_b32 v2, 6, v0")
        A("v_and_b32 v0, 63, v0")
        A(f"v_readfirstlane_b32 {s(sW)}, v2")
        A(f"s_and_b32 {s(sRB)}, s2, 7")
        A(f"s_lshr_b32 {s(sT0)}, s2, 7")
        A(f"s_lshl1_add_u32 {s(sRB)}, {s(sRB)}, {s(sT0)}")
        A(f"s_bfe_u32 {s(sJ)}, s2, 0x40003")
        A("v_mov_b32 v6, 0")
        A("v_lshrrev_b32 v8, 3, v0")
        A("v_and_b32 v9, 7, v0")
        A("v_lshlrev_b32 v1, 4, v0")
        A(f"v_mov_b32 {v(VMASK)}, 0xffff0000")
        A(f"s_and_b32 {s(sM)}, {s(sW)}, 3")
        A(f"s_lshl_b32 {s(sG)}, {s(sRB)}, 20")
        A(f"s_add_u32 {s(sG)}, {s(sG)}, {WS_G0:#x}")
        A(f"s_getreg_b32 {s(sFAST)}, hwreg(HW_REG_XCC_ID)")
        self.srd_consts([S_WS, S_C, S_WM, S_DBG])
        A(f"s_or_b32 {s(sFAST)}, {s(sFAST)}, 0x80")
        A(f"s_lshl2_add_u32 {s(sT0)}, {s(sW)}, {L_CW}")
        A(f"v_mov_b32 {v(VP)}, {s(sT0)}")
        A(f"ds_write_b32 {v(VP)}, v6")
        A(f"v_and_b32 {v(VQ)}, 3, v0")
        A(f"v_lshlrev_b32 {v(VQ)}, 2, {v(VQ)}")
        A(f"v_add_u32 {v(VQ)}, {L_CW}, {v(VQ)}")
        A(f"s_cmp_ge_u32 {s(sW)}, 4")
        A("s_cbranch_scc1 L_helper")

    PHIT, IDN, ONES, L2 = 112, 116, 120, 118

    def c_start(self):
        A = self.A
        self.srd_consts([S_X])
        A("v_lshlrev_b32 v2, 4, v9")
        A("v_lshl_add_u32 v89, v8, 10, v2")
        A(f"s_lshl4_add_u32 {s(sT2)}, {s(sRB)}, {s(sJ)}")
        A(f"s_lshl_b32 {s(sT2)}, {s(sT2)}, 13")
        A(f"s_lshl_b32 {s(sT3)}, {s(sM)}, 8")
        A(f"s_add_u32 {s(sT2)}, {s(sT2)}, {s(sT3)}")
        A(f"s_lshl_b32 {s(sEX)}, {s(sM)}, 11")
        A(f"s_add_u32 {s(sEX)}, {s(sEX)}, {L_XT}")
        A("s_waitcnt lgkmcnt(0)")
        self.wsoff()
        A(f"buffer_load_dword {v(VTAG)}, v6, {s(S_WS,4)}, 0 offen sc1")
        XL = self.o.get("xlate", 1)
        PH = self.o.get("pre_h", 1)

        def xdma():
            A(f"s_mov_b32 m0, {s(sEX)}")
            A(f"buffer_load_dwordx4 v89, {s(S_X,4)}, {s(sT2)} offen lds")
            A(f"s_add_u32 m0, {s(sEX)}, {1024-128}")
            A(f"buffer_load_dwordx4 v89, {s(S_X,4)}, {s(sT2)} offen offset:128 lds")
        A("s_cmp_ge_u32 s2, 32")
        A("s_cbranch_scc1 L_p0a_skip")
        self.gemv_issue(32)
        self.gemv_issue2(32)
        A.label("L_p0a_skip")
        if not XL:
            xdma()
        self.bar()
        A(f"s_load_dwordx2 {s(S_OUT,2)}, s[0:1], 80")
        A("v_lshrrev_b32 v10, 4, v0")
        A("v_and_b32 v11, 15, v0")
        self.srd_consts([S_OUT])
        A(f"v_lshl_add_u32 v90, v9, 7, {s(sEX)}")
        A("v_lshl_add_u32 v90, v8, 4, v90")
        A("v_lshlrev_b32 v2, 2, v10")
        A("v_sub_u32 v2, v11, v2")
        A("v_cmp_gt_u32 vcc, 4, v2")
        A("v_mov_b32 v20, 0x3f80")
        A("v_mov_b32 v21, 0")
        A("v_cndmask_b32 v20, 0, v20, vcc")
        A("v_lshlrev_b32 v2, 4, v2")
        A(f"v_lshlrev_b64 {v(self.IDN,2)}, v2, v[20:21]")
        for i in range(4):
            A(f"v_mov_b32 {v(self.ONES+i)}, 0x3f803f80")
        A(f"v_mov_b32 {v(self.L2)}, 0x3fb8aa3b")
        A(f"v_mov_b32 {v(self.L2+1)}, 0x3fb8aa3b")
        A("v_lshrrev_b32 v2, 2, v11")
        A("v_lshl_add_u32 v2, v10, 3, v2")
        A("v_lshlrev_b32 v2, 6, v2")
        A("v_and_b32 v3, 3, v0")
        A("v_lshl_add_u32 v2, v3, 3, v2")
        A("v_and_b32 v3, 1, v10")
        A("v_lshl_add_u32 v124, v3, 5, v2")
        A("v_xor_b32 v125, 32, v124")
        A("v_lshlrev_b32 v5, 2, v11")
        A("v_lshlrev_b32 v91, 5, v9")
        A("v_lshl_add_u32 v91, v10, 3, v91")
        A("v_lshlrev_b32 v92, 1, v91")
        A(f"s_add_u32 {s(sT0)}, {s(sT3)}, {L_SCR}")
        A(f"v_add_u32 v91, {s(sT0)}, v91")
        A("v_lshlrev_b32 v11, 4, v9")
        A(f"v_add_u32 v11, {L_STX}, v11")
        A("v_lshrrev_b32 v10, 5, v0")
        A("v_lshl_add_u32 v10, v10, 7, v11")
        A(f"s_lshl_b32 {s(sT0)}, {s(sM)}, 2")
        A(f"v_add_u32 v10, {s(sT0)}, v10")
        A(f"s_lshl_b32 {s(sA0)}, {s(sM)}, 10")
        A(f"s_add_u32 {s(sA7)}, {s(sA0)}, {L_TAB}")
        A(f"s_add_u32 {s(sA0)}, {s(sA0)}, {WS_MODU:#x}")
        A(f"s_add_u32 {s(sA8)}, {s(sA0)}, 4096")
        A(f"s_add_u32 {s(sA9)}, {s(sA0)}, 8192")
        A(f"s_add_u32 {s(sA10)}, {s(sA0)}, 12288")
        A(f"s_lshl_b32 {s(sA1)}, {s(sRB)}, 4")
        A(f"s_lshr_b32 {s(sA2)}, {s(sJ)}, 2")
        A(f"s_bfe_u32 {s(sT0)}, {s(sJ)}, 0x10001")
        A(f"s_lshl3_add_u32 {s(sA2)}, {s(sA2)}, {s(sT0)}")
        A(f"s_lshl2_add_u32 {s(sA2)}, {s(sA2)}, {s(sM)}")
        A(f"s_lshl_b32 {s(sA2)}, {s(sA2)}, 12")
        A(f"s_and_b32 {s(sT0)}, {s(sJ)}, 1")
        A(f"s_lshl_b32 {s(sT0)}, {s(sT0)}, 7")
        A(f"s_add_u32 {s(sA2)}, {s(sA2)}, {s(sT0)}")
        A(f"s_add_u32 {s(sA2)}, {s(sA2)}, {s(sG)}")
        A(f"s_lshr_b32 {s(sT0)}, {s(sJ)}, 2")
        A(f"s_lshl_b32 {s(sT0)}, {s(sT0)}, 7")
        A(f"s_and_b32 {s(sT1)}, {s(sJ)}, 3")
        A(f"s_lshl2_add_u32 {s(sT1)}, {s(sT1)}, {s(sM)}")
        A(f"s_lshl2_add_u32 {s(sT0)}, {s(sT1)}, {s(sT0)}")
        A(f"s_add_u32 {s(sA4)}, {s(sG)}, {G_FLH:#x}")
        A(f"s_add_u32 {s(sA3)}, {s(sA4)}, {s(sT0)}")
        A(f"s_lshl_b32 {s(sT0)}, {s(sM)}, 7")
        A(f"s_add_u32 {s(sA4)}, {s(sA4)}, {s(sT0)}")
        A(f"s_lshl_b32 {s(sA5)}, {s(sM)}, 17")
        A(f"s_add_u32 {s(sA5)}, {s(sA5)}, {s(sG)}")
        A(f"s_add_u32 {s(sA6)}, {s(sA5)}, 16384")
        A(f"s_lshl2_add_u32 {s(sA11)}, {s(sJ)}, {s(sM)}")
        A(f"s_lshl4_add_u32 {s(sA11)}, {s(sA11)}, {s(sRB)}")
        A(f"s_lshl_b32 {s(sA11)}, {s(sA11)}, 10")
        A(f"s_add_u32 {s(sA11)}, {s(sA11)}, {WS_KVP:#x}")
        A(f"s_mul_i32 {s(sFAST)}, {s(sFAST)}, 0x01010101")
        A("v_mov_b32 v72, 0\nv_mov_b32 v73, 0")
        A("v_lshlrev_b32 v88, 8, v0")
        nx = 0 if XL else 2
        A("s_cmp_ge_u32 s2, 32")
        A("s_cbranch_scc1 L_w1")
        A(f"s_waitcnt vmcnt({8 + nx})")
        A("s_branch L_w2")
        A.label("L_w1")
        A(f"s_waitcnt vmcnt({nx})")
        A.label("L_w2")
        if XL:
            xdma()
        if PH:
            A("s_mov_b64 exec, 0xffff")
            A(f"buffer_load_dword v88, v88, {s(S_WS,4)}, {s(sA2)} offen")
            A("s_mov_b64 exec, -1")
        A(f"v_add_u32 {v(VTAG)}, 1, {v(VTAG)}")
        A(f"v_readfirstlane_b32 {s(sTAG)}, {v(VTAG)}")
        self.ts("tag")
        A("s_cmp_ge_u32 s2, 32")
        A("s_cbranch_scc1 L_p0c_skip")
        self.gemv_compute(32, 2 + PH)
        A("ds_write_b64 v91, v[26:27]")
        self.signal(VP, 2, CV_G)
        A(f"s_cmp_lg_u32 {s(sW)}, 0")
        A("s_cbranch_scc1 L_p0c_skip")
        A("v_lshlrev_b32 v2, 2, v0")
        A(f"v_add_u32 v3, {L_SCR}, v2")
        A(f"s_lshr_b32 {s(sT0)}, s2, 4")
        A(f"s_and_b32 {s(sT1)}, s2, 1")
        A(f"s_lshl1_add_u32 {s(sT0)}, {s(sT0)}, {s(sT1)}")
        A(f"s_bfe_u32 {s(sT1)}, s2, 0x30001")
        A(f"s_lshl3_add_u32 {s(sT0)}, {s(sT0)}, {s(sT1)}")
        A(f"s_lshl_b32 {s(sT0)}, {s(sT0)}, 9")
        A(f"s_add_u32 {s(sT0)}, {s(sT0)}, {WS_MODU:#x}")
        self.lwait(VQ, 2, CV_G, extra=["ds_read2st64_b32 v[12:13], v3 offset0:0 offset1:1", "ds_read2st64_b32 v[14:15], v3 offset0:2 offset1:3"])
        A("v_lshlrev_b32 v2, 3, v0")
        A("s_waitcnt lgkmcnt(0)")
        A("v_pk_add_f32 v[12:13], v[12:13], v[14:15]")
        A("v_add_f32 v12, v12, v13")
        A(f"v_mov_b32 v13, {v(VTAG)}")
        A(f"buffer_store_dwordx2 v[12:13], v2, {s(S_WS,4)}, {s(sT0)} offen sc1")
        self.ts("p0_done")
        A(f"s_waitcnt vmcnt({1 + PH})")
        A("s_branch L_xw")
        A.label("L_p0c_skip")
        A(f"s_waitcnt vmcnt({PH})")
        A.label("L_xw")
        A("ds_read_b128 v[64:67], v90")
        A("ds_read_b128 v[68:71], v90 offset:1024")
        self.ts("x_land")
        A("s_waitcnt lgkmcnt(0)")
        for i in range(8):
            A(f"v_dot2c_f32_bf16 v72, {v(self.ONES)}, {v(64+i)}")
            A(f"v_dot2c_f32_bf16 v73, {v(64+i)}, {v(64+i)}")
        A("v_permlane32_swap_b32 v72, v73")
        A("v_add_f32 v72, v72, v73")
        A("v_mov_b32 v73, v72")
        A("v_permlane16_swap_b32 v72, v73")
        A("v_add_f32 v72, v72, v73")
        A("v_add_f32_dpp v73, v72, v72 row_ror:8 row_mask:0xf bank_mask:0xf")
        A("ds_write_b32 v10, v73")
        self.signal(VP, 2, CV_S)
        self.lwait(VQ, 2, CV_S)
        A("ds_read_b128 v[16:19], v11")
        A("ds_read_b128 v[20:23], v11 offset:128")
        for i in range(8):
            A(f"v_lshlrev_b32 {v(72+2*i)}, 16, {v(64+i)}")
            A(f"v_and_b32 {v(73+2*i)}, {v(VMASK)}, {v(64+i)}")
        A(f"v_lshl_add_u32 v2, v0, 3, {s(sA7)}")
        A(f"v_lshl_add_u32 v3, v8, 5, {s(sA7)}")
        A("v_lshlrev_b32 v93, 8, v8")
        A("v_lshl_add_u32 v93, v9, 4, v93")
        A("s_waitcnt lgkmcnt(0)")
        A("v_pk_add_f32 v[16:17], v[16:17], v[18:19]\nv_pk_add_f32 v[20:21], v[20:21], v[22:23]")
        A("v_add_f32 v16, v16, v17\nv_add_f32 v17, v20, v21")
        A("v_mul_f32 v16, 0x3b000000, v16\nv_mul_f32 v17, 0x3b000000, v17")
        A("v_fma_f32 v17, -v16, v16, v17")
        A("v_max_f32 v17, 0, v17")
        A("v_add_f32 v17, 0x3727c5ac, v17")
        A("v_rsq_f32 v17, v17")
        A("v_mul_f32_e64 v16, -v16, v17")
        for i in range(8):
            A(f"v_pk_fma_f32 {v(72+2*i,2)}, {v(72+2*i,2)}, v[16:17], v[16:17] op_sel:[0,1,0] op_sel_hi:[1,1,0]")
        A("v_mov_b32 v15, 0x80808080")
        A("v_lshlrev_b32 v14, 3, v0")
        A(f"v_add_u32 v14, {L_PHI}, v14")
        if self.o.get("s0late", 1):
            self.lwait(VQ, 13, HV_W, off=16, sleep=1)
        A(f"s_mov_b32 {s(sCNT)}, {SPIN}")
        A("s_branch L_s0f")
        A.label("L_s0")
        A("s_sleep 4")
        A.label("L_s0f")
        for i, sr in enumerate((sA0, sA8, sA9, sA10)):
            A(f"buffer_load_dwordx4 {v(16+4*i,4)}, v1, {s(S_WS,4)}, {s(sr)} offen sc1")
        A(f"buffer_load_dwordx4 v[32:35], v6, {s(S_DBG,4)}, {s(sA1)} offen sc1")
        A(f"s_sub_u32 {s(sCNT)}, {s(sCNT)}, 1")
        A("s_cbranch_scc1 L_s0d")
        A("s_waitcnt vmcnt(0)")
        A("v_bitop3_b32 v36, v32, v33, v34 bitop3:0x80")
        A(f"v_xor_b32 v37, {v(VTAG)}, v17")
        A("v_bitop3_b32 v36, v36, v35, v15 bitop3:0x2a")
        for i in range(1, 8):
            acc = 36 + (i & 1)
            A(f"v_bitop3_b32 {v(acc)}, {v(acc)}, {v(17+2*i)}, {v(VTAG)} bitop3:0xf6")
        A("v_or_b32 v36, v36, v37")
        A("v_cmp_ne_u32 vcc, 0, v36")
        A("s_cbranch_vccnz L_s0")
        A.label("L_s0d")
        A("s_waitcnt vmcnt(0)")
        self.ts("s0_ok")
        A("v_add_f32 v24, v24, v28\nv_add_f32 v26, v26, v30\nv_add_f32 v16, v16, v20\nv_add_f32 v18, v18, v22")
        A("v_cvt_pk_bf16_f32 v24, v24, v26\nv_cvt_pk_bf16_f32 v16, v16, v18")
        A(f"v_and_b32 v25, {v(VMASK)}, v24\nv_lshlrev_b32 v24, 16, v24")
        A(f"v_and_b32 v17, {v(VMASK)}, v16\nv_lshlrev_b32 v16, 16, v16")
        A("v_add_f32 v24, 1.0, v24\nv_add_f32 v25, 1.0, v25")
        A("ds_write_b64 v2, v[16:17]")
        A("v_cvt_pk_bf16_f32 v24, v24, v25")
        A(f"v_and_b32 v25, {v(VMASK)}, v24\nv_lshlrev_b32 v24, 16, v24")
        A("ds_write_b64 v2, v[24:25] offset:512")
        A(f"v_xor_b32 v32, {s(sFAST)}, v32")
        for i in range(1, 4):
            A(f"v_bitop3_b32 v32, v32, {v(32+i)}, {s(sFAST)} bitop3:0xf6")
        for e in range(2):
            for q in range(2):
                A(f"ds_read_b128 {v(16+8*e+4*q,4)}, v3 offset:{e*256 + q*16}")
                A(f"ds_read_b128 {v(40+8*e+4*q,4)}, v3 offset:{512 + e*256 + q*16}")
        A("v_cmp_ne_u32 vcc, 0, v32")
        A("s_cmp_eq_u64 vcc, 0")
        A(f"s_cselect_b32 {s(sFAST)}, {0 if self.force_slow else 1}, 0")
        for q in range(4):
            A(f"s_waitcnt lgkmcnt({6-2*q})")
            for i in range(2):
                r = 4*q + 2*i
                A(f"v_pk_fma_f32 {v(16+r,2)}, {v(72+r,2)}, {v(40+r,2)}, {v(16+r,2)}")
            for i in range(2):
                r = 4*q + 2*i
                A(f"v_cvt_pk_bf16_f32 {v(32+r//2)}, {v(16+r)}, {v(17+r)}")

        def st(sfx):
            A(f"buffer_store_dwordx4 v[32:35], v93, {s(S_WS,4)}, {s(sA2)} offen{sfx}")
            A(f"buffer_store_dwordx4 v[36:39], v93, {s(S_WS,4)}, {s(sA2)} offen offset:2048{sfx}")
        self.store_flag(st, sA3, 6, VTAG, data_sc1=not PH)

    def c_p1(self):
        A = self.A
        PHIT, IDN, ONES, L2 = self.PHIT, self.IDN, self.ONES, self.L2
        if not self.o.get("s0late", 1):
            self.lwait(VQ, 13, HV_W, off=16, sleep=1)
        for h in range(2):
            A(f"ds_read_b64_tr_b16 {v(PHIT+2*h,2)}, v14 offset:{h*512}")
        A("s_waitcnt lgkmcnt(0)")
        LA = self.o.get("la1", 4)

        def ld(u):
            o = [f"buffer_load_dwordx4 {a((u*2+t)*4,4)}, v1, {s(S_WS,4)}, {s(sA5+t)} offen offset:{(u&3)*1024} sc1" for t in range(2)]
            if (u & 3) == 3 and u < 15:
                o += [f"s_add_u32 {s(sA5)}, {s(sA5)}, 4096", f"s_add_u32 {s(sA6)}, {s(sA6)}, 4096"]
            return o

        def rd_b(u):
            p = 64 + (u % 3) * 16
            return [f"ds_read_b64_tr_b16 {v(p + (mi*2+h)*4 + hh*2, 2)}, {v(124+h)} offset:{base + u*2048 + hh*256}"
                    for mi, base in enumerate((L_WK, L_WV)) for h in range(2) for hh in range(2)]
        self.emit(rd_b(0) + rd_b(1))
        self.poll(5, sA4, 10)
        for u in range(LA):
            self.emit(ld(u))
        self.ts("h_flags")
        for u in range(16):
            A(f"s_waitcnt vmcnt({2*(min(15, u+LA-1) - u)}) lgkmcnt({(8 if u < 15 else 0) + (1 if u + LA == 16 else 0)})")
            p = 64 + (u % 3) * 16
            mf = []
            for h in range(2):
                for t in range(2):
                    d = 32 + (h * 2 + t) * 4
                    mf.append(f"v_mfma_f32_16x16x32_bf16 {v(d,4)}, {v(p+h*4,4)}, {a((u*2+t)*4,4)}, {v(d,4) if u else 0}")
            for h in range(2):
                for t in range(2):
                    d = 48 + (h * 2 + t) * 4
                    mf.append(f"v_mfma_f32_16x16x32_bf16 {v(d,4)}, {a((u*2+t)*4,4)}, {v(p+8+h*4,4)}, {v(d,4) if u else 0}")
            self.emit(weave(mf, (ld(u + LA) if u + LA < 16 else []) + (rd_b(u + 2) if u + 2 < 16 else [])))
            if u + LA == 15:
                self.signal(VP, 10, CV_A2)
        A(f"s_mul_i32 {s(sT0)}, {s(sM)}, {KVR_W}")
        A(f"s_add_u32 {s(sT0)}, {s(sT0)}, {L_KVR}")
        A(f"v_add_u32 v2, {s(sT0)}, v1")
        A("v_and_b32 v3, 48, v0")
        A(f"v_add_u32 v3, {s(sT0)}, v3")
        self.ts("kv_gemm")
        for i in range(8):
            A(f"v_cvt_pk_bf16_f32 {v(8+i)}, {v(32+2*i)}, {v(33+2*i)}")
        for h in range(2):
            for t in range(2):
                A(f"v_mfma_f32_16x16x16_bf16 {v(64+8*h+4*t,4)}, {v(PHIT+2*h,2)}, {v(8+4*h+2*t,2)}, 0")
        for i in range(8):
            A(f"v_cvt_pk_bf16_f32 {v(48+i)}, {v(48+2*i)}, {v(49+2*i)}")
        self.emit(zip_streams(*[self.softmax2(64+8*h, 80+8*h, 96+8*h, 16+8*h, 32+8*h, L2) for h in range(2)]))
        for h in range(2):
            for i, p in enumerate((0, 4, 2, 6)):
                A(f"v_mfma_f32_16x16x16_bf16 {v(64+16*h+4*i,4)}, {v(32+8*h+p,2)}, {v(IDN,2)}, 0")
        for i in range(16):
            A(f"v_cvt_pk_bf16_f32 {v(96+i)}, {v(64+2*i)}, {v(65+2*i)}")
        for h in range(2):
            for sg in range(2):
                A(f"v_mfma_f32_16x16x32_bf16 {v(16+8*h+4*sg,4)}, {v(96+8*h+4*sg,4)}, {v(48+4*h,4)}, 0")
        for h in range(2):
            for sg in range(2):
                A(f"v_mfma_f32_16x16x32_bf16 {v(32+8*h+4*sg,4)}, {v(96+8*h+4*sg,4)}, {v(ONES,4)}, 0")
        for i in range(4):
            A(f"ds_write_b128 v2, {v(16+4*i,4)} offset:{i*1024}")
        for i in range(4):
            A(f"ds_write_b128 v3, {v(32+4*i,4)} offset:{4096 + i*64}")
        self.signal(VP, 8, CV_KV)
        A(f"s_lshl_b32 {s(sT0)}, {s(sM)}, 10")
        A(f"s_add_u32 {s(sT0)}, {s(sT0)}, {L_KVR}")
        A(f"v_add_u32 v10, {s(sT0)}, v1")
        A("v_and_b32 v11, 3, v0")
        A("v_and_b32 v9, 48, v0")
        A("v_lshl_add_u32 v11, v11, 2, v9")
        A(f"s_lshl_b32 {s(sT0)}, {s(sM)}, 6")
        A(f"s_add_u32 {s(sT0)}, {s(sT0)}, {L_KVR + 4096}")
        A(f"v_add_u32 v11, {s(sT0)}, v11")
        self.lwait(VQ, 9, CV_KV, extra=[f"ds_read_b128 {v(64+4*i,4)}, v10 offset:{i*KVR_W}" for i in range(4)]
                   + [f"ds_read_b32 {v(80+i)}, v11 offset:{i*KVR_W}" for i in range(4)])
        A(f"v_add_u32 v124, {L_WQ}, v124")
        A(f"v_add_u32 v125, {L_WQ}, v125")
        A(f"v_mov_b32 v15, {v(VTAG)}")
        A("s_waitcnt lgkmcnt(4)")
        for i in range(2):
            A(f"v_pk_add_f32 {v(64+2*i,2)}, {v(64+2*i,2)}, {v(68+2*i,2)}")
            A(f"v_pk_add_f32 {v(72+2*i,2)}, {v(72+2*i,2)}, {v(76+2*i,2)}")
        for i in range(2):
            A(f"v_pk_add_f32 {v(64+2*i,2)}, {v(64+2*i,2)}, {v(72+2*i,2)}")
        A("s_waitcnt lgkmcnt(0)")
        A("v_pk_add_f32 v[80:81], v[80:81], v[82:83]")
        A("v_cvt_pk_bf16_f32 v12, v64, v65\nv_cvt_pk_bf16_f32 v13, v66, v67")
        A("v_add_f32 v14, v80, v81")
        A(f"buffer_store_dwordx4 v[12:15], v1, {s(S_WS,4)}, {s(sA11)} offen sc1")
        self.ts("kv_pub")
        self.c_addr_setup()
        self.lwait(VQ, 9, HV_Q, off=16, sleep=1)

        def rd_q(u):
            p = 64 + (u & 3) * 8
            return [f"ds_read_b64_tr_b16 {v(p + h*4 + hh*2, 2)}, {v(124+h)} offset:{u*2048 + hh*256}" for h in range(2) for hh in range(2)]
        self.emit(rd_q(0) + rd_q(1) + rd_q(2))
        for u in range(16):
            A(f"s_waitcnt lgkmcnt({min(8, 4*(15-u))})")
            p = 64 + (u & 3) * 8
            mf = []
            for t in range(2):
                for h in range(2):
                    d = 32 + (t * 2 + h) * 4
                    mf.append(f"v_mfma_f32_16x16x32_bf16 {v(d,4)}, {v(p+h*4,4)}, {a((u*2+t)*4,4)}, {v(d,4) if u else 0}")
            self.emit(weave(mf, rd_q(u + 3) if u + 3 < 16 else []))
        for i in range(8):
            A(f"v_cvt_pk_bf16_f32 {v(8+i)}, {v(32+2*i)}, {v(33+2*i)}")
        for t in range(2):
            for h in range(2):
                A(f"v_mfma_f32_16x16x16_bf16 {v(64+8*t+4*h,4)}, {v(PHIT+2*h,2)}, {v(8+4*t+2*h,2)}, 0")
        self.ts("q_gemm")
        A(f"s_mov_b32 {s(sCNT)}, {SPIN}")
        A.label("L_h1p")
        A(f"buffer_load_dwordx4 v[8:11], v48, {s(S_WS,4)}, {s(sB0)} offen sc1")
        A(f"s_sub_u32 {s(sCNT)}, {s(sCNT)}, 1")
        A("s_cbranch_scc1 L_h1d")
        A("s_waitcnt vmcnt(0)")
        A(f"v_cmp_ne_u32 vcc, {s(sTAG)}, v11")
        A("s_cbranch_vccnz L_h1p")
        A.label("L_h1d")
        A("s_waitcnt vmcnt(0)")
        self.ts("hop1")
        A(f"v_lshlrev_b32 v12, 16, v8\nv_lshlrev_b32 v14, 16, v9\nv_and_b32 v13, {v(VMASK)}, v8\nv_and_b32 v15, {v(VMASK)}, v9")
        zs = ["v_mov_b32 v16, v10", "v_permlane32_swap_b32 v10, v16", "v_add_f32 v10, v10, v16", "v_mov_b32 v16, v10",
              "v_permlane16_swap_b32 v10, v16", "v_add_f32 v10, v10, v16",
              "v_add_f32_dpp v16, v10, v10 row_ror:4 row_mask:0xf bank_mask:0xf", "v_add_f32_dpp v10, v16, v16 row_ror:8 row_mask:0xf bank_mask:0xf",
              "v_mov_b32_dpp v16, v10 quad_perm:[0,2,0,2] row_mask:0xf bank_mask:0xf", "v_mov_b32_dpp v17, v10 quad_perm:[1,3,1,3] row_mask:0xf bank_mask:0xf",
              "v_cvt_pk_bf16_f32 v10, v16, v17"]
        ks = (self.red4("v_add_f32", 12, 14, 13, 15)
              + ["v_add_f32_dpp v13, v12, v12 row_ror:4 row_mask:0xf bank_mask:0xf", "v_add_f32_dpp v12, v13, v13 row_ror:8 row_mask:0xf bank_mask:0xf"]
              + self.bcast4(12, 14, 13, 15) + ["v_cvt_pk_bf16_f32 v8, v12, v13", "v_cvt_pk_bf16_f32 v9, v14, v15"])
        self.emit(zip_streams(ks, zs))
        A("s_mov_b64 exec, 15")
        A(f"buffer_store_dwordx4 v[8:11], v1, {s(S_WS,4)}, {s(sB1)} offen sc1")
        A("s_mov_b64 exec, -1")
        self.signal(VP, 18, CV_H1)
        self.emit(zip_streams(*[self.softmax2(64+8*t, 80+8*t, 96+8*t, 16+8*t, 32+8*t, L2) for t in range(2)]))
        A(f"s_mov_b32 {s(sCNT)}, {SPIN}")
        A("s_branch L_h2f")
        A.label("L_h2p")
        A(f"s_sleep {self.o.get('h2sleep', 2)}")
        A.label("L_h2f")
        for i in range(4):
            A(f"buffer_load_dwordx4 {v(16+4*i,4)}, v1, {s(S_WS,4)}, {s(sB2)} offen offset:{i*1024} sc1")
        A(f"s_sub_u32 {s(sCNT)}, {s(sCNT)}, 1")
        A("s_cbranch_scc1 L_h2d")
        A("s_waitcnt vmcnt(0)")
        A(f"v_xor_b32 v12, {v(VTAG)}, v19")
        for i in range(1, 4):
            A(f"v_bitop3_b32 v12, v12, {v(19+4*i)}, {v(VTAG)} bitop3:0xf6")
        A("v_cmp_ne_u32 vcc, 0, v12")
        A("s_cbranch_vccnz L_h2p")
        A.label("L_h2d")
        A("s_waitcnt vmcnt(0)")
        self.ts("kvf")
        self.signal(VP, 12, CV_O)
        for i in range(4):
            for e in range(2):
                A(f"v_mov_b32_dpp {v(48+2*i+e)}, {v(18+4*i)} quad_perm:[{e},{e},{e},{e}] row_mask:0xf bank_mask:0xf")
        for h in range(2):
            A(f"v_mov_b32 {v(18+8*h)}, {v(20+8*h)}\nv_mov_b32 {v(19+8*h)}, {v(21+8*h)}")
        for t in range(2):
            for h in range(2):
                A(f"v_mfma_f32_16x16x32_bf16 {v(80+8*t+4*h,4)}, {v(48+4*h,4)}, {v(32+8*t+4*h,4)}, 0")
        for t in range(2):
            for h in range(2):
                A(f"v_mfma_f32_16x16x32_bf16 {v(64+8*t+4*h,4)}, {v(16+8*h,4)}, {v(32+8*t+4*h,4)}, 0")
        for i in range(4):
            A(f"v_add_f32 {v(80+4*i)}, 0x358637bd, {v(80+4*i)}")
        for i in range(4):
            A(f"v_rcp_f32 {v(80+4*i)}, {v(80+4*i)}")
        for i in range(4):
            for h in range(2):
                A(f"v_pk_mul_f32 {v(64+4*i+2*h,2)}, {v(64+4*i+2*h,2)}, {v(80+4*i,2)} op_sel:[0,0] op_sel_hi:[1,0]")
        for i in range(8):
            A(f"v_cvt_pk_bf16_f32 {v(16+i)}, {v(64+2*i)}, {v(65+2*i)}")

        def st(sfx):
            A(f"buffer_store_dwordx4 v[16:19], v1, {s(S_WS,4)}, {s(sA0)} offen{sfx}")
            A(f"buffer_store_dwordx4 v[20:23], v1, {s(S_WS,4)}, {s(sA1)} offen{sfx}")
        self.store_flag(st, sA2, 6, VTAG, data_sc1=bool(self.o.get('o_sc1', 0)))

    def c_addr_setup(self):
        A = self.A
        A(f"s_lshl2_add_u32 {s(sT0)}, {s(sJ)}, {s(sM)}")
        A(f"s_lshl_b32 {s(sT1)}, {s(sRB)}, 6")
        A(f"s_lshl_b32 {s(sB0)}, {s(sT0)}, 14")
        A(f"s_add_u32 {s(sB0)}, {s(sB0)}, {s(sT1)}")
        A(f"s_add_u32 {s(sB0)}, {s(sB0)}, {WS_KVP:#x}")
        A(f"s_lshl_b32 {s(sB1)}, {s(sT0)}, 10")
        A(f"s_add_u32 {s(sB1)}, {s(sB1)}, {s(sT1)}")
        A(f"s_add_u32 {s(sB1)}, {s(sB1)}, {WS_KV2:#x}")
        A(f"s_lshl_b32 {s(sB2)}, {s(sJ)}, 12")
        A(f"s_add_u32 {s(sB2)}, {s(sB2)}, {WS_KV2:#x}")
        A("v_lshrrev_b32 v48, 2, v0")
        A("v_lshlrev_b32 v48, 10, v48")
        A("v_and_b32 v49, 3, v0")
        A("v_lshl_add_u32 v48, v49, 4, v48")
        A(f"s_lshl_b32 {s(sT0)}, {s(sM)}, 7")
        A(f"s_add_u32 {s(sT1)}, {s(sT0)}, {s(sJ)}")
        A(f"s_lshl_b32 {s(sA0)}, {s(sT1)}, 10")
        A(f"s_add_u32 {s(sA0)}, {s(sA0)}, {s(sG)}")
        A(f"s_add_u32 {s(sA0)}, {s(sA0)}, {G_O:#x}")
        A(f"s_add_u32 {s(sA1)}, {s(sA0)}, 16384")
        A(f"s_add_u32 {s(sT0)}, {s(sT0)}, {s(sG)}")
        A(f"s_add_u32 {s(sA9)}, {s(sT0)}, {G_FL2:#x}")
        A(f"s_lshl2_add_u32 {s(sT0)}, {s(sJ)}, {s(sT0)}")
        A(f"s_add_u32 {s(sA2)}, {s(sT0)}, {G_FLO:#x}")
        A(f"s_add_u32 {s(sA10)}, {s(sT0)}, {G_FL3:#x}")
        A(f"s_lshr_b32 {s(sW)}, {s(sM)}, 1")
        A(f"s_lshr_b32 {s(sT1)}, {s(sJ)}, 3")
        A(f"s_and_b32 {s(sT0)}, {s(sM)}, 1")
        A(f"s_lshl1_add_u32 {s(sT1)}, {s(sT1)}, {s(sT0)}")
        A(f"s_and_b32 {s(sT2)}, {s(sJ)}, 7")
        A(f"s_lshl1_add_u32 {s(sT3)}, {s(sT2)}, {s(sW)}")
        A(f"s_lshl_b32 {s(sT0)}, {s(sT1)}, 7")
        A(f"s_add_u32 {s(sT0)}, {s(sT0)}, {s(sG)}")
        A(f"s_add_u32 {s(sA3)}, {s(sT0)}, {G_FLO:#x}")
        A(f"s_add_u32 {s(sA11)}, {s(sT0)}, {G_FL3:#x}")
        A(f"s_lshl2_add_u32 {s(sT0)}, {s(sT3)}, {s(sT0)}")
        A(f"s_add_u32 {s(sA8)}, {s(sT0)}, {G_FL2:#x}")
        A(f"s_lshl_b32 {s(sT0)}, {s(sT1)}, 12")
        A(f"s_add_u32 {s(sT0)}, {s(sT0)}, {s(sG)}")
        A(f"s_add_u32 {s(sA6)}, {s(sT0)}, {G_ST:#x}")
        A(f"s_lshl_b32 {s(sT0)}, {s(sT2)}, 9")
        A(f"s_add_u32 {s(sA7)}, {s(sA6)}, {s(sT0)}")
        A(f"s_lshl2_add_u32 {s(sT0)}, {s(sRB)}, {s(sT1)}")
        A(f"s_lshl_b32 s3, {s(sT0)}, 15")
        A(f"s_lshl_b32 {s(sT0)}, {s(sT3)}, 6")
        A(f"s_add_u32 s3, s3, {s(sT0)}")
        A(f"s_lshl_b32 {s(sEX)}, {s(sT1)}, 17")
        A(f"s_add_u32 {s(sEX)}, {s(sEX)}, {s(sG)}")
        A(f"s_lshl_b32 {s(sT0)}, {s(sW)}, 9")
        A(f"s_add_u32 {s(sA4)}, {s(sEX)}, {s(sT0)}")
        A(f"s_add_u32 {s(sA4)}, {s(sA4)}, {G_O:#x}")
        A(f"s_lshl_b32 {s(sT0)}, {s(sT3)}, 11")
        A(f"s_add_u32 {s(sA5)}, {s(sEX)}, {s(sT0)}")
        self.rot_setup()
        self.rm_voff(123)
        A(f"buffer_load_dwordx4 v[56:59], v123, {s(S_X,4)}, s3 offen")
        A(f"buffer_load_dwordx4 v[60:63], v123, {s(S_X,4)}, s3 offen offset:32")
        A("v_bfe_u32 v3, v0, 4, 1")
        A("v_lshlrev_b32 v122, 14, v3")
        A("v_lshl_add_u32 v122, v2, 8, v122")
        A("v_and_b32 v3, 15, v0")
        A("v_lshl_add_u32 v122, v3, 4, v122")
        self.slab_bases(120, 10)

    def rm_voff(self, d):
        A = self.A
        A(f"v_and_b32 {v(d)}, 31, v0")
        A(f"v_lshlrev_b32 {v(d)}, 10, {v(d)}")
        A("v_lshrrev_b32 v2, 5, v0")
        A(f"v_lshl_add_u32 {v(d)}, v2, 4, {v(d)}")

    def rot_setup(self):
        A = self.A
        A(f"s_lshr_b32 {s(sT1)}, {s(sRB)}, 1")
        A(f"s_lshl_b32 {s(sRB)}, {s(sT1)}, 1")
        A(f"s_lshl_b32 {s(sEX+1)}, {s(sT1)}, 2")

    def slab_bases(self, dst, khshift):
        A = self.A
        A("v_lshrrev_b32 v2, 5, v0")
        A("v_bfe_u32 v3, v0, 2, 2")
        A("v_lshl_add_u32 v2, v2, 2, v3")
        A(f"s_lshl_b32 {s(sT0)}, {s(sW)}, {khshift}")
        A(f"v_lshl_add_u32 v2, v2, 7, {s(sT0)}")
        A("v_bfe_u32 v3, v0, 3, 1")
        A(f"v_xor_b32 v3, {s(sW)}, v3")
        A("v_lshl_add_u32 v2, v3, 6, v2")
        A("v_bfe_u32 v3, v0, 4, 1")
        A("v_lshl_add_u32 v2, v3, 5, v2")
        A("v_and_b32 v3, 3, v0")
        A(f"v_lshl_add_u32 {v(dst)}, v3, 3, v2")
        A(f"v_xor_b32 {v(dst+1)}, 64, {v(dst)}")

    def g32(self, n, AF, ld, LA, rd, ring=False):
        A = self.A
        q = [("rd", i) for i in range(3) for _ in range(4)]
        for i in range(n):
            last = max(k for k, x in enumerate(q) if x == ("rd", i))
            A(f"s_waitcnt vmcnt({min(n-1, i+LA-1) - i}) lgkmcnt({len(q) - 1 - last})")
            q = q[last + 1:]
            mf = [f"v_mfma_f32_32x32x16_bf16 {v(32+16*T,16)}, {v(self.BR + (i&3)*8 + 4*T,4)}, {AF(i)}, {v(32+16*T,16) if i else 0}" for T in range(2)]
            oth = ld(i + LA) if i + LA < n else []
            if not ring and i + LA == n - 1:
                oth += [f"v_mov_b32 v25, {CV_P2L}", f"ds_write_b32 {v(VP)}, v25"]
                q.append(("sig", i))
            if ring and i % 3 == 2 and 16 + i // 3 <= 18:
                oth += [f"v_mov_b32 v25, {32 + i//3}", f"ds_write_b32 {v(VP)}, v25"]
                q.append(("sig", i))
            if i + 3 < n:
                if ring and (i + 3) % 3 == 0:
                    A(mf[0]); mf = mf[1:]
                    self.check(24, 32 + (i + 3) // 3)
                    oth += [f"ds_read_b32 v24, {v(VQ)} offset:16"]
                    q.append(("probe", i))
                r = rd(i + 3)
                oth += r
                q += [("rd", i + 3)] * 4
            self.emit(weave(mf, oth, per=5))

    def check(self, vtmp, val):
        A = self.A
        Ld = A.uniq("L_ck")
        A(f"v_cmp_gt_u32 vcc, {val}, {v(vtmp)}")
        A(f"s_cbranch_vccz {Ld}")
        self.lwait(VQ, vtmp, val, off=16)
        A.label(Ld)

    def exchange(self, base, val=None):
        A = self.A
        A(f"s_lshl_b32 {s(sT0)}, {s(sM)}, 11")
        A(f"v_add_u32 v2, {s(sT0)}, v1")
        A("v_xor_b32 v3, 0x1000, v2")
        A(f"v_add_u32 v26, {base[1]}, v2")
        A(f"v_add_u32 v27, {base[1]}, v3")
        A(f"v_add_u32 v2, {base[0]}, v2")
        A(f"v_add_u32 v3, {base[0]}, v3")
        for i in range(4):
            A(f"ds_write_b128 {v(2 if i < 2 else 26)}, {v(48+4*i,4)} offset:{(i&1)*1024}")
        rds = [f"ds_read_b128 {v(64+4*i,4)}, {v(3 if i < 2 else 27)} offset:{(i&1)*1024}" for i in range(4)]
        self.signal(VP, 24, val)
        self.lwait(VQ, 24, val, extra=rds)

    def mt_addr(self):
        A = self.A
        A(f"s_lshl_b32 {s(sT0)}, {s(sW)}, 7")
        A(f"s_add_u32 {s(sT0)}, {s(sT0)}, {L_MT}")
        A("v_lshrrev_b32 v123, 5, v0")
        A(f"v_lshl_add_u32 v123, v123, 4, {s(sT0)}")

    def c_p2(self):
        A = self.A
        self.BR = 64

        def rd(u):
            return [f"ds_read_b64_tr_b16 {v(64 + (u&3)*8 + T*4 + hh*2, 2)}, {v(120+T)} offset:{u*4096 + hh*2048}" for T in range(2) for hh in range(2)]

        def ld(i):
            o = [f"buffer_load_dwordx4 {a(4*i,4)}, v122, {s(S_WS,4)}, {s(sA4)} offen offset:{(i&3)*1024} sc1"]
            if (i & 3) == 3 and i < 15:
                o.append(f"s_add_u32 {s(sA4)}, {s(sA4)}, 4096")
            return o
        self.mt_addr()
        self.lwait(VQ, 24, HV_G, off=16)
        for q in range(4):
            A(f"ds_read_b128 {v(96+4*q,4)}, v123 offset:{q*32}")
        for e in range(2):
            A(f"v_permlane32_swap_b32 {v(56+4*e)}, {v(58+4*e)}")
            A(f"v_permlane32_swap_b32 {v(57+4*e)}, {v(59+4*e)}")
        self.emit(rd(0) + rd(1) + rd(2))
        for i in range(8):
            A(f"v_lshlrev_b32 {v(8+2*i)}, 16, {v(56+i)}")
            A(f"v_and_b32 {v(9+2*i)}, {v(VMASK)}, {v(56+i)}")
        LA = self.o.get("la2", 8)
        self.poll(5, sA3, 24)
        for i in range(LA):
            self.emit(ld(i))
        self.ts("o_flags")
        self.g32(16, lambda i: a(4*i, 4), ld, LA, rd)
        self.ts("p2_gemm")
        self.exchange(L_EX2, CV_X2)
        for vec in range(2):
            for q in range(4):
                A(f"ds_read_b128 {v(48+32*vec+4*q,4)}, v123 offset:{(vec+1)*256 + q*32}")
        A("v_mov_b32 v24, 0\nv_mov_b32 v25, 0\nv_mov_b32 v28, 0x3f803f80")
        A(f"v_mov_b32 v26, {v(VTAG)}\nv_mov_b32 v27, {v(VTAG)}")
        A(f"s_and_b32 {s(sT0)}, {s(sM)}, 1")
        A(f"s_lshl_b32 {s(sT0)}, {s(sT0)}, 8")
        A(f"s_add_u32 {s(sT0)}, {s(sT0)}, {L_SX}")
        A(f"v_lshl_add_u32 v29, v0, 2, {s(sT0)}")
        for q in range(4):
            A(f"s_waitcnt lgkmcnt({11-q})")
            for i in range(2*q, 2*q+2):
                A(f"v_pk_add_f32 {v(32+2*i,2)}, {v(32+2*i,2)}, {v(64+2*i,2)}")
            for i in range(2*q, 2*q+2):
                A(f"v_pk_fma_f32 {v(8+2*i,2)}, {v(32+2*i,2)}, {v(96+2*i,2)}, {v(8+2*i,2)}")
        for i in range(8):
            A(f"v_cvt_pk_bf16_f32 {v(112+i)}, {v(8+2*i)}, {v(9+2*i)}")
        for i in range(8):
            A(f"v_dot2c_f32_bf16 v24, v28, {v(112+i)}")
            A(f"v_dot2c_f32_bf16 v25, {v(112+i)}, {v(112+i)}")
        A("v_permlane32_swap_b32 v24, v25")
        A("v_add_f32 v24, v24, v25")
        A(f"s_cmp_eq_u32 {s(sW)}, 0")
        A("s_cbranch_scc1 L_sx0")
        A("ds_write_b32 v29, v24")
        self.signal(VP, 30, CV_SX)
        A("s_branch L_sx1")
        A.label("L_sx0")
        A(f"v_add_u32 v31, 8, {v(VP)}")
        self.lwait(31, 30, CV_SX, extra=["ds_read_b32 v25, v29"])
        A("s_waitcnt lgkmcnt(0)")
        A("v_add_f32 v24, v24, v25")
        A("v_mov_b32 v25, v24")
        A("v_permlane32_swap_b32 v24, v25")
        A("s_mov_b32 exec_hi, 0")
        self.dual(lambda sfx: A(f"buffer_store_dwordx4 v[24:27], v1, {s(S_WS,4)}, {s(sA7)} offen{sfx}"))
        A("s_mov_b64 exec, -1")
        A.label("L_sx1")
        for i in range(8):
            A(f"v_lshlrev_b32 {v(8+2*i)}, 16, {v(112+i)}")
            A(f"v_and_b32 {v(9+2*i)}, {v(VMASK)}, {v(112+i)}")
        A(f"s_lshl_b32 {s(sT0)}, {s(sM)}, 11")
        A(f"s_add_u32 {s(sT0)}, {s(sT0)}, {L_X1}")
        A(f"v_add_u32 v2, {s(sT0)}, v1")
        A("ds_write_b128 v2, v[112:115]")
        A("ds_write_b128 v2, v[116:119] offset:1024")
        A(f"s_mov_b32 {s(sCNT)}, {SPIN}")
        A.label("L_st")
        for i in range(4):
            A(f"buffer_load_dwordx4 {v(32+4*i,4)}, v1, {s(S_WS,4)}, {s(sA6)} offen offset:{i*1024} sc1")
        A(f"s_sub_u32 {s(sCNT)}, {s(sCNT)}, 1")
        A("s_cbranch_scc1 L_std")
        A("s_waitcnt vmcnt(0)")
        A(f"v_xor_b32 v28, {v(VTAG)}, v34")
        for i in range(1, 4):
            A(f"v_bitop3_b32 v28, v28, {v(34+4*i)}, {v(VTAG)} bitop3:0xf6")
        A("v_cmp_ne_u32 vcc, 0, v28")
        A("s_cbranch_vccnz L_st")
        A.label("L_std")
        A("s_waitcnt vmcnt(0) lgkmcnt(0)")
        self.signal(VP, 28, CV_ST)
        A("v_pk_add_f32 v[32:33], v[32:33], v[36:37]\nv_pk_add_f32 v[40:41], v[40:41], v[44:45]")
        A("v_pk_add_f32 v[30:31], v[32:33], v[40:41]")
        A("v_permlane32_swap_b32 v30, v31")
        A("v_add_f32 v30, v30, v31")
        A("v_mul_f32 v30, 0x3b000000, v30")
        A("v_mov_b32 v31, v30")
        A("v_permlane32_swap_b32 v30, v31")
        A("v_fma_f32 v31, -v30, v30, v31")
        A("v_max_f32 v31, 0, v31")
        A("v_add_f32 v31, 0x3727c5ac, v31")
        A("v_rsq_f32 v31, v31")
        A("v_mul_f32_e64 v30, -v30, v31")
        for i in range(8):
            A(f"v_pk_fma_f32 {v(8+2*i,2)}, {v(8+2*i,2)}, v[30:31], v[30:31] op_sel:[0,1,0] op_sel_hi:[1,1,0]")
        for i in range(8):
            A(f"v_pk_fma_f32 {v(8+2*i,2)}, {v(8+2*i,2)}, {v(80+2*i,2)}, {v(48+2*i,2)}")
        for i in range(8):
            A(f"v_cvt_pk_bf16_f32 {v(32+i)}, {v(8+2*i)}, {v(9+2*i)}")

        def st(sfx):
            A(f"buffer_store_dwordx4 v[32:35], v1, {s(S_WS,4)}, {s(sA5)} offen{sfx}")
            A(f"buffer_store_dwordx4 v[36:39], v1, {s(S_WS,4)}, {s(sA5)} offen offset:1024{sfx}")
        self.store_flag(st, sA8, 6, VTAG)
        self.ts("h2_pub")

    def c_p3(self):
        A = self.A
        NE = 1
        A(f"s_lshl_b32 {s(sT1)}, {s(sM)}, 17")
        A(f"s_add_u32 {s(sT1)}, {s(sT1)}, {s(sG)}")
        A(f"v_add_u32 v3, {s(sT1)}, v1")
        A(f"s_lshl_b32 {s(sT0)}, {s(sRB)}, 11")
        A(f"s_mul_i32 {s(sT1)}, {s(sJ)}, 6144")
        A(f"s_add_u32 {s(sT1)}, {s(sT1)}, {G_HH:#x}")
        A(f"s_add_u32 {s(sT2)}, {s(sT1)}, 4096")
        A("v_lshrrev_b32 v2, 5, v0")
        A("v_bfe_u32 v1, v0, 2, 2")
        A("v_lshl_add_u32 v2, v2, 2, v1")
        A("v_mul_u32_u24 v2, 192, v2")
        A("v_bfe_u32 v1, v0, 4, 1")
        A("v_lshl_add_u32 v2, v1, 5, v2")
        A("v_and_b32 v1, 3, v0")
        A("v_lshl_add_u32 v2, v1, 3, v2")
        A(f"v_add_u32 v2, {slot_addr(0)}, v2")
        LA = self.o.get("la3", 6)

        def ld(k):
            A(f"buffer_load_dwordx4 {a(4*k,4)}, v3, {s(S_WS,4)}, {s(sT0)} offen offset:{(k&1)*1024} sc1")
            if k & 1 and k < 31:
                A(f"s_add_u32 {s(sT0)}, {s(sT0)}, 2048")
                A(f"s_and_b32 {s(sT0)}, {s(sT0)}, 0x7fff")
        seq = [(k, T, mt) for k in range(32) for T in range(3) for mt in range(2)]
        cur = {"base": slot_addr(0)}
        NB, NPF = 6, 5
        q = []

        def rd(idx):
            k, T, mt = seq[idx]
            u, st = k >> 1, k & 1
            if idx % 12 == 0 and u >= NE:
                self.check(5, 16 + u)
                if not st8["e"]:
                    self.first_check_before_e = u
            if idx % 12 == 6 and NE <= u + 1 < 16:
                A(f"ds_read_b32 v5, {v(VQ)} offset:16")
                q.append(("probe", u + 1))
            addr = slot_addr(u) + mt * 6144 + st * 3072 + T * 64
            if not (0 <= addr - cur["base"] and addr - cur["base"] + 3072 < 65536):
                nb = slot_addr(u)
                d = nb - cur["base"]
                A(f"v_add_u32 v2, {d}, v2" if d >= 0 else f"v_subrev_u32 v2, {-d}, v2")
                cur["base"] = nb
            o = addr - cur["base"]
            b = 8 + (idx % NB) * 4
            for hh in range(2):
                A(f"ds_read_b64_tr_b16 {v(b+hh*2,2)}, v2 offset:{o + hh*1536}")
                q.append(("rd", idx))
        st8 = {'e': False}
        self.first_check_before_e = 0
        if self.o.get("e_early", 0):
            self.signal(VP, 1, CV_E)
        for i in range(NPF):
            rd(i)
        self.poll(5, sA9, 32)
        for k in range(LA):
            ld(k)
        nld = LA
        RATE = self.o.get("rate3", 1)
        EAT = self.o.get("eat", 0)
        esent = bool(self.o.get("e_early", 0))
        if not esent and nld >= EAT:
            self.signal(VP, 1, CV_E)
            q.append(("sig", -1))
            esent = True
        st8['e'] = esent
        self.ts("h2_flags")
        for idx, (k, T, mt) in enumerate(seq):
            last = max(i for i, x in enumerate(q) if x == ("rd", idx))
            w = f"lgkmcnt({len(q) - 1 - last})"
            del q[:last + 1]
            if T == 0 and mt == 0:
                w = f"vmcnt({nld - 1 - k}) " + w
            A(f"s_waitcnt {w}")
            b = 8 + (idx % NB) * 4
            d = 32 + (mt * 3 + T) * 16
            A(f"v_mfma_f32_32x32x16_bf16 {v(d,16)}, {v(b,4)}, {a(4*k,4)}, {v(d,16) if k else 0}")
            if mt == 0 and T < RATE and nld < 32:
                ld(nld)
                nld += 1
                if not esent and nld >= EAT:
                    self.signal(VP, 1, CV_E)
                    q.append(("sig", -1))
                    esent = True
                    st8['e'] = True
            if idx % 12 == 11 and esent:
                self.signal(VP, 1, 16 + (k >> 1))
                q.append(("sig", k))
            if idx + NPF < len(seq):
                rd(idx + NPF)
        A(f"v_mov_b32 v5, {s(sTAG)}")
        self.ts("p3_gemm")

        def st(sfx):
            for T in range(3):
                g0, u0 = 32 + T * 16, 80 + T * 16
                for hi in range(2):
                    for i in range(8):
                        A(f"v_max_f32 {v(g0+8*hi+i)}, 0, {v(g0+8*hi+i)}")
                    for i in range(4):
                        A(f"v_pk_mul_f32 {v(g0+8*hi+2*i,2)}, {v(g0+8*hi+2*i,2)}, {v(u0+8*hi+2*i,2)}")
                    n = T * 2 + hi
                    o = 8 + n * 4
                    for i in range(4):
                        A(f"v_cvt_pk_bf16_f32 {v(o+i)}, {v(g0+8*hi+2*i)}, {v(g0+8*hi+2*i+1)}")
                    A(f"buffer_store_dwordx4 {v(o,4)}, v3, {s(S_WS,4)}, {s(sT1 if n < 4 else sT2)} offen offset:{(n&3)*1024}{sfx}")
        self.store_flag(st, sA10, 6, 5, data_sc1=bool(self.o.get("hh_sc1", 1)))
        self.ts("hh_pub")

    def c_p4(self):
        A = self.A
        self.BR = 64
        A("v_lshlrev_b32 v1, 4, v0")
        A("v_and_b32 v122, 15, v0")
        A("v_lshlrev_b32 v122, 2, v122")
        self.rm_voff(127)
        self.slab_bases(124, 11)
        A(f"s_lshl_b32 {s(sT0)}, {s(sW)}, 10")
        A(f"s_add_u32 {s(sT0)}, {s(sT0)}, {s(sEX)}")
        A(f"s_add_u32 {s(sT0)}, {s(sT0)}, {G_HH:#x}")
        A(f"v_add_u32 v126, {s(sT0)}, v1")
        A(f"s_lshl_b32 {s(sT3)}, {s(sEX+1)}, 11")
        AF = lambda i: a(4 * (i % 32), 4)
        LA = self.o.get("la4", 8)

        def ld(i):
            o = [f"buffer_load_dwordx4 {AF(i)}, v126, {s(S_WS,4)}, {s(sT3)} offen sc1"]
            if i < 42:
                o += [f"s_add_u32 {s(sT3)}, {s(sT3)}, 2048", f"s_cmp_lg_u32 {s(sT3)}, {43*2048}", f"s_cselect_b32 {s(sT3)}, {s(sT3)}, 0"]
            return o
        cur = {"base": 0}

        def rd(i):
            o = []
            off = wd_addr(i)
            if not (0 <= off - cur["base"] < 61440):
                d = off - cur["base"]
                for r in (124, 125):
                    o.append(f"v_add_u32 {v(r)}, {d}, {v(r)}" if d >= 0 else f"v_subrev_u32 {v(r)}, {-d}, {v(r)}")
                cur["base"] = off
            return o + [f"ds_read_b64_tr_b16 {v(64 + (i&3)*8 + T*4 + hh*2, 2)}, {v(124+T)} offset:{off - cur['base'] + hh*1024}" for T in range(2) for hh in range(2)]
        self.mt_addr()
        A(f"s_lshl_b32 {s(sT0)}, {s(sM)}, 11")
        A(f"s_add_u32 {s(sT0)}, {s(sT0)}, {L_X1}")
        A(f"v_add_u32 v2, {s(sT0)}, v1")
        A("ds_read_b128 v[112:115], v2")
        A("ds_read_b128 v[116:119], v2 offset:1024")
        for q in range(4):
            A(f"ds_read_b128 {v(96+4*q,4)}, v123 offset:{3*256 + q*32}")
        A("v_mov_b32 v3, 0xffff0000")
        A("s_waitcnt lgkmcnt(4)")
        for i in range(8):
            A(f"v_lshlrev_b32 {v(8+2*i)}, 16, {v(112+i)}")
            A(f"v_and_b32 {v(9+2*i)}, v3, {v(112+i)}")
        self.lwait(VQ, 24, 32, off=16)
        self.emit(rd(0) + rd(1) + rd(2))
        self.poll(122, sA11, 25)
        for i in range(LA):
            self.emit(ld(i))
        self.ts("hh_flags")
        self.g32(43, AF, ld, LA, rd, ring=True)
        self.exchange(L_EX4, 60)
        for q in range(4):
            A(f"s_waitcnt lgkmcnt({3-q})")
            for i in range(2*q, 2*q+2):
                A(f"v_pk_add_f32 {v(32+2*i,2)}, {v(32+2*i,2)}, {v(64+2*i,2)}")
            for i in range(2*q, 2*q+2):
                A(f"v_pk_fma_f32 {v(8+2*i,2)}, {v(32+2*i,2)}, {v(96+2*i,2)}, {v(8+2*i,2)}")
        for i in range(8):
            A(f"v_cvt_pk_bf16_f32 {v(24+i)}, {v(8+2*i)}, {v(9+2*i)}")
        for e in range(2):
            A(f"v_permlane32_swap_b32 {v(24+4*e)}, {v(26+4*e)}")
            A(f"v_permlane32_swap_b32 {v(25+4*e)}, {v(27+4*e)}")
        A(f"buffer_store_dwordx4 v[24:27], v127, {s(S_OUT,4)}, s3 offen")
        A(f"buffer_store_dwordx4 v[28:31], v127, {s(S_OUT,4)}, s3 offen offset:32")
        if self.diag or self.leak:
            A("s_waitcnt vmcnt(0)")
        self.ts("end")
        if self.diag:
            A(f"s_mov_b32 {s(sW)}, {s(sM)}")
        A("s_branch L_fin")

    def gu_unit(self):
        A = self.A
        A(f"s_mul_i32 {s(sT0)}, {s(sRB)}, {32*2752}")
        A(f"s_add_u32 {s(sT1)}, {s(sA7)}, {s(sA1)}")
        A(f"s_add_u32 {s(sT0)}, {s(sT0)}, {s(sA0)}")
        fill = [f"s_add_u32 {s(sRB)}, {s(sRB)}, 1", f"s_and_b32 {s(sRB)}, {s(sRB)}, 15", f"s_add_u32 {s(sA7)}, {s(sA7)}, 12288",
                f"s_add_u32 {s(sT0)}, {s(sT0)}, {16*2752}", "s_nop 0", "s_nop 0"]
        for i in range(6):
            A(f"s_add_u32 m0, {s(sT1)}, {i*1024}")
            A(fill[i])
            A(f"buffer_load_dwordx4 {v(48+i%3)}, {s(S_GU,4)}, {s(sT0)} offen lds")
        A(f"s_cmp_lg_u32 {s(sA7)}, {12*12288}")
        A(f"s_cselect_b32 {s(sA7)}, {s(sA7)}, 0")

    def wd_unit(self):
        A = self.A
        A(f"s_add_u32 {s(sT1)}, {s(sA7)}, {s(sA3)}")
        for i in range(3):
            A(f"s_add_u32 m0, {s(sT1)}, {i*4096}")
            A(f"s_add_u32 {s(sT0)}, {s(sA4)}, 32768")
            A(f"buffer_load_dwordx4 v51, {s(S_WD,4)}, {s(sA4)} offen lds")
            A(f"s_add_u32 m0, {s(sT1)}, {i*4096 + 2048}")
            A(f"s_cmp_lg_u32 {s(sT0)}, {43*32768}")
            A(f"buffer_load_dwordx4 v47, {s(S_WD,4)}, {s(sA4)} offen lds")
            A(f"s_cselect_b32 {s(sA4)}, {s(sT0)}, 0")
        A(f"s_add_u32 {s(sA7)}, {s(sA7)}, 12288")
        A(f"s_cmp_lg_u32 {s(sA7)}, {12*12288}")
        A(f"s_cselect_b32 {s(sA7)}, {s(sA7)}, 0")

    def w_dma_rot(self, mats):
        A = self.A
        L, Ld = A.uniq("L_wd"), A.uniq("L_wdd")
        A.label(L)
        A(f"s_sub_u32 {s(sCNT)}, {s(sCNT)}, 1")
        A(f"s_cbranch_scc1 {Ld}")
        A(f"s_mul_i32 {s(sT0)}, {s(sT2)}, {4*49152}")
        A(f"s_lshl_b32 {s(sT1)}, {s(sT2)}, 12")
        A(f"s_add_u32 {s(sT0)}, {s(sT0)}, {s(sA9)}")
        A(f"s_add_u32 {s(sT1)}, {s(sT1)}, {s(sA3)}")
        A(f"s_add_u32 {s(sT2)}, {s(sT2)}, 1")
        for vo, off, lbase in mats:
            A(f"s_add_u32 m0, {s(sT1)}, {lbase - off}")
            A(f"s_and_b32 {s(sT2)}, {s(sT2)}, 7")
            A(f"buffer_load_dwordx4 {v(vo)}, {s(S_W,4)}, {s(sT0)} offen offset:{off} lds")
        A(f"s_branch {L}")
        A.label(Ld)

    def pwave(self):
        A = self.A
        P, X, SL, CN, IX, AD = sA0, sA1, sA2, sA4, sA6, sEX
        A.label("L_pw")
        A(f"s_and_b32 {s(P)}, {s(sM)}, 1")
        A(f"s_and_b32 {s(X)}, s2, 7")
        A("s_waitcnt lgkmcnt(0)")

        def seg(name, srd, count, start, wrap, step, stride, base_code, nld, first_hook=None):
            A(base_code)
            A(start)
            A(f"s_mov_b32 {s(CN)}, {count}")
            A.label(f"L_pw_{name}")
            A(f"s_sub_u32 {s(sT0)}, {s(IX)}, {wrap}")
            A(f"s_cselect_b32 {s(IX)}, {s(IX)}, {s(sT0)}")
            A(f"s_mul_i32 {s(sT0)}, {s(IX)}, {stride}")
            A(f"s_add_u32 {s(sT0)}, {s(sT0)}, {s(sA7)}")
            A(f"s_add_u32 {s(AD)}, {s(srd)}, {s(sT0)}")
            A(f"s_addc_u32 {s(AD+1)}, {s(srd+1)}, 0")
            for i in range(nld):
                A(f"s_load_dword {s(sA8 + (i & 3))}, {s(AD,2)}, {i*64}")
            if first_hook:
                first_hook()
            A(f"s_add_u32 {s(IX)}, {s(IX)}, {step}")
            A(f"s_sub_u32 {s(CN)}, {s(CN)}, 1")
            A(f"s_cmp_lg_u32 {s(CN)}, 0")
            A(f"s_cbranch_scc1 L_pw_{name}")

        def landed():
            A("s_waitcnt vmcnt(0)")
            self.signal(VP, 12, 0x100)
        hook = landed
        for sg in self.o_segs:
            if sg == "q":
                seg("q", S_W, 8, f"s_mov_b32 {s(IX)}, {s(X)}", 8, 1, 3072,
                    f"s_lshl1_add_u32 {s(sA7)}, {s(SL)}, {s(P)}\ns_mul_i32 {s(sA7)}, {s(sA7)}, {8*3072}", 16, hook)
            elif sg == "o":
                seg("o", S_WO, 8, f"s_mov_b32 {s(IX)}, {s(X)}", 8, 1, 1024,
                    f"s_lshl1_add_u32 {s(sA7)}, {s(SL)}, {s(P)}\ns_lshl_b32 {s(sA7)}, {s(sA7)}, 13", 16, hook)
            elif sg[0] == "g":
                u0, u1 = map(int, sg[1:].split("-"))
                A(f"s_cmp_lg_u32 {s(P)}, 0")
                A(f"s_cselect_b64 {s(S_X,2)}, {s(S_WU,2)}, {s(S_WG,2)}")
                seg(f"g{u0}", S_X, u1 - u0, f"s_lshl1_add_u32 {s(IX)}, {s(X)}, {u0}", 16, 1, 32*2752,
                    f"s_mul_i32 {s(sA7)}, {s(SL)}, 2752", 43, hook)
            elif sg[0] == "d":
                n = int(sg[1:])
                seg("d", S_WD, n, f"s_lshl2_add_u32 {s(IX)}, {s(X)}, {s(P)}", 43, 2, 32768,
                    f"s_lshl_b32 {s(sA7)}, {s(SL)}, 10", 16, hook)
            hook = None
            self.ts("p" + sg)
        if hook:
            hook()
        A("s_waitcnt lgkmcnt(0)")
        A("s_branch L_fin")

    def helper(self):
        A = self.A
        A.label("L_helper")
        self.srd_consts([S_W, S_PHI])
        A("v_lshrrev_b32 v12, 2, v0")
        A("v_mul_u32_u24 v12, 3072, v12")
        A("v_lshrrev_b32 v5, 4, v0")
        A("v_and_b32 v5, 2, v5")
        A("v_and_b32 v45, 3, v0")
        A("v_xor_b32 v5, v5, v45")
        A("v_lshl_add_u32 v45, v5, 4, v12")
        A(f"s_lshl_b32 {s(sA3)}, {s(sM)}, 10")
        A(f"s_mul_i32 {s(sA9)}, {s(sM)}, 49152")
        A(f"s_lshl_b32 {s(sT0)}, {s(sJ)}, 6")
        A(f"s_add_u32 {s(sA9)}, {s(sA9)}, {s(sT0)}")
        A(f"s_add_u32 {s(sA9)}, {s(sA9)}, 1024")
        A(f"s_lshr_b32 {s(sT2)}, {s(sRB)}, 1")
        A("s_waitcnt lgkmcnt(0)")
        self.wsoff()
        self.bar()
        A("v_lshlrev_b32 v2, 7, v0")
        A(f"s_cmp_eq_u32 {s(sM)}, 1")
        A("s_cbranch_scc1 L_h1")
        A(f"s_cmp_eq_u32 {s(sM)}, 2")
        A("s_cbranch_scc1 L_h2")
        A(f"s_cmp_eq_u32 {s(sM)}, 3")
        A("s_cbranch_scc1 L_h4")
        A(f"v_mov_b32 v3, {s(sFAST)}")
        A(f"s_lshl4_add_u32 {s(sT0)}, {s(sRB)}, {s(sJ)}")
        A(f"s_mul_i32 {s(sT1)}, s2, 6144")
        A("s_waitcnt lgkmcnt(0)")
        A("s_mov_b64 exec, 1")
        A(f"buffer_store_byte v3, v6, {s(S_DBG,4)}, {s(sT0)} offen sc1")
        A("s_mov_b32 exec_lo, -1\ns_mov_b32 exec_hi, 0xffff")
        if self.o.get("wtouch", 0):
            A(f"buffer_load_dword v10, v2, {s(S_W,4)}, {s(sT1)} offen")
        A("s_mov_b64 exec, -1")
        A("s_branch L_h3")
        A.label("L_h1")
        if self.o.get("cpf", 1):
            A(f"s_getpc_b64 {s(sEX,2)}")
            A.label("L_pc")
            A(f"s_sub_u32 {s(sEX)}, {s(sEX)}, L_pc-{KNAME}")
            A(f"s_subb_u32 {s(sEX+1)}, {s(sEX+1)}, 0")
            if self.o.get("cpf", 1) == 1:
                A(f"s_lshr_b32 {s(sT0)}, s2, 3")
                A(f"s_lshl_b32 {s(sT0)}, {s(sT0)}, 10")
                A(f"v_add_u32 v3, {s(sT0)}, v2")
                A(f"v_min_u32 v3, L_end-{KNAME}, v3")
                A("s_mov_b64 exec, 0xff")
                A(f"global_load_dword v10, v3, {s(sEX,2)}")
                A("s_mov_b64 exec, -1")
        A("s_branch L_h3")
        A.label("L_h2")
        A(f"s_lshl_b32 {s(sT0)}, s2, 8")
        A(f"s_add_u32 {s(sT0)}, {s(sT0)}, {WS_KV2:#x}")
        A(f"v_add_u32 v3, {s(sT0)}, v2")
        A(f"s_lshl_b32 {s(sT0)}, {s(sJ)}, 7")
        A(f"s_add_u32 {s(sT0)}, {s(sT0)}, {s(sG)}")
        A(f"s_add_u32 {s(sT0)}, {s(sT0)}, {G_FL:#x}")
        A(f"v_writelane_b32 v3, {s(sT0)}, 2")
        A(f"s_and_b32 {s(sT0)}, s2, 127")
        A(f"s_lshl_b32 {s(sT0)}, {s(sT0)}, 7")
        A(f"s_add_u32 {s(sT0)}, {s(sT0)}, {WS_MODU:#x}")
        A(f"v_writelane_b32 v3, {s(sT0)}, 3")
        A("s_waitcnt lgkmcnt(0)")
        A("s_mov_b64 exec, 15")
        A(f"buffer_load_dword v10, v3, {s(S_WS,4)}, 0 offen")
        A("s_mov_b64 exec, -1")
        A("s_branch L_h3")
        A.label("L_h4")
        A(f"s_mov_b32 m0, {L_PHI}")
        A(f"s_lshl_b32 {s(sT0)}, {s(sJ)}, 10")
        A(f"buffer_load_dwordx4 v1, {s(S_PHI,4)}, {s(sT0)} offen lds")
        A.label("L_h3")
        A(f"buffer_load_dword {v(VTAG)}, v6, {s(S_WS,4)}, 0 offen sc1")
        NB1 = self.o.get("nb1", 3)
        KV = [(45, 0, L_WK), (45, 1024, L_WV)]
        for r, off in ((S_WO, 24), (S_WG, 40), (S_WU, 48), (S_WD, 56)):
            A(f"s_load_dwordx2 {s(r,2)}, s[0:1], {off}")
        A(f"s_lshr_b32 {s(sA2)}, s2, 3")
        A(f"s_lshl2_add_u32 {s(sT0)}, {s(sA2)}, {s(sM)}")
        A(f"s_mul_i32 {s(sA5)}, {s(sT0)}, {4*3072}")
        A("v_lshrrev_b32 v12, 4, v0")
        A("v_mul_u32_u24 v12, 3072, v12")
        A("v_and_b32 v13, 15, v0")
        A("v_lshl_add_u32 v44, v13, 7, v12")
        if self.o.get("wshare", 1):
            A(f"buffer_load_dword v10, v44, {s(S_W,4)}, {s(sA5)} offen offset:1024")
        if self.o.get("qshare", 0):
            A("s_mov_b32 exec_lo, 0x00ff00ff\ns_mov_b32 exec_hi, 0x00ff00ff")
            A(f"buffer_load_dword v10, v44, {s(S_W,4)}, {s(sA5)} offen")
            A("s_mov_b64 exec, -1")
        A(f"s_cmp_ge_u32 s2, {self.o.get('hold', 32)}")
        A("s_cbranch_scc1 L_nohold")
        A("s_waitcnt lgkmcnt(0)")
        self.lwait(VQ, 12, CV_G, sleep=2)
        A.label("L_nohold")
        self.ts("iss1")
        A(f"s_mov_b32 {s(sCNT)}, 8")
        self.w_dma_rot(KV)
        self.ts("iss2")
        A(f"s_cmp_ge_u32 {s(sM)}, 2")
        A("s_cbranch_scc1 L_pw")
        A(f"v_add_u32 v46, {2*49152}, v45")
        self.srd_consts([S_WO, S_WG, S_WU, S_WD])
        for i in range(3):
            A(f"v_add_u32 v12, {64*i}, v0")
            A("v_mul_u32_u24 v13, 0x5556, v12")
            A("v_lshrrev_b32 v13, 18, v13")
            A(f"v_mul_u32_u24 v13, {2752 - 192}, v13")
            A(f"v_lshl_add_u32 {v(48+i)}, v12, 4, v13")
        A(f"s_mul_i32 {s(sA0)}, {s(sJ)}, 192")
        A(f"s_mul_i32 {s(sA1)}, {s(sM)}, 6144")
        A("v_lshlrev_b32 v51, 10, v8")
        A("v_bfe_u32 v12, v0, 4, 1")
        A("v_lshlrev_b32 v13, 2, v12")
        A("v_xor_b32 v13, v13, v9")
        A("v_lshl_add_u32 v51, v13, 4, v51")
        A(f"s_and_b32 {s(sT3)}, {s(sJ)}, 7")
        A(f"s_lshl_b32 {s(sT1)}, {s(sT3)}, 7")
        A(f"s_lshl_b32 {s(sT0)}, {s(sM)}, 13")
        A(f"s_add_u32 {s(sT0)}, {s(sT0)}, {s(sT1)}")
        A(f"v_add_u32 v51, {s(sT0)}, v51")
        A("v_add_u32 v47, 16384, v51")
        A("v_and_b32 v14, 48, v0")
        A("v_lshl_add_u32 v52, v9, 6, v14")
        A("v_lshrrev_b32 v54, 5, v0")
        A(f"v_lshl_add_u32 v54, v54, 5, {s(sA2)}")
        A("v_mul_u32_u24 v54, 2752, v54")
        A("v_and_b32 v13, 31, v0")
        A("v_lshlrev_b32 v13, 7, v13")
        A("v_min_u32 v13, 2748, v13")
        A("v_add_u32 v54, v54, v13")
        A(f"v_lshl_add_u32 v56, v8, 5, {s(sA2)}")
        A("v_lshlrev_b32 v56, 10, v56")
        A("v_lshl_add_u32 v56, v9, 7, v56")
        A(f"s_lshl3_add_u32 {s(sA8)}, {s(sM)}, {s(sT3)}")
        A(f"s_lshl_b32 {s(sA8)}, {s(sA8)}, 12")
        A(f"s_add_u32 {s(sA8)}, {s(sA8)}, {WS_MODL:#x}")
        A("v_lshlrev_b32 v58, 3, v0")
        A(f"s_lshl_b32 {s(sT0)}, {s(sM)}, 8")
        A(f"s_add_u32 {s(sT0)}, {s(sT0)}, {L_MT}")
        A(f"v_lshl_add_u32 v59, v0, 2, {s(sT0)}")
        A(f"s_lshl_b32 {s(sT0)}, {s(sM)}, 8")
        A(f"s_add_u32 {s(sT0)}, {s(sT0)}, {s(sJ)}")
        A(f"s_lshl_b32 {s(sT0)}, {s(sT0)}, 10")
        A(f"s_add_u32 {s(sT0)}, {s(sT0)}, {G_O:#x}")
        A("v_and_b32 v53, 1, v8")
        A("v_lshlrev_b32 v53, 14, v53")
        A("v_lshrrev_b32 v13, 4, v0")
        A("v_lshl_add_u32 v53, v13, 17, v53")
        A("v_lshl_add_u32 v53, v9, 7, v53")
        A(f"v_add_u32 v53, {s(sT0)}, v53")
        A(f"s_lshl1_add_u32 {s(sT0)}, {s(sJ)}, {s(sM)}")
        A(f"s_lshl_b32 {s(sT0)}, {s(sT0)}, 9")
        A(f"s_add_u32 {s(sT0)}, {s(sT0)}, {G_ST:#x}")
        A(f"v_lshl_add_u32 v55, v9, 7, {s(sT0)}")
        A("v_cmp_gt_u32 vcc, 32, v0")
        A("v_cndmask_b32 v53, v55, v53, vcc")
        A(f"s_lshl_b32 {s(sT0)}, {s(sM)}, 17")
        A(f"s_mul_i32 {s(sT1)}, {s(sJ)}, 6144")
        A(f"s_add_u32 {s(sT0)}, {s(sT0)}, {s(sT1)}")
        A(f"s_add_u32 {s(sT0)}, {s(sT0)}, {G_HH:#x}")
        A(f"v_add_u32 v57, {s(sT0)}, v2")
        self.rot_setup()
        A(f"s_mov_b32 {s(sA6)}, {s(sRB)}")
        A(f"s_lshl2_add_u32 {s(sA11)}, {s(sM)}, {s(sEX+1)}")
        A(f"s_mov_b32 {s(sA10)}, {s(sRB)}")
        A(f"s_lshl_b32 {s(sA4)}, {s(sEX+1)}, 15")
        A(f"s_mov_b32 {s(sA7)}, {slot_addr(0)}")
        A("s_waitcnt lgkmcnt(0)")
        A(f"s_bitcmp1_b32 {s(sM)}, 0")
        A(f"s_cselect_b64 {s(S_GU,2)}, {s(S_WU,2)}, {s(S_WG,2)}")
        A(f"s_mov_b32 {s(S_GU+2)}, {512*2752}")
        A(f"s_sub_u32 {s(sA9)}, {s(sA9)}, 1024")
        A("s_waitcnt vmcnt(0)")
        self.signal(VP, 12, HV_W)
        A(f"v_add_u32 {v(VTAG)}, 1, {v(VTAG)}")
        A(f"v_readfirstlane_b32 {s(sTAG)}, {v(VTAG)}")
        self.ts("w_land")
        CVS = dict(A2=CV_A2, KV=CV_KV, H1=CV_H1, O=CV_O, P2L=CV_P2L, X2=CV_X2, ST=CV_ST, E=CV_E)
        NE = 0
        since_tq = None
        since_li = None

        def masked(mask_lo, mask_hi, ins):
            A(f"s_mov_b32 exec_lo, {mask_lo:#x}\ns_mov_b32 exec_hi, {mask_hi:#x}")
            A(ins)
            A("s_mov_b64 exec, -1")

        def share_g():
            A(f"s_and_b32 {s(sT0)}, {s(sA6)}, 15")
            A(f"s_mul_i32 {s(sT0)}, {s(sT0)}, {32*2752}")
            A(f"s_add_u32 {s(sA6)}, {s(sA6)}, 2")
            masked(0x7fffff, 0x7fffff, f"buffer_load_dword v10, v54, {s(S_GU,4)}, {s(sT0)} offen")

        def share_d():
            A(f"s_sub_u32 {s(sT0)}, {s(sA11)}, 44")
            A(f"s_cselect_b32 {s(sA11)}, {s(sA11)}, {s(sT0)}")
            A(f"s_lshl_b32 {s(sT0)}, {s(sA11)}, 15")
            A(f"s_add_u32 {s(sA11)}, {s(sA11)}, 8")
            masked(0xffffffff, 0, f"buffer_load_dword v10, v56, {s(S_WD,4)}, {s(sT0)} offen")
        for act in self.sched.split():
            n = 0
            if act.startswith("w"):
                self.lwait(VQ, 15, CVS[act[1:]], sleep=2)
            elif act.startswith("@"):
                self.ts(act[1:])
            elif act == "so":
                A(f"s_lshl1_add_u32 {s(sT0)}, {s(sA2)}, {s(sM)}")
                A(f"s_lshl_b32 {s(sT0)}, {s(sT0)}, 13")
                A(f"buffer_load_dword v10, v2, {s(S_WO,4)}, {s(sT0)} offen"); n = 1
            elif act == "sg":
                share_g(); n = 1
            elif act == "sd":
                share_d(); n = 1
            elif act == "pre":
                masked(0xffffffff, 0xf, f"buffer_load_dword v10, v53, {s(S_WS,4)}, {s(sG)} offen"); n = 1
            elif act == "pst":
                masked(0, 0xf, f"buffer_load_dword v10, v53, {s(S_WS,4)}, {s(sG)} offen"); n = 1
            elif act == "phh":
                A(f"s_add_u32 {s(sT0)}, {s(sG)}, {2*RS}")
                masked(0xffffffff, 0xffff, f"buffer_load_dword v10, v57, {s(S_WS,4)}, {s(sG)} offen\nbuffer_load_dword v10, v57, {s(S_WS,4)}, {s(sT0)} offen"); n = 2
            elif act == "li":
                since_li = 0
                A(f"s_cmp_lg_u32 {s(sM)}, 0")
                A("s_cbranch_scc1 L_li")
                self.gemv_issue(64, late=True)
                self.gemv_issue2(64, late=True)
                A.label("L_li")
            elif act == "lc":
                A(f"s_cmp_lg_u32 {s(sM)}, 0")
                A("s_cbranch_scc1 L_lc")
                A(f"s_waitcnt vmcnt({min(since_li, 63)})")
                self.gemv_compute(64, None)
                A(f"s_lshl_b32 {s(sT0)}, s2, 9")
                A(f"s_add_u32 {s(sT0)}, {s(sT0)}, {WS_MODL:#x}")
                A(f"v_mov_b32 v28, v27\nv_mov_b32 v27, {v(VTAG)}\nv_mov_b32 v29, {v(VTAG)}")
                A(f"buffer_store_dwordx4 v[26:29], v52, {s(S_WS,4)}, {s(sT0)} offen sc1")
                A.label("L_lc")
            elif act == "tq":
                A(f"s_mov_b32 {s(sCNT)}, 8")
                self.w_dma_rot([(45, 0, L_WQ), (46, 0, L_WQ + 2048)])
                since_tq = -16
                n = 16
            elif act == "sigQ":
                A(f"s_waitcnt vmcnt({since_tq})")
                self.signal(VP, 15, HV_Q)
            elif act == "to":
                A(f"s_mov_b32 {s(sCNT)}, 16")
                A.label("L_wo")
                A(f"s_lshl_b32 {s(sT1)}, {s(sA10)}, 12")
                A(f"s_lshl_b32 {s(sT0)}, {s(sA10)}, 15")
                A(f"s_add_u32 m0, {s(sT1)}, {s(sA3)}")
                A(f"s_add_u32 {s(sA10)}, {s(sA10)}, 1")
                A(f"buffer_load_dwordx4 v51, {s(S_WO,4)}, {s(sT0)} offen lds")
                A("s_add_u32 m0, m0, 2048")
                A(f"s_and_b32 {s(sA10)}, {s(sA10)}, 15")
                A(f"buffer_load_dwordx4 v47, {s(S_WO,4)}, {s(sT0)} offen lds")
                A(f"s_sub_u32 {s(sCNT)}, {s(sCNT)}, 1")
                A(f"s_cmp_lg_u32 {s(sCNT)}, 0")
                A("s_cbranch_scc1 L_wo")
                n = 32
            elif act == "u":
                self.gu_unit(); NE += 1; n = 6
            elif act == "sigU":
                assert NE <= 10
                A(f"v_mov_b32 v14, {15 + NE}")
                A("s_waitcnt vmcnt(0)")
                A(f"ds_write_b32 {v(VP)}, v14")
            elif act == "v0":
                A("s_waitcnt vmcnt(0)")
            elif act == "mt":
                A(f"s_mov_b32 {s(sCNT)}, {SPIN}")
                A("s_branch L_gat1")
                A.label("L_gat")
                A("s_sleep 8")
                A.label("L_gat1")
                A(f"s_add_u32 {s(sT0)}, {s(sA8)}, 65536")
                for e in range(2):
                    for i in range(8):
                        A(f"buffer_load_dwordx2 {v(64+16*e+2*i,2)}, v58, {s(S_WS,4)}, {s(sT0 if e else sA8)} offen offset:{i*512} sc1")
                A("v_mov_b32 v21, 0")
                A("s_waitcnt vmcnt(0)")
                for i in range(8):
                    for e in range(2):
                        A(f"v_bitop3_b32 v21, v21, {v(65+16*e+2*i)}, {v(VTAG)} bitop3:0xf6")
                        if i:
                            A(f"v_add_f32 {v(64+16*e)}, {v(64+16*e)}, {v(64+16*e+2*i)}")
                A(f"s_sub_u32 {s(sCNT)}, {s(sCNT)}, 1")
                A("s_cbranch_scc1 L_gatd")
                A("v_cmp_ne_u32 vcc, 0, v21")
                A("s_cbranch_vccnz L_gat")
                A.label("L_gatd")
                A(f"s_cmp_eq_u32 {s(sM)}, 0")
                A(f"s_cselect_b32 {s(sT0)}, 1.0, 0")
                A("v_cvt_pk_bf16_f32 v24, v64, v80")
                A(f"v_and_b32 v25, {v(VMASK)}, v24")
                A("v_lshlrev_b32 v24, 16, v24")
                A(f"v_add_f32 v25, {s(sT0)}, v25")
                A("v_cvt_pk_bf16_f32 v25, v25, v25")
                A(f"v_and_b32 v25, {v(VMASK)}, v25")
                A("ds_write2st64_b32 v59, v24, v25 offset0:0 offset1:2")
                assert 1 <= NE <= 4
                A(f"v_mov_b32 v14, {15 + NE}")
                A(f"ds_write_b32 {v(VP)}, v14")
            else:
                raise ValueError(act)
            if since_tq is not None:
                since_tq += n
            if since_li is not None:
                since_li += n
        A("s_cmp_lg_u32 s2, 0")
        A("s_cbranch_scc1 L_ep_skip")
        A(f"buffer_store_dword {v(VTAG)}, v6, {s(S_WS,4)}, 0 offen sc1")
        A.label("L_ep_skip")
        D = self.o.get("d", 3)
        A(f"s_mov_b32 {s(sA8)}, {NE + 4}")
        A(f"v_subrev_u32 v13, {D - 1}, v14")
        for name, unit, end in (("gu", self.gu_unit, 16 + 4), ("wd", self.wd_unit, 31 + 4)):
            A.label(f"L_ring_{name}")
            self.lwait(VQ, 12, s(sA8), sleep=2)
            unit()
            A("v_add_u32 v13, 1, v13")
            A(f"s_add_u32 {s(sA8)}, {s(sA8)}, 1")
            A("v_max_u32 v15, v13, v14")
            A(f"s_waitcnt vmcnt({6*(D-1)})")
            A(f"ds_write_b32 {v(VP)}, v15")
            A(f"s_cmp_lg_u32 {s(sA8)}, {end}")
            A(f"s_cbranch_scc1 L_ring_{name}")
            self.ts(name + "_iss")
        for i in range(D - 1):
            A("v_add_u32 v13, 1, v13")
            A(f"s_waitcnt vmcnt({6*(D-2-i)})")
            A(f"ds_write_b32 {v(VP)}, v13")
        A("s_waitcnt lgkmcnt(0)")
        self.ts("wd_done")
        assert self.first_check_before_e < NE, (self.first_check_before_e, NE)
        A("s_branch L_fin")
        self.role = "P"
        self.names["P"] = list(self.names["H"][:4])
        self.pwave()

    def finish(self):
        A = self.A
        A.label("L_fin")
        if self.leak:
            A(f"s_lshl3_add_u32 {s(sRT)}, {s(sTS+2)}, {s(sRT)}")
            A(f"s_add_u32 {s(sRT)}, {s(sRT)}, 5000")
            A.label("L_leak")
            A(f"s_sleep 2\ns_memrealtime {s(sTP,2)}\ns_waitcnt lgkmcnt(0)\ns_sub_u32 {s(sT0)}, {s(sTP)}, {s(sRT)}\ns_cmp_lt_i32 {s(sT0)}, 0\ns_cbranch_scc1 L_leak")
        if self.diag:
            A("s_waitcnt vmcnt(0) lgkmcnt(0)")
            A(f"s_bitcmp1_b32 0x51, {s(sW)}")
            A("s_cbranch_scc0 L_end")
            A(f"s_lshl_b32 {s(sT0)}, s2, 9")
            A(f"s_lshl_b32 {s(sT1)}, {s(sW)}, 6")
            A(f"s_add_u32 {s(sT0)}, {s(sT0)}, {s(sT1)}")
            A(f"s_add_u32 {s(sT0)}, {s(sT0)}, {WS_TS:#x}")
            A("s_mov_b64 exec, 1")
            A("v_mov_b32 v6, 0")
            A(f"v_mov_b32 v8, {s(sRT)}")
            A(f"buffer_store_dword v8, v6, {s(S_WS,4)}, {s(sT0)} offen offset:124")
            A(f"s_memrealtime {s(sTP,2)}\ns_waitcnt lgkmcnt(0)\nv_mov_b32 v9, {s(sTP)}")
            A(f"buffer_store_dword v9, v6, {s(S_WS,4)}, {s(sT0)} offen offset:116")
            A(f"v_mov_b32 v9, {s(sFAST)}")
            A(f"buffer_store_dword v9, v6, {s(S_WS,4)}, {s(sT0)} offen offset:120")
            for i in range(20):
                A(f"v_mov_b32 {v(10+i)}, {s(sTS+i)}")
                A(f"buffer_store_dword {v(10+i)}, v6, {s(S_WS,4)}, {s(sT0)} offen offset:{4*i}")
            A("s_waitcnt vmcnt(0)")
        A.label("L_end")
        A("s_endpgm")

    def build(self):
        self.start()
        self.role = "C"
        self.c_start()
        self.c_p1()
        self.c_p2()
        self.c_p3()
        self.c_p4()
        self.role = "H"
        self.helper()
        self.finish()
        hdr = open("header.txt").read()
        return (hdr + "; @launch grid=(256,1,1) block=(512,1,1) lds=163840\n"
                + '.amdgcn_target "amdgcn-amd-amdhsa--gfx950"\n.text\n'
                + f".globl {KNAME}\n.p2align 8\n.type {KNAME},@function\n{KNAME}:\n"
                + self.A.text()
                + f"""
.section .rodata,"a"
.p2align 6
.amdhsa_kernel {KNAME}
  .amdhsa_next_free_vgpr 256
  .amdhsa_next_free_sgpr 102
  .amdhsa_accum_offset 128
  .amdhsa_group_segment_fixed_size 0
  .amdhsa_kernarg_size 104
  .amdhsa_user_sgpr_count 2
  .amdhsa_user_sgpr_kernarg_segment_ptr 1
  .amdhsa_system_sgpr_workgroup_id_x 1
.end_amdhsa_kernel
""")


if __name__ == "__main__":
    import argparse, json
    ap = argparse.ArgumentParser()
    ap.add_argument("-o", default="k8.s")
    ap.add_argument("--diag", action="store_true")
    ap.add_argument("--slow", action="store_true")
    ap.add_argument("--opt", default="")
    ap.add_argument("--leak", default=None)
    args = ap.parse_args()
    o, _, sched = args.opt.partition("|")
    opts = {kv.split("=")[0]: int(kv.split("=")[1]) for kv in o.split(",") if kv}
    g = Gen(diag=args.diag, force_slow=args.slow, opts=opts, sched=sched or None, leak=args.leak)
    t = g.build()
    open(args.o, "w").write(t)
    if args.diag:
        json.dump(g.names, open(args.o + ".ts", "w"))
    print("written", args.o, len(t.splitlines()), "lines")
```

```python
import sys
sys.path.insert(0, "gen")
from asmlib import *

KNAME = "adaLN_cond__linear_kernel_hedgehog__glu_gated_reglu__prompt_kernel"

WS_MODU = 0x4000
WS_MODL = 0x10000
WS_KV2 = 0x30000
WS_KVP = 0x40000
WS_G0 = 0x200000
RS = 0x20000
G_H, G_O, G_H2, G_HH = 0x0, 0x8000, 0x0, 0x8000
G_FL = 0x80000
G_FLH, G_FLO, G_FL2, G_FL3 = G_FL, G_FL + 512, G_FL + 1024, G_FL + 1536
G_XCC = 0x80800
G_ST = 0x81000
WS_TS = 0x1400000
L_WK, L_WV, L_WQ = 0, 32768, 65536
L_KVR, L_X1, L_KVF, L_SCR, L_STX, L_MT = 135168, 151552, 155648, 157824, 159872, 162816
L_TAB = 107520
KVR_W = 4352
L_CW, L_HW = 160384, 160400
L_XT, L_PHI = 98304, 106496
CV_G, CV_S, CV_A2, CV_KV, CV_H1, CV_O, CV_P2L, CV_X2, CV_SX, CV_ST, CV_E = 1, 2, 3, 4, 5, 6, 7, 8, 9, 10, 15
HV_I, HV_W, HV_Q, HV_G = 1, 2, 3, 16
sB0, sB1, sB2 = 16, 17, 18
L_SX = 160512
L_EX2 = (81920, 90112)
L_EX4 = (L_X1, 28672)


def slot_addr(u):
    return ((u + 8) % 12) * 12288


def wd_addr(i):
    return (i % 36) * 4096


S_X, S_W, S_WS, S_WM, S_C, S_PHI, S_WO, S_WG, S_WU, S_WD, S_OUT, S_GU = 4, 8, 12, 16, 20, 24, 28, 32, 36, 40, 44, 48
S_DBG = 48
sW, sM, sRB, sJ, sTAG, sG, sFAST = 52, 53, 54, 55, 56, 57, 58
sT0, sT1, sT2, sT3, sCNT = 59, 60, 61, 62, 63
sEX = 64
sA0, sA1, sA2, sA3, sA4, sA5, sA6, sA7, sA8, sA9 = range(66, 76)
sA10, sA11 = 76, 77
sTP = 78
sRT = 80
sTS = 82
SPIN = 0x40000
VMASK, VTAG = 126, 127
VP, VQ = 7, 4


def zip_streams(*streams):
    out = []
    n = max(len(x) for x in streams)
    for i in range(n):
        for x in streams:
            if i < len(x):
                out.append(x[i])
    return out


def weave(mfmas, others, per=2):
    out, o = [], list(others)
    n = len(mfmas)
    for i, m_ in enumerate(mfmas):
        out.append(m_)
        k = min(per, -(-len(o) // (n - i)))
        out += o[:k]
        o = o[k:]
    return out + o


class Gen:
    def __init__(self, diag=False, force_slow=False, opts=None, sched=None, leak=None):
        self.leak = leak
        self.A = Asm()
        self.diag = diag
        self.names = {"C": [], "H": []}
        self.role = None
        self.cold = []
        self.force_slow = force_slow
        self.o = opts or {}
        sched, _, segs = (sched or "").partition("|")
        self.sched = sched or "wA2 @a2 li pst tq sigQ @wq lc wKV to sg sg @t2 wH1 u u u u sigU mt @g wX2 u u u u sigU wE @e"
        self.o_segs = (segs or "q o g4-16 d22").split()

    def ts(self, name):
        if self.leak == name:
            self.A(f"s_cselect_b32 {s(sTS+3)}, 1, 0\ns_memrealtime {s(sTP,2)}\ns_waitcnt lgkmcnt(0)\ns_sub_u32 {s(sTS+2)}, {s(sTP)}, {s(sRT)}\ns_cmp_lg_u32 {s(sTS+3)}, 0")
        if not self.diag:
            return
        roles = ["C", "H"] if self.role is None else [self.role]
        idx = max(len(self.names[r]) for r in roles)
        for r in roles:
            while len(self.names[r]) < idx:
                self.names[r].append("-")
            self.names[r].append(name)
        assert idx < 20
        self.A(f"{'s_memtime' if self.o.get('cyc', 0) else 's_memrealtime'} {s(sTP,2)}\ns_waitcnt lgkmcnt(0)\ns_mov_b32 {s(sTS+idx)}, {s(sTP)}")

    def bar(self):
        self.A("s_barrier")

    def outline(self, label, back, fn):
        main = self.A
        sub = Asm()
        sub._n = main._n + 1000 * (len(self.cold) + 1)
        lines = main.lines
        main.lines = []
        main.label(label)
        fn()
        main(f"s_branch {back}")
        self.cold.append(main.lines)
        main.lines = lines

    def dual(self, fn):
        A = self.A
        Ls, Ld = A.uniq("L_slow"), A.uniq("L_sd")
        A(f"s_cmp_eq_u32 {s(sFAST)}, 0")
        A(f"s_cbranch_scc1 {Ls}")
        fn("")
        A.label(Ld)
        self.outline(Ls, Ld, lambda: fn(" sc1"))

    def store_flag(self, stores, sflag, vz, vt, data_sc1=False):
        A = self.A

        if data_sc1:
            stores(" sc1")

        def f(sfx):
            if not data_sc1:
                stores(sfx)
            A("s_waitcnt vmcnt(0)")
            A("s_mov_b64 exec, 1")
            A(f"buffer_store_dword {v(vt)}, {v(vz)}, {s(S_WS,4)}, {s(sflag)} offen{sfx}")
            A("s_mov_b64 exec, -1")
        self.dual(f)

    def poll(self, voff, soff, vtmp, sleep=0):
        A = self.A
        Lp, Ld = A.uniq("L_poll"), A.uniq("L_pd")
        A(f"s_mov_b32 {s(sCNT)}, {SPIN}")
        A.label(Lp)
        if sleep:
            A(f"s_sleep {sleep}")
        A(f"buffer_load_dword {v(vtmp)}, {v(voff)}, {s(S_WS,4)}, {s(soff)} offen sc1")
        A(f"s_sub_u32 {s(sCNT)}, {s(sCNT)}, 1")
        A(f"s_cbranch_scc1 {Ld}")
        A("s_waitcnt vmcnt(0)")
        A(f"v_cmp_ne_u32 vcc, {s(sTAG)}, {v(vtmp)}")
        A(f"s_cbranch_vccnz {Lp}")
        A.label(Ld)

    def signal(self, vaddr, vtmp, val):
        self.A(f"v_mov_b32 {v(vtmp)}, {val}")
        self.A(f"ds_write_b32 {v(vaddr)}, {v(vtmp)}")

    def lwait(self, vaddr, vtmp, val, off=0, sleep=0, extra=None):
        A = self.A
        Lp, Ld = A.uniq("L_lw"), A.uniq("L_lwd")
        A(f"s_mov_b32 {s(sCNT)}, {SPIN*8}")
        A.label(Lp)
        A(f"ds_read_b32 {v(vtmp)}, {v(vaddr)} offset:{off}")
        self.emit(extra or [])
        A(f"s_sub_u32 {s(sCNT)}, {s(sCNT)}, 1")
        A(f"s_cbranch_scc1 {Ld}")
        A(f"s_waitcnt lgkmcnt({len(extra or [])})")
        A(f"v_cmp_gt_u32 vcc, {val}, {v(vtmp)}")
        if sleep:
            A(f"s_cbranch_vccz {Ld}")
            A(f"s_sleep {sleep}")
            A(f"s_branch {Lp}")
        else:
            A(f"s_cbranch_vccnz {Lp}")
        A.label(Ld)

    @staticmethod
    def red4(op, a0, b0, a1, b1):
        return [f"v_permlane32_swap_b32 {v(a0)}, {v(b0)}", f"v_permlane32_swap_b32 {v(a1)}, {v(b1)}",
                f"{op} {v(a0)}, {v(a0)}, {v(b0)}", f"{op} {v(a1)}, {v(a1)}, {v(b1)}",
                f"v_permlane16_swap_b32 {v(a0)}, {v(a1)}", f"{op} {v(a0)}, {v(a0)}, {v(a1)}"]

    @staticmethod
    def bcast4(a0, b0, a1, b1):
        return [f"v_mov_b32 {v(a1)}, {v(a0)}", f"v_permlane16_swap_b32 {v(a0)}, {v(a1)}",
                f"v_mov_b32 {v(b0)}, {v(a0)}", f"v_mov_b32 {v(b1)}, {v(a1)}",
                f"v_permlane32_swap_b32 {v(a0)}, {v(b0)}", f"v_permlane32_swap_b32 {v(a1)}, {v(b1)}"]

    def softmax2(self, X, EP, EN, T, P, L2):
        o = []
        a0, b0, a1, b1 = T, T + 1, T + 2, T + 3
        for t, (aa, bb) in enumerate(((a0, b0), (a1, b1))):
            x = X + 4 * t
            o += [f"v_max3_f32 {v(aa)}, {v(x)}, {v(x+1)}, {v(x+2)}", f"v_max3_f32 {v(bb)}, -{v(x)}, -{v(x+1)}, -{v(x+2)}"]
        for t, (aa, bb) in enumerate(((a0, b0), (a1, b1))):
            x = X + 4 * t
            o += [f"v_max_f32 {v(aa)}, {v(aa)}, {v(x+3)}", f"v_max_f32_e64 {v(bb)}, {v(bb)}, -{v(x+3)}"]
        o += self.red4("v_max_f32", a0, b0, a1, b1)
        o += [f"v_mul_f32 {v(a0)}, {v(L2)}, {v(a0)}"]
        o += self.bcast4(a0, b0, a1, b1)
        for t in range(2):
            m = T + 2 * t
            for h in range(2):
                x = X + 4 * t + 2 * h
                o += [f"v_pk_fma_f32 {v(EP+4*t+2*h,2)}, {v(x,2)}, {v(L2,2)}, {v(m,2)} op_sel:[0,0,0] op_sel_hi:[1,1,0] neg_lo:[0,0,1] neg_hi:[0,0,1]",
                      f"v_pk_fma_f32 {v(EN+4*t+2*h,2)}, {v(x,2)}, {v(L2,2)}, {v(m,2)} op_sel:[0,0,1] op_sel_hi:[1,1,1] neg_lo:[1,0,1] neg_hi:[1,0,1]"]
        for i in range(8):
            o += [f"v_exp_f32 {v(EP+i)}, {v(EP+i)}", f"v_exp_f32 {v(EN+i)}, {v(EN+i)}"]
        for t in range(2):
            e, n = EP + 4 * t, EN + 4 * t
            o += [f"v_pk_add_f32 {v(T+4,2)}, {v(e,2)}, {v(e+2,2)}", f"v_pk_add_f32 {v(T+6,2)}, {v(n,2)}, {v(n+2,2)}",
                  f"v_add_f32 {v(T+2*t)}, {v(T+4)}, {v(T+5)}", f"v_add_f32 {v(T+2*t+1)}, {v(T+6)}, {v(T+7)}"]
        o += self.red4("v_add_f32", a0, b0, a1, b1)
        o += [f"v_rcp_f32 {v(a0)}, {v(a0)}"]
        o += self.bcast4(a0, b0, a1, b1)
        for t in range(2):
            m = T + 2 * t
            for h in range(2):
                e, n = EP + 4 * t + 2 * h, EN + 4 * t + 2 * h
                o += [f"v_pk_mul_f32 {v(e,2)}, {v(e,2)}, {v(m,2)} op_sel:[0,0] op_sel_hi:[1,0]",
                      f"v_pk_mul_f32 {v(n,2)}, {v(n,2)}, {v(m,2)} op_sel:[0,1] op_sel_hi:[1,1]"]
        for t in range(2):
            for h in range(2):
                o += [f"v_cvt_pk_bf16_f32 {v(P+4*t+h)}, {v(EP+4*t+2*h)}, {v(EP+4*t+2*h+1)}",
                      f"v_cvt_pk_bf16_f32 {v(P+4*t+2+h)}, {v(EN+4*t+2*h)}, {v(EN+4*t+2*h+1)}"]
        return o

    def emit(self, lst):
        for l in lst:
            self.A(l)

    def srd_consts(self, regs):
        sizes = {S_WS: 0x10000000 - (self.o.get('wsoff', 0) << 20), S_C: 1024, S_WM: 512*6144, S_X: 2048*1024, S_W: 512*3072, S_PHI: 32*512, S_WO: 512*1024,
                 S_WG: 512*2752, S_WU: 512*2752, S_WD: 1376*1024, S_OUT: 2048*1024, S_DBG: 256}
        for r in regs:
            self.A(f"s_mov_b32 {s(r+2)}, {sizes[r]:#x}")
            self.A(f"s_mov_b32 {s(r+3)}, 0x20000")

    def wsoff(self):
        off = self.o.get("wsoff", 0) << 20
        if off:
            self.A(f"s_add_u32 {s(S_WS)}, {s(S_WS)}, {off:#x}\ns_addc_u32 {s(S_WS+1)}, {s(S_WS+1)}, 0")

    def gemv_issue(self, W, late=False):
        A = self.A
        if late:
            A(f"s_and_b32 {s(sT0)}, s2, 7")
        else:
            A(f"s_and_b32 {s(sT0)}, s2, 1")
            A(f"s_lshl2_add_u32 {s(sT0)}, {s(sT0)}, {s(sM)}")
        A("v_and_b32 v13, 3, v0")
        A("v_lshlrev_b32 v13, 2, v13")
        A("v_lshl_add_u32 v13, v8, 4, v13")
        A(f"s_lshl_b32 {s(sT1)}, {s(sT0)}, 7")
        A(f"buffer_load_dword v12, v13, {s(S_C,4)}, {s(sT1)} offen")

    def gemv_issue2(self, W, late=False):
        A = self.A
        A("v_mul_u32_u24 v14, 49152, v8")
        A("v_lshl_add_u32 v14, v9, 4, v14")
        A(f"s_mul_i32 {s(sT0)}, {s(sT0)}, {64*6144}")
        A(f"s_lshr_b32 {s(sT1)}, s2, {3 if late else 1}")
        if late:
            A(f"s_add_u32 {s(sT1)}, {s(sT1)}, 16")
        A(f"s_lshl_b32 {s(sT1)}, {s(sT1)}, 7")
        A(f"s_add_u32 {s(sT0)}, {s(sT0)}, {s(sT1)}")
        for i in range(8):
            A(f"buffer_load_dwordx4 {v(W+4*i,4)}, v14, {s(S_WM,4)}, {s(sT0)} offen")
            if i < 7:
                A(f"s_add_u32 {s(sT0)}, {s(sT0)}, 6144")

    def gemv_compute(self, W, after):
        A = self.A
        A("v_lshlrev_b32 v13, 16, v12")
        A(f"v_and_b32 v14, {v(VMASK)}, v12")
        A("v_mul_f32 v15, 0xbfb8aa3b, v13\nv_mul_f32 v16, 0xbfb8aa3b, v14")
        A("v_exp_f32 v15, v15\nv_exp_f32 v16, v16")
        A(f"s_mov_b32 {s(sT0)}, 0x05040100\ns_mov_b32 {s(sT1)}, 0x07060302")
        A("v_add_f32 v15, 1.0, v15\nv_add_f32 v16, 1.0, v16")
        A("v_rcp_f32 v15, v15\nv_rcp_f32 v16, v16")
        for c in range(8):
            A(f"v_mov_b32 {v(24+c)}, 0")
        A("v_mul_f32 v13, v13, v15\nv_mul_f32 v14, v14, v16")
        A("v_cvt_pk_bf16_f32 v12, v13, v14")
        for q in range(4):
            A(f"v_mov_b32_dpp {v(16+q)}, v12 quad_perm:[{q},{q},{q},{q}] row_mask:0xf bank_mask:0xf")
        for q in range(4):
            if after is not None:
                A(f"s_waitcnt vmcnt({after + 6 - 2*q})")
            for d in range(0, 4, 2):
                for e in range(2):
                    ra, rb_ = W + 8*q + d + e, W + 8*q + 4 + d + e
                    A(f"v_perm_b32 {v(20+2*e)}, {v(rb_)}, {v(ra)}, {s(sT0)}")
                    A(f"v_perm_b32 {v(21+2*e)}, {v(rb_)}, {v(ra)}, {s(sT1)}")
                for e in range(4):
                    A(f"v_dot2c_f32_bf16 {v(24+2*d+e)}, {v(20+e)}, {v(16+q)}")
        for c in range(4):
            A(f"v_permlane32_swap_b32 {v(24+c)}, {v(28+c)}")
        A("v_pk_add_f32 v[24:25], v[24:25], v[28:29]\nv_pk_add_f32 v[26:27], v[26:27], v[30:31]")
        for c in range(2):
            A(f"v_permlane16_swap_b32 {v(24+c)}, {v(26+c)}")
        A("v_pk_add_f32 v[24:25], v[24:25], v[26:27]")
        for c in range(2):
            A(f"v_add_f32_dpp {v(26+c)}, {v(24+c)}, {v(24+c)} row_ror:8 row_mask:0xf bank_mask:0xf")

    def start(self):
        A = self.A
        A("s_cmp_ge_u32 s2, 256")
        A("s_cbranch_scc1 L_end")
        for r, off in ((S_WS, 96), (S_C, 64), (S_WM, 72), (S_X, 0), (S_W, 8), (S_PHI, 16)):
            A(f"s_load_dwordx2 {s(r,2)}, s[0:1], {off}")
        if self.leak:
            A(f"s_memrealtime {s(sRT,2)}\ns_mov_b32 {s(sTS+2)}, 0")
        if self.diag:
            A(f"s_memrealtime {s(sRT,2)}")
            A(f"{'s_memtime' if self.o.get('cyc', 0) else 's_memrealtime'} {s(sTS,2)}")
            self.names["cyc"] = self.o.get("cyc", 0)
            self.names["C"].append("start"); self.names["H"].append("start")
            self.names["C"].append("-"); self.names["H"].append("-")
        A("v_lshrrev_b32 v2, 6, v0")
        A("v_and_b32 v0, 63, v0")
        A(f"v_readfirstlane_b32 {s(sW)}, v2")
        A(f"s_and_b32 {s(sRB)}, s2, 7")
        A(f"s_lshr_b32 {s(sT0)}, s2, 7")
        A(f"s_lshl1_add_u32 {s(sRB)}, {s(sRB)}, {s(sT0)}")
        A(f"s_bfe_u32 {s(sJ)}, s2, 0x40003")
        A("v_mov_b32 v6, 0")
        A("v_lshrrev_b32 v8, 3, v0")
        A("v_and_b32 v9, 7, v0")
        A("v_lshlrev_b32 v1, 4, v0")
        A(f"v_mov_b32 {v(VMASK)}, 0xffff0000")
        A(f"s_and_b32 {s(sM)}, {s(sW)}, 3")
        A(f"s_lshl_b32 {s(sG)}, {s(sRB)}, 20")
        A(f"s_add_u32 {s(sG)}, {s(sG)}, {WS_G0:#x}")
        A(f"s_getreg_b32 {s(sFAST)}, hwreg(HW_REG_XCC_ID)")
        self.srd_consts([S_WS, S_C, S_WM])
        A(f"s_lshl2_add_u32 {s(sT0)}, {s(sW)}, {L_CW}")
        A(f"v_mov_b32 {v(VP)}, {s(sT0)}")
        A(f"ds_write2_b32 {v(VP)}, v6, v6 offset0:0 offset1:8")
        A(f"v_and_b32 {v(VQ)}, 3, v0")
        A(f"v_lshlrev_b32 {v(VQ)}, 2, {v(VQ)}")
        A(f"v_add_u32 {v(VQ)}, {L_CW}, {v(VQ)}")
        A(f"s_cmp_ge_u32 {s(sW)}, 4")
        A("s_cbranch_scc1 L_helper")

    PHIT, IDN, ONES, L2 = 112, 116, 120, 118

    def c_start(self):
        A = self.A
        if self.o.get("prio", 0):
            A(f"s_setprio {self.o.get('prio')}")
        self.srd_consts([S_X])
        A("v_lshlrev_b32 v2, 4, v9")
        A("v_lshl_add_u32 v89, v8, 10, v2")
        A(f"s_lshl4_add_u32 {s(sT2)}, {s(sRB)}, {s(sJ)}")
        A(f"s_lshl_b32 {s(sT2)}, {s(sT2)}, 13")
        A(f"s_lshl_b32 {s(sT3)}, {s(sM)}, 8")
        A(f"s_add_u32 {s(sT2)}, {s(sT2)}, {s(sT3)}")
        A(f"s_lshl_b32 {s(sEX)}, {s(sM)}, 11")
        A(f"s_add_u32 {s(sEX)}, {s(sEX)}, {L_XT}")
        A("s_waitcnt lgkmcnt(0)")
        self.wsoff()
        A(f"buffer_load_dword {v(VTAG)}, v6, {s(S_WS,4)}, 0 offen sc1")
        XL = self.o.get("xlate", 1)
        PH = self.o.get("pre_h", 1)

        def xdma():
            A(f"s_mov_b32 m0, {s(sEX)}")
            A(f"buffer_load_dwordx4 v89, {s(S_X,4)}, {s(sT2)} offen lds")
            A(f"s_add_u32 m0, {s(sEX)}, {1024-128}")
            A(f"buffer_load_dwordx4 v89, {s(S_X,4)}, {s(sT2)} offen offset:128 lds")
        A("s_cmp_ge_u32 s2, 32")
        A("s_cbranch_scc1 L_p0a_skip")
        self.gemv_issue(32)
        self.gemv_issue2(32)
        A.label("L_p0a_skip")
        if not XL:
            xdma()
        self.bar()
        A(f"s_load_dwordx2 {s(S_OUT,2)}, s[0:1], 80")
        A("v_lshrrev_b32 v10, 4, v0")
        A("v_and_b32 v11, 15, v0")
        self.srd_consts([S_OUT])
        A(f"v_lshl_add_u32 v90, v9, 7, {s(sEX)}")
        A("v_lshl_add_u32 v90, v8, 4, v90")
        A("v_lshlrev_b32 v2, 2, v10")
        A("v_sub_u32 v2, v11, v2")
        A("v_cmp_gt_u32 vcc, 4, v2")
        A("v_mov_b32 v20, 0x3f80")
        A("v_mov_b32 v21, 0")
        A("v_cndmask_b32 v20, 0, v20, vcc")
        A("v_lshlrev_b32 v2, 4, v2")
        A(f"v_lshlrev_b64 {v(self.IDN,2)}, v2, v[20:21]")
        for i in range(4):
            A(f"v_mov_b32 {v(self.ONES+i)}, 0x3f803f80")
        A(f"v_mov_b32 {v(self.L2)}, 0x3fb8aa3b")
        A(f"v_mov_b32 {v(self.L2+1)}, 0x3fb8aa3b")
        A("v_lshrrev_b32 v2, 2, v11")
        A("v_lshl_add_u32 v2, v10, 3, v2")
        A("v_lshlrev_b32 v2, 6, v2")
        A("v_and_b32 v3, 3, v0")
        A("v_lshl_add_u32 v2, v3, 3, v2")
        A("v_and_b32 v3, 1, v10")
        A("v_lshl_add_u32 v124, v3, 5, v2")
        A("v_xor_b32 v125, 32, v124")
        A("v_lshlrev_b32 v5, 2, v11")
        A("v_lshlrev_b32 v91, 5, v9")
        A("v_lshl_add_u32 v91, v10, 3, v91")
        A("v_lshlrev_b32 v92, 1, v91")
        A(f"s_add_u32 {s(sT0)}, {s(sT3)}, {L_SCR}")
        A(f"v_add_u32 v91, {s(sT0)}, v91")
        A("v_lshlrev_b32 v11, 4, v9")
        A(f"v_add_u32 v11, {L_STX}, v11")
        A("v_lshrrev_b32 v10, 5, v0")
        A("v_lshl_add_u32 v10, v10, 7, v11")
        A(f"s_lshl_b32 {s(sT0)}, {s(sM)}, 2")
        A(f"v_add_u32 v10, {s(sT0)}, v10")
        A(f"s_lshl_b32 {s(sA0)}, {s(sM)}, 10")
        A(f"s_add_u32 {s(sA7)}, {s(sA0)}, {L_TAB}")
        A(f"s_add_u32 {s(sA0)}, {s(sA0)}, {WS_MODU:#x}")
        A(f"s_add_u32 {s(sA8)}, {s(sA0)}, 4096")
        A(f"s_add_u32 {s(sA9)}, {s(sA0)}, 8192")
        A(f"s_add_u32 {s(sA10)}, {s(sA0)}, 12288")
        A(f"s_add_u32 {s(sA1)}, {s(sG)}, {G_XCC:#x}")
        A("v_lshlrev_b32 v94, 5, v5")
        A(f"s_lshr_b32 {s(sA2)}, {s(sJ)}, 2")
        A(f"s_bfe_u32 {s(sT0)}, {s(sJ)}, 0x10001")
        A(f"s_lshl3_add_u32 {s(sA2)}, {s(sA2)}, {s(sT0)}")
        A(f"s_lshl2_add_u32 {s(sA2)}, {s(sA2)}, {s(sM)}")
        A(f"s_lshl_b32 {s(sA2)}, {s(sA2)}, 12")
        A(f"s_and_b32 {s(sT0)}, {s(sJ)}, 1")
        A(f"s_lshl_b32 {s(sT0)}, {s(sT0)}, 7")
        A(f"s_add_u32 {s(sA2)}, {s(sA2)}, {s(sT0)}")
        A(f"s_add_u32 {s(sA2)}, {s(sA2)}, {s(sG)}")
        A(f"s_lshr_b32 {s(sT0)}, {s(sJ)}, 2")
        A(f"s_lshl_b32 {s(sT0)}, {s(sT0)}, 7")
        A(f"s_and_b32 {s(sT1)}, {s(sJ)}, 3")
        A(f"s_lshl2_add_u32 {s(sT1)}, {s(sT1)}, {s(sM)}")
        A(f"s_lshl2_add_u32 {s(sT0)}, {s(sT1)}, {s(sT0)}")
        A(f"s_add_u32 {s(sA4)}, {s(sG)}, {G_FLH:#x}")
        A(f"s_add_u32 {s(sA3)}, {s(sA4)}, {s(sT0)}")
        A(f"s_lshl_b32 {s(sT0)}, {s(sM)}, 7")
        A(f"s_add_u32 {s(sA4)}, {s(sA4)}, {s(sT0)}")
        A(f"s_lshl_b32 {s(sA5)}, {s(sM)}, 17")
        A(f"s_add_u32 {s(sA5)}, {s(sA5)}, {s(sG)}")
        A(f"s_add_u32 {s(sA6)}, {s(sA5)}, 16384")
        A(f"s_lshl2_add_u32 {s(sA11)}, {s(sJ)}, {s(sM)}")
        A(f"s_lshl4_add_u32 {s(sA11)}, {s(sA11)}, {s(sRB)}")
        A(f"s_lshl_b32 {s(sA11)}, {s(sA11)}, 10")
        A(f"s_add_u32 {s(sA11)}, {s(sA11)}, {WS_KVP:#x}")
        A("v_mov_b32 v72, 0\nv_mov_b32 v73, 0")
        A("v_lshlrev_b32 v88, 8, v0")
        nx = 0 if XL else 2
        A("s_cmp_ge_u32 s2, 32")
        A("s_cbranch_scc1 L_w1")
        A(f"s_waitcnt vmcnt({8 + nx})")
        A("s_branch L_w2")
        A.label("L_w1")
        A(f"s_waitcnt vmcnt({nx})")
        A.label("L_w2")
        if XL:
            xdma()
        if PH:
            A("s_mov_b64 exec, 0xffff")
            A(f"buffer_load_dword v88, v88, {s(S_WS,4)}, {s(sA2)} offen")
            A("s_mov_b64 exec, -1")
        A(f"v_add_u32 {v(VTAG)}, 1, {v(VTAG)}")
        A(f"v_readfirstlane_b32 {s(sTAG)}, {v(VTAG)}")
        A(f"v_mov_b32 v96, {s(sFAST)}\nv_mov_b32 v97, {v(VTAG)}\nv_mov_b32 v98, {s(sFAST)}\nv_mov_b32 v99, {v(VTAG)}")
        A(f"s_lshl_b32 {s(sT0)}, {s(sJ)}, 7")
        A(f"s_add_u32 {s(sT0)}, {s(sT0)}, {s(sA1)}")
        A(f"s_cmp_eq_u32 {s(sM)}, 3")
        A(f"s_cselect_b32 {s(sT1)}, 0, 0x40000000")
        A(f"v_add_u32 v95, {s(sT1)}, v1")
        A("s_mov_b64 exec, 0xff")
        A(f"buffer_store_dwordx4 v[96:99], v95, {s(S_WS,4)}, {s(sT0)} offen sc1")
        A("s_mov_b64 exec, -1")
        PH += 1
        self.ts("tag")
        A("s_cmp_ge_u32 s2, 32")
        A("s_cbranch_scc1 L_p0c_skip")
        self.gemv_compute(32, 2 + PH)
        A("ds_write_b64 v91, v[26:27]")
        self.signal(VP, 2, CV_G)
        A(f"s_cmp_lg_u32 {s(sW)}, 0")
        A("s_cbranch_scc1 L_p0c_skip")
        A("v_lshlrev_b32 v2, 2, v0")
        A(f"v_add_u32 v3, {L_SCR}, v2")
        A(f"s_lshr_b32 {s(sT0)}, s2, 4")
        A(f"s_and_b32 {s(sT1)}, s2, 1")
        A(f"s_lshl1_add_u32 {s(sT0)}, {s(sT0)}, {s(sT1)}")
        A(f"s_bfe_u32 {s(sT1)}, s2, 0x30001")
        A(f"s_lshl3_add_u32 {s(sT0)}, {s(sT0)}, {s(sT1)}")
        A(f"s_lshl_b32 {s(sT0)}, {s(sT0)}, 9")
        A(f"s_add_u32 {s(sT0)}, {s(sT0)}, {WS_MODU:#x}")
        self.lwait(VQ, 2, CV_G, extra=["ds_read2st64_b32 v[12:13], v3 offset0:0 offset1:1", "ds_read2st64_b32 v[14:15], v3 offset0:2 offset1:3"])
        A("v_lshlrev_b32 v2, 3, v0")
        A("s_waitcnt lgkmcnt(0)")
        A("v_pk_add_f32 v[12:13], v[12:13], v[14:15]")
        A("v_add_f32 v12, v12, v13")
        A(f"v_mov_b32 v13, {v(VTAG)}")
        A(f"buffer_store_dwordx2 v[12:13], v2, {s(S_WS,4)}, {s(sT0)} offen sc1")
        self.ts("p0_done")
        A(f"s_waitcnt vmcnt({1 + PH})")
        A("s_branch L_xw")
        A.label("L_p0c_skip")
        A(f"s_waitcnt vmcnt({PH})")
        A.label("L_xw")
        A("ds_read_b128 v[64:67], v90")
        A("ds_read_b128 v[68:71], v90 offset:1024")
        self.ts("x_land")
        A("s_waitcnt lgkmcnt(0)")
        for i in range(8):
            A(f"v_dot2c_f32_bf16 v72, {v(self.ONES)}, {v(64+i)}")
            A(f"v_dot2c_f32_bf16 v73, {v(64+i)}, {v(64+i)}")
        A("v_permlane32_swap_b32 v72, v73")
        A("v_add_f32 v72, v72, v73")
        A("v_mov_b32 v73, v72")
        A("v_permlane16_swap_b32 v72, v73")
        A("v_add_f32 v72, v72, v73")
        A("v_add_f32_dpp v73, v72, v72 row_ror:8 row_mask:0xf bank_mask:0xf")
        A("ds_write_b32 v10, v73")
        self.signal(VP, 2, CV_S)
        self.lwait(VQ, 2, CV_S)
        A("ds_read_b128 v[16:19], v11")
        A("ds_read_b128 v[20:23], v11 offset:128")
        for i in range(8):
            A(f"v_lshlrev_b32 {v(72+2*i)}, 16, {v(64+i)}")
            A(f"v_and_b32 {v(73+2*i)}, {v(VMASK)}, {v(64+i)}")
        A(f"v_lshl_add_u32 v2, v0, 3, {s(sA7)}")
        A(f"v_lshl_add_u32 v3, v8, 5, {s(sA7)}")
        A("v_lshlrev_b32 v93, 8, v8")
        A("v_lshl_add_u32 v93, v9, 4, v93")
        A("s_waitcnt lgkmcnt(0)")
        A("v_pk_add_f32 v[16:17], v[16:17], v[18:19]\nv_pk_add_f32 v[20:21], v[20:21], v[22:23]")
        A("v_add_f32 v16, v16, v17\nv_add_f32 v17, v20, v21")
        A("v_mul_f32 v16, 0x3b000000, v16\nv_mul_f32 v17, 0x3b000000, v17")
        A("v_fma_f32 v17, -v16, v16, v17")
        A("v_max_f32 v17, 0, v17")
        A("v_add_f32 v17, 0x3727c5ac, v17")
        A("v_rsq_f32 v17, v17")
        A("v_mul_f32_e64 v16, -v16, v17")
        for i in range(8):
            A(f"v_pk_fma_f32 {v(72+2*i,2)}, {v(72+2*i,2)}, v[16:17], v[16:17] op_sel:[0,1,0] op_sel_hi:[1,1,0]")
        A("v_lshlrev_b32 v14, 3, v0")
        A(f"v_add_u32 v14, {L_PHI}, v14")
        if self.o.get("s0late", 1):
            self.lwait(VQ, 13, HV_W if self.o.get("s0late", 1) == 1 else HV_I, off=16, sleep=1)
        A(f"s_mov_b32 {s(sCNT)}, {SPIN}")
        A("s_branch L_s0f")
        A.label("L_s0")
        A("s_sleep 4")
        A.label("L_s0f")
        for i, sr in enumerate((sA0, sA8, sA9, sA10)):
            A(f"buffer_load_dwordx4 {v(16+4*i,4)}, v1, {s(S_WS,4)}, {s(sr)} offen sc1")
        A(f"buffer_load_dwordx2 v[32:33], v94, {s(S_WS,4)}, {s(sA1)} offen sc1")
        A(f"s_sub_u32 {s(sCNT)}, {s(sCNT)}, 1")
        A("s_cbranch_scc1 L_s0d")
        A("s_waitcnt vmcnt(0)")
        A(f"v_xor_b32 v36, {v(VTAG)}, v33")
        A(f"v_xor_b32 v37, {v(VTAG)}, v17")
        for i in range(1, 8):
            acc = 36 + (i & 1)
            A(f"v_bitop3_b32 {v(acc)}, {v(acc)}, {v(17+2*i)}, {v(VTAG)} bitop3:0xf6")
        A("v_or_b32 v36, v36, v37")
        A("v_cmp_ne_u32 vcc, 0, v36")
        A("s_cbranch_vccnz L_s0")
        A.label("L_s0d")
        A("s_waitcnt vmcnt(0)")
        self.ts("s0_ok")
        A("v_add_f32 v24, v24, v28\nv_add_f32 v26, v26, v30\nv_add_f32 v16, v16, v20\nv_add_f32 v18, v18, v22")
        A("v_cvt_pk_bf16_f32 v24, v24, v26\nv_cvt_pk_bf16_f32 v16, v16, v18")
        A(f"v_and_b32 v25, {v(VMASK)}, v24\nv_lshlrev_b32 v24, 16, v24")
        A(f"v_and_b32 v17, {v(VMASK)}, v16\nv_lshlrev_b32 v16, 16, v16")
        A("v_add_f32 v24, 1.0, v24\nv_add_f32 v25, 1.0, v25")
        A("ds_write_b64 v2, v[16:17]")
        A("v_cvt_pk_bf16_f32 v24, v24, v25")
        A(f"v_and_b32 v25, {v(VMASK)}, v24\nv_lshlrev_b32 v24, 16, v24")
        A("ds_write_b64 v2, v[24:25] offset:512")
        for e in range(2):
            for q in range(2):
                A(f"ds_read_b128 {v(16+8*e+4*q,4)}, v3 offset:{e*256 + q*16}")
                A(f"ds_read_b128 {v(40+8*e+4*q,4)}, v3 offset:{512 + e*256 + q*16}")
        A(f"v_cmp_ne_u32 vcc, {s(sFAST)}, v32")
        A("s_cmp_eq_u64 vcc, 0")
        A(f"s_cselect_b32 {s(sFAST)}, {0 if self.force_slow else 1}, 0")
        for q in range(4):
            A(f"s_waitcnt lgkmcnt({6-2*q})")
            for i in range(2):
                r = 4*q + 2*i
                A(f"v_pk_fma_f32 {v(16+r,2)}, {v(72+r,2)}, {v(40+r,2)}, {v(16+r,2)}")
            for i in range(2):
                r = 4*q + 2*i
                A(f"v_cvt_pk_bf16_f32 {v(32+r//2)}, {v(16+r)}, {v(17+r)}")

        def st(sfx):
            A(f"buffer_store_dwordx4 v[32:35], v93, {s(S_WS,4)}, {s(sA2)} offen{sfx}")
            A(f"buffer_store_dwordx4 v[36:39], v93, {s(S_WS,4)}, {s(sA2)} offen offset:2048{sfx}")
        self.store_flag(st, sA3, 6, VTAG, data_sc1=not self.o.get('pre_h', 1))

    def c_p1(self):
        A = self.A
        PHIT, IDN, ONES, L2 = self.PHIT, self.IDN, self.ONES, self.L2
        if self.o.get("s0late", 1) != 1:
            self.lwait(VQ, 13, HV_W, off=16, sleep=1)
        for h in range(2):
            A(f"ds_read_b64_tr_b16 {v(PHIT+2*h,2)}, v14 offset:{h*512}")
        A("s_waitcnt lgkmcnt(0)")
        LA = self.o.get("la1", 4)

        def ld(u):
            o = [f"buffer_load_dwordx4 {a((u*2+t)*4,4)}, v1, {s(S_WS,4)}, {s(sA5+t)} offen offset:{(u&3)*1024} sc1" for t in range(2)]
            if (u & 3) == 3 and u < 15:
                o += [f"s_add_u32 {s(sA5)}, {s(sA5)}, 4096", f"s_add_u32 {s(sA6)}, {s(sA6)}, 4096"]
            return o

        def rd_b(u):
            p = 64 + (u % 3) * 16
            return [f"ds_read_b64_tr_b16 {v(p + (mi*2+h)*4 + hh*2, 2)}, {v(124+h)} offset:{base + u*2048 + hh*256}"
                    for mi, base in enumerate((L_WK, L_WV)) for h in range(2) for hh in range(2)]
        self.emit(rd_b(0) + rd_b(1))
        self.poll(5, sA4, 10)
        for u in range(LA):
            self.emit(ld(u))
        self.ts("h_flags")
        for u in range(16):
            A(f"s_waitcnt vmcnt({2*(min(15, u+LA-1) - u)}) lgkmcnt({(8 if u < 15 else 0) + (1 if u + LA == 16 else 0)})")
            p = 64 + (u % 3) * 16
            mf = []
            for h in range(2):
                for t in range(2):
                    d = 32 + (h * 2 + t) * 4
                    mf.append(f"v_mfma_f32_16x16x32_bf16 {v(d,4)}, {v(p+h*4,4)}, {a((u*2+t)*4,4)}, {v(d,4) if u else 0}")
            for h in range(2):
                for t in range(2):
                    d = 48 + (h * 2 + t) * 4
                    mf.append(f"v_mfma_f32_16x16x32_bf16 {v(d,4)}, {a((u*2+t)*4,4)}, {v(p+8+h*4,4)}, {v(d,4) if u else 0}")
            self.emit(weave(mf, (ld(u + LA) if u + LA < 16 else []) + (rd_b(u + 2) if u + 2 < 16 else [])))
            if u + LA == 15:
                self.signal(VP, 10, CV_A2)
        A(f"s_mul_i32 {s(sT0)}, {s(sM)}, {KVR_W}")
        A(f"s_add_u32 {s(sT0)}, {s(sT0)}, {L_KVR}")
        A(f"v_add_u32 v2, {s(sT0)}, v1")
        A("v_and_b32 v3, 48, v0")
        A(f"v_add_u32 v3, {s(sT0)}, v3")
        self.ts("kv_gemm")
        for i in range(8):
            A(f"v_cvt_pk_bf16_f32 {v(8+i)}, {v(32+2*i)}, {v(33+2*i)}")
        for h in range(2):
            for t in range(2):
                A(f"v_mfma_f32_16x16x16_bf16 {v(64+8*h+4*t,4)}, {v(PHIT+2*h,2)}, {v(8+4*h+2*t,2)}, 0")
        for i in range(8):
            A(f"v_cvt_pk_bf16_f32 {v(48+i)}, {v(48+2*i)}, {v(49+2*i)}")
        self.emit(zip_streams(*[self.softmax2(64+8*h, 80+8*h, 96+8*h, 16+8*h, 32+8*h, L2) for h in range(2)]))
        for h in range(2):
            for i, p in enumerate((0, 4, 2, 6)):
                A(f"v_mfma_f32_16x16x16_bf16 {v(64+16*h+4*i,4)}, {v(32+8*h+p,2)}, {v(IDN,2)}, 0")
        for i in range(16):
            A(f"v_cvt_pk_bf16_f32 {v(96+i)}, {v(64+2*i)}, {v(65+2*i)}")
        for h in range(2):
            for sg in range(2):
                A(f"v_mfma_f32_16x16x32_bf16 {v(16+8*h+4*sg,4)}, {v(96+8*h+4*sg,4)}, {v(48+4*h,4)}, 0")
        for h in range(2):
            for sg in range(2):
                A(f"v_mfma_f32_16x16x32_bf16 {v(32+8*h+4*sg,4)}, {v(96+8*h+4*sg,4)}, {v(ONES,4)}, 0")
        for i in range(4):
            A(f"ds_write_b128 v2, {v(16+4*i,4)} offset:{i*1024}")
        for i in range(4):
            A(f"ds_write_b128 v3, {v(32+4*i,4)} offset:{4096 + i*64}")
        self.signal(VP, 8, CV_KV)
        A(f"s_lshl_b32 {s(sT0)}, {s(sM)}, 10")
        A(f"s_add_u32 {s(sT0)}, {s(sT0)}, {L_KVR}")
        A(f"v_add_u32 v10, {s(sT0)}, v1")
        A("v_and_b32 v11, 3, v0")
        A("v_and_b32 v9, 48, v0")
        A("v_lshl_add_u32 v11, v11, 2, v9")
        A(f"s_lshl_b32 {s(sT0)}, {s(sM)}, 6")
        A(f"s_add_u32 {s(sT0)}, {s(sT0)}, {L_KVR + 4096}")
        A(f"v_add_u32 v11, {s(sT0)}, v11")
        self.lwait(VQ, 9, CV_KV, extra=[f"ds_read_b128 {v(64+4*i,4)}, v10 offset:{i*KVR_W}" for i in range(4)]
                   + [f"ds_read_b32 {v(80+i)}, v11 offset:{i*KVR_W}" for i in range(4)])
        A(f"v_add_u32 v124, {L_WQ}, v124")
        A(f"v_add_u32 v125, {L_WQ}, v125")
        A(f"v_mov_b32 v15, {v(VTAG)}")
        A("s_waitcnt lgkmcnt(4)")
        for i in range(2):
            A(f"v_pk_add_f32 {v(64+2*i,2)}, {v(64+2*i,2)}, {v(68+2*i,2)}")
            A(f"v_pk_add_f32 {v(72+2*i,2)}, {v(72+2*i,2)}, {v(76+2*i,2)}")
        for i in range(2):
            A(f"v_pk_add_f32 {v(64+2*i,2)}, {v(64+2*i,2)}, {v(72+2*i,2)}")
        A("s_waitcnt lgkmcnt(0)")
        A("v_pk_add_f32 v[80:81], v[80:81], v[82:83]")
        A("v_cvt_pk_bf16_f32 v12, v64, v65\nv_cvt_pk_bf16_f32 v13, v66, v67")
        A("v_add_f32 v14, v80, v81")
        A(f"buffer_store_dwordx4 v[12:15], v1, {s(S_WS,4)}, {s(sA11)} offen sc1")
        self.ts("kv_pub")
        self.c_addr_setup()
        self.lwait(VQ, 9, HV_Q, off=16, sleep=1)

        def rd_q(u):
            p = 64 + (u & 3) * 8
            return [f"ds_read_b64_tr_b16 {v(p + h*4 + hh*2, 2)}, {v(124+h)} offset:{u*2048 + hh*256}" for h in range(2) for hh in range(2)]
        self.emit(rd_q(0) + rd_q(1) + rd_q(2))
        for u in range(16):
            A(f"s_waitcnt lgkmcnt({min(8, 4*(15-u))})")
            p = 64 + (u & 3) * 8
            mf = []
            for t in range(2):
                for h in range(2):
                    d = 32 + (t * 2 + h) * 4
                    mf.append(f"v_mfma_f32_16x16x32_bf16 {v(d,4)}, {v(p+h*4,4)}, {a((u*2+t)*4,4)}, {v(d,4) if u else 0}")
            self.emit(weave(mf, rd_q(u + 3) if u + 3 < 16 else []))
        for i in range(8):
            A(f"v_cvt_pk_bf16_f32 {v(8+i)}, {v(32+2*i)}, {v(33+2*i)}")
        for t in range(2):
            for h in range(2):
                A(f"v_mfma_f32_16x16x16_bf16 {v(64+8*t+4*h,4)}, {v(PHIT+2*h,2)}, {v(8+4*t+2*h,2)}, 0")
        self.ts("q_gemm")
        A(f"s_mov_b32 {s(sCNT)}, {SPIN}")
        A.label("L_h1p")
        A(f"buffer_load_dwordx4 v[8:11], v48, {s(S_WS,4)}, {s(sB0)} offen sc1")
        A(f"s_sub_u32 {s(sCNT)}, {s(sCNT)}, 1")
        A("s_cbranch_scc1 L_h1d")
        A("s_waitcnt vmcnt(0)")
        A(f"v_cmp_ne_u32 vcc, {s(sTAG)}, v11")
        A("s_cbranch_vccnz L_h1p")
        A.label("L_h1d")
        A("s_waitcnt vmcnt(0)")
        self.ts("hop1")
        A(f"v_lshlrev_b32 v12, 16, v8\nv_lshlrev_b32 v14, 16, v9\nv_and_b32 v13, {v(VMASK)}, v8\nv_and_b32 v15, {v(VMASK)}, v9")
        zs = ["v_mov_b32 v16, v10", "v_permlane32_swap_b32 v10, v16", "v_add_f32 v10, v10, v16", "v_mov_b32 v16, v10",
              "v_permlane16_swap_b32 v10, v16", "v_add_f32 v10, v10, v16",
              "v_add_f32_dpp v16, v10, v10 row_ror:4 row_mask:0xf bank_mask:0xf", "v_add_f32_dpp v10, v16, v16 row_ror:8 row_mask:0xf bank_mask:0xf",
              "v_mov_b32_dpp v16, v10 quad_perm:[0,2,0,2] row_mask:0xf bank_mask:0xf", "v_mov_b32_dpp v17, v10 quad_perm:[1,3,1,3] row_mask:0xf bank_mask:0xf",
              "v_cvt_pk_bf16_f32 v10, v16, v17"]
        ks = (self.red4("v_add_f32", 12, 14, 13, 15)
              + ["v_add_f32_dpp v13, v12, v12 row_ror:4 row_mask:0xf bank_mask:0xf", "v_add_f32_dpp v12, v13, v13 row_ror:8 row_mask:0xf bank_mask:0xf"]
              + self.bcast4(12, 14, 13, 15) + ["v_cvt_pk_bf16_f32 v8, v12, v13", "v_cvt_pk_bf16_f32 v9, v14, v15"])
        self.emit(zip_streams(ks, zs))
        A("s_mov_b64 exec, 15")
        A(f"buffer_store_dwordx4 v[8:11], v1, {s(S_WS,4)}, {s(sB1)} offen sc1")
        A("s_mov_b64 exec, -1")
        self.signal(VP, 18, CV_H1)
        self.emit(zip_streams(*[self.softmax2(64+8*t, 80+8*t, 96+8*t, 16+8*t, 32+8*t, L2) for t in range(2)]))
        A(f"s_mov_b32 {s(sCNT)}, {SPIN}")
        A("s_branch L_h2f")
        A.label("L_h2p")
        A(f"s_sleep {self.o.get('h2sleep', 2)}")
        A.label("L_h2f")
        for i in range(4):
            A(f"buffer_load_dwordx4 {v(16+4*i,4)}, v1, {s(S_WS,4)}, {s(sB2)} offen offset:{i*1024} sc1")
        A(f"s_sub_u32 {s(sCNT)}, {s(sCNT)}, 1")
        A("s_cbranch_scc1 L_h2d")
        A("s_waitcnt vmcnt(0)")
        A(f"v_xor_b32 v12, {v(VTAG)}, v19")
        for i in range(1, 4):
            A(f"v_bitop3_b32 v12, v12, {v(19+4*i)}, {v(VTAG)} bitop3:0xf6")
        A("v_cmp_ne_u32 vcc, 0, v12")
        A("s_cbranch_vccnz L_h2p")
        A.label("L_h2d")
        A("s_waitcnt vmcnt(0)")
        self.ts("kvf")
        self.signal(VP, 12, CV_O)
        for i in range(4):
            for e in range(2):
                A(f"v_mov_b32_dpp {v(48+2*i+e)}, {v(18+4*i)} quad_perm:[{e},{e},{e},{e}] row_mask:0xf bank_mask:0xf")
        for h in range(2):
            A(f"v_mov_b32 {v(18+8*h)}, {v(20+8*h)}\nv_mov_b32 {v(19+8*h)}, {v(21+8*h)}")
        for t in range(2):
            for h in range(2):
                A(f"v_mfma_f32_16x16x32_bf16 {v(80+8*t+4*h,4)}, {v(48+4*h,4)}, {v(32+8*t+4*h,4)}, 0")
        for t in range(2):
            for h in range(2):
                A(f"v_mfma_f32_16x16x32_bf16 {v(64+8*t+4*h,4)}, {v(16+8*h,4)}, {v(32+8*t+4*h,4)}, 0")
        for i in range(4):
            A(f"v_add_f32 {v(80+4*i)}, 0x358637bd, {v(80+4*i)}")
        for i in range(4):
            A(f"v_rcp_f32 {v(80+4*i)}, {v(80+4*i)}")
        for i in range(4):
            for h in range(2):
                A(f"v_pk_mul_f32 {v(64+4*i+2*h,2)}, {v(64+4*i+2*h,2)}, {v(80+4*i,2)} op_sel:[0,0] op_sel_hi:[1,0]")
        for i in range(8):
            A(f"v_cvt_pk_bf16_f32 {v(16+i)}, {v(64+2*i)}, {v(65+2*i)}")

        def st(sfx):
            A(f"buffer_store_dwordx4 v[16:19], v1, {s(S_WS,4)}, {s(sA0)} offen{sfx}")
            A(f"buffer_store_dwordx4 v[20:23], v1, {s(S_WS,4)}, {s(sA1)} offen{sfx}")
        self.store_flag(st, sA2, 6, VTAG, data_sc1=bool(self.o.get('o_sc1', 0)))

    def c_addr_setup(self):
        A = self.A
        A(f"s_lshl2_add_u32 {s(sT0)}, {s(sJ)}, {s(sM)}")
        A(f"s_lshl_b32 {s(sT1)}, {s(sRB)}, 6")
        A(f"s_lshl_b32 {s(sB0)}, {s(sT0)}, 14")
        A(f"s_add_u32 {s(sB0)}, {s(sB0)}, {s(sT1)}")
        A(f"s_add_u32 {s(sB0)}, {s(sB0)}, {WS_KVP:#x}")
        A(f"s_lshl_b32 {s(sB1)}, {s(sT0)}, 10")
        A(f"s_add_u32 {s(sB1)}, {s(sB1)}, {s(sT1)}")
        A(f"s_add_u32 {s(sB1)}, {s(sB1)}, {WS_KV2:#x}")
        A(f"s_lshl_b32 {s(sB2)}, {s(sJ)}, 12")
        A(f"s_add_u32 {s(sB2)}, {s(sB2)}, {WS_KV2:#x}")
        A("v_lshrrev_b32 v48, 2, v0")
        A("v_lshlrev_b32 v48, 10, v48")
        A("v_and_b32 v49, 3, v0")
        A("v_lshl_add_u32 v48, v49, 4, v48")
        A(f"s_lshl_b32 {s(sT0)}, {s(sM)}, 7")
        A(f"s_add_u32 {s(sT1)}, {s(sT0)}, {s(sJ)}")
        A(f"s_lshl_b32 {s(sA0)}, {s(sT1)}, 10")
        A(f"s_add_u32 {s(sA0)}, {s(sA0)}, {s(sG)}")
        A(f"s_add_u32 {s(sA0)}, {s(sA0)}, {G_O:#x}")
        A(f"s_add_u32 {s(sA1)}, {s(sA0)}, 16384")
        A(f"s_add_u32 {s(sT0)}, {s(sT0)}, {s(sG)}")
        A(f"s_add_u32 {s(sA9)}, {s(sT0)}, {G_FL2:#x}")
        A(f"s_lshl2_add_u32 {s(sT0)}, {s(sJ)}, {s(sT0)}")
        A(f"s_add_u32 {s(sA2)}, {s(sT0)}, {G_FLO:#x}")
        A(f"s_add_u32 {s(sA10)}, {s(sT0)}, {G_FL3:#x}")
        A(f"s_lshr_b32 {s(sW)}, {s(sM)}, 1")
        A(f"s_lshr_b32 {s(sT1)}, {s(sJ)}, 3")
        A(f"s_and_b32 {s(sT0)}, {s(sM)}, 1")
        A(f"s_lshl1_add_u32 {s(sT1)}, {s(sT1)}, {s(sT0)}")
        A(f"s_and_b32 {s(sT2)}, {s(sJ)}, 7")
        A(f"s_lshl1_add_u32 {s(sT3)}, {s(sT2)}, {s(sW)}")
        A(f"s_lshl_b32 {s(sT0)}, {s(sT1)}, 7")
        A(f"s_add_u32 {s(sT0)}, {s(sT0)}, {s(sG)}")
        A(f"s_add_u32 {s(sA3)}, {s(sT0)}, {G_FLO:#x}")
        A(f"s_add_u32 {s(sA11)}, {s(sT0)}, {G_FL3:#x}")
        A(f"s_lshl2_add_u32 {s(sT0)}, {s(sT3)}, {s(sT0)}")
        A(f"s_add_u32 {s(sA8)}, {s(sT0)}, {G_FL2:#x}")
        A(f"s_lshl_b32 {s(sT0)}, {s(sT1)}, 12")
        A(f"s_add_u32 {s(sT0)}, {s(sT0)}, {s(sG)}")
        A(f"s_add_u32 {s(sA6)}, {s(sT0)}, {G_ST:#x}")
        A(f"s_lshl_b32 {s(sT0)}, {s(sT2)}, 9")
        A(f"s_add_u32 {s(sA7)}, {s(sA6)}, {s(sT0)}")
        A(f"s_lshl2_add_u32 {s(sT0)}, {s(sRB)}, {s(sT1)}")
        A(f"s_lshl_b32 s3, {s(sT0)}, 15")
        A(f"s_lshl_b32 {s(sT0)}, {s(sT3)}, 6")
        A(f"s_add_u32 s3, s3, {s(sT0)}")
        A(f"s_lshl_b32 {s(sEX)}, {s(sT1)}, 17")
        A(f"s_add_u32 {s(sEX)}, {s(sEX)}, {s(sG)}")
        A(f"s_lshl_b32 {s(sT0)}, {s(sW)}, 9")
        A(f"s_add_u32 {s(sA4)}, {s(sEX)}, {s(sT0)}")
        A(f"s_add_u32 {s(sA4)}, {s(sA4)}, {G_O:#x}")
        A(f"s_lshl_b32 {s(sT0)}, {s(sT3)}, 11")
        A(f"s_add_u32 {s(sA5)}, {s(sEX)}, {s(sT0)}")
        self.rot_setup()
        self.rm_voff(123)
        A(f"buffer_load_dwordx4 v[56:59], v123, {s(S_X,4)}, s3 offen")
        A(f"buffer_load_dwordx4 v[60:63], v123, {s(S_X,4)}, s3 offen offset:32")
        A("v_bfe_u32 v3, v0, 4, 1")
        A("v_lshlrev_b32 v122, 14, v3")
        A("v_lshl_add_u32 v122, v2, 8, v122")
        A("v_and_b32 v3, 15, v0")
        A("v_lshl_add_u32 v122, v3, 4, v122")
        self.slab_bases(120, 10)

    def rm_voff(self, d):
        A = self.A
        A(f"v_and_b32 {v(d)}, 31, v0")
        A(f"v_lshlrev_b32 {v(d)}, 10, {v(d)}")
        A("v_lshrrev_b32 v2, 5, v0")
        A(f"v_lshl_add_u32 {v(d)}, v2, 4, {v(d)}")

    def rot_setup(self):
        A = self.A
        A(f"s_lshr_b32 {s(sT1)}, {s(sRB)}, 1")
        A(f"s_lshl_b32 {s(sRB)}, {s(sT1)}, 1")
        A(f"s_lshl_b32 {s(sEX+1)}, {s(sT1)}, 2")

    def slab_bases(self, dst, khshift):
        A = self.A
        A("v_lshrrev_b32 v2, 5, v0")
        A("v_bfe_u32 v3, v0, 2, 2")
        A("v_lshl_add_u32 v2, v2, 2, v3")
        A(f"s_lshl_b32 {s(sT0)}, {s(sW)}, {khshift}")
        A(f"v_lshl_add_u32 v2, v2, 7, {s(sT0)}")
        A("v_bfe_u32 v3, v0, 3, 1")
        A(f"v_xor_b32 v3, {s(sW)}, v3")
        A("v_lshl_add_u32 v2, v3, 6, v2")
        A("v_bfe_u32 v3, v0, 4, 1")
        A("v_lshl_add_u32 v2, v3, 5, v2")
        A("v_and_b32 v3, 3, v0")
        A(f"v_lshl_add_u32 {v(dst)}, v3, 3, v2")
        A(f"v_xor_b32 {v(dst+1)}, 64, {v(dst)}")

    def g32(self, n, AF, ld, LA, rd, ring=False):
        A = self.A
        q = [("rd", i) for i in range(3) for _ in range(4)]
        for i in range(n):
            last = max(k for k, x in enumerate(q) if x == ("rd", i))
            A(f"s_waitcnt vmcnt({min(n-1, i+LA-1) - i}) lgkmcnt({len(q) - 1 - last})")
            q = q[last + 1:]
            mf = [f"v_mfma_f32_32x32x16_bf16 {v(32+16*T,16)}, {v(self.BR + (i&3)*8 + 4*T,4)}, {AF(i)}, {v(32+16*T,16) if i else 0}" for T in range(2)]
            oth = ld(i + LA) if i + LA < n else []
            if not ring and i + LA == n - 1:
                oth += [f"v_mov_b32 v25, {CV_P2L}", f"ds_write_b32 {v(VP)}, v25"]
                q.append(("sig", i))
            if ring and i % 3 == 2 and 16 + i // 3 <= 18:
                oth += [f"v_mov_b32 v25, {32 + i//3}", f"ds_write_b32 {v(VP)}, v25"]
                q.append(("sig", i))
            if i + 3 < n:
                if ring and (i + 3) % 3 == 0:
                    A(mf[0]); mf = mf[1:]
                    self.check(24, 32 + (i + 3) // 3)
                    oth += [f"ds_read_b32 v24, {v(VQ)} offset:16"]
                    q.append(("probe", i))
                r = rd(i + 3)
                oth += r
                q += [("rd", i + 3)] * 4
            self.emit(weave(mf, oth, per=5))

    def check(self, vtmp, val):
        A = self.A
        Ls, Ld = A.uniq("L_cks"), A.uniq("L_ck")
        A(f"v_cmp_gt_u32 vcc, {val}, {v(vtmp)}")
        A(f"s_cbranch_vccnz {Ls}")
        A.label(Ld)
        self.outline(Ls, Ld, lambda: self.lwait(VQ, vtmp, val, off=16))

    def exchange(self, base, val=None):
        A = self.A
        A(f"s_lshl_b32 {s(sT0)}, {s(sM)}, 11")
        A(f"v_add_u32 v2, {s(sT0)}, v1")
        A("v_xor_b32 v3, 0x1000, v2")
        A(f"v_add_u32 v26, {base[1]}, v2")
        A(f"v_add_u32 v27, {base[1]}, v3")
        A(f"v_add_u32 v2, {base[0]}, v2")
        A(f"v_add_u32 v3, {base[0]}, v3")
        for i in range(4):
            A(f"ds_write_b128 {v(2 if i < 2 else 26)}, {v(48+4*i,4)} offset:{(i&1)*1024}")
        rds = [f"ds_read_b128 {v(64+4*i,4)}, {v(3 if i < 2 else 27)} offset:{(i&1)*1024}" for i in range(4)]
        self.signal(VP, 24, val)
        self.lwait(VQ, 24, val, extra=rds)

    def mt_addr(self):
        A = self.A
        A(f"s_lshl_b32 {s(sT0)}, {s(sW)}, 7")
        A(f"s_add_u32 {s(sT0)}, {s(sT0)}, {L_MT}")
        A("v_lshrrev_b32 v123, 5, v0")
        A(f"v_lshl_add_u32 v123, v123, 4, {s(sT0)}")

    def c_p2(self):
        A = self.A
        self.BR = 64

        def rd(u):
            return [f"ds_read_b64_tr_b16 {v(64 + (u&3)*8 + T*4 + hh*2, 2)}, {v(120+T)} offset:{u*4096 + hh*2048}" for T in range(2) for hh in range(2)]

        def ld(i):
            o = [f"buffer_load_dwordx4 {a(4*i,4)}, v122, {s(S_WS,4)}, {s(sA4)} offen offset:{(i&3)*1024} sc1"]
            if (i & 3) == 3 and i < 15:
                o.append(f"s_add_u32 {s(sA4)}, {s(sA4)}, 4096")
            return o
        self.mt_addr()
        self.lwait(VQ, 24, HV_G, off=16)
        for e in range(2):
            A(f"v_permlane32_swap_b32 {v(56+4*e)}, {v(58+4*e)}")
            A(f"v_permlane32_swap_b32 {v(57+4*e)}, {v(59+4*e)}")
        self.emit(rd(0) + rd(1) + rd(2))
        for i in range(8):
            A(f"v_lshlrev_b32 {v(8+2*i)}, 16, {v(56+i)}")
            A(f"v_and_b32 {v(9+2*i)}, {v(VMASK)}, {v(56+i)}")
        LA = self.o.get("la2", 8)
        self.poll(5, sA3, 24)
        for i in range(LA):
            self.emit(ld(i))
        self.ts("o_flags")
        self.g32(16, lambda i: a(4*i, 4), ld, LA, rd)
        self.ts("p2_gemm")
        self.lwait(VQ, 24, 1, off=48, extra=[f"ds_read_b128 {v(96+4*q,4)}, v123 offset:{q*32}" for q in range(4)])
        self.exchange(L_EX2, CV_X2)
        for vec in range(2):
            for q in range(4):
                A(f"ds_read_b128 {v(48+32*vec+4*q,4)}, v123 offset:{(vec+1)*256 + q*32}")
        A("v_mov_b32 v24, 0\nv_mov_b32 v25, 0\nv_mov_b32 v28, 0x3f803f80")
        A(f"v_mov_b32 v26, {v(VTAG)}\nv_mov_b32 v27, {v(VTAG)}")
        A(f"s_and_b32 {s(sT0)}, {s(sM)}, 1")
        A(f"s_lshl_b32 {s(sT0)}, {s(sT0)}, 8")
        A(f"s_add_u32 {s(sT0)}, {s(sT0)}, {L_SX}")
        A(f"v_lshl_add_u32 v29, v0, 2, {s(sT0)}")
        for q in range(4):
            A(f"s_waitcnt lgkmcnt({11-q})")
            for i in range(2*q, 2*q+2):
                A(f"v_pk_add_f32 {v(32+2*i,2)}, {v(32+2*i,2)}, {v(64+2*i,2)}")
            for i in range(2*q, 2*q+2):
                A(f"v_pk_fma_f32 {v(8+2*i,2)}, {v(32+2*i,2)}, {v(96+2*i,2)}, {v(8+2*i,2)}")
        for i in range(8):
            A(f"v_cvt_pk_bf16_f32 {v(112+i)}, {v(8+2*i)}, {v(9+2*i)}")
        for i in range(8):
            A(f"v_dot2c_f32_bf16 v24, v28, {v(112+i)}")
            A(f"v_dot2c_f32_bf16 v25, {v(112+i)}, {v(112+i)}")
        A("v_permlane32_swap_b32 v24, v25")
        A("v_add_f32 v24, v24, v25")
        A(f"s_cmp_eq_u32 {s(sW)}, 0")
        A("s_cbranch_scc1 L_sx0")
        A("ds_write_b32 v29, v24")
        self.signal(VP, 30, CV_SX)
        A("s_branch L_sx1")
        A.label("L_sx0")
        A(f"v_add_u32 v31, 8, {v(VP)}")
        self.lwait(31, 30, CV_SX, extra=["ds_read_b32 v25, v29"])
        A("s_waitcnt lgkmcnt(0)")
        A("v_add_f32 v24, v24, v25")
        A("v_mov_b32 v25, v24")
        A("v_permlane32_swap_b32 v24, v25")
        A("s_mov_b32 exec_hi, 0")
        self.dual(lambda sfx: A(f"buffer_store_dwordx4 v[24:27], v1, {s(S_WS,4)}, {s(sA7)} offen{sfx}"))
        A("s_mov_b64 exec, -1")
        A.label("L_sx1")
        for i in range(8):
            A(f"v_lshlrev_b32 {v(8+2*i)}, 16, {v(112+i)}")
            A(f"v_and_b32 {v(9+2*i)}, {v(VMASK)}, {v(112+i)}")
        A(f"s_lshl_b32 {s(sT0)}, {s(sM)}, 11")
        A(f"s_add_u32 {s(sT0)}, {s(sT0)}, {L_X1}")
        A(f"v_add_u32 v2, {s(sT0)}, v1")
        A("ds_write_b128 v2, v[112:115]")
        A("ds_write_b128 v2, v[116:119] offset:1024")
        A(f"s_mov_b32 {s(sCNT)}, {SPIN}")
        A.label("L_st")
        for i in range(4):
            A(f"buffer_load_dwordx4 {v(32+4*i,4)}, v1, {s(S_WS,4)}, {s(sA6)} offen offset:{i*1024} sc1")
        A(f"s_sub_u32 {s(sCNT)}, {s(sCNT)}, 1")
        A("s_cbranch_scc1 L_std")
        A("s_waitcnt vmcnt(0)")
        A(f"v_xor_b32 v28, {v(VTAG)}, v34")
        for i in range(1, 4):
            A(f"v_bitop3_b32 v28, v28, {v(34+4*i)}, {v(VTAG)} bitop3:0xf6")
        A("v_cmp_ne_u32 vcc, 0, v28")
        A("s_cbranch_vccnz L_st")
        A.label("L_std")
        A("s_waitcnt vmcnt(0) lgkmcnt(0)")
        self.signal(VP, 28, CV_ST)
        A("v_pk_add_f32 v[32:33], v[32:33], v[36:37]\nv_pk_add_f32 v[40:41], v[40:41], v[44:45]")
        A("v_pk_add_f32 v[30:31], v[32:33], v[40:41]")
        A("v_permlane32_swap_b32 v30, v31")
        A("v_add_f32 v30, v30, v31")
        A("v_mul_f32 v30, 0x3b000000, v30")
        A("v_mov_b32 v31, v30")
        A("v_permlane32_swap_b32 v30, v31")
        A("v_fma_f32 v31, -v30, v30, v31")
        A("v_max_f32 v31, 0, v31")
        A("v_add_f32 v31, 0x3727c5ac, v31")
        A("v_rsq_f32 v31, v31")
        A("v_mul_f32_e64 v30, -v30, v31")
        for i in range(8):
            A(f"v_pk_fma_f32 {v(8+2*i,2)}, {v(8+2*i,2)}, v[30:31], v[30:31] op_sel:[0,1,0] op_sel_hi:[1,1,0]")
        for i in range(8):
            A(f"v_pk_fma_f32 {v(8+2*i,2)}, {v(8+2*i,2)}, {v(80+2*i,2)}, {v(48+2*i,2)}")
        for i in range(8):
            A(f"v_cvt_pk_bf16_f32 {v(32+i)}, {v(8+2*i)}, {v(9+2*i)}")

        def st(sfx):
            A(f"buffer_store_dwordx4 v[32:35], v1, {s(S_WS,4)}, {s(sA5)} offen{sfx}")
            A(f"buffer_store_dwordx4 v[36:39], v1, {s(S_WS,4)}, {s(sA5)} offen offset:1024{sfx}")
        self.store_flag(st, sA8, 6, VTAG)
        self.ts("h2_pub")

    def c_p3(self):
        A = self.A
        A(f"s_lshl_b32 {s(sT1)}, {s(sM)}, 17")
        A(f"s_add_u32 {s(sT1)}, {s(sT1)}, {s(sG)}")
        A("v_lshrrev_b32 v2, 4, v0")
        A(f"v_lshl_add_u32 v3, v2, 9, {s(sT1)}")
        A("v_lshl_add_u32 v3, v5, 2, v3")
        A(f"s_lshl_b32 {s(sT0)}, {s(sRB)}, 11")
        A(f"s_mul_i32 {s(sT1)}, {s(sJ)}, 6144")
        A(f"s_add_u32 {s(sT1)}, {s(sT1)}, {G_HH:#x}")
        A(f"s_add_u32 {s(sT2)}, {s(sT1)}, 4096")
        A(f"s_cmp_eq_u32 {s(sJ)}, 15")
        A("s_cbranch_scc1 L_p3_idle")
        A("v_lshrrev_b32 v2, 5, v0")
        A("v_bfe_u32 v1, v0, 2, 3")
        A("v_lshl_add_u32 v2, v2, 4, v1")
        A("v_mul_u32_u24 v2, 192, v2")
        A("v_and_b32 v1, 3, v0")
        A("v_lshl_add_u32 v2, v1, 3, v2")
        A("v_and_b32 v1, 16, v0")
        A("v_lshl_add_u32 v2, v1, 1, v2")
        A(f"v_add_u32 v2, {slot_addr(0)}, v2")
        A("v_xor_b32 v6, 32, v2")
        LA = self.o.get("la3", 4)

        def ld(u):
            o = [f"buffer_load_dwordx4 {a((u*2+t)*4,4)}, v3, {s(S_WS,4)}, {s(sT0)} offen offset:{t*256} sc1" for t in range(2)]
            if u < 15:
                o += [f"s_add_u32 {s(sT0)}, {s(sT0)}, 2048", f"s_and_b32 {s(sT0)}, {s(sT0)}, 0x7fff"]
            return o
        seq = [(u, f, mt) for u in range(16) for f in range(6) for mt in range(2)]
        cur = {"base": slot_addr(0)}
        NB, NPF = 6, self.o.get("npf", 5)
        q = []

        def rd(idx):
            u, f, mt = seq[idx]
            o = slot_addr(u) + mt * 6144 + (f & ~1) * 32 - cur["base"]
            assert 0 <= o and o + 1536 < 65536
            b = 8 + (idx % NB) * 4
            return [f"ds_read_b64_tr_b16 {v(b+hh*2,2)}, {v(6 if f & 1 else 2)} offset:{o + hh*1536}" for hh in range(2)]

        def rebase(u):
            if 0 <= slot_addr(u) - cur["base"] < 65536 - 12288:
                return []
            d = slot_addr(u) - cur["base"]
            cur["base"] = slot_addr(u)
            return [f"v_add_u32 {v(r)}, {d}, {v(r)}" if d >= 0 else f"v_subrev_u32 {v(r)}, {-d}, {v(r)}" for r in (2, 6)]
        self.first_check_before_e = 0
        for i in range(NPF):
            self.emit(rd(i)); q += [("rd", i)] * 2
        self.poll(5, sA9, 32)
        for u in range(LA):
            self.emit(ld(u))
        self.signal(VP, 1, CV_E)
        q.append(("sig", -1))
        self.ts("h2_flags")
        LAST = self.o.get("lastsig", 15)
        spare = []
        for idx, (u, f, mt) in enumerate(seq):
            i12 = idx % 12
            nu = (idx + NPF) // 12
            last = max(i for i, x in enumerate(q) if x == ("rd", idx))
            w = f"lgkmcnt({len(q) - 1 - last})"
            del q[:last + 1]
            if i12 == 0:
                assert not spare
                w = f"vmcnt({2*(min(15, u+LA-1) - u)}) " + w
                if u < 15:
                    spare.append((f"ds_read_b32 v5, {v(VQ)} offset:16", "probe"))
                if 0 < u <= LAST + 1:
                    spare += [(f"v_mov_b32 v1, {16 + u - 1}", None), (f"ds_write_b32 {v(VP)}, v1", "sig")]
                if u + LA < 16:
                    spare += [(x, None) for x in ld(u + LA)]
            A(f"s_waitcnt {w}")
            b = 8 + (idx % NB) * 4
            mf = []
            for t in range(2):
                d = 32 + ((mt * 2 + t) * 6 + f) * 4
                mf.append(f"v_mfma_f32_16x16x32_bf16 {v(d,4)}, {v(b,4)}, {a((u*2+t)*4,4)}, {v(d,4) if u else 0}")
            A(mf[0])
            newunit = (idx + NPF) % 12 == 0 and idx + NPF < len(seq)
            if newunit:
                assert ("probe", u) not in q
                self.check(5, 16 + nu)
                self.emit(rebase(nu))
            elif spare:
                x, tag = spare.pop(0)
                A(x)
                if tag:
                    q.append((tag, u))
            r = rd(idx + NPF) if idx + NPF < len(seq) else []
            self.emit(r[:1])
            A(mf[1])
            self.emit(r[1:])
            q += [("rd", idx + NPF)] * len(r)
        if LAST >= 15:
            self.signal(VP, 1, 31)
        A(f"v_mov_b32 v5, {s(sTAG)}")
        A("v_mov_b32 v6, 0")
        self.ts("p3_gemm")

        def st(sfx):
            for e in range(3):
                for t in range(2):
                    g0 = 32 + (t * 6 + 2 * e) * 4
                    u0 = 32 + ((2 + t) * 6 + 2 * e) * 4
                    for i in range(8):
                        A(f"v_max_f32 {v(g0+i)}, 0, {v(g0+i)}")
                    for i in range(4):
                        A(f"v_pk_mul_f32 {v(g0+2*i,2)}, {v(g0+2*i,2)}, {v(u0+2*i,2)}")
                    o = 8 + (e * 2 + t) * 4
                    for i in range(4):
                        A(f"v_cvt_pk_bf16_f32 {v(o+i)}, {v(g0+2*i)}, {v(g0+2*i+1)}")
                    A(f"buffer_store_dwordx4 {v(o,4)}, v3, {s(S_WS,4)}, {s(sT1 if e < 2 else sT2)} offen offset:{(e&1)*2048 + t*256}{sfx}")
        self.store_flag(st, sA10, 6, 5, data_sc1=bool(self.o.get("hh_sc1", 1)))
        A("s_branch L_p3_done")
        A.label("L_p3_idle")
        self.signal(VP, 1, 31)
        self.lwait(VQ, 1, 40, off=16, sleep=8)
        A.label("L_p3_done")
        self.ts("hh_pub")

    def c_p4(self):
        A = self.A
        self.BR = 64
        A("v_lshlrev_b32 v1, 4, v0")
        A("v_and_b32 v122, 15, v0")
        A("v_min_u32 v122, 14, v122")
        A("v_lshlrev_b32 v122, 2, v122")
        self.rm_voff(127)
        self.slab_bases(124, 10)
        A(f"s_lshl_b32 {s(sT0)}, {s(sW)}, 10")
        A(f"s_add_u32 {s(sT0)}, {s(sT0)}, {s(sEX)}")
        A(f"s_add_u32 {s(sT0)}, {s(sT0)}, {G_HH:#x}")
        A(f"v_add_u32 v126, {s(sT0)}, v1")
        A(f"s_lshl_b32 {s(sT3)}, {s(sEX+1)}, 11")
        AF = lambda i: a(4 * (i % 32), 4)
        LA = self.o.get("la4", 8)

        def ld(i):
            o = [f"buffer_load_dwordx4 {AF(i)}, v126, {s(S_WS,4)}, {s(sT3)} offen sc1"]
            if i < 42:
                o += [f"s_add_u32 {s(sT3)}, {s(sT3)}, 2048", f"s_cmp_lg_u32 {s(sT3)}, {43*2048}", f"s_cselect_b32 {s(sT3)}, {s(sT3)}, 0"]
            return o
        cur = {"base": 0}

        def rd(i):
            o = []
            off = wd_addr(i)
            if not (0 <= off - cur["base"] < 61440):
                d = off - cur["base"]
                for r in (124, 125):
                    o.append(f"v_add_u32 {v(r)}, {d}, {v(r)}" if d >= 0 else f"v_subrev_u32 {v(r)}, {-d}, {v(r)}")
                cur["base"] = off
            return o + [f"ds_read_b64_tr_b16 {v(64 + (i&3)*8 + T*4 + hh*2, 2)}, {v(124+T)} offset:{off - cur['base'] + hh*2048}" for T in range(2) for hh in range(2)]
        self.mt_addr()
        A(f"s_lshl_b32 {s(sT0)}, {s(sM)}, 11")
        A(f"s_add_u32 {s(sT0)}, {s(sT0)}, {L_X1}")
        A(f"v_add_u32 v2, {s(sT0)}, v1")
        A("ds_read_b128 v[112:115], v2")
        A("ds_read_b128 v[116:119], v2 offset:1024")
        for q in range(4):
            A(f"ds_read_b128 {v(96+4*q,4)}, v123 offset:{3*256 + q*32}")
        A("v_mov_b32 v3, 0xffff0000")
        A("s_waitcnt lgkmcnt(4)")
        for i in range(8):
            A(f"v_lshlrev_b32 {v(8+2*i)}, 16, {v(112+i)}")
            A(f"v_and_b32 {v(9+2*i)}, v3, {v(112+i)}")
        self.lwait(VQ, 24, 32, off=16)
        self.emit(rd(0) + rd(1) + rd(2))
        self.poll(122, sA11, 25)
        for i in range(LA):
            self.emit(ld(i))
        if self.o.get("lastsig", 15) < 15:
            self.signal(VP, 25, 31)
            A("s_waitcnt lgkmcnt(0)")
        self.ts("hh_flags")
        self.g32(43, AF, ld, LA, rd, ring=True)
        self.exchange(L_EX4, 60)
        for q in range(4):
            A(f"s_waitcnt lgkmcnt({3-q})")
            for i in range(2*q, 2*q+2):
                A(f"v_pk_add_f32 {v(32+2*i,2)}, {v(32+2*i,2)}, {v(64+2*i,2)}")
            for i in range(2*q, 2*q+2):
                A(f"v_pk_fma_f32 {v(8+2*i,2)}, {v(32+2*i,2)}, {v(96+2*i,2)}, {v(8+2*i,2)}")
        for i in range(8):
            A(f"v_cvt_pk_bf16_f32 {v(24+i)}, {v(8+2*i)}, {v(9+2*i)}")
        for e in range(2):
            A(f"v_permlane32_swap_b32 {v(24+4*e)}, {v(26+4*e)}")
            A(f"v_permlane32_swap_b32 {v(25+4*e)}, {v(27+4*e)}")
        A(f"buffer_store_dwordx4 v[24:27], v127, {s(S_OUT,4)}, s3 offen")
        A(f"buffer_store_dwordx4 v[28:31], v127, {s(S_OUT,4)}, s3 offen offset:32")
        if self.diag or self.leak:
            A("s_waitcnt vmcnt(0)")
        self.ts("end")
        if self.diag:
            A(f"s_mov_b32 {s(sW)}, {s(sM)}")
        A("s_branch L_fin")

    def gu_unit(self, thr=None):
        A = self.A
        A(f"s_mul_i32 {s(sT0)}, {s(sRB)}, {32*2752}")
        A(f"s_add_u32 {s(sT1)}, {s(sA7)}, {s(sA1)}")
        A(f"s_add_u32 {s(sT0)}, {s(sT0)}, {s(sA0)}")
        fill = [f"s_add_u32 {s(sRB)}, {s(sRB)}, 1", f"s_and_b32 {s(sRB)}, {s(sRB)}, 15", f"s_add_u32 {s(sA7)}, {s(sA7)}, 12288",
                f"s_add_u32 {s(sT0)}, {s(sT0)}, {16*2752}", "s_nop 0", "s_nop 0"]
        for i in range(6):
            A(f"s_add_u32 m0, {s(sT1)}, {i*1024}")
            A(fill[i])
            if thr is not None:
                A(f"s_waitcnt vmcnt({thr})")
            A(f"buffer_load_dwordx4 {v(48+i%3)}, {s(S_GU,4)}, {s(sT0)} offen lds")
        A(f"s_cmp_lg_u32 {s(sA7)}, {12*12288}")
        A(f"s_cselect_b32 {s(sA7)}, {s(sA7)}, 0")

    def wd_unit(self, thr=None):
        A = self.A
        A(f"s_add_u32 {s(sT1)}, {s(sA7)}, {s(sA3)}")
        for i in range(3):
            A(f"s_add_u32 m0, {s(sT1)}, {i*4096}")
            A(f"s_add_u32 {s(sT0)}, {s(sA4)}, 32768")
            if thr is not None:
                A(f"s_waitcnt vmcnt({max(thr-1, 0)})")
            A(f"buffer_load_dwordx4 v51, {s(S_WD,4)}, {s(sA4)} offen lds")
            A(f"s_add_u32 m0, {s(sT1)}, {i*4096 + 2048}")
            A(f"s_cmp_lg_u32 {s(sT0)}, {43*32768}")
            A(f"buffer_load_dwordx4 v47, {s(S_WD,4)}, {s(sA4)} offen lds")
            A(f"s_cselect_b32 {s(sA4)}, {s(sT0)}, 0")
        A(f"s_add_u32 {s(sA7)}, {s(sA7)}, 12288")
        A(f"s_cmp_lg_u32 {s(sA7)}, {12*12288}")
        A(f"s_cselect_b32 {s(sA7)}, {s(sA7)}, 0")

    def w_dma_rot(self, mats):
        A = self.A
        L, Ld = A.uniq("L_wd"), A.uniq("L_wdd")
        A.label(L)
        A(f"s_sub_u32 {s(sCNT)}, {s(sCNT)}, 1")
        A(f"s_cbranch_scc1 {Ld}")
        A(f"s_mul_i32 {s(sT0)}, {s(sT2)}, {4*49152}")
        A(f"s_lshl_b32 {s(sT1)}, {s(sT2)}, 12")
        A(f"s_add_u32 {s(sT0)}, {s(sT0)}, {s(sA9)}")
        A(f"s_add_u32 {s(sT1)}, {s(sT1)}, {s(sA3)}")
        A(f"s_add_u32 {s(sT2)}, {s(sT2)}, 1")
        for vo, off, lbase in mats:
            A(f"s_add_u32 m0, {s(sT1)}, {lbase - off}")
            A(f"s_and_b32 {s(sT2)}, {s(sT2)}, 7")
            A(f"buffer_load_dwordx4 {v(vo)}, {s(S_W,4)}, {s(sT0)} offen offset:{off} lds")
        A(f"s_branch {L}")
        A.label(Ld)

    def pwave(self):
        A = self.A
        P, X, SL, CN, IX, AD = sA0, sA1, sA2, sA4, sA6, sEX
        A.label("L_pw")
        A(f"s_and_b32 {s(P)}, {s(sM)}, 1")
        A(f"s_and_b32 {s(X)}, s2, 7")
        A("s_waitcnt lgkmcnt(0)")

        def seg(name, srd, count, start, wrap, step, stride, base_code, nld, first_hook=None):
            A(base_code)
            A(start)
            A(f"s_mov_b32 {s(CN)}, {count}")
            A.label(f"L_pw_{name}")
            A(f"s_sub_u32 {s(sT0)}, {s(IX)}, {wrap}")
            A(f"s_cselect_b32 {s(IX)}, {s(IX)}, {s(sT0)}")
            A(f"s_mul_i32 {s(sT0)}, {s(IX)}, {stride}")
            A(f"s_add_u32 {s(sT0)}, {s(sT0)}, {s(sA7)}")
            A(f"s_add_u32 {s(AD)}, {s(srd)}, {s(sT0)}")
            A(f"s_addc_u32 {s(AD+1)}, {s(srd+1)}, 0")
            for i in range(nld):
                A(f"s_load_dword {s(sA8 + (i & 3))}, {s(AD,2)}, {i*64}")
            if first_hook:
                first_hook()
            A(f"s_add_u32 {s(IX)}, {s(IX)}, {step}")
            A(f"s_sub_u32 {s(CN)}, {s(CN)}, 1")
            A(f"s_cmp_lg_u32 {s(CN)}, 0")
            A(f"s_cbranch_scc1 L_pw_{name}")

        def landed():
            A("s_waitcnt vmcnt(0)")
            A("v_mov_b32 v12, 0x100")
            A(f"ds_write2_b32 {v(VP)}, v12, v12 offset0:0 offset1:8")
        hook = landed
        for sg in self.o_segs:
            if sg == "q":
                seg("q", S_W, 8, f"s_mov_b32 {s(IX)}, {s(X)}", 8, 1, 3072,
                    f"s_lshl1_add_u32 {s(sA7)}, {s(SL)}, {s(P)}\ns_mul_i32 {s(sA7)}, {s(sA7)}, {8*3072}", 16, hook)
            elif sg == "o":
                seg("o", S_WO, 8, f"s_mov_b32 {s(IX)}, {s(X)}", 8, 1, 1024,
                    f"s_lshl1_add_u32 {s(sA7)}, {s(SL)}, {s(P)}\ns_lshl_b32 {s(sA7)}, {s(sA7)}, 13", 16, hook)
            elif sg[0] == "g":
                u0, u1 = map(int, sg[1:].split("-"))
                A(f"s_cmp_lg_u32 {s(P)}, 0")
                A(f"s_cselect_b64 {s(S_X,2)}, {s(S_WU,2)}, {s(S_WG,2)}")
                seg(f"g{u0}", S_X, u1 - u0, f"s_lshl1_add_u32 {s(IX)}, {s(X)}, {u0}", 16, 1, 32*2752,
                    f"s_mul_i32 {s(sA7)}, {s(SL)}, 2752", 43, hook)
            elif sg[0] == "d":
                n = int(sg[1:])
                seg("d", S_WD, n, f"s_lshl2_add_u32 {s(IX)}, {s(X)}, {s(P)}", 43, 2, 32768,
                    f"s_lshl_b32 {s(sA7)}, {s(SL)}, 10", 16, hook)
            hook = None
            self.ts("p" + sg)
        if hook:
            hook()
        A("s_waitcnt lgkmcnt(0)")
        A("s_branch L_fin")

    def helper(self):
        A = self.A
        A.label("L_helper")
        self.srd_consts([S_W, S_PHI])
        A("v_lshrrev_b32 v12, 2, v0")
        A("v_mul_u32_u24 v12, 3072, v12")
        A("v_lshrrev_b32 v5, 4, v0")
        A("v_and_b32 v5, 2, v5")
        A("v_and_b32 v45, 3, v0")
        A("v_xor_b32 v5, v5, v45")
        A("v_lshl_add_u32 v45, v5, 4, v12")
        A(f"s_lshl_b32 {s(sA3)}, {s(sM)}, 10")
        A(f"s_mul_i32 {s(sA9)}, {s(sM)}, 49152")
        A(f"s_lshl_b32 {s(sT0)}, {s(sJ)}, 6")
        A(f"s_add_u32 {s(sA9)}, {s(sA9)}, {s(sT0)}")
        A(f"s_add_u32 {s(sA9)}, {s(sA9)}, 1024")
        A(f"s_lshr_b32 {s(sT2)}, {s(sRB)}, 1")
        A("s_waitcnt lgkmcnt(0)")
        self.wsoff()
        self.bar()
        A("v_lshlrev_b32 v2, 7, v0")
        A(f"s_cmp_eq_u32 {s(sM)}, 1")
        A("s_cbranch_scc1 L_h1")
        A(f"s_cmp_eq_u32 {s(sM)}, 2")
        A("s_cbranch_scc1 L_h2")
        A(f"s_cmp_eq_u32 {s(sM)}, 3")
        A("s_cbranch_scc1 L_h4")
        A("s_branch L_h3")
        A.label("L_h1")
        if self.o.get("cpf", 1):
            A(f"s_getpc_b64 {s(sEX,2)}")
            A.label("L_pc")
            A(f"s_sub_u32 {s(sEX)}, {s(sEX)}, L_pc-{KNAME}")
            A(f"s_subb_u32 {s(sEX+1)}, {s(sEX+1)}, 0")
            if self.o.get("cpf", 1) == 1:
                A(f"s_lshr_b32 {s(sT0)}, s2, 3")
                A(f"s_lshl_b32 {s(sT0)}, {s(sT0)}, 10")
                A(f"v_add_u32 v3, {s(sT0)}, v2")
                A(f"v_min_u32 v3, L_end-{KNAME}, v3")
                A("s_mov_b64 exec, 0xff")
                A(f"global_load_dword v10, v3, {s(sEX,2)}")
                A("s_mov_b64 exec, -1")
        A("s_branch L_h3")
        A.label("L_h2")
        A(f"s_lshl_b32 {s(sT0)}, s2, 8")
        A(f"s_add_u32 {s(sT0)}, {s(sT0)}, {WS_KV2:#x}")
        A(f"v_add_u32 v3, {s(sT0)}, v2")
        A(f"s_lshl_b32 {s(sT0)}, {s(sJ)}, 7")
        A(f"s_add_u32 {s(sT0)}, {s(sT0)}, {s(sG)}")
        A(f"s_add_u32 {s(sT0)}, {s(sT0)}, {G_FL:#x}")
        A(f"v_writelane_b32 v3, {s(sT0)}, 2")
        A(f"s_and_b32 {s(sT0)}, s2, 127")
        A(f"s_lshl_b32 {s(sT0)}, {s(sT0)}, 7")
        A(f"s_add_u32 {s(sT0)}, {s(sT0)}, {WS_MODU:#x}")
        A(f"v_writelane_b32 v3, {s(sT0)}, 3")
        A("s_waitcnt lgkmcnt(0)")
        A("s_mov_b64 exec, 15")
        A(f"buffer_load_dword v10, v3, {s(S_WS,4)}, 0 offen")
        A("s_mov_b64 exec, -1")
        A("s_branch L_h3")
        A.label("L_h4")
        A(f"s_mov_b32 m0, {L_PHI}")
        A(f"s_lshl_b32 {s(sT0)}, {s(sJ)}, 10")
        A(f"buffer_load_dwordx4 v1, {s(S_PHI,4)}, {s(sT0)} offen lds")
        A.label("L_h3")
        A(f"buffer_load_dword {v(VTAG)}, v6, {s(S_WS,4)}, 0 offen sc1")
        NB1 = self.o.get("nb1", 3)
        KV = [(45, 0, L_WK), (45, 1024, L_WV)]
        for r, off in ((S_WO, 24), (S_WG, 40), (S_WU, 48), (S_WD, 56)):
            A(f"s_load_dwordx2 {s(r,2)}, s[0:1], {off}")
        A(f"s_lshr_b32 {s(sA2)}, s2, 3")
        A(f"s_lshl2_add_u32 {s(sT0)}, {s(sA2)}, {s(sM)}")
        A(f"s_mul_i32 {s(sA5)}, {s(sT0)}, {4*3072}")
        A("v_lshrrev_b32 v12, 4, v0")
        A("v_mul_u32_u24 v12, 3072, v12")
        A("v_and_b32 v13, 15, v0")
        A("v_lshl_add_u32 v44, v13, 7, v12")
        if self.o.get("wshare", 1) == 1:
            A(f"buffer_load_dword v10, v44, {s(S_W,4)}, {s(sA5)} offen offset:1024")
        if self.o.get("wshare", 1) == 2:
            A("s_mov_b32 exec_lo, 0x08080808\ns_mov_b32 exec_hi, 0x08080808")
            A(f"buffer_load_dword v10, v44, {s(S_W,4)}, {s(sA5)} offen offset:1024")
            A("s_mov_b32 exec_lo, 0x00080008\ns_mov_b32 exec_hi, 0x00080008")
            A(f"buffer_load_dword v10, v44, {s(S_W,4)}, {s(sA5)} offen")
            A("s_mov_b64 exec, -1")
        if self.o.get("qshare", 0):
            A("s_mov_b32 exec_lo, 0x00ff00ff\ns_mov_b32 exec_hi, 0x00ff00ff")
            A(f"buffer_load_dword v10, v44, {s(S_W,4)}, {s(sA5)} offen")
            A("s_mov_b64 exec, -1")
        A(f"s_cmp_ge_u32 s2, {self.o.get('hold', 32)}")
        A("s_cbranch_scc1 L_nohold")
        A("s_waitcnt lgkmcnt(0)")
        self.lwait(VQ, 12, CV_G, sleep=2)
        A.label("L_nohold")
        if self.o.get("hw", 0) == 1:
            A("s_waitcnt vmcnt(0)")
        if self.o.get("hw", 0) > 1:
            A(f"s_mov_b32 {s(sCNT)}, {self.o.get('hw') - 1}")
            self.w_dma_rot(KV)
            A("s_waitcnt vmcnt(0)")
        self.ts("iss1")
        R0 = self.o.get("s0r", 8)
        A("s_cmp_ge_u32 s2, 32")
        A(f"s_cselect_b32 {s(sCNT)}, {R0}, {self.o.get('s0rp', R0)}")
        A(f"s_sub_u32 {s(sT3)}, 8, {s(sCNT)}")
        if self.o.get("hw", 0) > 1:
            A(f"s_sub_u32 {s(sCNT)}, {s(sCNT)}, {self.o.get('hw') - 1}")
        self.w_dma_rot(KV)
        self.signal(VP, 12, HV_I)
        A(f"s_mov_b32 {s(sCNT)}, {s(sT3)}")
        self.w_dma_rot(KV)
        self.ts("iss2")
        A(f"s_cmp_ge_u32 {s(sM)}, 2")
        A("s_cbranch_scc1 L_pw")
        A(f"v_add_u32 v46, {2*49152}, v45")
        self.srd_consts([S_WO, S_WG, S_WU, S_WD])
        for i in range(3):
            A(f"v_add_u32 v12, {64*i}, v0")
            A("v_mul_u32_u24 v13, 0x5556, v12")
            A("v_lshrrev_b32 v13, 18, v13")
            A("v_lshrrev_b32 v14, 1, v13")
            A("v_and_b32 v14, 2, v14")
            A("v_xor_b32 v12, v12, v14")
            A(f"v_mul_u32_u24 v13, {2752 - 192}, v13")
            A(f"v_lshl_add_u32 {v(48+i)}, v12, 4, v13")
        A(f"s_mul_i32 {s(sA0)}, {s(sJ)}, 192")
        A(f"s_mul_i32 {s(sA1)}, {s(sM)}, 6144")
        A("v_lshlrev_b32 v51, 10, v8")
        A("v_bfe_u32 v12, v0, 4, 1")
        A("v_lshlrev_b32 v13, 2, v12")
        A("v_xor_b32 v13, v13, v9")
        A("v_lshl_add_u32 v51, v13, 4, v51")
        A(f"s_and_b32 {s(sT3)}, {s(sJ)}, 7")
        A(f"s_lshl_b32 {s(sT1)}, {s(sT3)}, 7")
        A(f"s_lshl_b32 {s(sT0)}, {s(sM)}, 13")
        A(f"s_add_u32 {s(sT0)}, {s(sT0)}, {s(sT1)}")
        A(f"v_add_u32 v51, {s(sT0)}, v51")
        A("v_add_u32 v47, 16384, v51")
        A("v_and_b32 v14, 48, v0")
        A("v_lshl_add_u32 v52, v9, 6, v14")
        A("v_lshrrev_b32 v54, 5, v0")
        A(f"v_lshl_add_u32 v54, v54, 5, {s(sA2)}")
        A("v_mul_u32_u24 v54, 2752, v54")
        A("v_and_b32 v13, 31, v0")
        A("v_lshlrev_b32 v13, 7, v13")
        A("v_min_u32 v13, 2748, v13")
        A("v_add_u32 v54, v54, v13")
        A(f"v_lshl_add_u32 v56, v8, 5, {s(sA2)}")
        A("v_lshlrev_b32 v56, 10, v56")
        A("v_lshl_add_u32 v56, v9, 7, v56")
        A(f"s_lshl3_add_u32 {s(sA8)}, {s(sM)}, {s(sT3)}")
        A(f"s_lshl_b32 {s(sA8)}, {s(sA8)}, 12")
        A(f"s_add_u32 {s(sA8)}, {s(sA8)}, {WS_MODL:#x}")
        A("v_lshlrev_b32 v58, 3, v0")
        A(f"s_lshl_b32 {s(sT0)}, {s(sM)}, 8")
        A(f"s_add_u32 {s(sT0)}, {s(sT0)}, {L_MT}")
        A(f"v_lshl_add_u32 v59, v0, 2, {s(sT0)}")
        A(f"s_lshl_b32 {s(sT0)}, {s(sM)}, 8")
        A(f"s_add_u32 {s(sT0)}, {s(sT0)}, {s(sJ)}")
        A(f"s_lshl_b32 {s(sT0)}, {s(sT0)}, 10")
        A(f"s_add_u32 {s(sT0)}, {s(sT0)}, {G_O:#x}")
        A("v_and_b32 v53, 1, v8")
        A("v_lshlrev_b32 v53, 14, v53")
        A("v_lshrrev_b32 v13, 4, v0")
        A("v_lshl_add_u32 v53, v13, 17, v53")
        A("v_lshl_add_u32 v53, v9, 7, v53")
        A(f"v_add_u32 v53, {s(sT0)}, v53")
        A(f"s_lshl1_add_u32 {s(sT0)}, {s(sJ)}, {s(sM)}")
        A(f"s_lshl_b32 {s(sT0)}, {s(sT0)}, 9")
        A(f"s_add_u32 {s(sT0)}, {s(sT0)}, {G_ST:#x}")
        A(f"v_lshl_add_u32 v55, v9, 7, {s(sT0)}")
        A("v_cmp_gt_u32 vcc, 32, v0")
        A("v_cndmask_b32 v53, v55, v53, vcc")
        A(f"s_lshl_b32 {s(sT0)}, {s(sM)}, 17")
        A(f"s_mul_i32 {s(sT1)}, {s(sJ)}, 6144")
        A(f"s_add_u32 {s(sT0)}, {s(sT0)}, {s(sT1)}")
        A(f"s_add_u32 {s(sT0)}, {s(sT0)}, {G_HH:#x}")
        A(f"v_add_u32 v57, {s(sT0)}, v2")
        self.rot_setup()
        A(f"s_mov_b32 {s(sA6)}, {s(sRB)}")
        A(f"s_lshl2_add_u32 {s(sA11)}, {s(sM)}, {s(sEX+1)}")
        A(f"s_mov_b32 {s(sA10)}, {s(sRB)}")
        A(f"s_lshl_b32 {s(sA4)}, {s(sEX+1)}, 15")
        A(f"s_mov_b32 {s(sA7)}, {slot_addr(0)}")
        A("s_waitcnt lgkmcnt(0)")
        A(f"s_bitcmp1_b32 {s(sM)}, 0")
        A(f"s_cselect_b64 {s(S_GU,2)}, {s(S_WU,2)}, {s(S_WG,2)}")
        A(f"s_mov_b32 {s(S_GU+2)}, {512*2752}")
        A(f"s_mov_b32 {s(S_GU+3)}, 0x20000")
        A(f"s_sub_u32 {s(sA9)}, {s(sA9)}, 1024")
        A("s_waitcnt vmcnt(0)")
        self.signal(VP, 12, HV_W)
        A(f"v_add_u32 {v(VTAG)}, 1, {v(VTAG)}")
        A(f"v_readfirstlane_b32 {s(sTAG)}, {v(VTAG)}")
        self.ts("w_land")
        CVS = dict(A2=CV_A2, KV=CV_KV, H1=CV_H1, O=CV_O, P2L=CV_P2L, X2=CV_X2, ST=CV_ST, E=CV_E)
        NE = 0
        since_tq = None
        since_li = None

        def masked(mask_lo, mask_hi, ins):
            A(f"s_mov_b32 exec_lo, {mask_lo:#x}\ns_mov_b32 exec_hi, {mask_hi:#x}")
            A(ins)
            A("s_mov_b64 exec, -1")

        def share_g():
            A(f"s_and_b32 {s(sT0)}, {s(sA6)}, 15")
            A(f"s_mul_i32 {s(sT0)}, {s(sT0)}, {32*2752}")
            A(f"s_add_u32 {s(sA6)}, {s(sA6)}, 2")
            masked(0x7fffff, 0x7fffff, f"buffer_load_dword v10, v54, {s(S_GU,4)}, {s(sT0)} offen")

        def share_d():
            A(f"s_sub_u32 {s(sT0)}, {s(sA11)}, 44")
            A(f"s_cselect_b32 {s(sA11)}, {s(sA11)}, {s(sT0)}")
            A(f"s_lshl_b32 {s(sT0)}, {s(sA11)}, 15")
            A(f"s_add_u32 {s(sA11)}, {s(sA11)}, 8")
            masked(0xffffffff, 0, f"buffer_load_dword v10, v56, {s(S_WD,4)}, {s(sT0)} offen")
        for act in self.sched.split():
            n = 0
            if act.startswith("w"):
                self.lwait(VQ, 15, CVS[act[1:]], sleep=2)
            elif act.startswith("@"):
                self.ts(act[1:])
            elif act == "so":
                A(f"s_lshl1_add_u32 {s(sT0)}, {s(sA2)}, {s(sM)}")
                A(f"s_lshl_b32 {s(sT0)}, {s(sT0)}, 13")
                A(f"buffer_load_dword v10, v2, {s(S_WO,4)}, {s(sT0)} offen"); n = 1
            elif act == "so3":
                A(f"s_lshl1_add_u32 {s(sT0)}, {s(sA2)}, {s(sM)}")
                A(f"s_lshl_b32 {s(sT0)}, {s(sT0)}, 13")
                masked(0x08080808, 0x08080808, f"buffer_load_dword v10, v2, {s(S_WO,4)}, {s(sT0)} offen"); n = 1
            elif act == "sd3":
                A(f"s_lshl1_add_u32 {s(sT0)}, {s(sA2)}, {s(sM)}")
                A(f"s_mul_i32 {s(sT0)}, {s(sT0)}, {22*1024}")
                A("v_lshlrev_b32 v11, 10, v0")
                masked(0x3fffff, 0, f"buffer_load_dword v10, v11, {s(S_WD,4)}, {s(sT0)} offen offset:384"); n = 1
            elif act == "sg":
                share_g(); n = 1
            elif act == "sd":
                share_d(); n = 1
            elif act == "pre":
                masked(0xffffffff, 0xf, f"buffer_load_dword v10, v53, {s(S_WS,4)}, {s(sG)} offen"); n = 1
            elif act == "pst":
                masked(0, 0xf, f"buffer_load_dword v10, v53, {s(S_WS,4)}, {s(sG)} offen"); n = 1
            elif act == "phh":
                A(f"s_add_u32 {s(sT0)}, {s(sG)}, {2*RS}")
                masked(0xffffffff, 0xffff, f"buffer_load_dword v10, v57, {s(S_WS,4)}, {s(sG)} offen\nbuffer_load_dword v10, v57, {s(S_WS,4)}, {s(sT0)} offen"); n = 2
            elif act == "li":
                since_li = 0
                A(f"s_cmp_lg_u32 {s(sM)}, 0")
                A("s_cbranch_scc1 L_li")
                self.gemv_issue(64, late=True)
                self.gemv_issue2(64, late=True)
                A.label("L_li")
            elif act == "lc":
                A(f"s_cmp_lg_u32 {s(sM)}, 0")
                A("s_cbranch_scc1 L_lc")
                A(f"s_waitcnt vmcnt({min(since_li, 63)})")
                self.gemv_compute(64, None)
                A(f"s_lshl_b32 {s(sT0)}, s2, 9")
                A(f"s_add_u32 {s(sT0)}, {s(sT0)}, {WS_MODL:#x}")
                A(f"v_mov_b32 v28, v27\nv_mov_b32 v27, {v(VTAG)}\nv_mov_b32 v29, {v(VTAG)}")
                A(f"buffer_store_dwordx4 v[26:29], v52, {s(S_WS,4)}, {s(sT0)} offen sc1")
                A.label("L_lc")
            elif act == "tq":
                A(f"s_mov_b32 {s(sCNT)}, 8")
                self.w_dma_rot([(45, 0, L_WQ), (46, 0, L_WQ + 2048)])
                since_tq = -16
                n = 16
            elif act == "sigQ":
                A(f"s_waitcnt vmcnt({since_tq})")
                self.signal(VP, 15, HV_Q)
            elif act == "to":
                A(f"s_mov_b32 {s(sCNT)}, 16")
                A.label("L_wo")
                A(f"s_lshl_b32 {s(sT1)}, {s(sA10)}, 12")
                A(f"s_lshl_b32 {s(sT0)}, {s(sA10)}, 15")
                A(f"s_add_u32 m0, {s(sT1)}, {s(sA3)}")
                A(f"s_add_u32 {s(sA10)}, {s(sA10)}, 1")
                A(f"buffer_load_dwordx4 v51, {s(S_WO,4)}, {s(sT0)} offen lds")
                A("s_add_u32 m0, m0, 2048")
                A(f"s_and_b32 {s(sA10)}, {s(sA10)}, 15")
                A(f"buffer_load_dwordx4 v47, {s(S_WO,4)}, {s(sT0)} offen lds")
                A(f"s_sub_u32 {s(sCNT)}, {s(sCNT)}, 1")
                A(f"s_cmp_lg_u32 {s(sCNT)}, 0")
                A("s_cbranch_scc1 L_wo")
                n = 32
            elif act == "u":
                self.gu_unit(self.o.get("thr_u")); NE += 1; n = 6
            elif act == "sigU":
                assert NE <= 10
                A(f"v_mov_b32 v14, {15 + NE}")
                A("s_waitcnt vmcnt(0)")
                A(f"ds_write_b32 {v(VP)}, v14")
            elif act == "v0":
                A("s_waitcnt vmcnt(0)")
            elif act == "mt":
                A(f"s_mov_b32 {s(sCNT)}, {SPIN}")
                A("s_branch L_gat1")
                A.label("L_gat")
                A("s_sleep 8")
                A.label("L_gat1")
                A(f"s_add_u32 {s(sT0)}, {s(sA8)}, 65536")
                for e in range(2):
                    for i in range(8):
                        A(f"buffer_load_dwordx2 {v(64+16*e+2*i,2)}, v58, {s(S_WS,4)}, {s(sT0 if e else sA8)} offen offset:{i*512} sc1")
                A("v_mov_b32 v21, 0")
                A("s_waitcnt vmcnt(0)")
                for i in range(8):
                    for e in range(2):
                        A(f"v_bitop3_b32 v21, v21, {v(65+16*e+2*i)}, {v(VTAG)} bitop3:0xf6")
                        if i:
                            A(f"v_add_f32 {v(64+16*e)}, {v(64+16*e)}, {v(64+16*e+2*i)}")
                A(f"s_sub_u32 {s(sCNT)}, {s(sCNT)}, 1")
                A("s_cbranch_scc1 L_gatd")
                A("v_cmp_ne_u32 vcc, 0, v21")
                A("s_cbranch_vccnz L_gat")
                A.label("L_gatd")
                A(f"s_cmp_eq_u32 {s(sM)}, 0")
                A(f"s_cselect_b32 {s(sT0)}, 1.0, 0")
                A("v_cvt_pk_bf16_f32 v24, v64, v80")
                A(f"v_and_b32 v25, {v(VMASK)}, v24")
                A("v_lshlrev_b32 v24, 16, v24")
                A(f"v_add_f32 v25, {s(sT0)}, v25")
                A("v_cvt_pk_bf16_f32 v25, v25, v25")
                A(f"v_and_b32 v25, {v(VMASK)}, v25")
                A("ds_write2st64_b32 v59, v24, v25 offset0:0 offset1:2")
                A("v_mov_b32 v15, 1")
                A(f"ds_write_b32 {v(VP)}, v15 offset:32")
            else:
                raise ValueError(act)
            if since_tq is not None:
                since_tq += n
            if since_li is not None:
                since_li += n
        A("s_cmp_lg_u32 s2, 0")
        A("s_cbranch_scc1 L_ep_skip")
        A(f"buffer_store_dword {v(VTAG)}, v6, {s(S_WS,4)}, 0 offen sc1")
        A.label("L_ep_skip")
        D = self.o.get("d", 3)
        A(f"s_mov_b32 {s(sA8)}, {NE + 4}")
        A(f"v_subrev_u32 v13, {D - 1}, v14")
        A(f"s_cmp_lg_u32 {s(sJ)}, 15")
        A("s_cbranch_scc1 L_ring_gu")
        A(f"s_mov_b32 {s(sA8)}, 20")
        A(f"s_mov_b32 {s(sA7)}, {slot_addr(16)}")
        A(f"v_mov_b32 v13, {32 - D}")
        NID = self.o.get("nid", 40)
        if NID:
            A(f"s_lshr_b32 {s(sT0)}, s2, 7")
            A(f"s_lshl1_add_u32 {s(sT0)}, {s(sT0)}, {s(sM)}")
            A(f"s_lshl_b32 {s(sT0)}, {s(sT0)}, 13")
            A(f"v_add_u32 v11, {s(sT0)}, v2")
            A(f"s_mov_b32 {s(sT1)}, {s(sA4)}")
            A(f"s_mov_b32 {s(sCNT)}, {NID}")
            A.label("L_idpf")
            A(f"buffer_load_dword v10, v11, {s(S_WD,4)}, {s(sT1)} offen")
            A(f"s_add_u32 {s(sT1)}, {s(sT1)}, 32768")
            A(f"s_cmp_lg_u32 {s(sT1)}, {43*32768}")
            A(f"s_cselect_b32 {s(sT1)}, {s(sT1)}, 0")
            A(f"s_sub_u32 {s(sCNT)}, {s(sCNT)}, 1")
            A(f"s_cmp_lg_u32 {s(sCNT)}, 0")
            A("s_cbranch_scc1 L_idpf")
        A("s_branch L_ring_wd")
        for name, unit, end in (("gu", self.gu_unit, 16 + 4), ("wd", self.wd_unit, 31 + 4)):
            A.label(f"L_ring_{name}")
            self.lwait(VQ, 12, s(sA8), sleep=2)
            unit(self.o.get('thr_' + name))
            A("v_add_u32 v13, 1, v13")
            A(f"s_add_u32 {s(sA8)}, {s(sA8)}, 1")
            A("v_max_u32 v15, v13, v14")
            A(f"s_waitcnt vmcnt({6*(D-1)})")
            A(f"ds_write_b32 {v(VP)}, v15")
            A(f"s_cmp_lg_u32 {s(sA8)}, {end}")
            A(f"s_cbranch_scc1 L_ring_{name}")
            self.ts(name + "_iss")
        for i in range(D - 1):
            A("v_add_u32 v13, 1, v13")
            A(f"s_waitcnt vmcnt({6*(D-2-i)})")
            A(f"ds_write_b32 {v(VP)}, v13")
        A("s_waitcnt lgkmcnt(0)")
        self.ts("wd_done")
        assert self.first_check_before_e < NE, (self.first_check_before_e, NE)
        A("s_branch L_fin")
        self.role = "P"
        self.names["P"] = list(self.names["H"][:4])
        self.pwave()

    def finish(self):
        A = self.A
        A.label("L_fin")
        if self.leak:
            A(f"s_lshl3_add_u32 {s(sRT)}, {s(sTS+2)}, {s(sRT)}")
            A(f"s_add_u32 {s(sRT)}, {s(sRT)}, 5000")
            A.label("L_leak")
            A(f"s_sleep 2\ns_memrealtime {s(sTP,2)}\ns_waitcnt lgkmcnt(0)\ns_sub_u32 {s(sT0)}, {s(sTP)}, {s(sRT)}\ns_cmp_lt_i32 {s(sT0)}, 0\ns_cbranch_scc1 L_leak")
        if self.diag:
            A("s_waitcnt vmcnt(0) lgkmcnt(0)")
            A(f"s_bitcmp1_b32 0x51, {s(sW)}")
            A("s_cbranch_scc0 L_end")
            A(f"s_lshl_b32 {s(sT0)}, s2, 9")
            A(f"s_lshl_b32 {s(sT1)}, {s(sW)}, 6")
            A(f"s_add_u32 {s(sT0)}, {s(sT0)}, {s(sT1)}")
            A(f"s_add_u32 {s(sT0)}, {s(sT0)}, {WS_TS:#x}")
            A("s_mov_b64 exec, 1")
            A("v_mov_b32 v6, 0")
            A(f"v_mov_b32 v8, {s(sRT)}")
            A(f"buffer_store_dword v8, v6, {s(S_WS,4)}, {s(sT0)} offen offset:124")
            A(f"s_memrealtime {s(sTP,2)}\ns_waitcnt lgkmcnt(0)\nv_mov_b32 v9, {s(sTP)}")
            A(f"buffer_store_dword v9, v6, {s(S_WS,4)}, {s(sT0)} offen offset:116")
            A(f"v_mov_b32 v9, {s(sFAST)}")
            A(f"buffer_store_dword v9, v6, {s(S_WS,4)}, {s(sT0)} offen offset:120")
            for i in range(20):
                A(f"v_mov_b32 {v(10+i)}, {s(sTS+i)}")
                A(f"buffer_store_dword {v(10+i)}, v6, {s(S_WS,4)}, {s(sT0)} offen offset:{4*i}")
            A("s_waitcnt vmcnt(0)")
        A.label("L_end")
        A("s_endpgm")
        for c in self.cold:
            A.lines += c

    def build(self):
        self.start()
        self.role = "C"
        self.c_start()
        self.c_p1()
        self.c_p2()
        self.c_p3()
        self.c_p4()
        self.role = "H"
        self.helper()
        self.finish()
        hdr = open("header.txt").read()
        return (hdr + "; @launch grid=(256,1,1) block=(512,1,1) lds=163840\n"
                + '.amdgcn_target "amdgcn-amd-amdhsa--gfx950"\n.text\n'
                + f".globl {KNAME}\n.p2align 8\n.type {KNAME},@function\n{KNAME}:\n"
                + self.A.text()
                + f"""
.section .rodata,"a"
.p2align 6
.amdhsa_kernel {KNAME}
  .amdhsa_next_free_vgpr 256
  .amdhsa_next_free_sgpr 102
  .amdhsa_accum_offset 128
  .amdhsa_group_segment_fixed_size 0
  .amdhsa_kernarg_size 104
  .amdhsa_user_sgpr_count 2
  .amdhsa_user_sgpr_kernarg_segment_ptr 1
  .amdhsa_system_sgpr_workgroup_id_x 1
.end_amdhsa_kernel
""")


if __name__ == "__main__":
    import argparse, json
    ap = argparse.ArgumentParser()
    ap.add_argument("-o", default="k10.s")
    ap.add_argument("--diag", action="store_true")
    ap.add_argument("--slow", action="store_true")
    ap.add_argument("--opt", default="")
    ap.add_argument("--leak", default=None)
    args = ap.parse_args()
    o, _, sched = args.opt.partition("|")
    opts = {kv.split("=")[0]: int(kv.split("=")[1]) for kv in o.split(",") if kv}
    g = Gen(diag=args.diag, force_slow=args.slow, opts=opts, sched=sched or None, leak=args.leak)
    t = g.build()
    open(args.o, "w").write(t)
    if args.diag:
        json.dump(g.names, open(args.o + ".ts", "w"))
    print("written", args.o, len(t.splitlines()), "lines")
```

```python
import sys
sys.path.insert(0, "gen")
from asmlib import *

KNAME = "adaLN_cond__linear_kernel_hedgehog__glu_gated_reglu__prompt_kernel"

WS_MODU = 0x4000
WS_MODL = 0x10000
WS_KV2 = 0x30000
WS_KVP = 0x40000
WS_G0 = 0x200000
RS = 0x20000
G_H, G_O, G_H2, G_HH = 0x0, 0x8000, 0x0, 0x8000
G_FL = 0x80000
G_FLH, G_FLO, G_FL2, G_FL3 = G_FL, G_FL + 512, G_FL + 1024, G_FL + 1536
G_XCC = 0x80800
G_ST = 0x81000
WS_TS = 0x1400000
L_WK, L_WV, L_WQ = 0, 32768, 65536
L_KVR, L_X1, L_SCR, L_STX, L_MT = 135168, 152576, 111616, 112640, 162816
L_TAB = 107520
KVR_W = 4352
L_CW, L_HW = 160768, 160784
L_XT, L_PHI = 98304, 106496
CV_G, CV_S, CV_A2, CV_GD, CV_KV, CV_PUB, CV_H1, CV_O, CV_P2L, CV_X2, CV_SX, CV_ST, CV_E = 1, 2, 3, 4, 5, 6, 7, 8, 9, 10, 11, 12, 15
HV_I, HV_W, HV_Q, HV_G = 1, 2, 3, 16
sB0, sB1, sB2 = 16, 17, 18
L_SX = 160512
L_EX2 = (81920, 90112)
L_EX4 = (L_X1, 28672)


def slot_addr(u):
    return ((u + 8) % 12) * 12288


def wd_addr(i):
    return (i % 36) * 4096


S_X, S_W, S_WS, S_WM, S_C, S_PHI, S_WO, S_WG, S_WU, S_WD, S_OUT, S_GU = 4, 8, 12, 16, 20, 24, 28, 32, 36, 40, 44, 48
S_DBG = 48
sW, sM, sRB, sJ, sTAG, sG, sFAST = 52, 53, 54, 55, 56, 57, 58
sT0, sT1, sT2, sT3, sCNT = 59, 60, 61, 62, 63
sEX = 64
sA0, sA1, sA2, sA3, sA4, sA5, sA6, sA7, sA8, sA9 = range(66, 76)
sA10, sA11 = 76, 77
sTP = 78
sRT = 80
sTS = 82
SPIN = 0x40000
VMASK, VTAG = 126, 127
VP, VQ = 7, 4


def zip_streams(*streams):
    out = []
    n = max(len(x) for x in streams)
    for i in range(n):
        for x in streams:
            if i < len(x):
                out.append(x[i])
    return out


def weave(mfmas, others, per=2):
    out, o = [], list(others)
    n = len(mfmas)
    for i, m_ in enumerate(mfmas):
        out.append(m_)
        k = min(per, -(-len(o) // (n - i)))
        out += o[:k]
        o = o[k:]
    return out + o


class Gen:
    def __init__(self, diag=False, force_slow=False, opts=None, sched=None, leak=None):
        self.leak = leak
        self.A = Asm()
        self.diag = diag
        self.names = {"C": [], "H": []}
        self.role = None
        self.cold = []
        self.force_slow = force_slow
        self.o = opts or {}
        self.osfx = ['', ' sc1', ' nt', ' sc0 sc1'][self.o.get('osfx', 0)]
        sched, _, segs = (sched or "").partition("|")
        self.sched = sched or "wA2 @a2 li pst tq sigQ @wq lc wKV to sg sg @t2 wH1 u u u u sigU mt @g wX2 u u u u sigU wE @e"
        self.o_segs = (segs or "q o g4-16 d22").split()

    def ts(self, name):
        if self.leak == name:
            self.A(f"s_cselect_b32 {s(sTS+3)}, 1, 0\ns_memrealtime {s(sTP,2)}\ns_waitcnt lgkmcnt(0)\ns_sub_u32 {s(sTS+2)}, {s(sTP)}, {s(sRT)}\ns_cmp_lg_u32 {s(sTS+3)}, 0")
        if not self.diag:
            return
        if name.startswith("f:") and not self.o.get("fine", 0):
            return
        if self.o.get("fine", 0) and self.role == "C" and not name.startswith("f:") and name not in ("kv_gemm", "kv_pub", "kvf", "o_flags", "p2_gemm", "h2_pub", "h2_flags", "tag", "p0_done"):
            return
        roles = ["C", "H"] if self.role is None else [self.role]
        idx = max(len(self.names[r]) for r in roles)
        for r in roles:
            while len(self.names[r]) < idx:
                self.names[r].append("-")
            self.names[r].append(name)
        assert idx < 20
        self.A(f"{'s_memtime' if self.o.get('cyc', 0) else 's_memrealtime'} {s(sTP,2)}\ns_waitcnt lgkmcnt(0)\ns_mov_b32 {s(sTS+idx)}, {s(sTP)}")

    def bar(self):
        self.A("s_barrier")

    def outline(self, label, back, fn):
        main = self.A
        sub = Asm()
        sub._n = main._n + 1000 * (len(self.cold) + 1)
        lines = main.lines
        main.lines = []
        main.label(label)
        fn()
        main(f"s_branch {back}")
        self.cold.append(main.lines)
        main.lines = lines

    def dual(self, fn):
        A = self.A
        Ls, Ld = A.uniq("L_slow"), A.uniq("L_sd")
        A(f"s_cmp_eq_u32 {s(sFAST)}, 0")
        A(f"s_cbranch_scc1 {Ls}")
        fn("")
        A.label(Ld)
        self.outline(Ls, Ld, lambda: fn(" sc1"))

    def store_flag(self, stores, sflag, vz, vt, data_sc1=False, shadow=None):
        A = self.A
        if data_sc1:
            stores(" sc1")
        else:
            self.dual(stores)
        if shadow:
            shadow()
        A("s_mov_b64 exec, 1")

        def f(sfx):
            A("s_waitcnt vmcnt(0)")
            A(f"buffer_store_dword {v(vt)}, {v(vz)}, {s(S_WS,4)}, {s(sflag)} offen{sfx}")
        self.dual(f)
        A("s_mov_b64 exec, -1")

    def poll(self, voff, soff, vtmp, sleep=0):
        A = self.A
        Lp, Ld = A.uniq("L_poll"), A.uniq("L_pd")
        A(f"s_mov_b32 {s(sCNT)}, {SPIN}")
        A.label(Lp)
        if sleep:
            A(f"s_sleep {sleep}")
        A(f"buffer_load_dword {v(vtmp)}, {v(voff)}, {s(S_WS,4)}, {s(soff)} offen sc1")
        A(f"s_sub_u32 {s(sCNT)}, {s(sCNT)}, 1")
        A(f"s_cbranch_scc1 {Ld}")
        A("s_waitcnt vmcnt(0)")
        A(f"v_cmp_ne_u32 vcc, {s(sTAG)}, {v(vtmp)}")
        A(f"s_cbranch_vccnz {Lp}")
        A.label(Ld)

    def signal(self, vaddr, vtmp, val):
        self.A(f"v_mov_b32 {v(vtmp)}, {val}")
        self.A(f"ds_write_b32 {v(vaddr)}, {v(vtmp)}")

    def lwait(self, vaddr, vtmp, val, off=0, sleep=0, extra=None):
        A = self.A
        Lp, Ld = A.uniq("L_lw"), A.uniq("L_lwd")
        A(f"s_mov_b32 {s(sCNT)}, {SPIN*8}")
        A.label(Lp)
        A(f"ds_read_b32 {v(vtmp)}, {v(vaddr)} offset:{off}")
        self.emit(extra or [])
        A(f"s_sub_u32 {s(sCNT)}, {s(sCNT)}, 1")
        A(f"s_cbranch_scc1 {Ld}")
        A(f"s_waitcnt lgkmcnt({len(extra or [])})")
        A(f"v_cmp_gt_u32 vcc, {val}, {v(vtmp)}")
        if sleep:
            A(f"s_cbranch_vccz {Ld}")
            A(f"s_sleep {sleep}")
            A(f"s_branch {Lp}")
        else:
            A(f"s_cbranch_vccnz {Lp}")
        A.label(Ld)

    @staticmethod
    def red4(op, a0, b0, a1, b1):
        return [f"v_permlane32_swap_b32 {v(a0)}, {v(b0)}", f"v_permlane32_swap_b32 {v(a1)}, {v(b1)}",
                f"{op} {v(a0)}, {v(a0)}, {v(b0)}", f"{op} {v(a1)}, {v(a1)}, {v(b1)}",
                f"v_permlane16_swap_b32 {v(a0)}, {v(a1)}", f"{op} {v(a0)}, {v(a0)}, {v(a1)}"]

    @staticmethod
    def bcast4(a0, b0, a1, b1):
        return [f"v_mov_b32 {v(a1)}, {v(a0)}", f"v_permlane16_swap_b32 {v(a0)}, {v(a1)}",
                f"v_mov_b32 {v(b0)}, {v(a0)}", f"v_mov_b32 {v(b1)}, {v(a1)}",
                f"v_permlane32_swap_b32 {v(a0)}, {v(b0)}", f"v_permlane32_swap_b32 {v(a1)}, {v(b1)}"]

    def softmax2(self, X, EP, EN, T, P, L2):
        o = []
        a0, b0, a1, b1 = T, T + 1, T + 2, T + 3
        for t, (aa, bb) in enumerate(((a0, b0), (a1, b1))):
            x = X + 4 * t
            o += [f"v_max3_f32 {v(aa)}, {v(x)}, {v(x+1)}, {v(x+2)}", f"v_max3_f32 {v(bb)}, -{v(x)}, -{v(x+1)}, -{v(x+2)}"]
        for t, (aa, bb) in enumerate(((a0, b0), (a1, b1))):
            x = X + 4 * t
            o += [f"v_max_f32 {v(aa)}, {v(aa)}, {v(x+3)}", f"v_max_f32_e64 {v(bb)}, {v(bb)}, -{v(x+3)}"]
        o += self.red4("v_max_f32", a0, b0, a1, b1)
        o += [f"v_mul_f32 {v(a0)}, {v(L2)}, {v(a0)}"]
        o += self.bcast4(a0, b0, a1, b1)
        for t in range(2):
            m = T + 2 * t
            for h in range(2):
                x = X + 4 * t + 2 * h
                o += [f"v_pk_fma_f32 {v(EP+4*t+2*h,2)}, {v(x,2)}, {v(L2,2)}, {v(m,2)} op_sel:[0,0,0] op_sel_hi:[1,1,0] neg_lo:[0,0,1] neg_hi:[0,0,1]",
                      f"v_pk_fma_f32 {v(EN+4*t+2*h,2)}, {v(x,2)}, {v(L2,2)}, {v(m,2)} op_sel:[0,0,1] op_sel_hi:[1,1,1] neg_lo:[1,0,1] neg_hi:[1,0,1]"]
        for i in range(8):
            o += [f"v_exp_f32 {v(EP+i)}, {v(EP+i)}", f"v_exp_f32 {v(EN+i)}, {v(EN+i)}"]
        for t in range(2):
            e, n = EP + 4 * t, EN + 4 * t
            o += [f"v_pk_add_f32 {v(T+4,2)}, {v(e,2)}, {v(e+2,2)}", f"v_pk_add_f32 {v(T+6,2)}, {v(n,2)}, {v(n+2,2)}",
                  f"v_add_f32 {v(T+2*t)}, {v(T+4)}, {v(T+5)}", f"v_add_f32 {v(T+2*t+1)}, {v(T+6)}, {v(T+7)}"]
        o += self.red4("v_add_f32", a0, b0, a1, b1)
        o += [f"v_rcp_f32 {v(a0)}, {v(a0)}"]
        o += self.bcast4(a0, b0, a1, b1)
        for t in range(2):
            m = T + 2 * t
            for h in range(2):
                e, n = EP + 4 * t + 2 * h, EN + 4 * t + 2 * h
                o += [f"v_pk_mul_f32 {v(e,2)}, {v(e,2)}, {v(m,2)} op_sel:[0,0] op_sel_hi:[1,0]",
                      f"v_pk_mul_f32 {v(n,2)}, {v(n,2)}, {v(m,2)} op_sel:[0,1] op_sel_hi:[1,1]"]
        for t in range(2):
            for h in range(2):
                o += [f"v_cvt_pk_bf16_f32 {v(P+4*t+h)}, {v(EP+4*t+2*h)}, {v(EP+4*t+2*h+1)}",
                      f"v_cvt_pk_bf16_f32 {v(P+4*t+2+h)}, {v(EN+4*t+2*h)}, {v(EN+4*t+2*h+1)}"]
        return o

    def emit(self, lst):
        for l in lst:
            if "@SFX@" in l:
                self.dual(lambda sfx: self.A(l.replace("@SFX@", sfx)))
            else:
                self.A(l)

    def srd_consts(self, regs):
        sizes = {S_WS: 0x10000000 - (self.o.get('wsoff', 0) << 20), S_C: 1024, S_WM: 512*6144, S_X: 2048*1024, S_W: 512*3072, S_PHI: 32*512, S_WO: 512*1024,
                 S_WG: 512*2752, S_WU: 512*2752, S_WD: 1376*1024, S_OUT: 2048*1024, S_DBG: 256}
        for r in regs:
            self.A(f"s_mov_b32 {s(r+2)}, {sizes[r]:#x}")
            self.A(f"s_mov_b32 {s(r+3)}, 0x20000")

    def wsoff(self):
        off = self.o.get("wsoff", 0) << 20
        if off:
            self.A(f"s_add_u32 {s(S_WS)}, {s(S_WS)}, {off:#x}\ns_addc_u32 {s(S_WS+1)}, {s(S_WS+1)}, 0")

    def gemv_issue(self, W, late=False):
        A = self.A
        if late:
            A(f"s_and_b32 {s(sT0)}, s2, 7")
        else:
            A(f"s_and_b32 {s(sT0)}, s2, 1")
            A(f"s_lshl2_add_u32 {s(sT0)}, {s(sT0)}, {s(sM)}")
        A("v_and_b32 v13, 3, v0")
        A("v_lshlrev_b32 v13, 2, v13")
        A("v_lshl_add_u32 v13, v8, 4, v13")
        A(f"s_lshl_b32 {s(sT1)}, {s(sT0)}, 7")
        A(f"buffer_load_dword v12, v13, {s(S_C,4)}, {s(sT1)} offen")

    def gemv_issue2(self, W, late=False):
        A = self.A
        A("v_mul_u32_u24 v14, 49152, v8")
        A("v_lshl_add_u32 v14, v9, 4, v14")
        A(f"s_mul_i32 {s(sT0)}, {s(sT0)}, {64*6144}")
        A(f"s_lshr_b32 {s(sT1)}, s2, {3 if late else 1}")
        if late:
            A(f"s_add_u32 {s(sT1)}, {s(sT1)}, 16")
        A(f"s_lshl_b32 {s(sT1)}, {s(sT1)}, 7")
        A(f"s_add_u32 {s(sT0)}, {s(sT0)}, {s(sT1)}")
        for i in range(8):
            A(f"buffer_load_dwordx4 {v(W+4*i,4)}, v14, {s(S_WM,4)}, {s(sT0)} offen")
            if i < 7:
                A(f"s_add_u32 {s(sT0)}, {s(sT0)}, 6144")

    def gemv_compute(self, W, after):
        A = self.A
        A("v_lshlrev_b32 v13, 16, v12")
        A(f"v_and_b32 v14, {v(VMASK)}, v12")
        A("v_mul_f32 v15, 0xbfb8aa3b, v13\nv_mul_f32 v16, 0xbfb8aa3b, v14")
        A("v_exp_f32 v15, v15\nv_exp_f32 v16, v16")
        A(f"s_mov_b32 {s(sT0)}, 0x05040100\ns_mov_b32 {s(sT1)}, 0x07060302")
        A("v_add_f32 v15, 1.0, v15\nv_add_f32 v16, 1.0, v16")
        A("v_rcp_f32 v15, v15\nv_rcp_f32 v16, v16")
        for c in range(8):
            A(f"v_mov_b32 {v(24+c)}, 0")
        A("v_mul_f32 v13, v13, v15\nv_mul_f32 v14, v14, v16")
        A("v_cvt_pk_bf16_f32 v12, v13, v14")
        for q in range(4):
            A(f"v_mov_b32_dpp {v(16+q)}, v12 quad_perm:[{q},{q},{q},{q}] row_mask:0xf bank_mask:0xf")
        for q in range(4):
            if after is not None:
                A(f"s_waitcnt vmcnt({after + 6 - 2*q})")
            for d in range(0, 4, 2):
                for e in range(2):
                    ra, rb_ = W + 8*q + d + e, W + 8*q + 4 + d + e
                    A(f"v_perm_b32 {v(20+2*e)}, {v(rb_)}, {v(ra)}, {s(sT0)}")
                    A(f"v_perm_b32 {v(21+2*e)}, {v(rb_)}, {v(ra)}, {s(sT1)}")
                for e in range(4):
                    A(f"v_dot2c_f32_bf16 {v(24+2*d+e)}, {v(20+e)}, {v(16+q)}")
        for c in range(4):
            A(f"v_permlane32_swap_b32 {v(24+c)}, {v(28+c)}")
        A("v_pk_add_f32 v[24:25], v[24:25], v[28:29]\nv_pk_add_f32 v[26:27], v[26:27], v[30:31]")
        for c in range(2):
            A(f"v_permlane16_swap_b32 {v(24+c)}, {v(26+c)}")
        A("v_pk_add_f32 v[24:25], v[24:25], v[26:27]")
        for c in range(2):
            A(f"v_add_f32_dpp {v(26+c)}, {v(24+c)}, {v(24+c)} row_ror:8 row_mask:0xf bank_mask:0xf")

    def start(self):
        A = self.A
        A("s_cmp_ge_u32 s2, 256")
        A("s_cbranch_scc1 L_end")
        for r, off in ((S_WS, 96), (S_C, 64), (S_WM, 72), (S_X, 0), (S_W, 8), (S_PHI, 16)):
            A(f"s_load_dwordx2 {s(r,2)}, s[0:1], {off}")
        if self.leak:
            A(f"s_memrealtime {s(sRT,2)}\ns_mov_b32 {s(sTS+2)}, 0")
        if self.diag:
            A(f"s_memrealtime {s(sRT,2)}")
            A(f"{'s_memtime' if self.o.get('cyc', 0) else 's_memrealtime'} {s(sTS,2)}")
            self.names["cyc"] = self.o.get("cyc", 0)
            self.names["C"].append("start"); self.names["H"].append("start")
            self.names["C"].append("-"); self.names["H"].append("-")
        A("v_lshrrev_b32 v2, 6, v0")
        A("v_and_b32 v0, 63, v0")
        A(f"v_readfirstlane_b32 {s(sW)}, v2")
        A(f"s_and_b32 {s(sRB)}, s2, 7")
        A(f"s_lshr_b32 {s(sT0)}, s2, 7")
        A(f"s_lshl1_add_u32 {s(sRB)}, {s(sRB)}, {s(sT0)}")
        A(f"s_bfe_u32 {s(sJ)}, s2, 0x40003")
        A("v_mov_b32 v6, 0")
        A("v_lshrrev_b32 v8, 3, v0")
        A("v_and_b32 v9, 7, v0")
        A("v_lshlrev_b32 v1, 4, v0")
        A(f"v_mov_b32 {v(VMASK)}, 0xffff0000")
        A(f"s_and_b32 {s(sM)}, {s(sW)}, 3")
        A(f"s_lshl_b32 {s(sG)}, {s(sRB)}, 20")
        A(f"s_add_u32 {s(sG)}, {s(sG)}, {WS_G0:#x}")
        A(f"s_getreg_b32 {s(sFAST)}, hwreg(HW_REG_XCC_ID)")
        self.srd_consts([S_WS, S_C, S_WM])
        A(f"s_lshl2_add_u32 {s(sT0)}, {s(sW)}, {L_CW}")
        A(f"v_mov_b32 {v(VP)}, {s(sT0)}")
        A(f"ds_write2_b32 {v(VP)}, v6, v6 offset0:0 offset1:8")
        A(f"v_and_b32 {v(VQ)}, 3, v0")
        A(f"v_lshlrev_b32 {v(VQ)}, 2, {v(VQ)}")
        A(f"v_add_u32 {v(VQ)}, {L_CW}, {v(VQ)}")
        A(f"s_cmp_ge_u32 {s(sW)}, 4")
        A("s_cbranch_scc1 L_helper")

    PHIT, IDN, ONES, L2 = 112, 116, 120, 118

    def c_start(self):
        A = self.A
        if self.o.get("prio", 0):
            A(f"s_setprio {self.o.get('prio')}")
        self.srd_consts([S_X])
        A("v_lshlrev_b32 v2, 4, v9")
        A("v_lshl_add_u32 v89, v8, 10, v2")
        A(f"s_lshl4_add_u32 {s(sT2)}, {s(sRB)}, {s(sJ)}")
        A(f"s_lshl_b32 {s(sT2)}, {s(sT2)}, 13")
        A(f"s_lshl_b32 {s(sT3)}, {s(sM)}, 8")
        A(f"s_add_u32 {s(sT2)}, {s(sT2)}, {s(sT3)}")
        A(f"s_lshl_b32 {s(sEX)}, {s(sM)}, 11")
        A(f"s_add_u32 {s(sEX)}, {s(sEX)}, {L_XT}")
        A("s_waitcnt lgkmcnt(0)")
        self.wsoff()
        A(f"buffer_load_dword {v(VTAG)}, v6, {s(S_WS,4)}, 0 offen sc1")
        XL = self.o.get("xlate", 1)
        PH = self.o.get("pre_h", 1)

        def xdma():
            A(f"s_mov_b32 m0, {s(sEX)}")
            A(f"buffer_load_dwordx4 v89, {s(S_X,4)}, {s(sT2)} offen lds")
            A(f"s_add_u32 m0, {s(sEX)}, {1024-128}")
            A(f"buffer_load_dwordx4 v89, {s(S_X,4)}, {s(sT2)} offen offset:128 lds")

        def xres():
            A(f"s_lshr_b32 {s(sT0)}, {s(sJ)}, 3")
            A(f"s_lshl1_add_u32 {s(sT0)}, {s(sRB)}, {s(sT0)}")
            A(f"s_lshl2_add_u32 {s(sT0)}, {s(sT0)}, {s(sM)}")
            A(f"s_lshl_b32 s3, {s(sT0)}, 14")
            A(f"s_and_b32 {s(sT0)}, {s(sJ)}, 7")
            A(f"s_lshl_b32 {s(sT0)}, {s(sT0)}, 7")
            A(f"s_add_u32 s3, s3, {s(sT0)}")
            self.rm_voff(100)
            A(f"s_add_u32 m0, {s(sEX)}, {L_X1 - L_XT}")
            A(f"buffer_load_dwordx4 v100, {s(S_X,4)}, s3 offen lds")
            A(f"s_add_u32 m0, {s(sEX)}, {L_X1 - L_XT + 1024}")
            A(f"buffer_load_dwordx4 v101, {s(S_X,4)}, s3 offen lds")
        A("s_cmp_ge_u32 s2, 32")
        A("s_cbranch_scc1 L_p0a_skip")
        self.gemv_issue(32)
        self.gemv_issue2(32)
        A.label("L_p0a_skip")
        if not XL:
            xdma()
        self.bar()
        A(f"s_load_dwordx2 {s(S_OUT,2)}, s[0:1], 80")
        A("v_lshrrev_b32 v10, 4, v0")
        A("v_and_b32 v11, 15, v0")
        self.srd_consts([S_OUT])
        A(f"v_lshl_add_u32 v90, v9, 7, {s(sEX)}")
        A("v_lshl_add_u32 v90, v8, 4, v90")
        A("v_lshlrev_b32 v2, 2, v10")
        A("v_sub_u32 v2, v11, v2")
        A("v_cmp_gt_u32 vcc, 4, v2")
        A("v_mov_b32 v20, 0x3f80")
        A("v_mov_b32 v21, 0")
        A("v_cndmask_b32 v20, 0, v20, vcc")
        A("v_lshlrev_b32 v2, 4, v2")
        A(f"v_lshlrev_b64 {v(self.IDN,2)}, v2, v[20:21]")
        for i in range(4):
            A(f"v_mov_b32 {v(self.ONES+i)}, 0x3f803f80")
        A(f"v_mov_b32 {v(self.L2)}, 0x3fb8aa3b")
        A(f"v_mov_b32 {v(self.L2+1)}, 0x3fb8aa3b")
        A("v_lshrrev_b32 v2, 2, v11")
        A("v_lshl_add_u32 v2, v10, 3, v2")
        A("v_lshlrev_b32 v2, 6, v2")
        A("v_and_b32 v3, 3, v0")
        A("v_lshl_add_u32 v2, v3, 3, v2")
        A("v_and_b32 v3, 1, v10")
        A("v_lshl_add_u32 v124, v3, 5, v2")
        A("v_xor_b32 v125, 32, v124")
        A("v_lshlrev_b32 v5, 2, v11")
        A("v_lshlrev_b32 v91, 5, v9")
        A("v_lshl_add_u32 v91, v10, 3, v91")
        A("v_lshlrev_b32 v92, 1, v91")
        A(f"s_add_u32 {s(sT0)}, {s(sT3)}, {L_SCR}")
        A(f"v_add_u32 v91, {s(sT0)}, v91")
        A("v_lshlrev_b32 v11, 4, v9")
        A(f"v_add_u32 v11, {L_STX}, v11")
        A("v_lshrrev_b32 v10, 5, v0")
        A("v_lshl_add_u32 v10, v10, 7, v11")
        A(f"s_lshl_b32 {s(sT0)}, {s(sM)}, 2")
        A(f"v_add_u32 v10, {s(sT0)}, v10")
        A(f"s_lshl_b32 {s(sA0)}, {s(sM)}, 10")
        A(f"s_add_u32 {s(sA7)}, {s(sA0)}, {L_TAB}")
        A(f"s_add_u32 {s(sA0)}, {s(sA0)}, {WS_MODU:#x}")
        A(f"s_add_u32 {s(sA8)}, {s(sA0)}, 4096")
        A(f"s_add_u32 {s(sA9)}, {s(sA0)}, 8192")
        A(f"s_add_u32 {s(sA10)}, {s(sA0)}, 12288")
        A(f"s_add_u32 {s(sA1)}, {s(sG)}, {G_XCC:#x}")
        A("v_lshlrev_b32 v94, 5, v5")
        A(f"s_lshr_b32 {s(sA2)}, {s(sJ)}, 2")
        A(f"s_bfe_u32 {s(sT0)}, {s(sJ)}, 0x10001")
        A(f"s_lshl3_add_u32 {s(sA2)}, {s(sA2)}, {s(sT0)}")
        A(f"s_lshl2_add_u32 {s(sA2)}, {s(sA2)}, {s(sM)}")
        A(f"s_lshl_b32 {s(sA2)}, {s(sA2)}, 12")
        A(f"s_and_b32 {s(sT0)}, {s(sJ)}, 1")
        A(f"s_lshl_b32 {s(sT0)}, {s(sT0)}, 7")
        A(f"s_add_u32 {s(sA2)}, {s(sA2)}, {s(sT0)}")
        A(f"s_add_u32 {s(sA2)}, {s(sA2)}, {s(sG)}")
        A(f"s_lshr_b32 {s(sT0)}, {s(sJ)}, 2")
        A(f"s_lshl_b32 {s(sT0)}, {s(sT0)}, 7")
        A(f"s_and_b32 {s(sT1)}, {s(sJ)}, 3")
        A(f"s_lshl2_add_u32 {s(sT1)}, {s(sT1)}, {s(sM)}")
        A(f"s_lshl2_add_u32 {s(sT0)}, {s(sT1)}, {s(sT0)}")
        A(f"s_add_u32 {s(sA4)}, {s(sG)}, {G_FLH:#x}")
        A(f"s_add_u32 {s(sA3)}, {s(sA4)}, {s(sT0)}")
        A(f"s_lshl_b32 {s(sT0)}, {s(sM)}, 7")
        A(f"s_add_u32 {s(sA4)}, {s(sA4)}, {s(sT0)}")
        A(f"s_lshl_b32 {s(sA5)}, {s(sM)}, 17")
        A(f"s_add_u32 {s(sA5)}, {s(sA5)}, {s(sG)}")
        A(f"s_add_u32 {s(sA6)}, {s(sA5)}, 16384")
        A(f"s_lshl2_add_u32 {s(sA11)}, {s(sJ)}, {s(sM)}")
        A(f"s_lshl4_add_u32 {s(sA11)}, {s(sA11)}, {s(sRB)}")
        A(f"s_lshl_b32 {s(sA11)}, {s(sA11)}, 10")
        A(f"s_add_u32 {s(sA11)}, {s(sA11)}, {WS_KVP:#x}")
        A("v_mov_b32 v72, 0\nv_mov_b32 v73, 0")
        A("v_lshlrev_b32 v88, 8, v0")
        nx = 0 if XL else 2
        A("s_cmp_ge_u32 s2, 32")
        A("s_cbranch_scc1 L_w1")
        A(f"s_waitcnt vmcnt({8 + nx})")
        A("s_branch L_w2")
        A.label("L_w1")
        A(f"s_waitcnt vmcnt({nx})")
        A.label("L_w2")
        if XL:
            xdma()
        if PH:
            A("s_mov_b64 exec, 0xffff")
            A(f"buffer_load_dword v88, v88, {s(S_WS,4)}, {s(sA2)} offen")
            A("s_mov_b64 exec, -1")
        A(f"v_add_u32 {v(VTAG)}, 1, {v(VTAG)}")
        A(f"v_readfirstlane_b32 {s(sTAG)}, {v(VTAG)}")
        A(f"v_mov_b32 v96, {s(sFAST)}\nv_mov_b32 v97, {v(VTAG)}\nv_mov_b32 v98, {s(sFAST)}\nv_mov_b32 v99, {v(VTAG)}")
        A(f"s_lshl_b32 {s(sT0)}, {s(sJ)}, 7")
        A(f"s_add_u32 {s(sT0)}, {s(sT0)}, {s(sA1)}")
        A(f"s_cmp_eq_u32 {s(sM)}, 3")
        A(f"s_cselect_b32 {s(sT1)}, 0, 0x40000000")
        A(f"v_add_u32 v95, {s(sT1)}, v1")
        A("s_mov_b64 exec, 0xff")
        A(f"buffer_store_dwordx4 v[96:99], v95, {s(S_WS,4)}, {s(sT0)} offen sc1")
        A("s_mov_b64 exec, -1")
        PH += 1
        self.ts("tag")
        A("s_cmp_ge_u32 s2, 32")
        A("s_cbranch_scc1 L_p0c_skip")
        self.gemv_compute(32, 2 + PH)
        A("ds_write_b64 v91, v[26:27]")
        self.signal(VP, 2, CV_G)
        A(f"s_cmp_lg_u32 {s(sW)}, 0")
        A("s_cbranch_scc1 L_p0c_skip")
        A("v_lshlrev_b32 v2, 2, v0")
        A(f"v_add_u32 v3, {L_SCR}, v2")
        A(f"s_lshr_b32 {s(sT0)}, s2, 4")
        A(f"s_and_b32 {s(sT1)}, s2, 1")
        A(f"s_lshl1_add_u32 {s(sT0)}, {s(sT0)}, {s(sT1)}")
        A(f"s_bfe_u32 {s(sT1)}, s2, 0x30001")
        A(f"s_lshl3_add_u32 {s(sT0)}, {s(sT0)}, {s(sT1)}")
        A(f"s_lshl_b32 {s(sT0)}, {s(sT0)}, 9")
        A(f"s_add_u32 {s(sT0)}, {s(sT0)}, {WS_MODU:#x}")
        self.lwait(VQ, 2, CV_G, extra=["ds_read2st64_b32 v[12:13], v3 offset0:0 offset1:1", "ds_read2st64_b32 v[14:15], v3 offset0:2 offset1:3"])
        A("v_lshlrev_b32 v2, 3, v0")
        A("s_waitcnt lgkmcnt(0)")
        A("v_pk_add_f32 v[12:13], v[12:13], v[14:15]")
        A("v_add_f32 v12, v12, v13")
        A(f"v_mov_b32 v13, {v(VTAG)}")
        A(f"buffer_store_dwordx2 v[12:13], v2, {s(S_WS,4)}, {s(sT0)} offen sc1")
        self.ts("p0_done")
        A(f"s_waitcnt vmcnt({1 + PH})")
        A("s_branch L_xw")
        A.label("L_p0c_skip")
        A(f"s_waitcnt vmcnt({PH})")
        A.label("L_xw")
        A("ds_read_b128 v[64:67], v90")
        A("ds_read_b128 v[68:71], v90 offset:1024")
        self.ts("x_land")
        A("s_waitcnt lgkmcnt(0)")
        for i in range(8):
            A(f"v_dot2c_f32_bf16 v72, {v(self.ONES)}, {v(64+i)}")
            A(f"v_dot2c_f32_bf16 v73, {v(64+i)}, {v(64+i)}")
        A("v_permlane32_swap_b32 v72, v73")
        A("v_add_f32 v72, v72, v73")
        A("v_mov_b32 v73, v72")
        A("v_permlane16_swap_b32 v72, v73")
        A("v_add_f32 v72, v72, v73")
        A("v_add_f32_dpp v73, v72, v72 row_ror:8 row_mask:0xf bank_mask:0xf")
        A("ds_write_b32 v10, v73")
        self.signal(VP, 2, CV_S)
        xres()
        self.lwait(VQ, 2, CV_S)
        A("ds_read_b128 v[16:19], v11")
        A("ds_read_b128 v[20:23], v11 offset:128")
        for i in range(8):
            A(f"v_lshlrev_b32 {v(72+2*i)}, 16, {v(64+i)}")
            A(f"v_and_b32 {v(73+2*i)}, {v(VMASK)}, {v(64+i)}")
        A(f"v_lshl_add_u32 v2, v0, 3, {s(sA7)}")
        A(f"v_lshl_add_u32 v3, v8, 5, {s(sA7)}")
        A("v_lshlrev_b32 v93, 8, v8")
        A("v_lshl_add_u32 v93, v9, 4, v93")
        A("s_waitcnt lgkmcnt(0)")
        A("v_pk_add_f32 v[16:17], v[16:17], v[18:19]\nv_pk_add_f32 v[20:21], v[20:21], v[22:23]")
        A("v_add_f32 v16, v16, v17\nv_add_f32 v17, v20, v21")
        A("v_mul_f32 v16, 0x3b000000, v16\nv_mul_f32 v17, 0x3b000000, v17")
        A("v_fma_f32 v17, -v16, v16, v17")
        A("v_max_f32 v17, 0, v17")
        A("v_add_f32 v17, 0x3727c5ac, v17")
        A("v_rsq_f32 v17, v17")
        A("v_mul_f32_e64 v16, -v16, v17")
        for i in range(8):
            A(f"v_pk_fma_f32 {v(72+2*i,2)}, {v(72+2*i,2)}, v[16:17], v[16:17] op_sel:[0,1,0] op_sel_hi:[1,1,0]")
        A("v_lshlrev_b32 v14, 3, v0")
        A(f"v_add_u32 v14, {L_PHI}, v14")
        if self.o.get("s0late", 1):
            self.lwait(VQ, 13, HV_W if self.o.get("s0late", 1) == 1 else HV_I, off=16, sleep=1)
        A(f"s_mov_b32 {s(sCNT)}, {SPIN}")
        A("s_branch L_s0f")
        A.label("L_s0")
        A("s_sleep 4")
        A.label("L_s0f")
        for i, sr in enumerate((sA0, sA8, sA9, sA10)):
            A(f"buffer_load_dwordx4 {v(16+4*i,4)}, v1, {s(S_WS,4)}, {s(sr)} offen sc1")
        A(f"buffer_load_dwordx2 v[32:33], v94, {s(S_WS,4)}, {s(sA1)} offen sc1")
        A(f"s_sub_u32 {s(sCNT)}, {s(sCNT)}, 1")
        A("s_cbranch_scc1 L_s0d")
        A("s_waitcnt vmcnt(0)")
        A(f"v_xor_b32 v36, {v(VTAG)}, v33")
        A(f"v_xor_b32 v37, {v(VTAG)}, v17")
        for i in range(1, 8):
            acc = 36 + (i & 1)
            A(f"v_bitop3_b32 {v(acc)}, {v(acc)}, {v(17+2*i)}, {v(VTAG)} bitop3:0xf6")
        A("v_or_b32 v36, v36, v37")
        A("v_cmp_ne_u32 vcc, 0, v36")
        A("s_cbranch_vccnz L_s0")
        A.label("L_s0d")
        A("s_waitcnt vmcnt(0)")
        self.ts("s0_ok")
        A("v_add_f32 v24, v24, v28\nv_add_f32 v26, v26, v30\nv_add_f32 v16, v16, v20\nv_add_f32 v18, v18, v22")
        A("v_cvt_pk_bf16_f32 v24, v24, v26\nv_cvt_pk_bf16_f32 v16, v16, v18")
        A(f"v_and_b32 v25, {v(VMASK)}, v24\nv_lshlrev_b32 v24, 16, v24")
        A(f"v_and_b32 v17, {v(VMASK)}, v16\nv_lshlrev_b32 v16, 16, v16")
        A("v_add_f32 v24, 1.0, v24\nv_add_f32 v25, 1.0, v25")
        A("ds_write_b64 v2, v[16:17]")
        A("v_cvt_pk_bf16_f32 v24, v24, v25")
        A(f"v_and_b32 v25, {v(VMASK)}, v24\nv_lshlrev_b32 v24, 16, v24")
        A("ds_write_b64 v2, v[24:25] offset:512")
        for e in range(2):
            for q in range(2):
                A(f"ds_read_b128 {v(16+8*e+4*q,4)}, v3 offset:{e*256 + q*16}")
                A(f"ds_read_b128 {v(40+8*e+4*q,4)}, v3 offset:{512 + e*256 + q*16}")
        A(f"v_cmp_ne_u32 vcc, {s(sFAST)}, v32")
        A("s_cmp_eq_u64 vcc, 0")
        A(f"s_cselect_b32 {s(sFAST)}, {0 if self.force_slow else 1}, 0")
        for q in range(4):
            A(f"s_waitcnt lgkmcnt({6-2*q})")
            for i in range(2):
                r = 4*q + 2*i
                A(f"v_pk_fma_f32 {v(16+r,2)}, {v(72+r,2)}, {v(40+r,2)}, {v(16+r,2)}")
            for i in range(2):
                r = 4*q + 2*i
                A(f"v_cvt_pk_bf16_f32 {v(32+r//2)}, {v(16+r)}, {v(17+r)}")

        def st(sfx):
            A(f"buffer_store_dwordx4 v[32:35], v93, {s(S_WS,4)}, {s(sA2)} offen{sfx}")
            A(f"buffer_store_dwordx4 v[36:39], v93, {s(S_WS,4)}, {s(sA2)} offen offset:2048{sfx}")
        self.store_flag(st, sA3, 6, VTAG, data_sc1=not self.o.get('pre_h', 1))

    def c_p1(self):
        A = self.A
        PHIT, IDN, ONES, L2 = self.PHIT, self.IDN, self.ONES, self.L2
        if self.o.get("s0late", 1) != 1:
            self.lwait(VQ, 13, HV_W, off=16, sleep=1)
        for h in range(2):
            A(f"ds_read_b64_tr_b16 {v(PHIT+2*h,2)}, v14 offset:{h*512}")
        A("s_waitcnt lgkmcnt(0)")
        LA = self.o.get("la1", 4)

        def ld(u):
            o = [f"buffer_load_dwordx4 {a((u*2+t)*4,4)}, v1, {s(S_WS,4)}, {s(sA5+t)} offen offset:{(u&3)*1024} sc1" for t in range(2)]
            if (u & 3) == 3 and u < 15:
                o += [f"s_add_u32 {s(sA5)}, {s(sA5)}, 4096", f"s_add_u32 {s(sA6)}, {s(sA6)}, 4096"]
            return o

        def rd_b(u):
            p = 64 + (u % 3) * 16
            return [f"ds_read_b64_tr_b16 {v(p + (mi*2+h)*4 + hh*2, 2)}, {v(124+h)} offset:{base + u*2048 + hh*256}"
                    for mi, base in enumerate((L_WK, L_WV)) for h in range(2) for hh in range(2)]
        self.emit(rd_b(0) + rd_b(1))
        self.poll(5, sA4, 10)
        for u in range(LA):
            self.emit(ld(u))
        self.ts("h_flags")
        for u in range(16):
            A(f"s_waitcnt vmcnt({2*(min(15, u+LA-1) - u)}) lgkmcnt({(8 if u < 15 else 0) + (1 if u + LA == 16 else 0)})")
            p = 64 + (u % 3) * 16
            mf = []
            for h in range(2):
                for t in range(2):
                    d = 32 + (h * 2 + t) * 4
                    mf.append(f"v_mfma_f32_16x16x32_bf16 {v(d,4)}, {v(p+h*4,4)}, {a((u*2+t)*4,4)}, {v(d,4) if u else 0}")
            for h in range(2):
                for t in range(2):
                    d = 48 + (h * 2 + t) * 4
                    mf.append(f"v_mfma_f32_16x16x32_bf16 {v(d,4)}, {a((u*2+t)*4,4)}, {v(p+8+h*4,4)}, {v(d,4) if u else 0}")
            self.emit(weave(mf, (ld(u + LA) if u + LA < 16 else []) + (rd_b(u + 2) if u + 2 < 16 else [])))
            if u + LA == 15:
                self.signal(VP, 10, CV_A2)
        self.signal(VP, 10, CV_GD)
        A(f"s_mul_i32 {s(sT0)}, {s(sM)}, {KVR_W}")
        A(f"s_add_u32 {s(sT0)}, {s(sT0)}, {L_KVR}")
        A(f"v_add_u32 v2, {s(sT0)}, v1")
        A("v_and_b32 v3, 48, v0")
        A(f"v_add_u32 v3, {s(sT0)}, v3")
        self.ts("kv_gemm")
        for i in range(8):
            A(f"v_cvt_pk_bf16_f32 {v(8+i)}, {v(32+2*i)}, {v(33+2*i)}")
        for h in range(2):
            for t in range(2):
                A(f"v_mfma_f32_16x16x16_bf16 {v(64+8*h+4*t,4)}, {v(PHIT+2*h,2)}, {v(8+4*h+2*t,2)}, 0")
        for i in range(8):
            A(f"v_cvt_pk_bf16_f32 {v(48+i)}, {v(48+2*i)}, {v(49+2*i)}")
        self.emit(zip_streams(*[self.softmax2(64+8*h, 80+8*h, 96+8*h, 16+8*h, 32+8*h, L2) for h in range(2)]))
        self.ts("f:sm")
        for h in range(2):
            for i, p in enumerate((0, 4, 2, 6)):
                A(f"v_mfma_f32_16x16x16_bf16 {v(64+16*h+4*i,4)}, {v(32+8*h+p,2)}, {v(IDN,2)}, 0")
        for i in range(16):
            A(f"v_cvt_pk_bf16_f32 {v(96+i)}, {v(64+2*i)}, {v(65+2*i)}")
        for h in range(2):
            for sg in range(2):
                A(f"v_mfma_f32_16x16x32_bf16 {v(16+8*h+4*sg,4)}, {v(96+8*h+4*sg,4)}, {v(48+4*h,4)}, 0")
        for h in range(2):
            for sg in range(2):
                A(f"v_mfma_f32_16x16x32_bf16 {v(32+8*h+4*sg,4)}, {v(96+8*h+4*sg,4)}, {v(ONES,4)}, 0")
        for i in range(4):
            A(f"ds_write_b128 v2, {v(16+4*i,4)} offset:{i*1024}")
        for i in range(4):
            A(f"ds_write_b128 v3, {v(32+4*i,4)} offset:{4096 + i*64}")
        self.signal(VP, 8, CV_KV)
        self.ts("f:kvw")
        A(f"s_lshl_b32 {s(sT0)}, {s(sM)}, 10")
        A(f"s_add_u32 {s(sT0)}, {s(sT0)}, {L_KVR}")
        A(f"v_add_u32 v10, {s(sT0)}, v1")
        A("v_and_b32 v11, 3, v0")
        A("v_and_b32 v9, 48, v0")
        A("v_lshl_add_u32 v11, v11, 2, v9")
        A(f"s_lshl_b32 {s(sT0)}, {s(sM)}, 6")
        A(f"s_add_u32 {s(sT0)}, {s(sT0)}, {L_KVR + 4096}")
        A(f"v_add_u32 v11, {s(sT0)}, v11")
        self.lwait(VQ, 9, CV_KV, extra=[f"ds_read_b128 {v(64+4*i,4)}, v10 offset:{i*KVR_W}" for i in range(4)]
                   + [f"ds_read_b32 {v(80+i)}, v11 offset:{i*KVR_W}" for i in range(4)])
        A(f"v_add_u32 v124, {L_WQ}, v124")
        A(f"v_add_u32 v125, {L_WQ}, v125")
        A(f"v_mov_b32 v15, {v(VTAG)}")
        A("s_waitcnt lgkmcnt(4)")
        for i in range(2):
            A(f"v_pk_add_f32 {v(64+2*i,2)}, {v(64+2*i,2)}, {v(68+2*i,2)}")
            A(f"v_pk_add_f32 {v(72+2*i,2)}, {v(72+2*i,2)}, {v(76+2*i,2)}")
        for i in range(2):
            A(f"v_pk_add_f32 {v(64+2*i,2)}, {v(64+2*i,2)}, {v(72+2*i,2)}")
        A("s_waitcnt lgkmcnt(0)")
        A("v_pk_add_f32 v[80:81], v[80:81], v[82:83]")
        A("v_cvt_pk_bf16_f32 v12, v64, v65\nv_cvt_pk_bf16_f32 v13, v66, v67")
        A("v_add_f32 v14, v80, v81")
        A(f"buffer_store_dwordx4 v[12:15], v1, {s(S_WS,4)}, {s(sA11)} offen sc1")
        self.signal(VP, 9, CV_PUB)
        self.ts("kv_pub")
        self.c_addr_setup()
        self.lwait(VQ, 9, HV_Q, off=16, sleep=1)

        def rd_q(u):
            p = 64 + (u & 3) * 8
            return [f"ds_read_b64_tr_b16 {v(p + h*4 + hh*2, 2)}, {v(124+h)} offset:{u*2048 + hh*256}" for h in range(2) for hh in range(2)]
        self.emit(rd_q(0) + rd_q(1) + rd_q(2))
        for u in range(16):
            A(f"s_waitcnt lgkmcnt({min(8, 4*(15-u))})")
            p = 64 + (u & 3) * 8
            mf = []
            for t in range(2):
                for h in range(2):
                    d = 32 + (t * 2 + h) * 4
                    mf.append(f"v_mfma_f32_16x16x32_bf16 {v(d,4)}, {v(p+h*4,4)}, {a((u*2+t)*4,4)}, {v(d,4) if u else 0}")
            self.emit(weave(mf, rd_q(u + 3) if u + 3 < 16 else []))
        for i in range(8):
            A(f"v_cvt_pk_bf16_f32 {v(8+i)}, {v(32+2*i)}, {v(33+2*i)}")
        for t in range(2):
            for h in range(2):
                A(f"v_mfma_f32_16x16x16_bf16 {v(64+8*t+4*h,4)}, {v(PHIT+2*h,2)}, {v(8+4*t+2*h,2)}, 0")
        self.ts("q_gemm")
        A(f"s_mov_b32 {s(sCNT)}, {SPIN}")
        A.label("L_h1p")
        A(f"buffer_load_dwordx4 v[8:11], v48, {s(S_WS,4)}, {s(sB0)} offen sc1")
        A(f"s_sub_u32 {s(sCNT)}, {s(sCNT)}, 1")
        A("s_cbranch_scc1 L_h1d")
        A("s_waitcnt vmcnt(0)")
        A(f"v_cmp_ne_u32 vcc, {s(sTAG)}, v11")
        A("s_cbranch_vccnz L_h1p")
        A.label("L_h1d")
        A("s_waitcnt vmcnt(0)")
        A(f"v_lshlrev_b32 v12, 16, v8\nv_lshlrev_b32 v14, 16, v9\nv_and_b32 v13, {v(VMASK)}, v8\nv_and_b32 v15, {v(VMASK)}, v9")
        zs = ["v_mov_b32 v16, v10", "v_permlane32_swap_b32 v10, v16", "v_add_f32 v10, v10, v16", "v_mov_b32 v16, v10",
              "v_permlane16_swap_b32 v10, v16", "v_add_f32 v10, v10, v16",
              "v_add_f32_dpp v16, v10, v10 row_ror:4 row_mask:0xf bank_mask:0xf", "v_add_f32_dpp v10, v16, v16 row_ror:8 row_mask:0xf bank_mask:0xf",
              "v_mov_b32_dpp v16, v10 quad_perm:[0,2,0,2] row_mask:0xf bank_mask:0xf", "v_mov_b32_dpp v17, v10 quad_perm:[1,3,1,3] row_mask:0xf bank_mask:0xf",
              "v_cvt_pk_bf16_f32 v10, v16, v17"]
        ks = (self.red4("v_add_f32", 12, 14, 13, 15)
              + ["v_add_f32_dpp v13, v12, v12 row_ror:4 row_mask:0xf bank_mask:0xf", "v_add_f32_dpp v12, v13, v13 row_ror:8 row_mask:0xf bank_mask:0xf"]
              + self.bcast4(12, 14, 13, 15) + ["v_cvt_pk_bf16_f32 v8, v12, v13", "v_cvt_pk_bf16_f32 v9, v14, v15"])
        self.emit(zip_streams(ks, zs))
        A("s_mov_b64 exec, 15")
        A(f"buffer_store_dwordx4 v[8:11], v1, {s(S_WS,4)}, {s(sB1)} offen sc1")
        A("s_mov_b64 exec, -1")
        self.signal(VP, 18, CV_H1)
        self.emit(zip_streams(*[self.softmax2(64+8*t, 80+8*t, 96+8*t, 16+8*t, 32+8*t, L2) for t in range(2)]))
        A(f"s_mov_b32 {s(sCNT)}, {SPIN}")
        A("s_branch L_h2f")
        A.label("L_h2p")
        A(f"s_sleep {self.o.get('h2sleep', 2)}")
        A.label("L_h2f")
        for i in range(4):
            A(f"buffer_load_dwordx4 {v(16+4*i,4)}, v1, {s(S_WS,4)}, {s(sB2)} offen offset:{i*1024} sc1")
        A(f"s_sub_u32 {s(sCNT)}, {s(sCNT)}, 1")
        A("s_cbranch_scc1 L_h2d")
        A("s_waitcnt vmcnt(0)")
        A(f"v_xor_b32 v12, {v(VTAG)}, v19")
        for i in range(1, 4):
            A(f"v_bitop3_b32 v12, v12, {v(19+4*i)}, {v(VTAG)} bitop3:0xf6")
        A("v_cmp_ne_u32 vcc, 0, v12")
        A("s_cbranch_vccnz L_h2p")
        A.label("L_h2d")
        A("s_waitcnt vmcnt(0)")
        self.ts("kvf")
        self.signal(VP, 12, CV_O)
        for i in range(4):
            for e in range(2):
                A(f"v_mov_b32_dpp {v(48+2*i+e)}, {v(18+4*i)} quad_perm:[{e},{e},{e},{e}] row_mask:0xf bank_mask:0xf")
        for h in range(2):
            A(f"v_mov_b32 {v(18+8*h)}, {v(20+8*h)}\nv_mov_b32 {v(19+8*h)}, {v(21+8*h)}")
        for t in range(2):
            for h in range(2):
                A(f"v_mfma_f32_16x16x32_bf16 {v(80+8*t+4*h,4)}, {v(48+4*h,4)}, {v(32+8*t+4*h,4)}, 0")
        for t in range(2):
            for h in range(2):
                A(f"v_mfma_f32_16x16x32_bf16 {v(64+8*t+4*h,4)}, {v(16+8*h,4)}, {v(32+8*t+4*h,4)}, 0")
        for i in range(4):
            A(f"v_add_f32 {v(80+4*i)}, 0x358637bd, {v(80+4*i)}")
        for i in range(4):
            A(f"v_rcp_f32 {v(80+4*i)}, {v(80+4*i)}")
        for i in range(4):
            for h in range(2):
                A(f"v_pk_mul_f32 {v(64+4*i+2*h,2)}, {v(64+4*i+2*h,2)}, {v(80+4*i,2)} op_sel:[0,0] op_sel_hi:[1,0]")
        for i in range(8):
            A(f"v_cvt_pk_bf16_f32 {v(56+i)}, {v(64+2*i)}, {v(65+2*i)}")
        self.ts("f:o")

        def st(sfx):
            A(f"buffer_store_dwordx4 v[56:59], v1, {s(S_WS,4)}, {s(sA0)} offen{sfx}")
            A(f"buffer_store_dwordx4 v[60:63], v1, {s(S_WS,4)}, {s(sA1)} offen{sfx}")
        self.store_flag(st, sA2, 6, VTAG, data_sc1=bool(self.o.get('o_sc1', 0)), shadow=self.img_addr)
        self.ts("f:opub")

    def c_addr_setup(self):
        A = self.A
        A(f"s_lshl2_add_u32 {s(sT0)}, {s(sJ)}, {s(sM)}")
        A(f"s_lshl_b32 {s(sT1)}, {s(sRB)}, 6")
        A(f"s_lshl_b32 {s(sB0)}, {s(sT0)}, 14")
        A(f"s_add_u32 {s(sB0)}, {s(sB0)}, {s(sT1)}")
        A(f"s_add_u32 {s(sB0)}, {s(sB0)}, {WS_KVP:#x}")
        A(f"s_lshl_b32 {s(sB1)}, {s(sT0)}, 10")
        A(f"s_add_u32 {s(sB1)}, {s(sB1)}, {s(sT1)}")
        A(f"s_add_u32 {s(sB1)}, {s(sB1)}, {WS_KV2:#x}")
        A(f"s_lshl_b32 {s(sB2)}, {s(sJ)}, 12")
        A(f"s_add_u32 {s(sB2)}, {s(sB2)}, {WS_KV2:#x}")
        A("v_lshrrev_b32 v48, 2, v0")
        A("v_lshlrev_b32 v48, 10, v48")
        A("v_and_b32 v49, 3, v0")
        A("v_lshl_add_u32 v48, v49, 4, v48")
        A(f"s_lshl_b32 {s(sT0)}, {s(sM)}, 7")
        A(f"s_add_u32 {s(sT1)}, {s(sT0)}, {s(sJ)}")
        A(f"s_lshl_b32 {s(sA0)}, {s(sT1)}, 10")
        A(f"s_add_u32 {s(sA0)}, {s(sA0)}, {s(sG)}")
        A(f"s_add_u32 {s(sA0)}, {s(sA0)}, {G_O:#x}")
        A(f"s_add_u32 {s(sA1)}, {s(sA0)}, 16384")
        A(f"s_add_u32 {s(sT0)}, {s(sT0)}, {s(sG)}")
        A(f"s_add_u32 {s(sA9)}, {s(sT0)}, {G_FL2:#x}")
        A(f"s_lshl2_add_u32 {s(sT0)}, {s(sJ)}, {s(sT0)}")
        A(f"s_add_u32 {s(sA2)}, {s(sT0)}, {G_FLO:#x}")
        A(f"s_add_u32 {s(sA10)}, {s(sT0)}, {G_FL3:#x}")
        A(f"s_lshr_b32 {s(sT1)}, {s(sJ)}, 3")
        A(f"s_lshl2_add_u32 {s(sT1)}, {s(sT1)}, {s(sM)}")
        A(f"s_and_b32 {s(sT2)}, {s(sJ)}, 7")
        A(f"s_lshr_b32 {s(sEX)}, {s(sT1)}, 1")
        A(f"s_lshl_b32 {s(sT0)}, {s(sEX)}, 7")
        A(f"s_add_u32 {s(sT0)}, {s(sT0)}, {s(sG)}")
        A(f"s_add_u32 {s(sA3)}, {s(sT0)}, {G_FLO:#x}")
        A(f"s_add_u32 {s(sA11)}, {s(sT0)}, {G_FL3:#x}")
        A(f"s_and_b32 {s(sW)}, {s(sM)}, 1")
        A(f"s_lshl3_add_u32 {s(sT3)}, {s(sW)}, {s(sT2)}")
        A(f"s_lshl2_add_u32 {s(sT0)}, {s(sT3)}, {s(sT0)}")
        A(f"s_add_u32 {s(sA8)}, {s(sT0)}, {G_FL2:#x}")
        A(f"s_lshl_b32 {s(sT0)}, {s(sT1)}, 11")
        A(f"s_add_u32 {s(sT0)}, {s(sT0)}, {s(sG)}")
        A(f"s_add_u32 {s(sA6)}, {s(sT0)}, {G_ST:#x}")
        A(f"s_lshl_b32 {s(sT0)}, {s(sT2)}, 8")
        A(f"s_add_u32 {s(sA7)}, {s(sA6)}, {s(sT0)}")
        A(f"s_lshl_b32 {s(sEX)}, {s(sEX)}, 17")
        A(f"s_add_u32 {s(sEX)}, {s(sEX)}, {s(sG)}")
        A(f"s_lshl_b32 {s(sT0)}, {s(sT3)}, 11")
        A(f"s_add_u32 {s(sA5)}, {s(sEX)}, {s(sT0)}")
        A(f"s_add_u32 {s(sEX)}, {s(sEX)}, {G_O:#x}")
        A(f"s_lshl_b32 {s(sT0)}, {s(sW)}, 14")
        A(f"s_add_u32 {s(sA4)}, {s(sEX)}, {s(sT0)}")
        A(f"s_mul_i32 {s(sT0)}, {s(sW)}, 49152")
        A(f"s_add_u32 {s(sEX)}, {s(sEX)}, {s(sT0)}")
        self.rot_setup()
        self.slab_bases()

    def rm_voff(self, d):
        A = self.A
        A("v_lshrrev_b32 v2, 4, v0")
        A("v_and_b32 v3, 7, v0")
        A("v_xor_b32 v2, v2, v3")
        A("v_lshrrev_b32 v3, 3, v0")
        A("v_lshlrev_b32 v3, 10, v3")
        A(f"v_lshl_add_u32 {v(d)}, v2, 4, v3")
        A(f"v_xor_b32 {v(d+1)}, {8192 + 64}, {v(d)}")

    def rot_setup(self):
        A = self.A
        A(f"s_and_b32 {s(sRB)}, {s(sRB)}, 14")
        A(f"s_cmp_eq_u32 {s(sRB)}, 14")
        A(f"s_cselect_b32 {s(sEX+1)}, 0, {s(sRB)}")

    def slab_bases(self):
        A = self.A
        A("v_lshrrev_b32 v2, 2, v0")
        A("v_lshlrev_b32 v2, 7, v2")
        A("v_and_b32 v3, 3, v0")
        A("v_lshl_add_u32 v2, v3, 3, v2")
        A("v_bfe_u32 v3, v0, 3, 2")
        A("v_lshl_add_u32 v120, v3, 5, v2")
        for t in range(1, 4):
            A(f"v_xor_b32 {v(120+t)}, {32*t}, v120")

    def img_addr(self):
        A = self.A
        A("v_and_b32 v2, 15, v0")
        A("v_lshrrev_b32 v3, 1, v2")
        A("v_lshrrev_b32 v115, 5, v0")
        A("v_xor_b32 v3, v3, v115")
        A("v_lshlrev_b32 v3, 4, v3")
        A("v_lshl_add_u32 v2, v2, 7, v3")
        A("v_bfe_u32 v3, v0, 4, 1")
        A("v_lshl_add_u32 v2, v3, 3, v2")
        A(f"s_lshl_b32 {s(sT0)}, {s(sM)}, 11")
        A(f"s_add_u32 {s(sT0)}, {s(sT0)}, {L_X1}")
        A(f"v_add_u32 v116, {s(sT0)}, v2")
        for t in range(1, 4):
            A(f"v_xor_b32 {v(116+t)}, {32*t}, v116")
        A("v_and_b32 v115, 48, v0")
        A(f"v_add_u32 v115, {L_MT}, v115")
        for t in range(4):
            A(f"ds_read_b64 {v(24+2*t,2)}, {v(116+t)}")
        A("v_mov_b32 v114, 0xffff0000")
        A("s_waitcnt lgkmcnt(0)")
        for i in range(8):
            A(f"v_lshlrev_b32 {v(8+2*i)}, 16, {v(24+i)}")
            A(f"v_and_b32 {v(9+2*i)}, v114, {v(24+i)}")

    def g16(self, n, AF, ld, LA, rd, extra):
        A = self.A
        q = [("rd", i) for i in range(2) for _ in range(8)]
        for i in range(n):
            last = max(k for k, x in enumerate(q) if x == ("rd", i))
            A(f"s_waitcnt vmcnt({min(n-1, i+LA-1) - i}) lgkmcnt({len(q) - 1 - last})")
            q = q[last + 1:]
            mf = [f"v_mfma_f32_16x16x32_bf16 {v(32+4*T,4)}, {v(48 + (i%3)*16 + 4*T,4)}, {AF(i)}, {v(32+4*T,4) if i else 0}" for T in range(4)]
            hook, ex = extra(i, q)
            if hook:
                A(mf[0]); mf = mf[1:]
                hook()
            oth = []
            for x, tag in ex:
                oth.append(x)
                if tag:
                    q.append((tag, i))
            if i + 2 < n:
                oth += rd(i + 2)
                q += [("rd", i + 2)] * 8
            l = ld(i + LA) if i + LA < n else []
            oth = l[:1] + oth + l[1:]
            self.emit(weave(mf, oth, per=4))

    def check(self, vtmp, val):
        A = self.A
        Ls, Ld = A.uniq("L_cks"), A.uniq("L_ck")
        A(f"v_cmp_gt_u32 vcc, {val}, {v(vtmp)}")
        A(f"s_cbranch_vccnz {Ls}")
        A.label(Ld)
        self.outline(Ls, Ld, lambda: self.lwait(VQ, vtmp, val, off=16))

    def c_p2(self):
        A = self.A

        def rd(u):
            return [f"ds_read_b64_tr_b16 {v(48 + (u%3)*16 + T*4 + hh*2, 2)}, {v(120+T)} offset:{u*4096 + hh*2048}" for T in range(4) for hh in range(2)]

        def ld(i):
            o = [f"buffer_load_dwordx4 {a(4*i,4)}, v1, {s(S_WS,4)}, {s(sA4)} offen offset:{(i&3)*1024} sc1"]
            if (i & 3) == 3 and i < 15:
                o.append(f"s_add_u32 {s(sA4)}, {s(sA4)}, 4096")
            return o
        self.lwait(VQ, 24, HV_G, off=16)
        self.emit(rd(0) + rd(1))
        LA = self.o.get("la2", 8)
        self.poll(5, sA3, 24)
        for i in range(LA):
            self.emit(ld(i))
        self.ts("o_flags")

        def extra(i, q):
            if i + LA == 16:
                return None, [(f"v_mov_b32 v25, {CV_P2L}", None), (f"ds_write_b32 {v(VP)}, v25", "sig")]
            if i == 11:
                return None, [(f"ds_read_b32 v24, {v(VQ)} offset:48", "probe")]
            if i == 14:
                def hook():
                    Ls, Ld = A.uniq("L_cks"), A.uniq("L_ck")
                    A("v_cmp_gt_u32 vcc, 1, v24")
                    A(f"s_cbranch_vccnz {Ls}")
                    A.label(Ld)
                    self.outline(Ls, Ld, lambda: self.lwait(VQ, 24, 1, off=48))
                return hook, [(f"ds_read_b128 {v(96+4*t,4)}, v115 offset:{t*64}", "x") for t in range(4)] + \
                    [("v_mov_b32 v24, 0", None), ("v_mov_b32 v25, 0", None), ("v_mov_b32 v28, 0x3f803f80", None)]
            if i == 15:
                return None, [(f"v_mov_b32 v26, {CV_X2}", None), (f"ds_write_b32 {v(VP)}, v26", "sig")] + \
                    [(f"ds_read_b128 {v(64+16*vec+4*t,4)}, v115 offset:{(vec+1)*256 + t*64}", "x") for vec in range(2) for t in range(4)]
            return None, []
        self.g16(16, lambda i: a(4*i, 4), ld, LA, rd, extra)
        self.ts("p2_gemm")
        A(f"v_mov_b32 v26, {v(VTAG)}\nv_mov_b32 v27, {v(VTAG)}")
        A("s_waitcnt lgkmcnt(9)")
        for i in range(8):
            A(f"v_pk_fma_f32 {v(8+2*i,2)}, {v(32+2*i,2)}, {v(96+2*i,2)}, {v(8+2*i,2)}")
        for i in range(8):
            A(f"v_cvt_pk_bf16_f32 {v(48+i)}, {v(8+2*i)}, {v(9+2*i)}")
        for i in range(8):
            A(f"v_dot2c_f32_bf16 v24, v28, {v(48+i)}")
            A(f"v_dot2c_f32_bf16 v25, {v(48+i)}, {v(48+i)}")
        A("v_permlane32_swap_b32 v24, v25")
        A("v_add_f32 v24, v24, v25")
        A("v_mov_b32 v25, v24")
        A("v_permlane16_swap_b32 v24, v25")
        A("v_add_f32 v24, v24, v25")
        A("v_mov_b32 v25, v24")
        A("v_permlane32_swap_b32 v24, v25")
        A("s_mov_b64 exec, 0xffff")
        self.dual(lambda sfx: A(f"buffer_store_dwordx4 v[24:27], v1, {s(S_WS,4)}, {s(sA7)} offen{sfx}"))
        A("s_mov_b64 exec, -1")
        self.ts("f:st")
        for t in range(4):
            A(f"ds_write_b64 {v(116+t)}, {v(48+2*t,2)}")
        for i in range(8):
            A(f"v_lshlrev_b32 {v(8+2*i)}, 16, {v(48+i)}")
            A(f"v_and_b32 {v(9+2*i)}, {v(VMASK)}, {v(48+i)}")
        A("s_waitcnt lgkmcnt(0)")
        for i in range(8):
            A(f"v_pk_mul_f32 {v(8+2*i,2)}, {v(8+2*i,2)}, {v(80+2*i,2)}")
        A(f"s_mov_b32 {s(sCNT)}, {SPIN}")
        A.label("L_st")
        for i in range(2):
            A(f"buffer_load_dwordx4 {v(32+4*i,4)}, v1, {s(S_WS,4)}, {s(sA6)} offen offset:{i*1024} sc1")
        A(f"s_sub_u32 {s(sCNT)}, {s(sCNT)}, 1")
        A("s_cbranch_scc1 L_std")
        A("s_waitcnt vmcnt(0)")
        A(f"v_xor_b32 v28, {v(VTAG)}, v34")
        A(f"v_bitop3_b32 v28, v28, v38, {v(VTAG)} bitop3:0xf6")
        A("v_pk_add_f32 v[30:31], v[32:33], v[36:37]")
        A("v_cmp_ne_u32 vcc, 0, v28")
        A("s_cbranch_vccnz L_st")
        A.label("L_std")
        self.ts("f:stok")
        A("v_permlane32_swap_b32 v30, v31")
        A("v_add_f32 v30, v30, v31")
        A("v_mov_b32 v31, v30")
        A(f"v_mov_b32 v28, {CV_ST}")
        A("v_permlane16_swap_b32 v30, v31")
        A("v_add_f32 v30, v30, v31")
        A("v_mul_f32 v30, 0x3b000000, v30")
        A("v_mov_b32 v31, v30")
        A(f"ds_write_b32 {v(VP)}, v28")
        A("v_permlane32_swap_b32 v30, v31")
        A("v_fma_f32 v31, -v30, v30, v31")
        A("v_max_f32 v31, 0, v31")
        A("v_add_f32 v31, 0x3727c5ac, v31")
        A("v_rsq_f32 v31, v31")
        for i in range(8):
            A(f"v_pk_fma_f32 {v(8+2*i,2)}, {v(80+2*i,2)}, v[30:31], {v(8+2*i,2)} op_sel:[0,0,0] op_sel_hi:[1,0,1] neg_lo:[0,1,0] neg_hi:[0,1,0]")
        for i in range(8):
            A(f"v_pk_fma_f32 {v(8+2*i,2)}, {v(8+2*i,2)}, v[30:31], {v(64+2*i,2)} op_sel:[0,1,0] op_sel_hi:[1,1,1]")
        for i in range(8):
            A(f"v_cvt_pk_bf16_f32 {v(32+i)}, {v(8+2*i)}, {v(9+2*i)}")
        self.ts("f:h2")

        def st(sfx):
            A(f"buffer_store_dwordx4 v[32:35], v1, {s(S_WS,4)}, {s(sA5)} offen{sfx}")
            A(f"buffer_store_dwordx4 v[36:39], v1, {s(S_WS,4)}, {s(sA5)} offen offset:1024{sfx}")
        self.store_flag(st, sA8, 6, VTAG)
        self.ts("h2_pub")

    def c_p3(self):
        A = self.A
        A(f"s_lshl_b32 {s(sT1)}, {s(sM)}, 17")
        A(f"s_add_u32 {s(sT1)}, {s(sT1)}, {s(sG)}")
        A(f"v_add_u32 v3, {s(sT1)}, v1")
        A(f"s_lshl_b32 {s(sT0)}, {s(sRB)}, 10")
        A(f"s_or_b32 {s(sT3)}, {s(sT0)}, 16384")
        A(f"s_mul_i32 {s(sT1)}, {s(sJ)}, 3072")
        A(f"s_add_u32 {s(sT1)}, {s(sT1)}, {G_HH:#x}")
        A(f"s_add_u32 {s(sT2)}, {s(sT1)}, 49152")
        A(f"s_cmp_eq_u32 {s(sJ)}, 15")
        A("s_cbranch_scc1 L_p3_idle")
        A("v_lshrrev_b32 v2, 2, v0")
        A("v_mul_u32_u24 v2, 192, v2")
        A("v_and_b32 v1, 3, v0")
        A("v_lshl_add_u32 v2, v1, 3, v2")
        A("v_and_b32 v1, 16, v0")
        A("v_lshl_add_u32 v2, v1, 1, v2")
        A(f"v_add_u32 v2, {slot_addr(0)}, v2")
        A("v_xor_b32 v6, 32, v2")
        LA = self.o.get("la3", 4)

        def ld(u):
            o = [f"buffer_load_dwordx4 {a((u*2+t)*4,4)}, v3, {s(S_WS,4)}, {s(sT3 if t else sT0)} offen offset:{(u&1)*1024} sc1" for t in range(2)]
            if u & 1 and u < 15:
                o += [f"s_add_u32 {s(sT0)}, {s(sT0)}, 2048", f"s_and_b32 {s(sT0)}, {s(sT0)}, 0x3fff", f"s_or_b32 {s(sT3)}, {s(sT0)}, 16384"]
            return o
        R = self.o.get("tail", 3)
        U0 = 16 - R
        seq = [(u, f, mt) for u in range(U0) for f in range(6) for mt in range(2)]
        seq += [(u, f, mt) for e in range(3) for u in range(U0, 16) for f in (2*e, 2*e+1) for mt in range(2)]
        cur = {"base": slot_addr(0)}
        NB, NPF = 6, 5
        q = []
        sfx = " sc1" if self.o.get("hh_sc1", 1) else "@SFX@"

        def rd(idx):
            u, f, mt = seq[idx]
            o = slot_addr(u) + mt * 6144 + (f & ~1) * 32 - cur["base"]
            assert 0 <= o and o + 3072 < 65536
            b = 8 + (idx % NB) * 4
            return [f"ds_read_b64_tr_b16 {v(b+hh*2,2)}, {v(6 if f & 1 else 2)} offset:{o + hh*3072}" for hh in range(2)]

        def rebase(u):
            span = 12288 * (R if u == U0 else 1)
            if 0 <= slot_addr(u) - cur["base"] <= 65536 - span:
                return []
            d = slot_addr(u) - cur["base"]
            cur["base"] = slot_addr(u)
            return [f"v_add_u32 {v(r)}, {d}, {v(r)}" if d >= 0 else f"v_subrev_u32 {v(r)}, {-d}, {v(r)}" for r in (2, 6)]

        def epi(e):
            o = []
            for t in range(2):
                g0 = 32 + (t * 6 + 2 * e) * 4
                u0 = 32 + ((2 + t) * 6 + 2 * e) * 4
                o += [f"v_max_f32 {v(g0+i)}, 0, {v(g0+i)}" for i in range(8)]
                o += [f"v_pk_mul_f32 {v(g0+2*i,2)}, {v(g0+2*i,2)}, {v(u0+2*i,2)}" for i in range(4)]
                o += [f"v_cvt_pk_bf16_f32 {v(g0+i)}, {v(g0+2*i)}, {v(g0+2*i+1)}" for i in range(4)]
                o += [f"buffer_store_dwordx4 {v(g0,4)}, v3, {s(S_WS,4)}, {s(sT2 if t else sT1)} offen offset:{e*1024}{sfx}"]
            return o
        self.first_check_before_e = 0
        for i in range(NPF):
            self.emit(rd(i)); q += [("rd", i)] * 2
        self.poll(5, sA9, 32)
        for u in range(LA):
            self.emit(ld(u))
        nld = LA
        self.signal(VP, 1, CV_E)
        q.append(("sig", -1))
        self.ts("h2_flags")
        spare, bulk, seen = [], [], set()
        for idx, (u, f, mt) in enumerate(seq):
            last = max(i for i, x in enumerate(q) if x == ("rd", idx))
            w = f"lgkmcnt({len(q) - 1 - last})"
            del q[:last + 1]
            if u not in seen:
                seen.add(u)
                assert nld > u
                w = f"vmcnt({2*(nld - 1 - u)}) " + w
            if idx % 12 == 0 and idx <= 12 * U0:
                assert not spare
                if u < U0:
                    spare.append((f"ds_read_b32 v5, {v(VQ)} offset:16", "probe"))
                if u > 0:
                    spare += [(f"v_mov_b32 v1, {16 + u - 1}", None), (f"ds_write_b32 {v(VP)}, v1", "sig")]
                if nld < 16:
                    assert u < U0
                    spare += [(x, None) for x in ld(nld)]
                    nld += 1
            if idx > 12 * U0 and (idx - 12 * U0) % (4 * R) == 1 and idx > 12 * U0 + 4 * R:
                assert not bulk
                bulk = epi((idx - 12 * U0) // (4 * R) - 1)
            A(f"s_waitcnt {w}")
            b = 8 + (idx % NB) * 4
            mf = []
            for t in range(2):
                d = 32 + ((mt * 2 + t) * 6 + f) * 4
                mf.append(f"v_mfma_f32_16x16x32_bf16 {v(d,4)}, {v(b,4)}, {a((u*2+t)*4,4)}, {v(d,4) if u else 0}")
            A(mf[0])
            nb = -(-len(bulk) // (4 * R - (idx - 12 * U0) % (4 * R))) if bulk else 0
            if (idx + NPF) % 12 == 0 and idx + NPF <= 12 * U0:
                nu = (idx + NPF) // 12
                assert not any(x[0] == "probe" for x in q)
                self.check(5, 16 + (nu if nu < U0 else 15))
                self.emit(rebase(nu))
            elif spare:
                x, tag = spare.pop(0)
                A(x)
                if tag:
                    q.append((tag, u))
            self.emit(bulk[:nb // 2])
            r = rd(idx + NPF) if idx + NPF < len(seq) else []
            self.emit(r[:1])
            A(mf[1])
            self.emit(r[1:])
            self.emit(bulk[nb // 2:nb])
            bulk = bulk[nb:]
            q += [("rd", idx + NPF)] * len(r)
            if idx + NPF == len(seq) + 3 and self.o.get("lastsig", 15) >= 15:
                pass
        assert not bulk
        if self.o.get("lastsig", 15) >= 15:
            self.signal(VP, 1, 31)
        A(f"v_mov_b32 v5, {s(sTAG)}")
        A("v_mov_b32 v6, 0")
        self.ts("p3_gemm")
        self.emit(epi(2))
        self.p4_setup()
        self.store_flag(lambda sfx: None, sA10, 6, 5, data_sc1=True)
        A("s_branch L_p3_done")
        A.label("L_p3_idle")
        self.signal(VP, 1, 31)
        self.lwait(VQ, 1, 38, off=16, sleep=8)
        self.p4_setup()
        A.label("L_p3_done")
        self.ts("hh_pub")

    def p4_setup(self):
        A = self.A
        A("v_lshlrev_b32 v1, 4, v0")
        A("v_and_b32 v124, 15, v0")
        A("v_min_u32 v124, 14, v124")
        A("v_lshlrev_b32 v124, 2, v124")
        self.slab_bases()
        A(f"s_lshl_b32 {s(sT0)}, {s(sW)}, 12")
        for r in range(120, 124):
            A(f"v_add_u32 {v(r)}, {s(sT0)}, {v(r)}")
        A(f"v_add_u32 v126, {s(sEX)}, v1")
        A(f"s_mul_i32 {s(sT0)}, {s(sW)}, {2*49152}")
        A(f"s_sub_u32 {s(sT0)}, 49152, {s(sT0)}")
        A(f"v_add_u32 v127, {s(sT0)}, v126")
        A(f"s_mul_i32 {s(sT3)}, {s(sEX+1)}, 3")
        A(f"s_add_u32 {s(sT3)}, {s(sT3)}, {s(sW)}")
        A(f"s_lshl_b32 {s(sT3)}, {s(sT3)}, 10")
        self.img_addr()
        self.rm_voff(112)
        A(f"v_add_u32 v125, {s(sT0)}, v1")
        A(f"s_xor_b32 {s(sT0)}, {s(sM)}, 1")
        A(f"s_lshl_b32 {s(sT0)}, {s(sT0)}, 11")
        A(f"s_add_u32 {s(sT0)}, {s(sT0)}, {L_X1}")
        A(f"v_add_u32 v26, {s(sT0)}, v1")
        A(f"v_subrev_u32 v27, {L_X1 - 28672}, v26")
        A(f"v_subrev_u32 v28, {L_X1 - 28672}, v125")
        A(f"v_xor_b32 v29, 4, {v(VP)}")

    def c_p4(self):
        A = self.A
        AF = lambda p, t: a(8 * (p % 16) + 4 * t, 4)
        LA = self.o.get("la4", 4)
        n = 22

        def ld(p):
            o = [f"buffer_load_dwordx4 {AF(p, t)}, {v(126+t)}, {s(S_WS,4)}, {s(sT3)} offen sc1" for t in range(2)]
            if p < 20:
                o += [f"s_add_u32 {s(sT3)}, {s(sT3)}, 2048", f"s_sub_u32 {s(sT0)}, {s(sT3)}, {42*1024}", f"s_cselect_b32 {s(sT3)}, {s(sT3)}, {s(sT0)}"]
            elif p == 20:
                o += [f"s_mov_b32 {s(sT3)}, {42*1024}"]
            return o
        cur = {"base": 0}

        def rd(p):
            o = []
            off = wd_addr(2 * p)
            if not (0 <= off - cur["base"] < 61440):
                d = off - cur["base"]
                for r in range(120, 124):
                    o.append(f"v_add_u32 {v(r)}, {d}, {v(r)}" if d >= 0 else f"v_subrev_u32 {v(r)}, {-d}, {v(r)}")
                cur["base"] = off
            return o + [f"ds_read_b64_tr_b16 {v(64 + (p%3)*16 + T*4 + hh*2, 2)}, {v(120+T)} offset:{off - cur['base'] + hh*2048}" for T in range(4) for hh in range(2)]
        self.lwait(VQ, 24, 33, off=16)
        self.emit(rd(0) + rd(1))
        self.poll(124, sA11, 25)
        for p in range(LA):
            self.emit(ld(p))
        if self.o.get("lastsig", 15) < 15:
            self.signal(VP, 25, 31)
            A("s_waitcnt lgkmcnt(0)")
        self.ts("hh_flags")
        q = [("rd", i) for i in range(2) for _ in range(8)]
        for p in range(n):
            if p == n - 1:
                A(f"s_cmp_lg_u32 {s(sW)}, 0")
                A("s_cbranch_scc1 L_p4_skip")
            last = max(k for k, x in enumerate(q) if x == ("rd", p))
            A(f"s_waitcnt vmcnt({2*(min(n-1, p+LA-1) - p)}) lgkmcnt({len(q) - 1 - last})")
            q = q[last + 1:]
            mf = [f"v_mfma_f32_16x16x32_bf16 {v(32+16*t+4*T,4)}, {v(64 + (p%3)*16 + 4*T,4)}, {AF(p, t)}, {v(32+16*t+4*T,4) if p else 0}"
                  for t in (1, 0) for T in range(4)]
            oth = []
            if (p + 2) % 3 == 0 and p + 2 < n:
                assert not any(x[0] == "probe" for x in q)
                A(mf[0]); mf = mf[1:]
                self.check(24, 32 + min(14, 2 * ((p + 2) // 3) + 1))
            if p in (1, 2, 4):
                oth += [f"v_mov_b32 v25, {32 + {1: 0, 2: 1, 4: 2}[p]}", f"ds_write_b32 {v(VP)}, v25"]
                q.append(("sig", p))
            if p % 3 == 2 and p + 4 < n:
                oth += [f"ds_read_b32 v24, {v(VQ)} offset:16"]
                q.append(("probe", p))
            if p + 2 < n:
                oth += rd(p + 2)
                q += [("rd", p + 2)] * 8
            if p == n - 2:
                oth += [f"ds_read_b128 {v(80+4*t,4)}, v115 offset:{3*256 + t*64}" for t in range(4)]
                q += [("x", p)] * 4
            l = ld(p + LA) if p + LA < n else []
            self.emit(weave(mf, l[:2] + oth + l[2:], per=2))
        A.label("L_p4_skip")
        self.ts("p4_gemm")
        for i in range(4):
            A(f"ds_write_b128 {v(26 if i < 2 else 27)}, {v(48+4*i,4)} offset:{(i&1)*1024}")
        self.signal(VP, 24, 60)
        self.lwait(29, 24, 60, extra=[f"ds_read_b128 {v(96+4*i,4)}, {v(125 if i < 2 else 28)} offset:{(i&1)*1024}" for i in range(4)])
        for k in range(4):
            A(f"s_waitcnt lgkmcnt({3-k})")
            for i in range(2*k, 2*k+2):
                A(f"v_pk_add_f32 {v(32+2*i,2)}, {v(32+2*i,2)}, {v(96+2*i,2)}")
            for i in range(2*k, 2*k+2):
                A(f"v_pk_fma_f32 {v(8+2*i,2)}, {v(32+2*i,2)}, {v(80+2*i,2)}, {v(8+2*i,2)}")
        for t in range(4):
            for i in range(2*t, 2*t+2):
                A(f"v_cvt_pk_bf16_f32 {v(24+i)}, {v(8+2*i)}, {v(9+2*i)}")
            A(f"ds_write_b64 {v(116+t)}, {v(24+2*t,2)}")
        A("ds_read_b128 v[32:35], v125")
        A("ds_read_b128 v[36:39], v125 offset:1024")
        A("s_waitcnt lgkmcnt(1)")
        A(f"buffer_store_dwordx4 v[32:35], v112, {s(S_OUT,4)}, s3 offen{self.osfx}")
        A("s_waitcnt lgkmcnt(0)")
        A(f"buffer_store_dwordx4 v[36:39], v113, {s(S_OUT,4)}, s3 offen{self.osfx}")
        if self.diag or self.leak:
            A("s_waitcnt vmcnt(0)")
        self.ts("end")
        if self.diag:
            A(f"s_mov_b32 {s(sW)}, {s(sM)}")
        A("s_branch L_fin")

    def gu_unit(self, thr=None):
        A = self.A
        A(f"s_mul_i32 {s(sT0)}, {s(sRB)}, {32*2752}")
        A(f"s_add_u32 {s(sT1)}, {s(sA7)}, {s(sA1)}")
        A(f"s_add_u32 {s(sT0)}, {s(sT0)}, {s(sA0)}")
        fill = [f"s_add_u32 {s(sRB)}, {s(sRB)}, 1", f"s_and_b32 {s(sRB)}, {s(sRB)}, 15", f"s_add_u32 {s(sA7)}, {s(sA7)}, 12288",
                f"s_add_u32 {s(sT0)}, {s(sT0)}, {16*2752}", "s_nop 0", "s_nop 0"]
        for i in range(6):
            A(f"s_add_u32 m0, {s(sT1)}, {i*1024}")
            A(fill[i])
            if thr is not None:
                A(f"s_waitcnt vmcnt({thr})")
            A(f"buffer_load_dwordx4 {v(48+i%3)}, {s(S_GU,4)}, {s(sT0)} offen lds")
        A(f"s_cmp_lg_u32 {s(sA7)}, {12*12288}")
        A(f"s_cselect_b32 {s(sA7)}, {s(sA7)}, 0")

    def wd_unit(self, thr=None, wrap=42):
        A = self.A
        A(f"s_add_u32 {s(sT1)}, {s(sA7)}, {s(sA3)}")
        for i in range(3):
            A(f"s_add_u32 m0, {s(sT1)}, {i*4096}")
            A(f"s_add_u32 {s(sT0)}, {s(sA4)}, 32768")
            if thr is not None:
                A(f"s_waitcnt vmcnt({max(thr-1, 0)})")
            A(f"buffer_load_dwordx4 v51, {s(S_WD,4)}, {s(sA4)} offen lds")
            A(f"s_add_u32 m0, {s(sT1)}, {i*4096 + 2048}")
            A(f"s_cmp_lg_u32 {s(sT0)}, {wrap*32768}")
            A(f"buffer_load_dwordx4 v47, {s(S_WD,4)}, {s(sA4)} offen lds")
            A(f"s_cselect_b32 {s(sA4)}, {s(sT0)}, 0")
        A(f"s_add_u32 {s(sA7)}, {s(sA7)}, 12288")
        A(f"s_cmp_lg_u32 {s(sA7)}, {12*12288}")
        A(f"s_cselect_b32 {s(sA7)}, {s(sA7)}, 0")

    def w_dma_rot(self, mats):
        A = self.A
        L, Ld = A.uniq("L_wd"), A.uniq("L_wdd")
        A.label(L)
        A(f"s_sub_u32 {s(sCNT)}, {s(sCNT)}, 1")
        A(f"s_cbranch_scc1 {Ld}")
        A(f"s_mul_i32 {s(sT0)}, {s(sT2)}, {4*49152}")
        A(f"s_lshl_b32 {s(sT1)}, {s(sT2)}, 12")
        A(f"s_add_u32 {s(sT0)}, {s(sT0)}, {s(sA9)}")
        A(f"s_add_u32 {s(sT1)}, {s(sT1)}, {s(sA3)}")
        A(f"s_add_u32 {s(sT2)}, {s(sT2)}, 1")
        for vo, off, lbase in mats:
            A(f"s_add_u32 m0, {s(sT1)}, {lbase - off}")
            A(f"s_and_b32 {s(sT2)}, {s(sT2)}, 7")
            A(f"buffer_load_dwordx4 {v(vo)}, {s(S_W,4)}, {s(sT0)} offen offset:{off} lds")
        A(f"s_branch {L}")
        A.label(Ld)

    def scalar_segs(self, segs, hook=None, stamp=True):
        A = self.A
        P, X, SL, CN, IX, BO, AD, DS, GP = 24, 25, sA2, 26, 27, 6, 4, 44, 100
        A(f"s_and_b32 {s(P)}, {s(sM)}, 1")
        A(f"s_and_b32 {s(X)}, s2, 7")

        def seg(srd, count, start, wrap, step, stride, base_code, offs, first_hook=None):
            L = A.uniq("L_pw")
            A(base_code)
            A(start)
            A(f"s_mov_b32 {s(CN)}, {count}")
            A.label(L)
            A(f"s_sub_u32 {s(sT0)}, {s(IX)}, {wrap}")
            A(f"s_cselect_b32 {s(IX)}, {s(IX)}, {s(sT0)}")
            A(f"s_mul_i32 {s(sT0)}, {s(IX)}, {stride}")
            A(f"s_add_u32 {s(sT0)}, {s(sT0)}, {s(BO)}")
            A(f"s_add_u32 {s(AD)}, {s(srd)}, {s(sT0)}")
            A(f"s_addc_u32 {s(AD+1)}, {s(srd+1)}, 0")
            for i, o in enumerate(offs):
                A(f"s_load_dword {s(DS + (i & 3))}, {s(AD,2)}, {o}")
            if first_hook:
                first_hook()
            A(f"s_add_u32 {s(IX)}, {s(IX)}, {step}")
            A(f"s_sub_u32 {s(CN)}, {s(CN)}, 1")
            A(f"s_cmp_lg_u32 {s(CN)}, 0")
            A(f"s_cbranch_scc1 {L}")
        lin = lambda n: [i * 64 for i in range(n)]
        zero = f"s_mov_b32 {s(IX)}, 0"
        for sg in segs:
            if sg == "q":
                seg(S_W, 8, f"s_mov_b32 {s(IX)}, {s(X)}", 8, 1, 3072,
                    f"s_lshl1_add_u32 {s(BO)}, {s(SL)}, {s(P)}\ns_mul_i32 {s(BO)}, {s(BO)}, {8*3072}", lin(16), hook)
            elif sg == "o":
                seg(S_WO, 8, f"s_mov_b32 {s(IX)}, {s(X)}", 8, 1, 1024,
                    f"s_lshl1_add_u32 {s(BO)}, {s(SL)}, {s(P)}\ns_lshl_b32 {s(BO)}, {s(BO)}, 13", lin(16), hook)
            elif sg[0] == "g":
                u0, u1 = map(int, sg[1:].split("-"))
                A(f"s_cmp_lg_u32 {s(P)}, 0")
                A(f"s_cselect_b64 {s(GP,2)}, {s(S_WU,2)}, {s(S_WG,2)}")
                seg(GP, u1 - u0, f"s_lshl1_add_u32 {s(IX)}, {s(X)}, {u0}", 16, 1, 32*2752,
                    f"s_mul_i32 {s(BO)}, {s(SL)}, 2752", lin(43), hook)
            elif sg[0] == "d":
                seg(S_WD, int(sg[1:]), f"s_mul_i32 {s(IX)}, {s(X)}, 6\ns_add_u32 {s(IX)}, {s(IX)}, {s(P)}", 43, 2, 32768,
                    f"s_lshl_b32 {s(BO)}, {s(SL)}, 10", lin(16), hook)
            elif sg == "p":
                seg(S_WS, 4, zero, 64, 1, RS,
                    f"s_lshl4_add_u32 {s(BO)}, {s(P)}, {s(sJ)}\ns_lshl_b32 {s(BO)}, {s(BO)}, 10\ns_add_u32 {s(BO)}, {s(BO)}, {s(sG)}\ns_add_u32 {s(BO)}, {s(BO)}, {G_O:#x}", lin(16), hook)
                seg(S_WS, 1, zero, 64, 1, 0,
                    f"s_lshl1_add_u32 {s(BO)}, {s(sJ)}, {s(P)}\ns_lshl_b32 {s(BO)}, {s(BO)}, 9\ns_add_u32 {s(BO)}, {s(BO)}, {s(sG)}\ns_add_u32 {s(BO)}, {s(BO)}, {G_ST:#x}", lin(8))
            elif sg == "h":
                seg(S_WS, 4, zero, 64, 1, RS,
                    f"s_lshl1_add_u32 {s(BO)}, {s(sJ)}, {s(P)}\ns_lshl_b32 {s(BO)}, {s(BO)}, 11\ns_add_u32 {s(BO)}, {s(BO)}, {s(sG)}\ns_add_u32 {s(BO)}, {s(BO)}, {G_HH + 32768:#x}", lin(32), hook)
            elif sg == "l":
                seg(S_WM, 4, zero, 64, 1, 8*6144,
                    f"s_lshl1_add_u32 {s(BO)}, {s(X)}, {s(P)}\ns_mul_i32 {s(BO)}, {s(BO)}, {32*6144}\ns_lshl_b32 {s(sT0)}, {s(SL)}, 7\ns_add_u32 {s(BO)}, {s(BO)}, {s(sT0)}\ns_add_u32 {s(BO)}, {s(BO)}, 2048",
                    [r * 6144 + h * 64 for r in range(8) for h in range(2)], hook)
            else:
                raise ValueError(sg)
            hook = None
            if stamp:
                self.ts("p" + sg)
        if hook:
            hook()

    def pwave(self):
        A = self.A
        A.label("L_pw")
        A("s_waitcnt lgkmcnt(0)")

        def landed():
            A("s_waitcnt vmcnt(0)")
            A("v_mov_b32 v12, 0x100")
            A(f"ds_write2_b32 {v(VP)}, v12, v12 offset0:0 offset1:8")
        self.scalar_segs(self.o_segs, landed)
        A("s_waitcnt lgkmcnt(0)")
        A("s_branch L_fin")

    def helper(self):
        A = self.A
        A.label("L_helper")
        self.srd_consts([S_W, S_PHI])
        A("v_lshrrev_b32 v12, 2, v0")
        A("v_mul_u32_u24 v12, 3072, v12")
        A("v_lshrrev_b32 v5, 4, v0")
        A("v_and_b32 v5, 2, v5")
        A("v_and_b32 v45, 3, v0")
        A("v_xor_b32 v5, v5, v45")
        A("v_lshl_add_u32 v45, v5, 4, v12")
        A(f"s_lshl_b32 {s(sA3)}, {s(sM)}, 10")
        A(f"s_mul_i32 {s(sA9)}, {s(sM)}, 49152")
        A(f"s_lshl_b32 {s(sT0)}, {s(sJ)}, 6")
        A(f"s_add_u32 {s(sA9)}, {s(sA9)}, {s(sT0)}")
        A(f"s_add_u32 {s(sA9)}, {s(sA9)}, 1024")
        A(f"s_lshr_b32 {s(sT2)}, {s(sRB)}, 1")
        A("s_waitcnt lgkmcnt(0)")
        self.wsoff()
        self.bar()
        A("v_lshlrev_b32 v2, 7, v0")
        A(f"s_cmp_eq_u32 {s(sM)}, 1")
        A("s_cbranch_scc1 L_h1")
        A(f"s_cmp_eq_u32 {s(sM)}, 2")
        A("s_cbranch_scc1 L_h2")
        A(f"s_cmp_eq_u32 {s(sM)}, 3")
        A("s_cbranch_scc1 L_h4")
        A("s_branch L_h3")
        A.label("L_h1")
        if self.o.get("cpf", 1):
            A(f"s_getpc_b64 {s(sEX,2)}")
            A.label("L_pc")
            A(f"s_sub_u32 {s(sEX)}, {s(sEX)}, L_pc-{KNAME}")
            A(f"s_subb_u32 {s(sEX+1)}, {s(sEX+1)}, 0")
            if self.o.get("cpf", 1) == 1:
                A(f"s_lshr_b32 {s(sT0)}, s2, 3")
                A(f"s_lshl_b32 {s(sT0)}, {s(sT0)}, 10")
                A(f"v_add_u32 v3, {s(sT0)}, v2")
                A(f"v_min_u32 v3, L_end-{KNAME}, v3")
                A("s_mov_b64 exec, 0xff")
                A(f"global_load_dword v10, v3, {s(sEX,2)}")
                A("s_mov_b64 exec, -1")
        A("s_branch L_h3")
        A.label("L_h2")
        A(f"s_lshl_b32 {s(sT0)}, s2, 8")
        A(f"s_add_u32 {s(sT0)}, {s(sT0)}, {WS_KV2:#x}")
        A(f"v_add_u32 v3, {s(sT0)}, v2")
        A(f"s_lshl_b32 {s(sT0)}, {s(sJ)}, 7")
        A(f"s_add_u32 {s(sT0)}, {s(sT0)}, {s(sG)}")
        A(f"s_add_u32 {s(sT0)}, {s(sT0)}, {G_FL:#x}")
        A(f"v_writelane_b32 v3, {s(sT0)}, 2")
        A(f"s_and_b32 {s(sT0)}, s2, 127")
        A(f"s_lshl_b32 {s(sT0)}, {s(sT0)}, 7")
        A(f"s_add_u32 {s(sT0)}, {s(sT0)}, {WS_MODU:#x}")
        A(f"v_writelane_b32 v3, {s(sT0)}, 3")
        A("s_waitcnt lgkmcnt(0)")
        A("s_mov_b64 exec, 15")
        A(f"buffer_load_dword v10, v3, {s(S_WS,4)}, 0 offen")
        A("s_mov_b64 exec, -1")
        A("s_branch L_h3")
        A.label("L_h4")
        A(f"s_mov_b32 m0, {L_PHI}")
        A(f"s_lshl_b32 {s(sT0)}, {s(sJ)}, 10")
        A(f"buffer_load_dwordx4 v1, {s(S_PHI,4)}, {s(sT0)} offen lds")
        A.label("L_h3")
        A(f"buffer_load_dword {v(VTAG)}, v6, {s(S_WS,4)}, 0 offen sc1")
        NB1 = self.o.get("nb1", 3)
        KV = [(45, 0, L_WK), (45, 1024, L_WV)]
        for r, off in ((S_WO, 24), (S_WG, 40), (S_WU, 48), (S_WD, 56)):
            A(f"s_load_dwordx2 {s(r,2)}, s[0:1], {off}")
        TLB = self.o.get("tlb", 0)
        if TLB:
            A(f"s_cmp_lg_u32 {s(sM)}, 0")
            A("s_cbranch_scc1 L_tlb")
            A(f"s_load_dwordx2 {s(S_OUT,2)}, s[0:1], 80")
            A(f"s_lshl_b32 {s(sT0)}, s2, 11")
            A(f"s_add_u32 {s(sT1)}, {s(sT0)}, {2<<20}")
            A("s_waitcnt lgkmcnt(0)")
            if TLB == 1:
                for r in (S_WO, S_WG, S_WU, S_WD, S_OUT, S_WM):
                    A(f"s_load_dword s7, {s(r,2)}, {s(sT0)}")
                A(f"s_load_dword s7, {s(S_WM,2)}, {s(sT1)}")
            else:
                A(f"v_mov_b32 v12, {s(sT0)}\nv_mov_b32 v13, {s(sT1)}")
                A("s_mov_b64 exec, 1")
                for r in (S_WO, S_WG, S_WU, S_WD, S_OUT, S_WM):
                    A(f"global_load_dword v10, v12, {s(r,2)}")
                A(f"global_load_dword v10, v13, {s(S_WM,2)}")
                A("s_mov_b64 exec, -1")
            A.label("L_tlb")
        A(f"s_lshr_b32 {s(sA2)}, s2, 3")
        A(f"s_lshl2_add_u32 {s(sT0)}, {s(sA2)}, {s(sM)}")
        A(f"s_mul_i32 {s(sA5)}, {s(sT0)}, {4*3072}")
        A("v_lshrrev_b32 v12, 4, v0")
        A("v_mul_u32_u24 v12, 3072, v12")
        A("v_and_b32 v13, 15, v0")
        A("v_lshl_add_u32 v44, v13, 7, v12")
        if self.o.get("wshare", 1) == 1:
            A(f"buffer_load_dword v10, v44, {s(S_W,4)}, {s(sA5)} offen offset:1024")
        if self.o.get("wshare", 1) == 2:
            A("s_mov_b32 exec_lo, 0x08080808\ns_mov_b32 exec_hi, 0x08080808")
            A(f"buffer_load_dword v10, v44, {s(S_W,4)}, {s(sA5)} offen offset:1024")
            A("s_mov_b32 exec_lo, 0x00080008\ns_mov_b32 exec_hi, 0x00080008")
            A(f"buffer_load_dword v10, v44, {s(S_W,4)}, {s(sA5)} offen")
            A("s_mov_b64 exec, -1")
        if self.o.get("qshare", 0):
            A("s_mov_b32 exec_lo, 0x00ff00ff\ns_mov_b32 exec_hi, 0x00ff00ff")
            A(f"buffer_load_dword v10, v44, {s(S_W,4)}, {s(sA5)} offen")
            A("s_mov_b64 exec, -1")
        A(f"s_cmp_ge_u32 s2, {self.o.get('hold', 32)}")
        A("s_cbranch_scc1 L_nohold")
        A("s_waitcnt lgkmcnt(0)")
        self.lwait(VQ, 12, CV_G, sleep=2)
        A.label("L_nohold")
        if self.o.get("hw", 0) == 1:
            A("s_waitcnt vmcnt(0)")
        if self.o.get("hw", 0) > 1:
            A(f"s_mov_b32 {s(sCNT)}, {self.o.get('hw') - 1}")
            self.w_dma_rot(KV)
            A("s_waitcnt vmcnt(0)")
        self.ts("iss1")
        R0 = self.o.get("s0r", 8)
        A("s_cmp_ge_u32 s2, 32")
        A(f"s_cselect_b32 {s(sCNT)}, {R0}, {self.o.get('s0rp', R0)}")
        A(f"s_sub_u32 {s(sT3)}, 8, {s(sCNT)}")
        if self.o.get("hw", 0) > 1:
            A(f"s_sub_u32 {s(sCNT)}, {s(sCNT)}, {self.o.get('hw') - 1}")
        self.w_dma_rot(KV)
        self.signal(VP, 12, HV_I)
        A(f"s_mov_b32 {s(sCNT)}, {s(sT3)}")
        self.w_dma_rot(KV)
        self.ts("iss2")
        A(f"s_cmp_ge_u32 {s(sM)}, 2")
        A("s_cbranch_scc1 L_pw")
        A(f"v_add_u32 v46, {2*49152}, v45")
        self.srd_consts([S_WO, S_WG, S_WU, S_WD])
        for i in range(3):
            A(f"v_add_u32 v12, {64*i}, v0")
            A("v_mul_u32_u24 v13, 0x5556, v12")
            A("v_lshrrev_b32 v13, 18, v13")
            A("v_lshrrev_b32 v14, 1, v13")
            A("v_and_b32 v14, 2, v14")
            A("v_xor_b32 v12, v12, v14")
            A(f"v_mul_u32_u24 v13, {2752 - 192}, v13")
            A(f"v_lshl_add_u32 {v(48+i)}, v12, 4, v13")
        A(f"s_mul_i32 {s(sA0)}, {s(sJ)}, 192")
        A(f"s_mul_i32 {s(sA1)}, {s(sM)}, 6144")
        A("v_lshlrev_b32 v51, 10, v8")
        A("v_and_b32 v13, 6, v8")
        A("v_xor_b32 v13, v13, v9")
        A("v_lshl_add_u32 v51, v13, 4, v51")
        A(f"s_and_b32 {s(sT3)}, {s(sJ)}, 7")
        A(f"s_lshl_b32 {s(sT1)}, {s(sT3)}, 7")
        A(f"s_lshl_b32 {s(sT0)}, {s(sM)}, 13")
        A(f"s_add_u32 {s(sT0)}, {s(sT0)}, {s(sT1)}")
        A(f"v_add_u32 v51, {s(sT0)}, v51")
        A("v_add_u32 v47, 16384, v51")
        A("v_and_b32 v14, 48, v0")
        A("v_lshl_add_u32 v52, v9, 6, v14")
        A("v_lshrrev_b32 v54, 5, v0")
        A(f"v_lshl_add_u32 v54, v54, 5, {s(sA2)}")
        A("v_mul_u32_u24 v54, 2752, v54")
        A("v_and_b32 v13, 31, v0")
        A("v_lshlrev_b32 v13, 7, v13")
        A("v_min_u32 v13, 2748, v13")
        A("v_add_u32 v54, v54, v13")
        A(f"v_lshl_add_u32 v56, v8, 5, {s(sA2)}")
        A("v_lshlrev_b32 v56, 10, v56")
        A("v_lshl_add_u32 v56, v9, 7, v56")
        A(f"s_lshl3_add_u32 {s(sA8)}, {s(sM)}, {s(sT3)}")
        A(f"s_lshl_b32 {s(sA8)}, {s(sA8)}, 12")
        A(f"s_add_u32 {s(sA8)}, {s(sA8)}, {WS_MODL:#x}")
        A("v_lshlrev_b32 v58, 3, v0")
        A(f"s_lshl_b32 {s(sT0)}, {s(sM)}, 8")
        A(f"s_add_u32 {s(sT0)}, {s(sT0)}, {L_MT}")
        A(f"v_lshl_add_u32 v59, v0, 2, {s(sT0)}")
        A(f"s_lshl_b32 {s(sT0)}, {s(sM)}, 8")
        A(f"s_add_u32 {s(sT0)}, {s(sT0)}, {s(sJ)}")
        A(f"s_lshl_b32 {s(sT0)}, {s(sT0)}, 10")
        A(f"s_add_u32 {s(sT0)}, {s(sT0)}, {G_O:#x}")
        A("v_and_b32 v53, 1, v8")
        A("v_lshlrev_b32 v53, 14, v53")
        A("v_lshrrev_b32 v13, 4, v0")
        A("v_lshl_add_u32 v53, v13, 17, v53")
        A("v_lshl_add_u32 v53, v9, 7, v53")
        A(f"v_add_u32 v53, {s(sT0)}, v53")
        A(f"s_lshl1_add_u32 {s(sT0)}, {s(sJ)}, {s(sM)}")
        A(f"s_lshl_b32 {s(sT0)}, {s(sT0)}, 9")
        A(f"s_add_u32 {s(sT0)}, {s(sT0)}, {G_ST:#x}")
        A(f"v_lshl_add_u32 v55, v9, 7, {s(sT0)}")
        A("v_cmp_gt_u32 vcc, 32, v0")
        A("v_cndmask_b32 v53, v55, v53, vcc")
        A(f"s_lshl_b32 {s(sT0)}, {s(sM)}, 17")
        A(f"s_mul_i32 {s(sT1)}, {s(sJ)}, 6144")
        A(f"s_add_u32 {s(sT0)}, {s(sT0)}, {s(sT1)}")
        A(f"s_add_u32 {s(sT0)}, {s(sT0)}, {G_HH:#x}")
        A(f"v_add_u32 v57, {s(sT0)}, v2")
        self.rot_setup()
        A(f"s_mov_b32 {s(sA6)}, {s(sRB)}")
        A(f"s_lshl2_add_u32 {s(sA11)}, {s(sM)}, {s(sEX+1)}")
        A(f"s_mov_b32 {s(sA10)}, {s(sRB)}")
        A(f"s_mul_i32 {s(sA4)}, {s(sEX+1)}, 98304")
        A(f"s_mov_b32 {s(sA7)}, {slot_addr(0)}")
        A("s_waitcnt lgkmcnt(0)")
        A(f"s_bitcmp1_b32 {s(sM)}, 0")
        A(f"s_cselect_b64 {s(S_GU,2)}, {s(S_WU,2)}, {s(S_WG,2)}")
        A(f"s_mov_b32 {s(S_GU+2)}, {512*2752}")
        A(f"s_mov_b32 {s(S_GU+3)}, 0x20000")
        A(f"s_sub_u32 {s(sA9)}, {s(sA9)}, 1024")
        A("s_waitcnt vmcnt(0)")
        self.signal(VP, 12, HV_W)
        A(f"v_add_u32 {v(VTAG)}, 1, {v(VTAG)}")
        A(f"v_readfirstlane_b32 {s(sTAG)}, {v(VTAG)}")
        self.ts("w_land")
        CVS = dict(GD=CV_GD, PUB=CV_PUB, A2=CV_A2, KV=CV_KV, H1=CV_H1, O=CV_O, P2L=CV_P2L, X2=CV_X2, ST=CV_ST, E=CV_E)
        NE = 0
        since_tq = None
        since_li = None

        def masked(mask_lo, mask_hi, ins):
            A(f"s_mov_b32 exec_lo, {mask_lo:#x}\ns_mov_b32 exec_hi, {mask_hi:#x}")
            A(ins)
            A("s_mov_b64 exec, -1")

        def share_g():
            A(f"s_and_b32 {s(sT0)}, {s(sA6)}, 15")
            A(f"s_mul_i32 {s(sT0)}, {s(sT0)}, {32*2752}")
            A(f"s_add_u32 {s(sA6)}, {s(sA6)}, 2")
            masked(0x7fffff, 0x7fffff, f"buffer_load_dword v10, v54, {s(S_GU,4)}, {s(sT0)} offen")

        def share_d():
            A(f"s_sub_u32 {s(sT0)}, {s(sA11)}, 44")
            A(f"s_cselect_b32 {s(sA11)}, {s(sA11)}, {s(sT0)}")
            A(f"s_lshl_b32 {s(sT0)}, {s(sA11)}, 15")
            A(f"s_add_u32 {s(sA11)}, {s(sA11)}, 8")
            masked(0xffffffff, 0, f"buffer_load_dword v10, v56, {s(S_WD,4)}, {s(sT0)} offen")
        for act in self.sched.split():
            n = 0
            if act.startswith("w") and act != "wb":
                self.lwait(VQ, 15, CVS[act[1:]], sleep=2)
            elif act.startswith("@"):
                self.ts(act[1:])
            elif act.startswith("S:"):
                self.scalar_segs(act[2:].split("+"), stamp=False)
            elif act == "so":
                A(f"s_lshl1_add_u32 {s(sT0)}, {s(sA2)}, {s(sM)}")
                A(f"s_lshl_b32 {s(sT0)}, {s(sT0)}, 13")
                A(f"buffer_load_dword v10, v2, {s(S_WO,4)}, {s(sT0)} offen"); n = 1
            elif act == "so3":
                A(f"s_lshl1_add_u32 {s(sT0)}, {s(sA2)}, {s(sM)}")
                A(f"s_lshl_b32 {s(sT0)}, {s(sT0)}, 13")
                masked(0x08080808, 0x08080808, f"buffer_load_dword v10, v2, {s(S_WO,4)}, {s(sT0)} offen"); n = 1
            elif act == "sd3":
                A(f"s_lshl1_add_u32 {s(sT0)}, {s(sA2)}, {s(sM)}")
                A(f"s_mul_i32 {s(sT0)}, {s(sT0)}, {22*1024}")
                A("v_lshlrev_b32 v11, 10, v0")
                masked(0x3fffff, 0, f"buffer_load_dword v10, v11, {s(S_WD,4)}, {s(sT0)} offen offset:384"); n = 1
            elif act == "sg":
                share_g(); n = 1
            elif act == "sd":
                share_d(); n = 1
            elif act == "pre":
                masked(0xffffffff, 0xf, f"buffer_load_dword v10, v53, {s(S_WS,4)}, {s(sG)} offen"); n = 1
            elif act == "pst":
                masked(0, 0xf, f"buffer_load_dword v10, v53, {s(S_WS,4)}, {s(sG)} offen"); n = 1
            elif act == "phh":
                A(f"s_add_u32 {s(sT0)}, {s(sG)}, {2*RS}")
                masked(0xffffffff, 0xffff, f"buffer_load_dword v10, v57, {s(S_WS,4)}, {s(sG)} offen\nbuffer_load_dword v10, v57, {s(S_WS,4)}, {s(sT0)} offen"); n = 2
            elif act == "li":
                since_li = 0
                A(f"s_cmp_lg_u32 {s(sM)}, 0")
                A("s_cbranch_scc1 L_li")
                self.gemv_issue(64, late=True)
                self.gemv_issue2(64, late=True)
                A.label("L_li")
            elif act == "lc":
                A(f"s_cmp_lg_u32 {s(sM)}, 0")
                A("s_cbranch_scc1 L_lc")
                A(f"s_waitcnt vmcnt({min(since_li, 63)})")
                self.gemv_compute(64, None)
                A(f"s_lshl_b32 {s(sT0)}, s2, 9")
                A(f"s_add_u32 {s(sT0)}, {s(sT0)}, {WS_MODL:#x}")
                A(f"v_mov_b32 v28, v27\nv_mov_b32 v27, {v(VTAG)}\nv_mov_b32 v29, {v(VTAG)}")
                A(f"buffer_store_dwordx4 v[26:29], v52, {s(S_WS,4)}, {s(sT0)} offen sc1")
                A.label("L_lc")
            elif act == "tq":
                A(f"s_mov_b32 {s(sCNT)}, 8")
                self.w_dma_rot([(45, 0, L_WQ), (46, 0, L_WQ + 2048)])
                since_tq = -16
                n = 16
            elif act == "sigQ":
                A(f"s_waitcnt vmcnt({since_tq})")
                self.signal(VP, 15, HV_Q)
            elif act == "to":
                A(f"s_mov_b32 {s(sCNT)}, 16")
                A.label("L_wo")
                A(f"s_lshl_b32 {s(sT1)}, {s(sA10)}, 12")
                A(f"s_lshl_b32 {s(sT0)}, {s(sA10)}, 15")
                A(f"s_add_u32 m0, {s(sT1)}, {s(sA3)}")
                A(f"s_add_u32 {s(sA10)}, {s(sA10)}, 1")
                A(f"buffer_load_dwordx4 v51, {s(S_WO,4)}, {s(sT0)} offen lds")
                A("s_add_u32 m0, m0, 2048")
                A(f"s_and_b32 {s(sA10)}, {s(sA10)}, 15")
                A(f"buffer_load_dwordx4 v47, {s(S_WO,4)}, {s(sT0)} offen lds")
                A(f"s_sub_u32 {s(sCNT)}, {s(sCNT)}, 1")
                A(f"s_cmp_lg_u32 {s(sCNT)}, 0")
                A("s_cbranch_scc1 L_wo")
                n = 32
            elif act == "u":
                self.gu_unit(self.o.get("thr_u")); NE += 1; n = 6
            elif act == "sigU":
                assert NE <= 12
                A(f"v_mov_b32 v14, {15 + NE}")
                A("s_waitcnt vmcnt(0)")
                A(f"ds_write_b32 {v(VP)}, v14")
            elif act == "wb":
                L = A.uniq("L_wb")
                A(f"s_lshr_b32 {s(sT0)}, s2, 3")
                A(f"s_or_b32 {s(sT0)}, {s(sT0)}, {s(sM)}")
                A(f"s_cmp_lg_u32 {s(sT0)}, 15")
                A(f"s_cbranch_scc1 {L}")
                A("buffer_wbl2 sc1")
                A.label(L)
            elif act == "v0":
                A("s_waitcnt vmcnt(0)")
            elif act == "mt":
                A(f"s_mov_b32 {s(sCNT)}, {SPIN}")
                A("s_branch L_gat1")
                A.label("L_gat")
                A("s_sleep 8")
                A.label("L_gat1")
                A(f"s_add_u32 {s(sT0)}, {s(sA8)}, 65536")
                for e in range(2):
                    for i in range(8):
                        A(f"buffer_load_dwordx2 {v(64+16*e+2*i,2)}, v58, {s(S_WS,4)}, {s(sT0 if e else sA8)} offen offset:{i*512} sc1")
                A("v_mov_b32 v21, 0")
                A("s_waitcnt vmcnt(0)")
                for i in range(8):
                    for e in range(2):
                        A(f"v_bitop3_b32 v21, v21, {v(65+16*e+2*i)}, {v(VTAG)} bitop3:0xf6")
                        if i:
                            A(f"v_add_f32 {v(64+16*e)}, {v(64+16*e)}, {v(64+16*e+2*i)}")
                A(f"s_sub_u32 {s(sCNT)}, {s(sCNT)}, 1")
                A("s_cbranch_scc1 L_gatd")
                A("v_cmp_ne_u32 vcc, 0, v21")
                A("s_cbranch_vccnz L_gat")
                A.label("L_gatd")
                A(f"s_cmp_eq_u32 {s(sM)}, 0")
                A(f"s_cselect_b32 {s(sT0)}, 1.0, 0")
                A("v_cvt_pk_bf16_f32 v24, v64, v80")
                A(f"v_and_b32 v25, {v(VMASK)}, v24")
                A("v_lshlrev_b32 v24, 16, v24")
                A(f"v_add_f32 v25, {s(sT0)}, v25")
                A("v_cvt_pk_bf16_f32 v25, v25, v25")
                A(f"v_and_b32 v25, {v(VMASK)}, v25")
                A("ds_write2st64_b32 v59, v24, v25 offset0:0 offset1:2")
                A("v_mov_b32 v15, 1")
                A(f"ds_write_b32 {v(VP)}, v15 offset:32")
            else:
                raise ValueError(act)
            if since_tq is not None:
                since_tq += n
            if since_li is not None:
                since_li += n
        A("s_cmp_lg_u32 s2, 0")
        A("s_cbranch_scc1 L_ep_skip")
        A(f"buffer_store_dword {v(VTAG)}, v6, {s(S_WS,4)}, 0 offen sc1")
        A.label("L_ep_skip")
        D = self.o.get("d", 3)
        A(f"s_mov_b32 {s(sA8)}, {NE + 4}")
        A(f"v_subrev_u32 v13, {D - 1}, v14")
        A(f"s_cmp_lg_u32 {s(sJ)}, 15")
        A("s_cbranch_scc1 L_ring_gu")
        A(f"s_mov_b32 {s(sA8)}, 20")
        A(f"s_mov_b32 {s(sA7)}, {slot_addr(16)}")
        A(f"v_mov_b32 v13, {32 - D}")
        A("s_branch L_ring_w0")
        D2 = self.o.get("d2", D)
        STG = self.o.get("stage", 1)

        def ring(name, unit, end, dd):
            A.label(f"L_ring_{name}")
            self.lwait(VQ, 12, s(sA8), sleep=2)
            unit(None)
            A("v_add_u32 v13, 1, v13")
            A(f"s_add_u32 {s(sA8)}, {s(sA8)}, 1")
            A("v_max_u32 v15, v13, v14")
            A(f"s_waitcnt vmcnt({6*(dd-1)})")
            A(f"ds_write_b32 {v(VP)}, v15")
            A(f"s_cmp_lg_u32 {s(sA8)}, {end + 4}")
            A(f"s_cbranch_scc1 L_ring_{name}")
        ring("gu", self.gu_unit, 16, D)
        self.ts("gu_iss")
        ring("w0", self.wd_unit, 16 + D - 1, D)
        A("v_mov_b32 v14, v15")
        A(f"v_subrev_u32 v13, {D2 - D}, v13")
        ring("wd", self.wd_unit, 28 if STG else 30, D2)
        self.ts("wd_iss")
        if STG:
            for i in range(7):
                if i == 6:
                    A(f"s_mov_b32 {s(sA4)}, {42*32768}")
                A(f"s_add_u32 {s(sT0)}, {s(sA4)}, 32768")
                A(f"buffer_load_dwordx4 {v(64+8*i,4)}, v51, {s(S_WD,4)}, {s(sA4)} offen")
                A(f"s_cmp_lg_u32 {s(sT0)}, {42*32768}")
                A(f"buffer_load_dwordx4 {v(68+8*i,4)}, v47, {s(S_WD,4)}, {s(sA4)} offen")
                A(f"s_cselect_b32 {s(sA4)}, {s(sT0)}, 0")
            for i in range(D2 - 1):
                A("v_add_u32 v13, 1, v13")
                A(f"s_waitcnt vmcnt({14 + 6*(D2-2-i)})")
                A(f"ds_write_b32 {v(VP)}, v13")
            A(f"v_add_u32 v16, {s(sA3)}, v1")
            assert slot_addr(28) == 0
            for n in range(3):
                self.lwait(VQ, 12, 32 + n, sleep=1)
                A(f"s_waitcnt vmcnt({max(0, 8 - 6*n) if n < 2 else 0})")
                for i in range(3*n, min(7, 3*n + 3)):
                    A(f"ds_write_b128 v16, {v(64+8*i,4)} offset:{i*4096}")
                    A(f"ds_write_b128 v16, {v(68+8*i,4)} offset:{i*4096 + 2048}")
                self.signal(VP, 13, 16 + 28 + n)
        else:
            A(f"s_mov_b32 {s(sA4)}, {42*32768}")
            ring("wl", lambda th: self.wd_unit(th, 43), 31, D2)
            for i in range(D2 - 1):
                A("v_add_u32 v13, 1, v13")
                A(f"s_waitcnt vmcnt({6*(D2-2-i)})")
                A(f"ds_write_b32 {v(VP)}, v13")
        A("s_waitcnt lgkmcnt(0)")
        self.ts("wd_done")
        assert self.first_check_before_e < NE, (self.first_check_before_e, NE)
        A("s_branch L_fin")
        self.role = "P"
        self.names["P"] = list(self.names["H"][:4])
        self.pwave()

    def finish(self):
        A = self.A
        A.label("L_fin")
        if self.leak:
            A(f"s_lshl3_add_u32 {s(sRT)}, {s(sTS+2)}, {s(sRT)}")
            A(f"s_add_u32 {s(sRT)}, {s(sRT)}, 5000")
            A.label("L_leak")
            A(f"s_sleep 2\ns_memrealtime {s(sTP,2)}\ns_waitcnt lgkmcnt(0)\ns_sub_u32 {s(sT0)}, {s(sTP)}, {s(sRT)}\ns_cmp_lt_i32 {s(sT0)}, 0\ns_cbranch_scc1 L_leak")
        if self.diag:
            A("s_waitcnt vmcnt(0) lgkmcnt(0)")
            A(f"s_bitcmp1_b32 0x51, {s(sW)}")
            A("s_cbranch_scc0 L_end")
            A(f"s_lshl_b32 {s(sT0)}, s2, 9")
            A(f"s_lshl_b32 {s(sT1)}, {s(sW)}, 6")
            A(f"s_add_u32 {s(sT0)}, {s(sT0)}, {s(sT1)}")
            A(f"s_add_u32 {s(sT0)}, {s(sT0)}, {WS_TS:#x}")
            A("s_mov_b64 exec, 1")
            A("v_mov_b32 v6, 0")
            A(f"v_mov_b32 v8, {s(sRT)}")
            A(f"buffer_store_dword v8, v6, {s(S_WS,4)}, {s(sT0)} offen offset:124")
            A(f"s_memrealtime {s(sTP,2)}\ns_waitcnt lgkmcnt(0)\nv_mov_b32 v9, {s(sTP)}")
            A(f"buffer_store_dword v9, v6, {s(S_WS,4)}, {s(sT0)} offen offset:116")
            A(f"v_mov_b32 v9, {s(sFAST)}")
            A(f"buffer_store_dword v9, v6, {s(S_WS,4)}, {s(sT0)} offen offset:120")
            for i in range(20):
                A(f"v_mov_b32 {v(10+i)}, {s(sTS+i)}")
                A(f"buffer_store_dword {v(10+i)}, v6, {s(S_WS,4)}, {s(sT0)} offen offset:{4*i}")
            A("s_waitcnt vmcnt(0)")
        A.label("L_end")
        A("s_endpgm")
        for c in self.cold:
            A.lines += c

    def build(self):
        self.start()
        self.role = "C"
        self.c_start()
        self.c_p1()
        self.c_p2()
        self.c_p3()
        self.c_p4()
        self.role = "H"
        self.helper()
        self.finish()
        hdr = open("header.txt").read()
        return (hdr + "; @launch grid=(256,1,1) block=(512,1,1) lds=163840\n"
                + '.amdgcn_target "amdgcn-amd-amdhsa--gfx950"\n.text\n'
                + f".globl {KNAME}\n.p2align 8\n.type {KNAME},@function\n{KNAME}:\n"
                + self.A.text()
                + f"""
.section .rodata,"a"
.p2align 6
.amdhsa_kernel {KNAME}
  .amdhsa_next_free_vgpr 256
  .amdhsa_next_free_sgpr 102
  .amdhsa_accum_offset 128
  .amdhsa_group_segment_fixed_size 0
  .amdhsa_kernarg_size 104
  .amdhsa_user_sgpr_count 2
  .amdhsa_user_sgpr_kernarg_segment_ptr 1
  .amdhsa_system_sgpr_workgroup_id_x 1
.end_amdhsa_kernel
""")


if __name__ == "__main__":
    import argparse, json
    ap = argparse.ArgumentParser()
    ap.add_argument("-o", default="k14.s")
    ap.add_argument("--diag", action="store_true")
    ap.add_argument("--slow", action="store_true")
    ap.add_argument("--opt", default="")
    ap.add_argument("--leak", default=None)
    args = ap.parse_args()
    o, _, sched = args.opt.partition("|")
    opts = {kv.split("=")[0]: int(kv.split("=")[1]) for kv in o.split(",") if kv}
    g = Gen(diag=args.diag, force_slow=args.slow, opts=opts, sched=sched or None, leak=args.leak)
    t = g.build()
    open(args.o, "w").write(t)
    if args.diag:
        json.dump(g.names, open(args.o + ".ts", "w"))
    print("written", args.o, len(t.splitlines()), "lines")
```

```python
import sys
sys.path.insert(0, "gen")
from asmlib import *

KNAME = "adaLN_cond__linear_kernel_hedgehog__glu_gated_reglu__prompt_kernel"

WS_MODU = 0x8000
WS_MODL = 0x10000
WS_KV2 = 0x30000
WS_KVP = 0x40000
WS_G0 = 0x200000
RS = 0x20000
import os
OSEP = 'osep=1' in ' '.join(sys.argv)
G_H, G_O, G_H2, G_HH = 0x0, 0x8000 + (0x1000000 if OSEP else 0), 0x0, 0x8000
G_FL = 0x80000
G_FLH, G_FLO, G_FL2, G_FL3 = G_FL, G_FL + 512, G_FL + 1024, G_FL + 1536
G_XCC = 0x80800
G_ST = 0x81000
WS_TS = 0x2800000
L_WK, L_WV, L_WQ = 0, 32768, 65536
L_KVR, L_X1, L_SCR, L_STX, L_MT = 135168, 152576, 111616, 112640, 162816
L_TAB = 107520
KVR_W = 4352
L_CW, L_HW = 160768, 160784
L_XT, L_PHI = 98304, 106496
CV_G, CV_S, CV_A2, CV_GD, CV_KV, CV_PUB, CV_H1, CV_O, CV_P2L, CV_X2, CV_SX, CV_ST, CV_E = 1, 2, 3, 4, 5, 6, 7, 8, 9, 10, 11, 12, 15
HV_I, HV_W, HV_Q, HV_G = 1, 2, 3, 16
sB0, sB1, sB2 = 16, 17, 18
L_SX = 160512
L_EX2 = (81920, 90112)
L_EX4 = (L_X1, 28672)


def slot_addr(u):
    return ((u + 8) % 12) * 12288


def wd_addr(i):
    return (i % 36) * 4096


S_X, S_W, S_WS, S_WM, S_C, S_PHI, S_WO, S_WG, S_WU, S_WD, S_OUT, S_GU = 4, 8, 12, 16, 20, 24, 28, 32, 36, 40, 44, 48
S_DBG = 48
sW, sM, sRB, sJ, sTAG, sG, sFAST = 52, 53, 54, 55, 56, 57, 58
sT0, sT1, sT2, sT3, sCNT = 59, 60, 61, 62, 63
sEX = 64
sA0, sA1, sA2, sA3, sA4, sA5, sA6, sA7, sA8, sA9 = range(66, 76)
sA10, sA11 = 76, 77
sPI = 49
sTP = 78
sRT = 80
sTS = 82
SPIN = 0x40000
VMASK, VTAG = 126, 127
VP, VQ = 7, 4


def zip_streams(*streams):
    out = []
    n = max(len(x) for x in streams)
    for i in range(n):
        for x in streams:
            if i < len(x):
                out.append(x[i])
    return out


def weave(mfmas, others, per=2):
    out, o = [], list(others)
    n = len(mfmas)
    for i, m_ in enumerate(mfmas):
        out.append(m_)
        k = min(per, -(-len(o) // (n - i)))
        out += o[:k]
        o = o[k:]
    return out + o


class Gen:
    def __init__(self, diag=False, force_slow=False, opts=None, sched=None, leak=None):
        self.leak = leak
        self.A = Asm()
        self.diag = diag
        self.names = {"C": [], "H": []}
        self.role = None
        self.cold = []
        self.force_slow = force_slow
        self.o = opts or {}
        self.NR = self.o.get('nr', 8)
        self.NP = 256 // self.NR
        self.osfx = ['', ' sc1', ' nt', ' sc0 sc1'][self.o.get('osfx', 0)]
        sched, _, segs = (sched or "").partition("|")
        self.sched = sched or "wA2 @a2 li pst tq sigQ @wq lc wKV to sg sg @t2 wH1 u u u u sigU mt @g wX2 u u u u sigU wE @e"
        self.o_segs = (segs or "q o g4-16 d22").split()

    def ts(self, name):
        if self.leak == name:
            self.A(f"s_cselect_b32 {s(sTS+3)}, 1, 0\ns_memrealtime {s(sTP,2)}\ns_waitcnt lgkmcnt(0)\ns_sub_u32 {s(sTS+2)}, {s(sTP)}, {s(sRT)}\ns_cmp_lg_u32 {s(sTS+3)}, 0")
        if not self.diag:
            return
        if name.startswith("f:") and self.o.get("fine", 0) != 1:
            return
        if name.startswith("g:"):
            if self.o.get("fine", 0) != 2:
                return
            name = "f:" + name[2:]
        if self.o.get("fine", 0) and self.role == "C" and not name.startswith("f:") and name not in (("kv_gemm", "kv_pub", "kvf", "o_flags", "p2_gemm") if self.o.get("fine") == 1 else ()) + ( "h2_pub", "h2_flags", "tag", "p0_done") + (("p3_gemm", "hh_flags", "p4_gemm", "end") if self.o.get("fine") == 2 else ()):
            return
        roles = ["C", "H"] if self.role is None else [self.role]
        idx = max(len(self.names[r]) for r in roles)
        for r in roles:
            while len(self.names[r]) < idx:
                self.names[r].append("-")
            self.names[r].append(name)
        assert idx < 20
        self.A(f"{'s_memtime' if self.o.get('cyc', 0) else 's_memrealtime'} {s(sTP,2)}\ns_waitcnt lgkmcnt(0)\ns_mov_b32 {s(sTS+idx)}, {s(sTP)}")

    def bar(self):
        self.A("s_barrier")

    def outline(self, label, back, fn):
        main = self.A
        sub = Asm()
        sub._n = main._n + 1000 * (len(self.cold) + 1)
        lines = main.lines
        main.lines = []
        main.label(label)
        fn()
        main(f"s_branch {back}")
        self.cold.append(main.lines)
        main.lines = lines

    def dual(self, fn):
        A = self.A
        Ls, Ld = A.uniq("L_slow"), A.uniq("L_sd")
        A(f"s_cmp_eq_u32 {s(sFAST)}, 0")
        A(f"s_cbranch_scc1 {Ls}")
        fn(" nt" if self.o.get("nt", 0) else "")
        A.label(Ld)
        self.outline(Ls, Ld, lambda: fn(" sc1"))

    def store_flag(self, stores, sflag, vz, vt, data_sc1=False, shadow=None):
        A = self.A
        if data_sc1:
            stores(" sc1")
        else:
            self.dual(stores)
        if shadow:
            shadow()
        A("s_mov_b64 exec, 1")

        def f(sfx):
            A("s_waitcnt vmcnt(0)")
            A(f"buffer_store_dword {v(vt)}, {v(vz)}, {s(S_WS,4)}, {s(sflag)} offen{sfx}")
        self.dual(f)
        A("s_mov_b64 exec, -1")

    def poll(self, voff, soff, vtmp, sleep=0, off=0):
        A = self.A
        Lp, Ld = A.uniq("L_poll"), A.uniq("L_pd")
        A(f"s_mov_b32 {s(sCNT)}, {SPIN}")
        if sleep:
            A(f"s_branch {Lp}f")
        A.label(Lp)
        if sleep:
            A(f"s_sleep {sleep}")
            A.label(Lp + "f")
        A(f"buffer_load_dword {v(vtmp)}, {v(voff)}, {s(S_WS,4)}, {s(soff)} offen offset:{off} sc1")
        A(f"s_sub_u32 {s(sCNT)}, {s(sCNT)}, 1")
        A(f"s_cbranch_scc1 {Ld}")
        A("s_waitcnt vmcnt(0)")
        A(f"v_cmp_ne_u32 vcc, {s(sTAG)}, {v(vtmp)}")
        A(f"s_cbranch_vccnz {Lp}")
        A.label(Ld)

    def signal(self, vaddr, vtmp, val):
        self.A(f"v_mov_b32 {v(vtmp)}, {val}")
        self.A(f"ds_write_b32 {v(vaddr)}, {v(vtmp)}")

    def lwait(self, vaddr, vtmp, val, off=0, sleep=0, extra=None):
        A = self.A
        Lp, Ld = A.uniq("L_lw"), A.uniq("L_lwd")
        A(f"s_mov_b32 {s(sCNT)}, {SPIN*8}")
        A.label(Lp)
        A(f"ds_read_b32 {v(vtmp)}, {v(vaddr)} offset:{off}")
        self.emit(extra or [])
        A(f"s_sub_u32 {s(sCNT)}, {s(sCNT)}, 1")
        A(f"s_cbranch_scc1 {Ld}")
        A(f"s_waitcnt lgkmcnt({len(extra or [])})")
        A(f"v_cmp_gt_u32 vcc, {val}, {v(vtmp)}")
        if sleep:
            A(f"s_cbranch_vccz {Ld}")
            A(f"s_sleep {sleep}")
            A(f"s_branch {Lp}")
        else:
            A(f"s_cbranch_vccnz {Lp}")
        A.label(Ld)

    @staticmethod
    def red4(op, a0, b0, a1, b1):
        return [f"v_permlane32_swap_b32 {v(a0)}, {v(b0)}", f"v_permlane32_swap_b32 {v(a1)}, {v(b1)}",
                f"{op} {v(a0)}, {v(a0)}, {v(b0)}", f"{op} {v(a1)}, {v(a1)}, {v(b1)}",
                f"v_permlane16_swap_b32 {v(a0)}, {v(a1)}", f"{op} {v(a0)}, {v(a0)}, {v(a1)}"]

    @staticmethod
    def bcast4(a0, b0, a1, b1):
        return [f"v_mov_b32 {v(a1)}, {v(a0)}", f"v_permlane16_swap_b32 {v(a0)}, {v(a1)}",
                f"v_mov_b32 {v(b0)}, {v(a0)}", f"v_mov_b32 {v(b1)}, {v(a1)}",
                f"v_permlane32_swap_b32 {v(a0)}, {v(b0)}", f"v_permlane32_swap_b32 {v(a1)}, {v(b1)}"]

    def softmax2(self, X, EP, EN, T, P, L2):
        o = []
        a0, b0, a1, b1 = T, T + 1, T + 2, T + 3
        for t, (aa, bb) in enumerate(((a0, b0), (a1, b1))):
            x = X + 4 * t
            o += [f"v_max3_f32 {v(aa)}, {v(x)}, {v(x+1)}, {v(x+2)}", f"v_max3_f32 {v(bb)}, -{v(x)}, -{v(x+1)}, -{v(x+2)}"]
        for t, (aa, bb) in enumerate(((a0, b0), (a1, b1))):
            x = X + 4 * t
            o += [f"v_max_f32 {v(aa)}, {v(aa)}, {v(x+3)}", f"v_max_f32_e64 {v(bb)}, {v(bb)}, -{v(x+3)}"]
        o += self.red4("v_max_f32", a0, b0, a1, b1)
        o += [f"v_mul_f32 {v(a0)}, {v(L2)}, {v(a0)}"]
        o += self.bcast4(a0, b0, a1, b1)
        for t in range(2):
            m = T + 2 * t
            for h in range(2):
                x = X + 4 * t + 2 * h
                o += [f"v_pk_fma_f32 {v(EP+4*t+2*h,2)}, {v(x,2)}, {v(L2,2)}, {v(m,2)} op_sel:[0,0,0] op_sel_hi:[1,1,0] neg_lo:[0,0,1] neg_hi:[0,0,1]",
                      f"v_pk_fma_f32 {v(EN+4*t+2*h,2)}, {v(x,2)}, {v(L2,2)}, {v(m,2)} op_sel:[0,0,1] op_sel_hi:[1,1,1] neg_lo:[1,0,1] neg_hi:[1,0,1]"]
        for i in range(8):
            o += [f"v_exp_f32 {v(EP+i)}, {v(EP+i)}", f"v_exp_f32 {v(EN+i)}, {v(EN+i)}"]
        for t in range(2):
            e, n = EP + 4 * t, EN + 4 * t
            o += [f"v_pk_add_f32 {v(T+4,2)}, {v(e,2)}, {v(e+2,2)}", f"v_pk_add_f32 {v(T+6,2)}, {v(n,2)}, {v(n+2,2)}",
                  f"v_add_f32 {v(T+2*t)}, {v(T+4)}, {v(T+5)}", f"v_add_f32 {v(T+2*t+1)}, {v(T+6)}, {v(T+7)}"]
        o += self.red4("v_add_f32", a0, b0, a1, b1)
        o += [f"v_rcp_f32 {v(a0)}, {v(a0)}"]
        o += self.bcast4(a0, b0, a1, b1)
        for t in range(2):
            m = T + 2 * t
            for h in range(2):
                e, n = EP + 4 * t + 2 * h, EN + 4 * t + 2 * h
                o += [f"v_pk_mul_f32 {v(e,2)}, {v(e,2)}, {v(m,2)} op_sel:[0,0] op_sel_hi:[1,0]",
                      f"v_pk_mul_f32 {v(n,2)}, {v(n,2)}, {v(m,2)} op_sel:[0,1] op_sel_hi:[1,1]"]
        for t in range(2):
            for h in range(2):
                o += [f"v_cvt_pk_bf16_f32 {v(P+4*t+h)}, {v(EP+4*t+2*h)}, {v(EP+4*t+2*h+1)}",
                      f"v_cvt_pk_bf16_f32 {v(P+4*t+2+h)}, {v(EN+4*t+2*h)}, {v(EN+4*t+2*h+1)}"]
        return o

    def emit(self, lst):
        for l in lst:
            if "@SFX@" in l:
                self.dual(lambda sfx: self.A(l.replace("@SFX@", sfx)))
            else:
                self.A(l)

    def srd_consts(self, regs):
        sizes = {S_WS: 0x10000000 - (self.o.get('wsoff', 0) << 20), S_C: 1024, S_WM: 512*6144, S_X: 2048*1024, S_W: 512*3072, S_PHI: 32*512, S_WO: 512*1024,
                 S_WG: 512*2752, S_WU: 512*2752, S_WD: 1376*1024, S_OUT: 2048*1024, S_DBG: 256}
        for r in regs:
            self.A(f"s_mov_b32 {s(r+2)}, {sizes[r]:#x}")
            self.A(f"s_mov_b32 {s(r+3)}, 0x20000")

    def wsoff(self):
        off = self.o.get("wsoff", 0) << 20
        if off:
            self.A(f"s_add_u32 {s(S_WS)}, {s(S_WS)}, {off:#x}\ns_addc_u32 {s(S_WS+1)}, {s(S_WS+1)}, 0")

    def gemv_issue(self, W, late=False):
        A = self.A
        NR = 8 if late else self.NR
        if late:
            A(f"s_and_b32 {s(sT0)}, s2, 7")
        else:
            A(f"s_and_b32 {s(sT0)}, {s(sPI)}, {16 // NR - 1}")
            A(f"s_lshl2_add_u32 {s(sT0)}, {s(sT0)}, {s(sM)}")
        A(f"v_and_b32 v13, {NR // 2 - 1}, v0")
        A("v_lshlrev_b32 v13, 2, v13")
        A(f"v_lshl_add_u32 v13, v8, {3 if NR == 4 else 4}, v13")
        A(f"s_lshl_b32 {s(sT1)}, {s(sT0)}, {6 if NR == 4 else 7}")
        A(f"buffer_load_dword v12, v13, {s(S_C,4)}, {s(sT1)} offen")

    def gemv_issue2(self, W, late=False):
        A = self.A
        NR = 8 if late else self.NR
        A(f"v_mul_u32_u24 v14, {NR*6144}, v8")
        A("v_lshl_add_u32 v14, v9, 4, v14")
        A(f"s_mul_i32 {s(sT0)}, {s(sT0)}, {8*NR*6144}")
        A(f"s_lshr_b32 {s(sT1)}, {'s2' if late else s(sPI)}, {3 if late else (2 if NR == 4 else 1)}")
        if late:
            A(f"s_add_u32 {s(sT1)}, {s(sT1)}, 16")
        A(f"s_lshl_b32 {s(sT1)}, {s(sT1)}, 7")
        A(f"s_add_u32 {s(sT0)}, {s(sT0)}, {s(sT1)}")
        for i in range(NR):
            A(f"buffer_load_dwordx4 {v(W+4*i,4)}, v14, {s(S_WM,4)}, {s(sT0)} offen")
            if i < NR - 1:
                A(f"s_add_u32 {s(sT0)}, {s(sT0)}, 6144")

    def gemv_compute(self, W, after, NR=8):
        A = self.A
        A("v_lshlrev_b32 v13, 16, v12")
        A(f"v_and_b32 v14, {v(VMASK)}, v12")
        A("v_mul_f32 v15, 0xbfb8aa3b, v13\nv_mul_f32 v16, 0xbfb8aa3b, v14")
        A("v_exp_f32 v15, v15\nv_exp_f32 v16, v16")
        A(f"s_mov_b32 {s(sT0)}, 0x05040100\ns_mov_b32 {s(sT1)}, 0x07060302")
        A("v_add_f32 v15, 1.0, v15\nv_add_f32 v16, 1.0, v16")
        A("v_rcp_f32 v15, v15\nv_rcp_f32 v16, v16")
        for c in range(8):
            A(f"v_mov_b32 {v(24+c)}, 0")
        A("v_mul_f32 v13, v13, v15\nv_mul_f32 v14, v14, v16")
        A("v_cvt_pk_bf16_f32 v12, v13, v14")
        for q in range(NR // 2):
            A(f"v_mov_b32_dpp {v(16+q)}, v12 quad_perm:[{q},{q},{q},{q}] row_mask:0xf bank_mask:0xf")
        for q in range(NR // 2):
            if after is not None:
                A(f"s_waitcnt vmcnt({after + NR - 2 - 2*q})")
            for d in range(0, 4, 2):
                for e in range(2):
                    ra, rb_ = W + 8*q + d + e, W + 8*q + 4 + d + e
                    A(f"v_perm_b32 {v(20+2*e)}, {v(rb_)}, {v(ra)}, {s(sT0)}")
                    A(f"v_perm_b32 {v(21+2*e)}, {v(rb_)}, {v(ra)}, {s(sT1)}")
                for e in range(4):
                    A(f"v_dot2c_f32_bf16 {v(24+2*d+e)}, {v(20+e)}, {v(16+q)}")
        for c in range(4):
            A(f"v_permlane32_swap_b32 {v(24+c)}, {v(28+c)}")
        A("v_pk_add_f32 v[24:25], v[24:25], v[28:29]\nv_pk_add_f32 v[26:27], v[26:27], v[30:31]")
        for c in range(2):
            A(f"v_permlane16_swap_b32 {v(24+c)}, {v(26+c)}")
        A("v_pk_add_f32 v[24:25], v[24:25], v[26:27]")
        for c in range(2):
            A(f"v_add_f32_dpp {v(26+c)}, {v(24+c)}, {v(24+c)} row_ror:8 row_mask:0xf bank_mask:0xf")

    def start(self):
        A = self.A
        A("s_cmp_ge_u32 s2, 256")
        A("s_cbranch_scc1 L_end")
        for r, off in ((S_WS, 96), (S_C, 64), (S_WM, 72), (S_X, 0), (S_W, 8), (S_PHI, 16)):
            A(f"s_load_dwordx2 {s(r,2)}, s[0:1], {off}")
        if self.leak:
            A(f"s_memrealtime {s(sRT,2)}\ns_mov_b32 {s(sTS+2)}, 0")
        if self.diag:
            A(f"s_memrealtime {s(sRT,2)}")
            A(f"{'s_memtime' if self.o.get('cyc', 0) else 's_memrealtime'} {s(sTS,2)}")
            self.names["cyc"] = self.o.get("cyc", 0)
            self.names["C"].append("start"); self.names["H"].append("start")
            self.names["C"].append("-"); self.names["H"].append("-")
        A("v_lshrrev_b32 v2, 6, v0")
        A("v_and_b32 v0, 63, v0")
        A(f"v_readfirstlane_b32 {s(sW)}, v2")
        A(f"s_and_b32 {s(sRB)}, s2, 7")
        A(f"s_lshr_b32 {s(sT0)}, s2, 7")
        A(f"s_lshl1_add_u32 {s(sRB)}, {s(sRB)}, {s(sT0)}")
        A(f"s_bfe_u32 {s(sJ)}, s2, 0x40003")
        if self.o.get("pearly", 0):
            A(f"s_lshr_b32 {s(sPI)}, s2, 3")
            A(f"s_and_b32 {s(sT0)}, s2, 3")
            A(f"s_lshl2_add_u32 {s(sPI)}, {s(sPI)}, {s(sT0)}")
            A("s_bitcmp1_b32 s2, 2")
            A(f"s_cselect_b32 {s(sPI)}, 64, {s(sPI)}")
        else:
            A(f"s_mov_b32 {s(sPI)}, s2")
        A("v_mov_b32 v6, 0")
        A("v_lshrrev_b32 v8, 3, v0")
        A("v_and_b32 v9, 7, v0")
        A("v_lshlrev_b32 v1, 4, v0")
        A(f"v_mov_b32 {v(VMASK)}, 0xffff0000")
        A(f"s_and_b32 {s(sM)}, {s(sW)}, 3")
        A(f"s_lshl_b32 {s(sG)}, {s(sRB)}, 20")
        A(f"s_add_u32 {s(sG)}, {s(sG)}, {WS_G0:#x}")
        A(f"s_getreg_b32 {s(sFAST)}, hwreg(HW_REG_XCC_ID)")
        self.srd_consts([S_WS, S_C, S_WM])
        A(f"s_lshl2_add_u32 {s(sT0)}, {s(sW)}, {L_CW}")
        A(f"v_mov_b32 {v(VP)}, {s(sT0)}")
        A(f"ds_write2_b32 {v(VP)}, v6, v6 offset0:0 offset1:8")
        A(f"v_and_b32 {v(VQ)}, 3, v0")
        A(f"v_lshlrev_b32 {v(VQ)}, 2, {v(VQ)}")
        A(f"v_add_u32 {v(VQ)}, {L_CW}, {v(VQ)}")
        A(f"s_cmp_ge_u32 {s(sW)}, 4")
        A("s_cbranch_scc1 L_helper")

    PHIT, IDN, ONES, L2 = 112, 116, 120, 118

    def c_start(self):
        A = self.A
        if self.o.get("prio", 0):
            A(f"s_setprio {self.o.get('prio')}")
        self.srd_consts([S_X])
        A("v_lshlrev_b32 v2, 4, v9")
        A("v_lshl_add_u32 v89, v8, 10, v2")
        A(f"s_lshl4_add_u32 {s(sT2)}, {s(sRB)}, {s(sJ)}")
        A(f"s_lshl_b32 {s(sT2)}, {s(sT2)}, 13")
        A(f"s_lshl_b32 {s(sT3)}, {s(sM)}, 8")
        A(f"s_add_u32 {s(sT2)}, {s(sT2)}, {s(sT3)}")
        A(f"s_lshl_b32 {s(sEX)}, {s(sM)}, 11")
        A(f"s_add_u32 {s(sEX)}, {s(sEX)}, {L_XT}")
        A("s_waitcnt lgkmcnt(0)")
        self.wsoff()
        A(f"buffer_load_dword {v(VTAG)}, v6, {s(S_WS,4)}, 0 offen sc1")
        XL = self.o.get("xlate", 1)
        PH = self.o.get("pre_h", 1)

        def xdma():
            A(f"s_mov_b32 m0, {s(sEX)}")
            A(f"buffer_load_dwordx4 v89, {s(S_X,4)}, {s(sT2)} offen lds")
            A(f"s_add_u32 m0, {s(sEX)}, {1024-128}")
            A(f"buffer_load_dwordx4 v89, {s(S_X,4)}, {s(sT2)} offen offset:128 lds")

        def xres():
            A(f"s_lshr_b32 {s(sT0)}, {s(sJ)}, 3")
            A(f"s_lshl1_add_u32 {s(sT0)}, {s(sRB)}, {s(sT0)}")
            A(f"s_lshl2_add_u32 {s(sT0)}, {s(sT0)}, {s(sM)}")
            A(f"s_lshl_b32 s3, {s(sT0)}, 14")
            A(f"s_and_b32 {s(sT0)}, {s(sJ)}, 7")
            A(f"s_lshl_b32 {s(sT0)}, {s(sT0)}, 7")
            A(f"s_add_u32 s3, s3, {s(sT0)}")
            self.rm_voff(100)
            A(f"s_add_u32 m0, {s(sEX)}, {L_X1 - L_XT}")
            A(f"buffer_load_dwordx4 v100, {s(S_X,4)}, s3 offen lds")
            A(f"s_add_u32 m0, {s(sEX)}, {L_X1 - L_XT + 1024}")
            A(f"buffer_load_dwordx4 v101, {s(S_X,4)}, s3 offen lds")
        A(f"s_cmp_ge_u32 {s(sPI)}, {self.NP}")
        A("s_cbranch_scc1 L_p0a_skip")
        self.gemv_issue(32)
        self.gemv_issue2(32)
        A.label("L_p0a_skip")
        if not XL:
            xdma()
        self.bar()
        A(f"s_load_dwordx2 {s(S_OUT,2)}, s[0:1], 80")
        A("v_lshrrev_b32 v10, 4, v0")
        A("v_and_b32 v11, 15, v0")
        self.srd_consts([S_OUT])
        A(f"v_lshl_add_u32 v90, v9, 7, {s(sEX)}")
        A("v_lshl_add_u32 v90, v8, 4, v90")
        A("v_lshlrev_b32 v2, 2, v10")
        A("v_sub_u32 v2, v11, v2")
        A("v_cmp_gt_u32 vcc, 4, v2")
        A("v_mov_b32 v20, 0x3f80")
        A("v_mov_b32 v21, 0")
        A("v_cndmask_b32 v20, 0, v20, vcc")
        A("v_lshlrev_b32 v2, 4, v2")
        A(f"v_lshlrev_b64 {v(self.IDN,2)}, v2, v[20:21]")
        for i in range(4):
            A(f"v_mov_b32 {v(self.ONES+i)}, 0x3f803f80")
        A(f"v_mov_b32 {v(self.L2)}, 0x3fb8aa3b")
        A(f"v_mov_b32 {v(self.L2+1)}, 0x3fb8aa3b")
        A("v_lshrrev_b32 v2, 2, v11")
        A("v_lshl_add_u32 v2, v10, 3, v2")
        A("v_lshlrev_b32 v2, 6, v2")
        A("v_and_b32 v3, 3, v0")
        A("v_lshl_add_u32 v2, v3, 3, v2")
        A("v_and_b32 v3, 1, v10")
        A("v_lshl_add_u32 v124, v3, 5, v2")
        A("v_xor_b32 v125, 32, v124")
        A("v_lshlrev_b32 v5, 2, v11")
        A("v_lshlrev_b32 v91, 5, v9")
        A("v_lshl_add_u32 v91, v10, 3, v91")
        A("v_lshlrev_b32 v92, 1, v91")
        A(f"s_add_u32 {s(sT0)}, {s(sT3)}, {L_SCR}")
        A(f"v_add_u32 v91, {s(sT0)}, v91")
        A("v_lshlrev_b32 v11, 4, v9")
        A(f"v_add_u32 v11, {L_STX}, v11")
        A("v_lshrrev_b32 v10, 5, v0")
        A("v_lshl_add_u32 v10, v10, 7, v11")
        A(f"s_lshl_b32 {s(sT0)}, {s(sM)}, 2")
        A(f"v_add_u32 v10, {s(sT0)}, v10")
        A(f"s_lshl_b32 {s(sA0)}, {s(sM)}, 10")
        A(f"s_add_u32 {s(sA7)}, {s(sA0)}, {L_TAB}")
        A(f"s_lshl_b32 {s(sA0)}, {s(sM)}, 13")
        A(f"s_add_u32 {s(sA0)}, {s(sA0)}, {WS_MODU:#x}")
        A(f"s_add_u32 {s(sA8)}, {s(sA0)}, 4096")
        A(f"s_add_u32 {s(sA1)}, {s(sG)}, {G_XCC:#x}")
        A("v_lshlrev_b32 v94, 5, v5")
        A(f"s_lshr_b32 {s(sA2)}, {s(sJ)}, 2")
        A(f"s_bfe_u32 {s(sT0)}, {s(sJ)}, 0x10001")
        A(f"s_lshl3_add_u32 {s(sA2)}, {s(sA2)}, {s(sT0)}")
        A(f"s_lshl2_add_u32 {s(sA2)}, {s(sA2)}, {s(sM)}")
        A(f"s_lshl_b32 {s(sA2)}, {s(sA2)}, 12")
        A(f"s_and_b32 {s(sT0)}, {s(sJ)}, 1")
        A(f"s_lshl_b32 {s(sT0)}, {s(sT0)}, 7")
        A(f"s_add_u32 {s(sA2)}, {s(sA2)}, {s(sT0)}")
        A(f"s_add_u32 {s(sA2)}, {s(sA2)}, {s(sG)}")
        A(f"s_lshr_b32 {s(sT0)}, {s(sJ)}, 2")
        A(f"s_lshl_b32 {s(sT0)}, {s(sT0)}, 7")
        A(f"s_and_b32 {s(sT1)}, {s(sJ)}, 3")
        A(f"s_lshl2_add_u32 {s(sT1)}, {s(sT1)}, {s(sM)}")
        A(f"s_lshl2_add_u32 {s(sT0)}, {s(sT1)}, {s(sT0)}")
        A(f"s_add_u32 {s(sA4)}, {s(sG)}, {G_FLH:#x}")
        A(f"s_add_u32 {s(sA3)}, {s(sA4)}, {s(sT0)}")
        A(f"s_lshl_b32 {s(sT0)}, {s(sM)}, 7")
        A(f"s_add_u32 {s(sA4)}, {s(sA4)}, {s(sT0)}")
        A(f"s_lshl_b32 {s(sA5)}, {s(sM)}, 17")
        A(f"s_add_u32 {s(sA5)}, {s(sA5)}, {s(sG)}")
        A(f"s_add_u32 {s(sA6)}, {s(sA5)}, 16384")
        A(f"s_lshl2_add_u32 {s(sA11)}, {s(sJ)}, {s(sM)}")
        A(f"s_lshl4_add_u32 {s(sA11)}, {s(sA11)}, {s(sRB)}")
        A(f"s_lshl_b32 {s(sA11)}, {s(sA11)}, 10")
        A(f"s_add_u32 {s(sA11)}, {s(sA11)}, {WS_KVP:#x}")
        A("v_mov_b32 v72, 0\nv_mov_b32 v73, 0")
        A("v_lshlrev_b32 v88, 8, v0")
        nx = 0 if XL else 2
        A(f"s_cmp_ge_u32 {s(sPI)}, {self.NP}")
        A("s_cbranch_scc1 L_w1")
        A(f"s_waitcnt vmcnt({self.NR + nx})")
        A("s_branch L_w2")
        A.label("L_w1")
        A(f"s_waitcnt vmcnt({nx})")
        A.label("L_w2")
        if XL:
            xdma()
        if PH:
            A("s_mov_b64 exec, 0xffff")
            A(f"buffer_load_dword v88, v88, {s(S_WS,4)}, {s(sA2)} offen")
            A("s_mov_b64 exec, -1")
        A(f"v_add_u32 {v(VTAG)}, 1, {v(VTAG)}")
        A(f"v_readfirstlane_b32 {s(sTAG)}, {v(VTAG)}")
        A(f"v_mov_b32 v96, {s(sFAST)}\nv_mov_b32 v97, {v(VTAG)}\nv_mov_b32 v98, {s(sFAST)}\nv_mov_b32 v99, {v(VTAG)}")
        A(f"s_lshl_b32 {s(sT0)}, {s(sJ)}, 7")
        A(f"s_add_u32 {s(sT0)}, {s(sT0)}, {s(sA1)}")
        A(f"s_cmp_eq_u32 {s(sM)}, 3")
        A(f"s_cselect_b32 {s(sT1)}, 0, 0x40000000")
        A(f"v_add_u32 v95, {s(sT1)}, v1")
        A("s_mov_b64 exec, 0xff")
        A(f"buffer_store_dwordx4 v[96:99], v95, {s(S_WS,4)}, {s(sT0)} offen sc1")
        A("s_mov_b64 exec, -1")
        PH += 1
        self.ts("tag")
        A(f"s_cmp_ge_u32 {s(sPI)}, {self.NP}")
        A("s_cbranch_scc1 L_p0c_skip")
        self.gemv_compute(32, 2 + PH, self.NR)
        A("ds_write_b64 v91, v[26:27]")
        self.signal(VP, 2, CV_G)
        A(f"s_cmp_lg_u32 {s(sW)}, 0")
        A("s_cbranch_scc1 L_p0c_skip")
        A("v_lshlrev_b32 v2, 2, v0")
        A(f"v_add_u32 v3, {L_SCR}, v2")
        PB = 2 if self.NR == 4 else 1
        A(f"s_bfe_u32 {s(sT0)}, {s(sPI)}, {0x20000 + PB + 1:#x}")
        A(f"s_lshr_b32 {s(sT1)}, {s(sPI)}, {PB + 3}")
        A(f"s_lshl1_add_u32 {s(sT0)}, {s(sT0)}, {s(sT1)}")
        A(f"s_and_b32 {s(sT1)}, {s(sPI)}, {(1 << PB) - 1}")
        A(f"s_lshl2_add_u32 {s(sT0)}, {s(sT0)}, {s(sT1)}")
        A(f"s_bfe_u32 {s(sT1)}, {s(sPI)}, {0x10000 + PB:#x}")
        A(f"s_lshl1_add_u32 {s(sT0)}, {s(sT0)}, {s(sT1)}")
        A(f"s_lshl_b32 {s(sT0)}, {s(sT0)}, 9")
        A(f"s_add_u32 {s(sT0)}, {s(sT0)}, {WS_MODU:#x}")
        self.lwait(VQ, 2, CV_G, extra=["ds_read2st64_b32 v[12:13], v3 offset0:0 offset1:1", "ds_read2st64_b32 v[14:15], v3 offset0:2 offset1:3"])
        A("v_lshlrev_b32 v2, 3, v0")
        A("s_waitcnt lgkmcnt(0)")
        A("v_pk_add_f32 v[12:13], v[12:13], v[14:15]")
        A("v_add_f32 v12, v12, v13")
        A(f"v_mov_b32 v13, {v(VTAG)}")
        A(f"buffer_store_dwordx2 v[12:13], v2, {s(S_WS,4)}, {s(sT0)} offen sc1")
        self.ts("p0_done")
        A(f"s_waitcnt vmcnt({1 + PH})")
        A("s_branch L_xw")
        A.label("L_p0c_skip")
        A(f"s_waitcnt vmcnt({PH})")
        A.label("L_xw")
        A("ds_read_b128 v[64:67], v90")
        A("ds_read_b128 v[68:71], v90 offset:1024")
        self.ts("x_land")
        A("s_waitcnt lgkmcnt(0)")
        for i in range(8):
            A(f"v_dot2c_f32_bf16 v72, {v(self.ONES)}, {v(64+i)}")
            A(f"v_dot2c_f32_bf16 v73, {v(64+i)}, {v(64+i)}")
        A("v_permlane32_swap_b32 v72, v73")
        A("v_add_f32 v72, v72, v73")
        A("v_mov_b32 v73, v72")
        A("v_permlane16_swap_b32 v72, v73")
        A("v_add_f32 v72, v72, v73")
        A("v_add_f32_dpp v73, v72, v72 row_ror:8 row_mask:0xf bank_mask:0xf")
        A("ds_write_b32 v10, v73")
        self.signal(VP, 2, CV_S)
        xres()
        self.lwait(VQ, 2, CV_S)
        A("ds_read_b128 v[16:19], v11")
        A("ds_read_b128 v[20:23], v11 offset:128")
        for i in range(8):
            A(f"v_lshlrev_b32 {v(72+2*i)}, 16, {v(64+i)}")
            A(f"v_and_b32 {v(73+2*i)}, {v(VMASK)}, {v(64+i)}")
        A(f"v_lshl_add_u32 v2, v0, 3, {s(sA7)}")
        A(f"v_lshl_add_u32 v3, v8, 5, {s(sA7)}")
        A("v_lshlrev_b32 v93, 8, v8")
        A("v_lshl_add_u32 v93, v9, 4, v93")
        A("s_waitcnt lgkmcnt(0)")
        A("v_pk_add_f32 v[16:17], v[16:17], v[18:19]\nv_pk_add_f32 v[20:21], v[20:21], v[22:23]")
        A("v_add_f32 v16, v16, v17\nv_add_f32 v17, v20, v21")
        A("v_mul_f32 v16, 0x3b000000, v16\nv_mul_f32 v17, 0x3b000000, v17")
        A("v_fma_f32 v17, -v16, v16, v17")
        A("v_max_f32 v17, 0, v17")
        A("v_add_f32 v17, 0x3727c5ac, v17")
        A("v_rsq_f32 v17, v17")
        A("v_mul_f32_e64 v16, -v16, v17")
        for i in range(8):
            A(f"v_pk_fma_f32 {v(72+2*i,2)}, {v(72+2*i,2)}, v[16:17], v[16:17] op_sel:[0,1,0] op_sel_hi:[1,1,0]")
        A("v_lshlrev_b32 v14, 3, v0")
        A(f"v_add_u32 v14, {L_PHI}, v14")
        if self.o.get("s0late", 1):
            self.lwait(VQ, 13, HV_W if self.o.get("s0late", 1) == 1 else HV_I, off=16, sleep=1)
        A(f"s_mov_b32 {s(sCNT)}, {SPIN}")
        A("s_branch L_s0f")
        A.label("L_s0")
        A("s_sleep 4")
        A.label("L_s0f")
        P = 16 // self.NR
        dst = lambda vec, p: (16 + 8*vec + 4*p) if p < 2 else (40 + 8*vec + 4*(p-2))
        for vec in range(2):
            for p in range(P):
                A(f"buffer_load_dwordx4 {v(dst(vec,p),4)}, v1, {s(S_WS,4)}, {s(sA8 if vec else sA0)} offen offset:{p*1024} sc1")
        A(f"buffer_load_dwordx2 v[32:33], v94, {s(S_WS,4)}, {s(sA1)} offen sc1")
        A(f"s_sub_u32 {s(sCNT)}, {s(sCNT)}, 1")
        A("s_cbranch_scc1 L_s0d")
        tags = [dst(vec, p) + k for vec in range(2) for p in range(P) for k in (1, 3)]
        A(f"s_waitcnt vmcnt({P + 1})")
        A(f"v_xor_b32 v36, {v(VTAG)}, {v(tags[0])}")
        A(f"v_xor_b32 v37, {v(VTAG)}, {v(tags[1])}")
        for i, r in enumerate(tags[2:] + [33]):
            if i + 2 == 2 * P:
                A("s_waitcnt vmcnt(0)")
            A(f"v_bitop3_b32 {v(36 + (i & 1))}, {v(36 + (i & 1))}, {v(r)}, {v(VTAG)} bitop3:0xf6")
        A("v_or_b32 v36, v36, v37")
        A("v_cmp_ne_u32 vcc, 0, v36")
        A("s_cbranch_vccnz L_s0")
        A.label("L_s0d")
        A("s_waitcnt vmcnt(0)")
        self.ts("s0_ok")
        if P == 4:
            for r in (24, 26, 28, 30, 16, 18, 20, 22):
                A(f"v_add_f32 {v(r)}, {v(r)}, {v(r+24)}")
        A("v_add_f32 v24, v24, v28\nv_add_f32 v26, v26, v30\nv_add_f32 v16, v16, v20\nv_add_f32 v18, v18, v22")
        A("v_cvt_pk_bf16_f32 v24, v24, v26\nv_cvt_pk_bf16_f32 v16, v16, v18")
        A(f"v_and_b32 v25, {v(VMASK)}, v24\nv_lshlrev_b32 v24, 16, v24")
        A(f"v_and_b32 v17, {v(VMASK)}, v16\nv_lshlrev_b32 v16, 16, v16")
        A("v_add_f32 v24, 1.0, v24\nv_add_f32 v25, 1.0, v25")
        A("ds_write_b64 v2, v[16:17]")
        A("v_cvt_pk_bf16_f32 v24, v24, v25")
        A(f"v_and_b32 v25, {v(VMASK)}, v24\nv_lshlrev_b32 v24, 16, v24")
        A("ds_write_b64 v2, v[24:25] offset:512")
        for e in range(2):
            for q in range(2):
                A(f"ds_read_b128 {v(16+8*e+4*q,4)}, v3 offset:{e*256 + q*16}")
                A(f"ds_read_b128 {v(40+8*e+4*q,4)}, v3 offset:{512 + e*256 + q*16}")
        A(f"v_cmp_ne_u32 vcc, {s(sFAST)}, v32")
        A("s_cmp_eq_u64 vcc, 0")
        A(f"s_cselect_b32 {s(sFAST)}, {0 if self.force_slow else 1}, 0")
        for q in range(4):
            A(f"s_waitcnt lgkmcnt({6-2*q})")
            for i in range(2):
                r = 4*q + 2*i
                A(f"v_pk_fma_f32 {v(16+r,2)}, {v(72+r,2)}, {v(40+r,2)}, {v(16+r,2)}")
            for i in range(2):
                r = 4*q + 2*i
                A(f"v_cvt_pk_bf16_f32 {v(32+r//2)}, {v(16+r)}, {v(17+r)}")

        def st(sfx):
            A(f"buffer_store_dwordx4 v[32:35], v93, {s(S_WS,4)}, {s(sA2)} offen{sfx}")
            A(f"buffer_store_dwordx4 v[36:39], v93, {s(S_WS,4)}, {s(sA2)} offen offset:2048{sfx}")
        self.store_flag(st, sA3, 6, VTAG, data_sc1=not self.o.get('pre_h', 1))

    def c_p1(self):
        A = self.A
        PHIT, IDN, ONES, L2 = self.PHIT, self.IDN, self.ONES, self.L2
        if self.o.get("s0late", 1) != 1:
            self.lwait(VQ, 13, HV_W, off=16, sleep=1)
        for h in range(2):
            A(f"ds_read_b64_tr_b16 {v(PHIT+2*h,2)}, v14 offset:{h*512}")
        A("s_waitcnt lgkmcnt(0)")
        LA = self.o.get("la1", 4)

        def ld(u):
            o = [f"buffer_load_dwordx4 {a((u*2+t)*4,4)}, v1, {s(S_WS,4)}, {s(sA5+t)} offen offset:{(u&3)*1024} sc1" for t in range(2)]
            if (u & 3) == 3 and u < 15:
                o += [f"s_add_u32 {s(sA5)}, {s(sA5)}, 4096", f"s_add_u32 {s(sA6)}, {s(sA6)}, 4096"]
            return o

        def rd_b(u):
            p = 64 + (u % 3) * 16
            return [f"ds_read_b64_tr_b16 {v(p + (mi*2+h)*4 + hh*2, 2)}, {v(124+h)} offset:{base + u*2048 + hh*256}"
                    for mi, base in enumerate((L_WK, L_WV)) for h in range(2) for hh in range(2)]
        self.emit(rd_b(0) + rd_b(1))
        self.poll(5, sA4, 10)
        for u in range(LA):
            self.emit(ld(u))
        self.ts("h_flags")
        for u in range(16):
            A(f"s_waitcnt vmcnt({2*(min(15, u+LA-1) - u)}) lgkmcnt({(8 if u < 15 else 0) + (1 if u + LA == 16 else 0)})")
            p = 64 + (u % 3) * 16
            mf = []
            for h in range(2):
                for t in range(2):
                    d = 32 + (h * 2 + t) * 4
                    mf.append(f"v_mfma_f32_16x16x32_bf16 {v(d,4)}, {v(p+h*4,4)}, {a((u*2+t)*4,4)}, {v(d,4) if u else 0}")
            for h in range(2):
                for t in range(2):
                    d = 48 + (h * 2 + t) * 4
                    mf.append(f"v_mfma_f32_16x16x32_bf16 {v(d,4)}, {a((u*2+t)*4,4)}, {v(p+8+h*4,4)}, {v(d,4) if u else 0}")
            self.emit(weave(mf, (ld(u + LA) if u + LA < 16 else []) + (rd_b(u + 2) if u + 2 < 16 else [])))
            if u + LA == 15:
                self.signal(VP, 10, CV_A2)
        self.signal(VP, 10, CV_GD)
        A(f"s_mul_i32 {s(sT0)}, {s(sM)}, {KVR_W}")
        A(f"s_add_u32 {s(sT0)}, {s(sT0)}, {L_KVR}")
        A(f"v_add_u32 v2, {s(sT0)}, v1")
        A("v_and_b32 v3, 48, v0")
        A(f"v_add_u32 v3, {s(sT0)}, v3")
        self.ts("kv_gemm")
        for i in range(8):
            A(f"v_cvt_pk_bf16_f32 {v(8+i)}, {v(32+2*i)}, {v(33+2*i)}")
        for h in range(2):
            for t in range(2):
                A(f"v_mfma_f32_16x16x16_bf16 {v(64+8*h+4*t,4)}, {v(PHIT+2*h,2)}, {v(8+4*h+2*t,2)}, 0")
        for i in range(8):
            A(f"v_cvt_pk_bf16_f32 {v(48+i)}, {v(48+2*i)}, {v(49+2*i)}")
        self.emit(zip_streams(*[self.softmax2(64+8*h, 80+8*h, 96+8*h, 16+8*h, 32+8*h, L2) for h in range(2)]))
        self.ts("f:sm")
        for h in range(2):
            for i, p in enumerate((0, 4, 2, 6)):
                A(f"v_mfma_f32_16x16x16_bf16 {v(64+16*h+4*i,4)}, {v(32+8*h+p,2)}, {v(IDN,2)}, 0")
        for i in range(16):
            A(f"v_cvt_pk_bf16_f32 {v(96+i)}, {v(64+2*i)}, {v(65+2*i)}")
        for h in range(2):
            for sg in range(2):
                A(f"v_mfma_f32_16x16x32_bf16 {v(16+8*h+4*sg,4)}, {v(96+8*h+4*sg,4)}, {v(48+4*h,4)}, 0")
        for h in range(2):
            for sg in range(2):
                A(f"v_mfma_f32_16x16x32_bf16 {v(32+8*h+4*sg,4)}, {v(96+8*h+4*sg,4)}, {v(ONES,4)}, 0")
        for i in range(4):
            A(f"ds_write_b128 v2, {v(16+4*i,4)} offset:{i*1024}")
        for i in range(4):
            A(f"ds_write_b128 v3, {v(32+4*i,4)} offset:{4096 + i*64}")
        self.signal(VP, 8, CV_KV)
        self.ts("f:kvw")
        A(f"s_lshl_b32 {s(sT0)}, {s(sM)}, 10")
        A(f"s_add_u32 {s(sT0)}, {s(sT0)}, {L_KVR}")
        A(f"v_add_u32 v10, {s(sT0)}, v1")
        A("v_and_b32 v11, 3, v0")
        A("v_and_b32 v9, 48, v0")
        A("v_lshl_add_u32 v11, v11, 2, v9")
        A(f"s_lshl_b32 {s(sT0)}, {s(sM)}, 6")
        A(f"s_add_u32 {s(sT0)}, {s(sT0)}, {L_KVR + 4096}")
        A(f"v_add_u32 v11, {s(sT0)}, v11")
        self.lwait(VQ, 9, CV_KV, extra=[f"ds_read_b128 {v(64+4*i,4)}, v10 offset:{i*KVR_W}" for i in range(4)]
                   + [f"ds_read_b32 {v(80+i)}, v11 offset:{i*KVR_W}" for i in range(4)])
        A(f"v_add_u32 v124, {L_WQ}, v124")
        A(f"v_add_u32 v125, {L_WQ}, v125")
        A(f"v_mov_b32 v15, {v(VTAG)}")
        A("s_waitcnt lgkmcnt(4)")
        for i in range(2):
            A(f"v_pk_add_f32 {v(64+2*i,2)}, {v(64+2*i,2)}, {v(68+2*i,2)}")
            A(f"v_pk_add_f32 {v(72+2*i,2)}, {v(72+2*i,2)}, {v(76+2*i,2)}")
        for i in range(2):
            A(f"v_pk_add_f32 {v(64+2*i,2)}, {v(64+2*i,2)}, {v(72+2*i,2)}")
        A("s_waitcnt lgkmcnt(0)")
        A("v_pk_add_f32 v[80:81], v[80:81], v[82:83]")
        A("v_cvt_pk_bf16_f32 v12, v64, v65\nv_cvt_pk_bf16_f32 v13, v66, v67")
        A("v_add_f32 v14, v80, v81")
        A(f"buffer_store_dwordx4 v[12:15], v1, {s(S_WS,4)}, {s(sA11)} offen sc1")
        self.signal(VP, 9, CV_PUB)
        self.ts("kv_pub")
        self.c_addr_setup()
        self.lwait(VQ, 9, HV_Q, off=16, sleep=1)

        def rd_q(u):
            p = 64 + (u & 3) * 8
            return [f"ds_read_b64_tr_b16 {v(p + h*4 + hh*2, 2)}, {v(124+h)} offset:{u*2048 + hh*256}" for h in range(2) for hh in range(2)]
        self.emit(rd_q(0) + rd_q(1) + rd_q(2))
        for u in range(16):
            A(f"s_waitcnt lgkmcnt({min(8, 4*(15-u))})")
            p = 64 + (u & 3) * 8
            mf = []
            for t in range(2):
                for h in range(2):
                    d = 32 + (t * 2 + h) * 4
                    mf.append(f"v_mfma_f32_16x16x32_bf16 {v(d,4)}, {v(p+h*4,4)}, {a((u*2+t)*4,4)}, {v(d,4) if u else 0}")
            self.emit(weave(mf, rd_q(u + 3) if u + 3 < 16 else []))
        for i in range(8):
            A(f"v_cvt_pk_bf16_f32 {v(8+i)}, {v(32+2*i)}, {v(33+2*i)}")
        for t in range(2):
            for h in range(2):
                A(f"v_mfma_f32_16x16x16_bf16 {v(64+8*t+4*h,4)}, {v(PHIT+2*h,2)}, {v(8+4*t+2*h,2)}, 0")
        self.ts("q_gemm")
        A(f"s_mov_b32 {s(sCNT)}, {SPIN}")
        A.label("L_h1p")
        A(f"buffer_load_dwordx4 v[8:11], v48, {s(S_WS,4)}, {s(sB0)} offen sc1")
        A(f"s_sub_u32 {s(sCNT)}, {s(sCNT)}, 1")
        A("s_cbranch_scc1 L_h1d")
        A("s_waitcnt vmcnt(0)")
        A(f"v_cmp_ne_u32 vcc, {s(sTAG)}, v11")
        A("s_cbranch_vccnz L_h1p")
        A.label("L_h1d")
        A("s_waitcnt vmcnt(0)")
        A(f"v_lshlrev_b32 v12, 16, v8\nv_lshlrev_b32 v14, 16, v9\nv_and_b32 v13, {v(VMASK)}, v8\nv_and_b32 v15, {v(VMASK)}, v9")
        zs = ["v_mov_b32 v16, v10", "v_permlane32_swap_b32 v10, v16", "v_add_f32 v10, v10, v16", "v_mov_b32 v16, v10",
              "v_permlane16_swap_b32 v10, v16", "v_add_f32 v10, v10, v16",
              "v_add_f32_dpp v16, v10, v10 row_ror:4 row_mask:0xf bank_mask:0xf", "v_add_f32_dpp v10, v16, v16 row_ror:8 row_mask:0xf bank_mask:0xf",
              "v_mov_b32_dpp v16, v10 quad_perm:[0,2,0,2] row_mask:0xf bank_mask:0xf", "v_mov_b32_dpp v17, v10 quad_perm:[1,3,1,3] row_mask:0xf bank_mask:0xf",
              "v_cvt_pk_bf16_f32 v10, v16, v17"]
        ks = (self.red4("v_add_f32", 12, 14, 13, 15)
              + ["v_add_f32_dpp v13, v12, v12 row_ror:4 row_mask:0xf bank_mask:0xf", "v_add_f32_dpp v12, v13, v13 row_ror:8 row_mask:0xf bank_mask:0xf"]
              + self.bcast4(12, 14, 13, 15) + ["v_cvt_pk_bf16_f32 v8, v12, v13", "v_cvt_pk_bf16_f32 v9, v14, v15"])
        self.emit(zip_streams(ks, zs))
        A("s_mov_b64 exec, 15")
        A(f"buffer_store_dwordx4 v[8:11], v1, {s(S_WS,4)}, {s(sB1)} offen sc1")
        A("s_mov_b64 exec, -1")
        self.signal(VP, 18, CV_H1)
        self.emit(zip_streams(*[self.softmax2(64+8*t, 80+8*t, 96+8*t, 16+8*t, 32+8*t, L2) for t in range(2)]))
        A(f"s_mov_b32 {s(sCNT)}, {SPIN}")
        A("s_branch L_h2f")
        A.label("L_h2p")
        A(f"s_sleep {self.o.get('h2sleep', 2)}")
        A.label("L_h2f")
        for i in range(4):
            A(f"buffer_load_dwordx4 {v(16+4*i,4)}, v1, {s(S_WS,4)}, {s(sB2)} offen offset:{i*1024} sc1")
        A(f"s_sub_u32 {s(sCNT)}, {s(sCNT)}, 1")
        A("s_cbranch_scc1 L_h2d")
        A("s_waitcnt vmcnt(0)")
        A(f"v_xor_b32 v12, {v(VTAG)}, v19")
        for i in range(1, 4):
            A(f"v_bitop3_b32 v12, v12, {v(19+4*i)}, {v(VTAG)} bitop3:0xf6")
        A("v_cmp_ne_u32 vcc, 0, v12")
        A("s_cbranch_vccnz L_h2p")
        A.label("L_h2d")
        A("s_waitcnt vmcnt(0)")
        self.ts("kvf")
        self.signal(VP, 12, CV_O)
        for i in range(4):
            for e in range(2):
                A(f"v_mov_b32_dpp {v(48+2*i+e)}, {v(18+4*i)} quad_perm:[{e},{e},{e},{e}] row_mask:0xf bank_mask:0xf")
        for h in range(2):
            A(f"v_mov_b32 {v(18+8*h)}, {v(20+8*h)}\nv_mov_b32 {v(19+8*h)}, {v(21+8*h)}")
        for t in range(2):
            for h in range(2):
                A(f"v_mfma_f32_16x16x32_bf16 {v(80+8*t+4*h,4)}, {v(48+4*h,4)}, {v(32+8*t+4*h,4)}, 0")
        for t in range(2):
            for h in range(2):
                A(f"v_mfma_f32_16x16x32_bf16 {v(64+8*t+4*h,4)}, {v(16+8*h,4)}, {v(32+8*t+4*h,4)}, 0")
        for i in range(4):
            A(f"v_add_f32 {v(80+4*i)}, 0x358637bd, {v(80+4*i)}")
        for i in range(4):
            A(f"v_rcp_f32 {v(80+4*i)}, {v(80+4*i)}")
        for i in range(4):
            for h in range(2):
                A(f"v_pk_mul_f32 {v(64+4*i+2*h,2)}, {v(64+4*i+2*h,2)}, {v(80+4*i,2)} op_sel:[0,0] op_sel_hi:[1,0]")
        for i in range(8):
            A(f"v_cvt_pk_bf16_f32 {v(56+i)}, {v(64+2*i)}, {v(65+2*i)}")
        self.ts("f:o")

        def st(sfx):
            A(f"buffer_store_dwordx4 v[56:59], v1, {s(S_WS,4)}, {s(sA0)} offen{sfx}")
            A(f"buffer_store_dwordx4 v[60:63], v1, {s(S_WS,4)}, {s(sA1)} offen{sfx}")
        self.store_flag(st, sA2, 6, VTAG, data_sc1=bool(self.o.get('o_sc1', 0)), shadow=self.img_addr)
        self.ts("f:opub")

    def c_addr_setup(self):
        A = self.A
        A(f"s_lshl2_add_u32 {s(sT0)}, {s(sJ)}, {s(sM)}")
        A(f"s_lshl_b32 {s(sT1)}, {s(sRB)}, 6")
        A(f"s_lshl_b32 {s(sB0)}, {s(sT0)}, 14")
        A(f"s_add_u32 {s(sB0)}, {s(sB0)}, {s(sT1)}")
        A(f"s_add_u32 {s(sB0)}, {s(sB0)}, {WS_KVP:#x}")
        A(f"s_lshl_b32 {s(sB1)}, {s(sT0)}, 10")
        A(f"s_add_u32 {s(sB1)}, {s(sB1)}, {s(sT1)}")
        A(f"s_add_u32 {s(sB1)}, {s(sB1)}, {WS_KV2:#x}")
        A(f"s_lshl_b32 {s(sB2)}, {s(sJ)}, 12")
        A(f"s_add_u32 {s(sB2)}, {s(sB2)}, {WS_KV2:#x}")
        A("v_lshrrev_b32 v48, 2, v0")
        A("v_lshlrev_b32 v48, 10, v48")
        A("v_and_b32 v49, 3, v0")
        A("v_lshl_add_u32 v48, v49, 4, v48")
        A(f"s_lshl_b32 {s(sT0)}, {s(sM)}, 7")
        A(f"s_add_u32 {s(sT1)}, {s(sT0)}, {s(sJ)}")
        A(f"s_lshl_b32 {s(sA0)}, {s(sT1)}, 10")
        A(f"s_add_u32 {s(sA0)}, {s(sA0)}, {s(sG)}")
        A(f"s_add_u32 {s(sA0)}, {s(sA0)}, {G_O:#x}")
        A(f"s_add_u32 {s(sA1)}, {s(sA0)}, 16384")
        A(f"s_add_u32 {s(sT0)}, {s(sT0)}, {s(sG)}")
        A(f"s_add_u32 {s(sA9)}, {s(sT0)}, {G_FL2:#x}")
        A(f"s_lshl2_add_u32 {s(sT0)}, {s(sJ)}, {s(sT0)}")
        A(f"s_add_u32 {s(sA2)}, {s(sT0)}, {G_FLO:#x}")
        A(f"s_add_u32 {s(sA10)}, {s(sT0)}, {G_FL2:#x}")
        A(f"s_lshr_b32 {s(sT1)}, {s(sJ)}, 3")
        A(f"s_lshl2_add_u32 {s(sT1)}, {s(sT1)}, {s(sM)}")
        A(f"s_and_b32 {s(sT2)}, {s(sJ)}, 7")
        A(f"s_lshr_b32 {s(sEX)}, {s(sT1)}, 1")
        A(f"s_lshl_b32 {s(sT0)}, {s(sEX)}, 7")
        A(f"s_add_u32 {s(sT0)}, {s(sT0)}, {s(sG)}")
        A(f"s_add_u32 {s(sA3)}, {s(sT0)}, {G_FLO:#x}")
        A(f"s_add_u32 {s(sA11)}, {s(sT0)}, {G_FL2:#x}")
        A(f"s_and_b32 {s(sW)}, {s(sM)}, 1")
        A(f"s_lshl3_add_u32 {s(sT3)}, {s(sW)}, {s(sT2)}")
        A(f"s_lshl2_add_u32 {s(sT0)}, {s(sT3)}, {s(sT0)}")
        A(f"s_add_u32 {s(sA8)}, {s(sT0)}, {G_FL2:#x}")
        A(f"s_lshl_b32 {s(sT0)}, {s(sT1)}, 11")
        A(f"s_add_u32 {s(sT0)}, {s(sT0)}, {s(sG)}")
        A(f"s_add_u32 {s(sA6)}, {s(sT0)}, {G_ST:#x}")
        A(f"s_lshl_b32 {s(sT0)}, {s(sT2)}, 8")
        A(f"s_add_u32 {s(sA7)}, {s(sA6)}, {s(sT0)}")
        A(f"s_lshl_b32 {s(sEX)}, {s(sEX)}, 17")
        A(f"s_add_u32 {s(sEX)}, {s(sEX)}, {s(sG)}")
        A(f"s_lshl_b32 {s(sT0)}, {s(sT3)}, 11")
        A(f"s_add_u32 {s(sA5)}, {s(sEX)}, {s(sT0)}")
        A(f"s_add_u32 {s(sEX)}, {s(sEX)}, {G_O:#x}")
        A(f"s_lshl_b32 {s(sT0)}, {s(sW)}, 14")
        A(f"s_add_u32 {s(sA4)}, {s(sEX)}, {s(sT0)}")
        A(f"s_mul_i32 {s(sT0)}, {s(sW)}, 49152")
        A(f"s_add_u32 {s(sEX)}, {s(sEX)}, {s(sT0)}")
        if G_O != G_HH:
            A(f"s_sub_u32 {s(sEX)}, {s(sEX)}, {G_O - G_HH:#x}")
        self.rot_setup()
        self.slab_bases()

    def rm_voff(self, d):
        A = self.A
        A("v_lshrrev_b32 v2, 4, v0")
        A("v_and_b32 v3, 7, v0")
        A("v_xor_b32 v2, v2, v3")
        A("v_lshrrev_b32 v3, 3, v0")
        A("v_lshlrev_b32 v3, 10, v3")
        A(f"v_lshl_add_u32 {v(d)}, v2, 4, v3")
        A(f"v_xor_b32 {v(d+1)}, {8192 + 64}, {v(d)}")

    def rot_setup(self):
        A = self.A
        A(f"s_and_b32 {s(sRB)}, {s(sRB)}, 14")
        A(f"s_cmp_eq_u32 {s(sRB)}, 14")
        A(f"s_cselect_b32 {s(sEX+1)}, 0, {s(sRB)}")

    def slab_bases(self):
        A = self.A
        A("v_lshrrev_b32 v2, 2, v0")
        A("v_lshlrev_b32 v2, 7, v2")
        A("v_and_b32 v3, 3, v0")
        A("v_lshl_add_u32 v2, v3, 3, v2")
        A("v_bfe_u32 v3, v0, 3, 2")
        A("v_lshl_add_u32 v120, v3, 5, v2")
        for t in range(1, 4):
            A(f"v_xor_b32 {v(120+t)}, {32*t}, v120")

    def img_addr(self):
        A = self.A
        A("v_and_b32 v2, 15, v0")
        A("v_lshrrev_b32 v3, 1, v2")
        A("v_lshrrev_b32 v115, 5, v0")
        A("v_xor_b32 v3, v3, v115")
        A("v_lshlrev_b32 v3, 4, v3")
        A("v_lshl_add_u32 v2, v2, 7, v3")
        A("v_bfe_u32 v3, v0, 4, 1")
        A("v_lshl_add_u32 v2, v3, 3, v2")
        A(f"s_lshl_b32 {s(sT0)}, {s(sM)}, 11")
        A(f"s_add_u32 {s(sT0)}, {s(sT0)}, {L_X1}")
        A(f"v_add_u32 v116, {s(sT0)}, v2")
        for t in range(1, 4):
            A(f"v_xor_b32 {v(116+t)}, {32*t}, v116")
        A("v_and_b32 v115, 48, v0")
        A(f"v_add_u32 v115, {L_MT}, v115")
        for t in range(4):
            A(f"ds_read_b64 {v(24+2*t,2)}, {v(116+t)}")
        A("v_mov_b32 v114, 0xffff0000")
        A("s_waitcnt lgkmcnt(0)")
        for i in range(8):
            A(f"v_lshlrev_b32 {v(8+2*i)}, 16, {v(24+i)}")
            A(f"v_and_b32 {v(9+2*i)}, v114, {v(24+i)}")

    def g16(self, n, AF, ld, LA, rd, extra):
        A = self.A
        q = [("rd", i) for i in range(2) for _ in range(8)]
        for i in range(n):
            last = max(k for k, x in enumerate(q) if x == ("rd", i))
            A(f"s_waitcnt vmcnt({min(n-1, i+LA-1) - i}) lgkmcnt({len(q) - 1 - last})")
            q = q[last + 1:]
            mf = [f"v_mfma_f32_16x16x32_bf16 {v(32+4*T,4)}, {v(48 + (i%3)*16 + 4*T,4)}, {AF(i)}, {v(32+4*T,4) if i else 0}" for T in range(4)]
            hook, ex = extra(i, q)
            if hook:
                A(mf[0]); mf = mf[1:]
                hook()
            oth = []
            for x, tag in ex:
                oth.append(x)
                if tag:
                    q.append((tag, i))
            if i + 2 < n:
                oth += rd(i + 2)
                q += [("rd", i + 2)] * 8
            l = ld(i + LA) if i + LA < n else []
            oth = l[:1] + oth + l[1:]
            self.emit(weave(mf, oth, per=4))

    def check(self, vtmp, val):
        A = self.A
        Ls, Ld = A.uniq("L_cks"), A.uniq("L_ck")
        A(f"v_cmp_gt_u32 vcc, {val}, {v(vtmp)}")
        A(f"s_cbranch_vccnz {Ls}")
        A.label(Ld)
        self.outline(Ls, Ld, lambda: self.lwait(VQ, vtmp, val, off=16))

    def c_p2(self):
        A = self.A

        def rd(u):
            return [f"ds_read_b64_tr_b16 {v(48 + (u%3)*16 + T*4 + hh*2, 2)}, {v(120+T)} offset:{u*4096 + hh*2048}" for T in range(4) for hh in range(2)]

        def ld(i):
            o = [f"buffer_load_dwordx4 {a(4*i,4)}, v1, {s(S_WS,4)}, {s(sA4)} offen offset:{(i&3)*1024} sc1"]
            if (i & 3) == 3 and i < 15:
                o.append(f"s_add_u32 {s(sA4)}, {s(sA4)}, 4096")
            return o
        self.lwait(VQ, 24, HV_G, off=16)
        self.emit(rd(0) + rd(1))
        LA = self.o.get("la2", 8)
        self.poll(5, sA3, 24)
        for i in range(LA):
            self.emit(ld(i))
        self.ts("o_flags")

        def extra(i, q):
            if i + LA == 16:
                return None, [(f"v_mov_b32 v25, {CV_P2L}", None), (f"ds_write_b32 {v(VP)}, v25", "sig")]
            if i == 11:
                return None, [(f"ds_read_b32 v24, {v(VQ)} offset:48", "probe")]
            if i == 14:
                def hook():
                    Ls, Ld = A.uniq("L_cks"), A.uniq("L_ck")
                    A("v_cmp_gt_u32 vcc, 1, v24")
                    A(f"s_cbranch_vccnz {Ls}")
                    A.label(Ld)
                    self.outline(Ls, Ld, lambda: self.lwait(VQ, 24, 1, off=48))
                return hook, [(f"ds_read_b128 {v(96+4*t,4)}, v115 offset:{t*64}", "x") for t in range(4)] + \
                    [("v_mov_b32 v24, 0", None), ("v_mov_b32 v25, 0", None), ("v_mov_b32 v28, 0x3f803f80", None)]
            if i == 15:
                return None, [(f"v_mov_b32 v26, {CV_X2}", None), (f"ds_write_b32 {v(VP)}, v26", "sig")] + \
                    [(f"ds_read_b128 {v(64+16*vec+4*t,4)}, v115 offset:{(vec+1)*256 + t*64}", "x") for vec in range(2) for t in range(4)]
            return None, []
        self.g16(16, lambda i: a(4*i, 4), ld, LA, rd, extra)
        self.ts("p2_gemm")
        A(f"v_mov_b32 v26, {v(VTAG)}\nv_mov_b32 v27, {v(VTAG)}")
        A("s_waitcnt lgkmcnt(9)")
        for i in range(8):
            A(f"v_pk_fma_f32 {v(8+2*i,2)}, {v(32+2*i,2)}, {v(96+2*i,2)}, {v(8+2*i,2)}")
        for i in range(8):
            A(f"v_cvt_pk_bf16_f32 {v(48+i)}, {v(8+2*i)}, {v(9+2*i)}")
        for i in range(8):
            A(f"v_dot2c_f32_bf16 v24, v28, {v(48+i)}")
            A(f"v_dot2c_f32_bf16 v25, {v(48+i)}, {v(48+i)}")
        A("v_permlane32_swap_b32 v24, v25")
        A("v_add_f32 v24, v24, v25")
        A("v_mov_b32 v25, v24")
        A("v_permlane16_swap_b32 v24, v25")
        A("v_add_f32 v24, v24, v25")
        A("v_mov_b32 v25, v24")
        A("v_permlane32_swap_b32 v24, v25")
        A("s_mov_b64 exec, 0xffff")
        self.dual(lambda sfx: A(f"buffer_store_dwordx4 v[24:27], v1, {s(S_WS,4)}, {s(sA7)} offen{sfx}"))
        A("s_mov_b64 exec, -1")
        self.ts("f:st")
        for t in range(4):
            A(f"ds_write_b64 {v(116+t)}, {v(48+2*t,2)}")
        for i in range(8):
            A(f"v_lshlrev_b32 {v(8+2*i)}, 16, {v(48+i)}")
            A(f"v_and_b32 {v(9+2*i)}, {v(VMASK)}, {v(48+i)}")
        A("s_waitcnt lgkmcnt(0)")
        for i in range(8):
            A(f"v_pk_mul_f32 {v(8+2*i,2)}, {v(8+2*i,2)}, {v(80+2*i,2)}")
        A(f"s_mov_b32 {s(sCNT)}, {SPIN}")
        A.label("L_st")
        for i in range(2):
            A(f"buffer_load_dwordx4 {v(32+4*i,4)}, v1, {s(S_WS,4)}, {s(sA6)} offen offset:{i*1024} sc1")
        A(f"s_sub_u32 {s(sCNT)}, {s(sCNT)}, 1")
        A("s_cbranch_scc1 L_std")
        A("s_waitcnt vmcnt(0)")
        A(f"v_xor_b32 v28, {v(VTAG)}, v34")
        A(f"v_bitop3_b32 v28, v28, v38, {v(VTAG)} bitop3:0xf6")
        A("v_pk_add_f32 v[30:31], v[32:33], v[36:37]")
        A("v_cmp_ne_u32 vcc, 0, v28")
        A("s_cbranch_vccnz L_st")
        A.label("L_std")
        self.ts("f:stok")
        A("v_permlane32_swap_b32 v30, v31")
        A("v_add_f32 v30, v30, v31")
        A("v_mov_b32 v31, v30")
        A(f"v_mov_b32 v28, {CV_ST}")
        A("v_permlane16_swap_b32 v30, v31")
        A("v_add_f32 v30, v30, v31")
        A("v_mul_f32 v30, 0x3b000000, v30")
        A("v_mov_b32 v31, v30")
        A(f"ds_write_b32 {v(VP)}, v28")
        A("v_permlane32_swap_b32 v30, v31")
        A("v_fma_f32 v31, -v30, v30, v31")
        A("v_max_f32 v31, 0, v31")
        A("v_add_f32 v31, 0x3727c5ac, v31")
        A("v_rsq_f32 v31, v31")
        for i in range(8):
            A(f"v_pk_fma_f32 {v(8+2*i,2)}, {v(80+2*i,2)}, v[30:31], {v(8+2*i,2)} op_sel:[0,0,0] op_sel_hi:[1,0,1] neg_lo:[0,1,0] neg_hi:[0,1,0]")
        for i in range(8):
            A(f"v_pk_fma_f32 {v(8+2*i,2)}, {v(8+2*i,2)}, v[30:31], {v(64+2*i,2)} op_sel:[0,1,0] op_sel_hi:[1,1,1]")
        for i in range(8):
            A(f"v_cvt_pk_bf16_f32 {v(32+i)}, {v(8+2*i)}, {v(9+2*i)}")
        self.ts("f:h2")

        def st(sfx):
            A(f"buffer_store_dwordx4 v[32:35], v1, {s(S_WS,4)}, {s(sA5)} offen{sfx}")
            A(f"buffer_store_dwordx4 v[36:39], v1, {s(S_WS,4)}, {s(sA5)} offen offset:1024{sfx}")
        self.store_flag(st, sA8, 6, VTAG)
        self.ts("h2_pub")

    def c_p3(self):
        A = self.A
        A(f"s_lshl_b32 {s(sT1)}, {s(sM)}, 17")
        A(f"s_add_u32 {s(sT1)}, {s(sT1)}, {s(sG)}")
        A(f"v_add_u32 v3, {s(sT1)}, v1")
        A(f"s_lshl_b32 {s(sT0)}, {s(sRB)}, 10")
        A(f"s_or_b32 {s(sT3)}, {s(sT0)}, 16384")
        A(f"s_lshl_b32 {s(sT1)}, {s(sJ)}, 10")
        A(f"s_add_u32 {s(sT1)}, {s(sT1)}, {G_HH:#x}")
        A(f"s_add_u32 {s(sT2)}, {s(sT1)}, 49152")
        A(f"s_add_u32 {s(sA0)}, {s(sEX+1)}, {s(sW)}")
        A(f"s_lshl_b32 {s(sA0)}, {s(sA0)}, 10")
        A(f"s_mul_i32 {s(sA2)}, {s(sW)}, {2*49152}")
        A(f"s_sub_u32 {s(sA2)}, 49152, {s(sA2)}")
        A(f"s_cmp_eq_u32 {s(sJ)}, 15")
        A("s_cbranch_scc1 L_p3_idle")
        A("v_lshrrev_b32 v2, 2, v0")
        A("v_mul_u32_u24 v2, 192, v2")
        A("v_and_b32 v1, 3, v0")
        A("v_lshl_add_u32 v2, v1, 3, v2")
        A("v_and_b32 v1, 16, v0")
        A("v_lshl_add_u32 v2, v1, 1, v2")
        A(f"v_add_u32 v2, {slot_addr(0)}, v2")
        A("v_xor_b32 v6, 32, v2")
        LA = self.o.get("la3", 4)

        def ld(u):
            o = [f"buffer_load_dwordx4 {a((u*2+t)*4,4)}, v3, {s(S_WS,4)}, {s(sT3 if t else sT0)} offen offset:{(u&1)*1024} sc1" for t in range(2)]
            if u & 1 and u < 15:
                o += [f"s_add_u32 {s(sT0)}, {s(sT0)}, 2048", f"s_and_b32 {s(sT0)}, {s(sT0)}, 0x3fff", f"s_or_b32 {s(sT3)}, {s(sT0)}, 16384"]
            return o
        R = self.o.get("tail", 6)
        U0 = 16 - R
        T0 = 12 * U0
        SW = 4 * R
        seq = [(u, f, mt) for u in range(U0) for f in range(6) for mt in range(2)]
        seq += [(u, f, mt) for e in range(3) for u in range(U0, 16) for f in (2*e, 2*e+1) for mt in range(2)]
        cur = {"base": slot_addr(0)}
        NB, NPF = 6, 5
        q = []
        vq = self.vq = []
        self.issued = set()

        def rd(idx):
            u, f, mt = seq[idx]
            o = []
            if not (0 <= slot_addr(u) - cur["base"] <= 65536 - 12288):
                d = slot_addr(u) - cur["base"]
                cur["base"] = slot_addr(u)
                o = [f"v_add_u32 {v(r)}, {d}, {v(r)}" if d >= 0 else f"v_subrev_u32 {v(r)}, {-d}, {v(r)}" for r in (2, 6)]
            off = slot_addr(u) + mt * 6144 + (f & ~1) * 32 - cur["base"]
            b = 8 + (idx % NB) * 4
            return o, [f"ds_read_b64_tr_b16 {v(b+hh*2,2)}, {v(6 if f & 1 else 2)} offset:{off + hh*3072}" for hh in range(2)]

        def epi(e):
            o = []
            for t in range(2):
                g0 = 32 + (t * 6 + 2 * e) * 4
                u0 = 32 + ((2 + t) * 6 + 2 * e) * 4
                o += [f"v_max_f32 {v(g0+i)}, 0, {v(g0+i)}" for i in range(8)]
                o += [f"v_pk_mul_f32 {v(g0+2*i,2)}, {v(g0+2*i,2)}, {v(u0+2*i,2)}" for i in range(4)]
                o += [f"v_cvt_pk_bf16_f32 {v(g0+i)}, {v(g0+2*i)}, {v(g0+2*i+1)}" for i in range(4)]
                o += [(f"buffer_store_dwordx4 {v(g0,4)}, v3, {s(S_WS,4)}, {s(sT2 if t else sT1)} offen" + (" sc1" if self.o.get("hh_sc1", 7) >> e & 1 else "@SFX@"), ("st", e, t))]
            if e < 2:
                o += [f"s_add_u32 {s(sT1)}, {s(sT1)}, 16384", f"s_add_u32 {s(sT2)}, {s(sT2)}, 16384"]
            return o
        temps = [f"v_mov_b32 v80, {s(sTAG)}", "v_mov_b32 v81, 0", "v_and_b32 v82, 15, v0", "v_min_u32 v82, 14, v82", "v_lshlrev_b32 v82, 2, v82",
                 f"v_lshl_add_u32 v84, v0, 4, {s(sEX)}", f"v_add_u32 v85, {s(sA2)}, v84"]

        def put(lst):
            for x in lst:
                if isinstance(x, tuple):
                    self.emit([x[0]]); vq.append(x[1]); self.issued.add(x[1])
                else:
                    A(x)
        self.put = put
        self.first_check_before_e = 0
        for i in range(NPF):
            self.emit(rd(i)[1]); q += [("rd", i)] * 2
        self.poll(5, sA9, 32)

        def ldq(u):
            l = ld(u)
            return [(l[0], ("a", u, 0)), (l[1], ("a", u, 1))] + l[2:]
        for u in range(LA):
            put(ldq(u))
        nld = LA
        if self.o.get("xp3", 0) == 2:
            A("s_waitcnt vmcnt(0)")
        self.signal(VP, 1, CV_E)
        q.append(("sig", -1))
        self.ts("h2_flags")
        spare, bulk, seen = [], [], set()
        F0 = T0 + SW + self.o.get("f0", SW + 2)
        F1 = T0 + 2 * SW + self.o.get("f1", SW + 9)
        G0 = T0 + 2 * SW + self.o.get("g0", SW - 1)
        BRATE = self.o.get("br", 4)
        CH = self.o.get("ch", 2)
        checked = 0
        for idx, (u, f, mt) in enumerate(seq):
            last = max(i for i, x in enumerate(q) if x == ("rd", idx))
            w = f"lgkmcnt({len(q) - 1 - last})"
            del q[:last + 1]
            if u not in seen:
                seen.add(u)
                w = self.vwait(("a", u, 1)) + " " + w
            if idx % 12 == 0 and idx <= T0:
                if u > 0:
                    spare += [(f"v_mov_b32 v1, {16 + u - 1}", None), (f"ds_write_b32 {v(VP)}, v1", "sig")]
                want = min(16, u + LA + 1 + max(0, 2 * (u + LA + 1 - U0)))
                while nld < want:
                    spare += [(x, None) for x in ldq(nld)]
                    nld += 1
            if idx >= T0 + 2 * SW + 4 and (idx - T0) % 4 == 0:
                spare += [(f"v_mov_b32 v1, {16 + u - 1}", None), (f"ds_write_b32 {v(VP)}, v1", "sig")]
            if idx > T0 + SW and (idx - T0) % SW == 1:
                assert not bulk
                e = (idx - T0) // SW - 1
                bulk = epi(e) + (temps if e == 0 else [])
            if idx in (72, T0, T0 + SW, T0 + 2 * SW, len(seq) - 1):
                self.ts(f"g:i{idx}")
            A(f"s_waitcnt {w}")
            b = 8 + (idx % NB) * 4
            mf = []
            for t in range(2):
                d = 32 + ((mt * 2 + t) * 6 + f) * 4
                mf.append(f"v_mfma_f32_16x16x32_bf16 {v(d,4)}, {v(b,4)}, {a((u*2+t)*4,4)}, {v(d,4) if u else 0}")
            A(mf[0])
            more = idx + NPF < len(seq)
            nu = seq[idx + NPF][0] if more else 0
            used = False
            if nu > checked:
                assert not any(x[0] == "probe" for x in q), idx
                checked = nu if nu < U0 else min(15, nu + CH - 1)
                if not self.o.get("xp3", 0):
                    self.check(5, 16 + checked)
                used = True
            if idx + NPF + 7 < len(seq) and seq[idx + NPF + 7][0] > checked and seq[idx + NPF + 6][0] <= checked:
                A(f"ds_read_b32 v5, {v(VQ)} offset:16")
                q.append(("probe", u))
                used = True
            for _ in range((0 if used else 1) + (1 if len(spare) > 11 - idx % 12 and idx < T0 + SW else 0)):
                if spare:
                    x, tag = spare.pop(0)
                    put([x])
                    if tag:
                        q.append((tag, u))
            put(bulk[:BRATE // 2])
            rb_, r = rd(idx + NPF) if more else ([], [])
            self.emit(rb_ + r[:1])
            A(mf[1])
            self.emit(r[1:])
            put(bulk[BRATE // 2:BRATE])
            bulk = bulk[BRATE:]
            q += [("rd", idx + NPF)] * len(r)
            for e, F in ((0, F0), (1, F1)):
                if idx == F:
                    A(f"s_waitcnt {self.vwait(('st', e, 1))}")
                    self.flag_only(sA10, (512, 576)[e], 81, 80)
            if idx == G0:
                put([(f"buffer_load_dword v83, v82, {s(S_WS,4)}, {s(sA11)} offen offset:512 sc1", ("gp", 0))])
        assert not bulk and not spare
        self.f1_done = F1 < len(seq)
        self.signal(VP, 1, 31)
        A.label("L_p3_join")
        self.ts("p3_gemm")

        def idle():
            self.signal(VP, 1, 31)
            self.emit(temps)
            A(f"s_add_u32 {s(sT1)}, {s(sT1)}, 32768\ns_add_u32 {s(sT2)}, {s(sT2)}, 32768")
            self.lwait(VQ, 1, 36, off=16, sleep=8)
            self.poll(82, sA11, 83, sleep=8, off=512)
        self.outline("L_p3_idle", "L_p3_join", idle)
        self.epi2 = epi(2)

    def vwait(self, tag):
        vq = self.vq
        assert tag in self.issued, tag
        k = vq.index(tag) if tag in vq else -1
        n = len(vq) - 1 - k
        del vq[:k + 1]
        return f"vmcnt({n})"

    def flag_only(self, sflag, off, vz, vt):
        A = self.A
        A("s_mov_b64 exec, 1")
        self.dual(lambda sfx: A(f"buffer_store_dword {v(vt)}, {v(vz)}, {s(S_WS,4)}, {s(sflag)} offen offset:{off}{sfx}"))
        A("s_mov_b64 exec, -1")
        self.vq.append(("fl", off))

    def p4_setup(self):
        A = self.A
        A("v_lshlrev_b32 v1, 4, v0")
        A("v_mov_b32 v5, v80\nv_mov_b32 v6, 0\nv_min_u32 v124, 52, v82\nv_mov_b32 v126, v84\nv_mov_b32 v127, v85")
        self.slab_bases()
        A(f"s_lshl_b32 {s(sT0)}, {s(sW)}, 12")
        for r in range(120, 124):
            A(f"v_add_u32 {v(r)}, {s(sT0)}, {v(r)}")

    def p4_late(self):
        main = self.A
        lines = main.lines
        main.lines = []
        self.img_addr()
        self.rm_voff(112)
        main(f"v_add_u32 v125, {s(sT0)}, v1")
        main(f"s_xor_b32 {s(sT0)}, {s(sM)}, 1")
        main(f"s_lshl_b32 {s(sT0)}, {s(sT0)}, 11")
        main(f"s_add_u32 {s(sT0)}, {s(sT0)}, {L_X1}")
        main(f"v_add_u32 v26, {s(sT0)}, v1")
        main(f"v_subrev_u32 v27, {L_X1 - 28672}, v26")
        main(f"v_subrev_u32 v28, {L_X1 - 28672}, v125")
        main(f"v_xor_b32 v29, 4, {v(VP)}")
        out = main.lines
        main.lines = lines
        return out

    def c_p4(self):
        A = self.A
        put, vq = self.put, self.vq
        AF = lambda p, t: a(8 * (p % 16) + 4 * t, 4)
        LA = self.o.get("la4", 4)
        n = 22
        VA = {"r": 84}

        def ld(p):
            o = [(f"buffer_load_dwordx4 {AF(p, t)}, {v(VA['r']+t)}, {s(S_WS,4)}, {s(sA0)} offen sc1", ("h", p, t)) for t in range(2)]
            if p < 20:
                e = p // 7
                o += [f"s_add_u32 {s(sA0)}, {s(sA0)}, 2048", f"s_cmp_ge_u32 {s(sA0)}, {e*16384 + 14*1024}", f"s_cselect_b32 {s(sT3)}, {14*1024}, 0",
                      f"s_sub_u32 {s(sA0)}, {s(sA0)}, {s(sT3)}"]
                if p % 7 == 6:
                    o += [f"s_add_u32 {s(sA0)}, {s(sA0)}, 16384"]
            elif p == 20:
                o += [f"s_mov_b32 {s(sA0)}, {14*1024}"]
            return o

        def gcheck(vp, voff, off):
            Ls, Ld = A.uniq("L_gs"), A.uniq("L_g")
            A(f"v_cmp_ne_u32 vcc, {s(sTAG)}, {v(vp)}")
            A(f"s_cbranch_vccnz {Ls}")
            A.label(Ld)
            self.outline(Ls, Ld, lambda: self.poll(voff, sA11, vp, off=off))
        cur = {"base": 0}

        def rd(p):
            o = []
            off = wd_addr(2 * p)
            if not (0 <= off - cur["base"] < 61440):
                d = off - cur["base"]
                for r in range(120, 124):
                    o.append(f"v_add_u32 {v(r)}, {d}, {v(r)}" if d >= 0 else f"v_subrev_u32 {v(r)}, {-d}, {v(r)}")
                cur["base"] = off
            return o + [f"ds_read_b64_tr_b16 {v(64 + (p%3)*16 + T*4 + hh*2, 2)}, {v(120+T)} offset:{off - cur['base'] + hh*2048}" for T in range(4) for hh in range(2)]
        EF = self.o.get("ef", 0)
        stores = [x for x in self.epi2 if isinstance(x, tuple)]
        put(self.epi2 if EF else [x for x in self.epi2 if not isinstance(x, tuple)])
        if not EF:
            A("v_mov_b32 v113, v3")
            stores = [(x[0].replace(", v3,", ", v113,"), x[1]) for x in stores]
            A("v_mov_b32 v96, v72\nv_mov_b32 v97, v73\nv_mov_b32 v98, v74\nv_mov_b32 v99, v75")
            stores[1] = (stores[1][0].replace("v[72:75]", "v[96:99]"), stores[1][1])
        self.p4_setup()
        VA["r"] = 126
        late = self.p4_late()
        k = max(i for i, x in enumerate(late) if x.startswith("ds_read"))
        self.emit(late[:k + 1])
        late = [x for x in late[k + 1:] if not x.startswith("s_waitcnt")]
        self.lwait(VQ, 125, 33, off=16)
        A(f"s_waitcnt {self.vwait(('gp', 0))}")
        if not self.f1_done:
            assert ("st", 1, 1) not in vq
            self.flag_only(sA10, 576, 6, 5)
        gcheck(83, 82, 512)
        for p in range(LA):
            put(ld(p))
        if not EF:
            put(stores)
        self.ts("hh_flags")
        self.emit(rd(0) + rd(1))
        k = max(i for i, x in enumerate(late) if ", v114, " in x)
        self.emit(late[:k + 1])
        late = late[k + 1:]
        A("v_mov_b32 v24, v125")
        q = [("rd", i) for i in range(2) for _ in range(8)]
        F2 = self.o.get("f2", 0 if EF else LA)
        PD = self.o.get("pd", 2)
        for p in range(n):
            if p == n - 1:
                A(f"s_cmp_lg_u32 {s(sW)}, 0")
                A("s_cbranch_scc1 L_p4_skip")
            if p in (0, 7, 14):
                self.ts(f"g:p{p}")
            need = [("h", p, 1)] + ([("st", 2, 1)] if p == F2 else []) + ([("gp", (p + LA) // 7)] if p + LA in (7, 14) else [])
            assert all(x in self.issued for x in need), need
            tgt = max(need, key=lambda x: vq.index(x) if x in vq else -1)
            last = max(k for k, x in enumerate(q) if x == ("rd", p))
            A(f"s_waitcnt {self.vwait(tgt)} lgkmcnt({len(q) - 1 - last})")
            q = q[last + 1:]
            mf = [f"v_mfma_f32_16x16x32_bf16 {v(32+16*t+4*T,4)}, {v(64 + (p%3)*16 + 4*T,4)}, {AF(p, t)}, {v(32+16*t+4*T,4) if p else 0}"
                  for t in (1, 0) for T in range(4)]
            oth = []
            A(mf[0]); mf = mf[1:]
            if p == F2:
                self.flag_only(sA10, 64, 6, 5)
            if p + LA in (7, 14):
                gcheck(30, 124, {7: 576, 14: 64}[p + LA])
            if (p + 2) % 3 == 0 and p + 2 < n:
                assert not any(x[0] == "probe" for x in q)
                self.check(24, 32 + min(14, 2 * ((p + 2) // 3) + 1))
            if p + LA + PD in (7, 14):
                oth.append((f"buffer_load_dword v30, v124, {s(S_WS,4)}, {s(sA11)} offen offset:{ {7: 576, 14: 64}[p + LA + PD]} sc1", ("gp", (p + LA + PD) // 7)))
            if p in (1, 2, 4):
                oth += [f"v_mov_b32 v25, {32 + {1: 0, 2: 1, 4: 2}[p]}", f"ds_write_b32 {v(VP)}, v25"]
                q.append(("sig", p))
            if p % 3 == 2 and p + 4 < n:
                oth += [f"ds_read_b32 v24, {v(VQ)} offset:16"]
                q.append(("probe", p))
            if p + 2 < n:
                oth += rd(p + 2)
                q += [("rd", p + 2)] * 8
            if p == n - 2:
                oth += [f"ds_read_b128 {v(80+4*t,4)}, v115 offset:{3*256 + t*64}" for t in range(4)]
                q += [("x", p)] * 4
            l = ld(p + LA) if p + LA < n else []
            if p >= 17:
                oth += late[:5]
                late = late[5:]
            put(weave(mf, l[:2] + oth + l[2:], per=2))
        assert not late
        A.label("L_p4_skip")
        self.ts("p4_gemm")
        for i in range(4):
            A(f"ds_write_b128 {v(26 if i < 2 else 27)}, {v(48+4*i,4)} offset:{(i&1)*1024}")
        self.signal(VP, 24, 60)
        self.lwait(29, 24, 60, extra=[f"ds_read_b128 {v(96+4*i,4)}, {v(125 if i < 2 else 28)} offset:{(i&1)*1024}" for i in range(4)])
        for k in range(4):
            A(f"s_waitcnt lgkmcnt({3-k})")
            for i in range(2*k, 2*k+2):
                A(f"v_pk_add_f32 {v(32+2*i,2)}, {v(32+2*i,2)}, {v(96+2*i,2)}")
            for i in range(2*k, 2*k+2):
                A(f"v_pk_fma_f32 {v(8+2*i,2)}, {v(32+2*i,2)}, {v(80+2*i,2)}, {v(8+2*i,2)}")
        for t in range(4):
            for i in range(2*t, 2*t+2):
                A(f"v_cvt_pk_bf16_f32 {v(24+i)}, {v(8+2*i)}, {v(9+2*i)}")
            A(f"ds_write_b64 {v(116+t)}, {v(24+2*t,2)}")
        A("ds_read_b128 v[32:35], v125")
        A("ds_read_b128 v[36:39], v125 offset:1024")
        A("s_waitcnt lgkmcnt(1)")
        A(f"buffer_store_dwordx4 v[32:35], v112, {s(S_OUT,4)}, s3 offen{self.osfx}")
        A("s_waitcnt lgkmcnt(0)")
        A(f"buffer_store_dwordx4 v[36:39], v113, {s(S_OUT,4)}, s3 offen{self.osfx}")
        if self.diag or self.leak:
            A("s_waitcnt vmcnt(0)")
        self.ts("end")
        if self.diag:
            A(f"s_mov_b32 {s(sW)}, {s(sM)}")
        A("s_branch L_fin")

    def gu_unit(self, thr=None):
        A = self.A
        A(f"s_mul_i32 {s(sT0)}, {s(sRB)}, {32*2752}")
        A(f"s_add_u32 {s(sT1)}, {s(sA7)}, {s(sA1)}")
        A(f"s_add_u32 {s(sT0)}, {s(sT0)}, {s(sA0)}")
        fill = [f"s_add_u32 {s(sRB)}, {s(sRB)}, 1", f"s_and_b32 {s(sRB)}, {s(sRB)}, 15", f"s_add_u32 {s(sA7)}, {s(sA7)}, 12288",
                f"s_add_u32 {s(sT0)}, {s(sT0)}, {16*2752}", "s_nop 0", "s_nop 0"]
        for i in range(6):
            A(f"s_add_u32 m0, {s(sT1)}, {i*1024}")
            A(fill[i])
            if thr is not None:
                A(f"s_waitcnt vmcnt({thr})")
            A(f"buffer_load_dwordx4 {v(48+i%3)}, {s(S_GU,4)}, {s(sT0)} offen lds")
        A(f"s_cmp_lg_u32 {s(sA7)}, {12*12288}")
        A(f"s_cselect_b32 {s(sA7)}, {s(sA7)}, 0")

    def wd_next(self):
        A = self.A
        A(f"s_add_u32 {s(sA4)}, {s(sA4)}, 98304")
        A(f"s_cmp_lg_u32 {s(sA4)}, {14*98304}")
        A(f"s_cselect_b32 {s(sA4)}, {s(sA4)}, 0")
        A(f"s_cmp_eq_u32 {s(sA4)}, {s(sA5)}")
        A(f"s_cselect_b32 {s(sT0)}, 32768, 0")
        A(f"v_add_u32 v51, {s(sT0)}, v51")
        A(f"v_add_u32 v47, {s(sT0)}, v47")

    def wd_unit(self, thr=None):
        A = self.A
        A(f"s_add_u32 {s(sT1)}, {s(sA7)}, {s(sA3)}")
        for i in range(3):
            A(f"s_add_u32 m0, {s(sT1)}, {i*4096}")
            if thr is not None:
                A(f"s_waitcnt vmcnt({thr})")
            A(f"buffer_load_dwordx4 v51, {s(S_WD,4)}, {s(sA4)} offen lds")
            A(f"s_add_u32 m0, {s(sT1)}, {i*4096 + 2048}")
            A(f"buffer_load_dwordx4 v47, {s(S_WD,4)}, {s(sA4)} offen lds")
            self.wd_next()
        A(f"s_add_u32 {s(sA7)}, {s(sA7)}, 12288")
        A(f"s_cmp_lg_u32 {s(sA7)}, {12*12288}")
        A(f"s_cselect_b32 {s(sA7)}, {s(sA7)}, 0")

    def w_dma_rot(self, mats):
        A = self.A
        L, Ld = A.uniq("L_wd"), A.uniq("L_wdd")
        A.label(L)
        A(f"s_sub_u32 {s(sCNT)}, {s(sCNT)}, 1")
        A(f"s_cbranch_scc1 {Ld}")
        A(f"s_mul_i32 {s(sT0)}, {s(sT2)}, {4*49152}")
        A(f"s_lshl_b32 {s(sT1)}, {s(sT2)}, 12")
        A(f"s_add_u32 {s(sT0)}, {s(sT0)}, {s(sA9)}")
        A(f"s_add_u32 {s(sT1)}, {s(sT1)}, {s(sA3)}")
        A(f"s_add_u32 {s(sT2)}, {s(sT2)}, 1")
        for vo, off, lbase in mats:
            A(f"s_add_u32 m0, {s(sT1)}, {lbase - off}")
            A(f"s_and_b32 {s(sT2)}, {s(sT2)}, 7")
            A(f"buffer_load_dwordx4 {v(vo)}, {s(S_W,4)}, {s(sT0)} offen offset:{off} lds")
        A(f"s_branch {L}")
        A.label(Ld)

    def scalar_segs(self, segs, hook=None, stamp=True):
        A = self.A
        P, X, SL, CN, IX, BO, AD, DS, GP = 24, 25, sA2, 26, 27, 6, 4, 44, 100
        A(f"s_and_b32 {s(P)}, {s(sM)}, 1")
        A(f"s_and_b32 {s(X)}, s2, 7")

        def seg(srd, count, start, wrap, step, stride, base_code, offs, first_hook=None):
            L = A.uniq("L_pw")
            A(base_code)
            A(start)
            A(f"s_mov_b32 {s(CN)}, {count}")
            A.label(L)
            A(f"s_sub_u32 {s(sT0)}, {s(IX)}, {wrap}")
            A(f"s_cselect_b32 {s(IX)}, {s(IX)}, {s(sT0)}")
            A(f"s_mul_i32 {s(sT0)}, {s(IX)}, {stride}")
            A(f"s_add_u32 {s(sT0)}, {s(sT0)}, {s(BO)}")
            A(f"s_add_u32 {s(AD)}, {s(srd)}, {s(sT0)}")
            A(f"s_addc_u32 {s(AD+1)}, {s(srd+1)}, 0")
            for i, o in enumerate(offs):
                A(f"s_load_dword {s(DS + (i & 3))}, {s(AD,2)}, {o}")
            if first_hook:
                first_hook()
            A(f"s_add_u32 {s(IX)}, {s(IX)}, {step}")
            A(f"s_sub_u32 {s(CN)}, {s(CN)}, 1")
            A(f"s_cmp_lg_u32 {s(CN)}, 0")
            A(f"s_cbranch_scc1 {L}")
        lin = lambda n: [i * 64 for i in range(n)]
        zero = f"s_mov_b32 {s(IX)}, 0"
        for sg in segs:
            if sg == "q":
                seg(S_W, 8, f"s_mov_b32 {s(IX)}, {s(X)}", 8, 1, 3072,
                    f"s_lshl1_add_u32 {s(BO)}, {s(SL)}, {s(P)}\ns_mul_i32 {s(BO)}, {s(BO)}, {8*3072}", lin(16), hook)
            elif sg == "o":
                seg(S_WO, 8, f"s_mov_b32 {s(IX)}, {s(X)}", 8, 1, 1024,
                    f"s_lshl1_add_u32 {s(BO)}, {s(SL)}, {s(P)}\ns_lshl_b32 {s(BO)}, {s(BO)}, 13", lin(16), hook)
            elif sg[0] == "g":
                u0, u1 = map(int, sg[1:].split("-"))
                A(f"s_cmp_lg_u32 {s(P)}, 0")
                A(f"s_cselect_b64 {s(GP,2)}, {s(S_WU,2)}, {s(S_WG,2)}")
                seg(GP, u1 - u0, f"s_lshl1_add_u32 {s(IX)}, {s(X)}, {u0}", 16, 1, 32*2752,
                    f"s_mul_i32 {s(BO)}, {s(SL)}, 2752", lin(43), hook)
            elif sg[0] == "d":
                seg(S_WD, int(sg[1:]), f"s_mul_i32 {s(IX)}, {s(X)}, 6\ns_add_u32 {s(IX)}, {s(IX)}, {s(P)}", 43, 2, 32768,
                    f"s_lshl_b32 {s(BO)}, {s(SL)}, 10", lin(16), hook)
            elif sg[0] == "m":
                srd, stride, n = {"q": (S_W, 3072, 16), "o": (S_WO, 1024, 16), "g": (S_WG, 2752, 43), "u": (S_WU, 2752, 43), "d": (S_WD, 2752, 43)}[sg[1]]
                seg(srd, 1, zero, 64, 1, 0, f"s_lshl1_add_u32 {s(BO)}, s2, {s(P)}\ns_mul_i32 {s(BO)}, {s(BO)}, {stride}", lin(n), hook)
            elif sg == "p":
                seg(S_WS, 4, zero, 64, 1, RS,
                    f"s_lshl4_add_u32 {s(BO)}, {s(P)}, {s(sJ)}\ns_lshl_b32 {s(BO)}, {s(BO)}, 10\ns_add_u32 {s(BO)}, {s(BO)}, {s(sG)}\ns_add_u32 {s(BO)}, {s(BO)}, {G_O:#x}", lin(16), hook)
                seg(S_WS, 1, zero, 64, 1, 0,
                    f"s_lshl1_add_u32 {s(BO)}, {s(sJ)}, {s(P)}\ns_lshl_b32 {s(BO)}, {s(BO)}, 9\ns_add_u32 {s(BO)}, {s(BO)}, {s(sG)}\ns_add_u32 {s(BO)}, {s(BO)}, {G_ST:#x}", lin(8))
            elif sg == "h":
                seg(S_WS, 4, zero, 64, 1, RS,
                    f"s_lshl1_add_u32 {s(BO)}, {s(sJ)}, {s(P)}\ns_lshl_b32 {s(BO)}, {s(BO)}, 11\ns_add_u32 {s(BO)}, {s(BO)}, {s(sG)}\ns_add_u32 {s(BO)}, {s(BO)}, {G_HH + 32768:#x}", lin(32), hook)
            elif sg == "l":
                seg(S_WM, 4, zero, 64, 1, 8*6144,
                    f"s_lshl1_add_u32 {s(BO)}, {s(X)}, {s(P)}\ns_mul_i32 {s(BO)}, {s(BO)}, {32*6144}\ns_lshl_b32 {s(sT0)}, {s(SL)}, 7\ns_add_u32 {s(BO)}, {s(BO)}, {s(sT0)}\ns_add_u32 {s(BO)}, {s(BO)}, 2048",
                    [r * 6144 + h * 64 for r in range(8) for h in range(2)], hook)
            else:
                raise ValueError(sg)
            hook = None
            if stamp:
                self.ts("p" + sg)
        if hook:
            hook()

    def pwave(self):
        A = self.A
        A.label("L_pw")
        A("s_waitcnt lgkmcnt(0)")

        def landed():
            A("s_waitcnt vmcnt(0)")
            A("v_mov_b32 v12, 0x100")
            A(f"ds_write2_b32 {v(VP)}, v12, v12 offset0:0 offset1:8")
        self.scalar_segs(self.o_segs, landed)
        A("s_waitcnt lgkmcnt(0)")
        A("s_branch L_fin")

    def helper(self):
        A = self.A
        A.label("L_helper")
        self.srd_consts([S_W, S_PHI])
        A("v_lshrrev_b32 v12, 2, v0")
        A("v_mul_u32_u24 v12, 3072, v12")
        A("v_lshrrev_b32 v5, 4, v0")
        A("v_and_b32 v5, 2, v5")
        A("v_and_b32 v45, 3, v0")
        A("v_xor_b32 v5, v5, v45")
        A("v_lshl_add_u32 v45, v5, 4, v12")
        A(f"s_lshl_b32 {s(sA3)}, {s(sM)}, 10")
        A(f"s_mul_i32 {s(sA9)}, {s(sM)}, 49152")
        A(f"s_lshl_b32 {s(sT0)}, {s(sJ)}, 6")
        A(f"s_add_u32 {s(sA9)}, {s(sA9)}, {s(sT0)}")
        A(f"s_add_u32 {s(sA9)}, {s(sA9)}, 1024")
        A(f"s_lshr_b32 {s(sT2)}, {s(sRB)}, 1")
        A("s_waitcnt lgkmcnt(0)")
        self.wsoff()
        self.bar()
        A("v_lshlrev_b32 v2, 7, v0")
        A(f"s_cmp_eq_u32 {s(sM)}, 1")
        A("s_cbranch_scc1 L_h1")
        A(f"s_cmp_eq_u32 {s(sM)}, 2")
        A("s_cbranch_scc1 L_h2")
        A(f"s_cmp_eq_u32 {s(sM)}, 3")
        A("s_cbranch_scc1 L_h4")
        A("s_branch L_h3")
        A.label("L_h1")
        if self.o.get("cpf", 1):
            A(f"s_getpc_b64 {s(sEX,2)}")
            A.label("L_pc")
            A(f"s_sub_u32 {s(sEX)}, {s(sEX)}, L_pc-{KNAME}")
            A(f"s_subb_u32 {s(sEX+1)}, {s(sEX+1)}, 0")
            if self.o.get("cpf", 1) == 1:
                A(f"s_lshr_b32 {s(sT0)}, s2, 3")
                A(f"s_lshl_b32 {s(sT0)}, {s(sT0)}, 10")
                A(f"v_add_u32 v3, {s(sT0)}, v2")
                A(f"v_min_u32 v3, L_end-{KNAME}, v3")
                A("s_mov_b64 exec, 0xff")
                A(f"global_load_dword v10, v3, {s(sEX,2)}")
                A("s_mov_b64 exec, -1")
        A("s_branch L_h3")
        A.label("L_h2")
        A(f"s_lshl_b32 {s(sT0)}, s2, 8")
        A(f"s_add_u32 {s(sT0)}, {s(sT0)}, {WS_KV2:#x}")
        A(f"v_add_u32 v3, {s(sT0)}, v2")
        A(f"s_lshl_b32 {s(sT0)}, {s(sJ)}, 7")
        A(f"s_add_u32 {s(sT0)}, {s(sT0)}, {s(sG)}")
        A(f"s_add_u32 {s(sT0)}, {s(sT0)}, {G_FL:#x}")
        A(f"v_writelane_b32 v3, {s(sT0)}, 2")
        A(f"s_lshl_b32 {s(sT0)}, s2, 7")
        A(f"s_add_u32 {s(sT0)}, {s(sT0)}, {WS_MODU:#x}")
        A(f"v_writelane_b32 v3, {s(sT0)}, 3")
        A("s_waitcnt lgkmcnt(0)")
        A(f"s_mov_b64 exec, {self.o.get('misc', 15)}")
        A(f"buffer_load_dword v10, v3, {s(S_WS,4)}, 0 offen")
        A("s_mov_b64 exec, -1")
        A("s_branch L_h3")
        A.label("L_h4")
        A(f"s_mov_b32 m0, {L_PHI}")
        A(f"s_lshl_b32 {s(sT0)}, {s(sJ)}, 10")
        A(f"buffer_load_dwordx4 v1, {s(S_PHI,4)}, {s(sT0)} offen lds")
        A.label("L_h3")
        A(f"buffer_load_dword {v(VTAG)}, v6, {s(S_WS,4)}, 0 offen sc1")
        NB1 = self.o.get("nb1", 3)
        KV = [(45, 0, L_WK), (45, 1024, L_WV)]
        for r, off in ((S_WO, 24), (S_WG, 40), (S_WU, 48), (S_WD, 56)):
            A(f"s_load_dwordx2 {s(r,2)}, s[0:1], {off}")
        TLB = self.o.get("tlb", 0)
        if TLB:
            A(f"s_cmp_lg_u32 {s(sM)}, 0")
            A("s_cbranch_scc1 L_tlb")
            A(f"s_load_dwordx2 {s(S_OUT,2)}, s[0:1], 80")
            A(f"s_lshl_b32 {s(sT0)}, s2, 11")
            A(f"s_add_u32 {s(sT1)}, {s(sT0)}, {2<<20}")
            A("s_waitcnt lgkmcnt(0)")
            if TLB == 1:
                for r in (S_WO, S_WG, S_WU, S_WD, S_OUT, S_WM):
                    A(f"s_load_dword s7, {s(r,2)}, {s(sT0)}")
                A(f"s_load_dword s7, {s(S_WM,2)}, {s(sT1)}")
            else:
                A(f"v_mov_b32 v12, {s(sT0)}\nv_mov_b32 v13, {s(sT1)}")
                A("s_mov_b64 exec, 1")
                for r in (S_WO, S_WG, S_WU, S_WD, S_OUT, S_WM):
                    A(f"global_load_dword v10, v12, {s(r,2)}")
                A(f"global_load_dword v10, v13, {s(S_WM,2)}")
                A("s_mov_b64 exec, -1")
            A.label("L_tlb")
        A(f"s_lshr_b32 {s(sA2)}, s2, 3")
        A(f"s_lshl2_add_u32 {s(sT0)}, {s(sA2)}, {s(sM)}")
        A(f"s_mul_i32 {s(sA5)}, {s(sT0)}, {4*3072}")
        A("v_lshrrev_b32 v12, 4, v0")
        A("v_mul_u32_u24 v12, 3072, v12")
        A("v_and_b32 v13, 15, v0")
        A("v_lshl_add_u32 v44, v13, 7, v12")
        if self.o.get("wshare", 1) == 1:
            A(f"buffer_load_dword v10, v44, {s(S_W,4)}, {s(sA5)} offen offset:1024")
        if self.o.get("wshare", 1) == 2:
            A("s_mov_b32 exec_lo, 0x08080808\ns_mov_b32 exec_hi, 0x08080808")
            A(f"buffer_load_dword v10, v44, {s(S_W,4)}, {s(sA5)} offen offset:1024")
            A("s_mov_b32 exec_lo, 0x00080008\ns_mov_b32 exec_hi, 0x00080008")
            A(f"buffer_load_dword v10, v44, {s(S_W,4)}, {s(sA5)} offen")
            A("s_mov_b64 exec, -1")
        if self.o.get("qshare", 0):
            A("s_mov_b32 exec_lo, 0x00ff00ff\ns_mov_b32 exec_hi, 0x00ff00ff")
            A(f"buffer_load_dword v10, v44, {s(S_W,4)}, {s(sA5)} offen")
            A("s_mov_b64 exec, -1")
        PE = self.o.get("pe", 0)
        if PE:
            A(f"s_cmp_ge_u32 {s(sM)}, 2")
            A("s_cbranch_scc1 L_pw")
            A(f"v_add_u32 v46, {2*49152}, v45")
            KV = [(45, 0, L_WK), (45, 1024, L_WV), (46, 0, L_WK + 2048), (46, 1024, L_WV + 2048)]
        A(f"s_cmp_ge_u32 {s(sPI)}, {self.o.get('hold', self.NP)}")
        A("s_cbranch_scc1 L_nohold")
        A("s_waitcnt lgkmcnt(0)")
        self.lwait(VQ, 12, CV_G, sleep=2)
        A.label("L_nohold")
        if self.o.get("hw", 0) == 1:
            A("s_waitcnt vmcnt(0)")
        if self.o.get("hw", 0) > 1:
            A(f"s_mov_b32 {s(sCNT)}, {self.o.get('hw') - 1}")
            self.w_dma_rot(KV)
            A("s_waitcnt vmcnt(0)")
        self.ts("iss1")
        R0 = self.o.get("s0r", 8)
        A(f"s_cmp_ge_u32 {s(sPI)}, {self.NP}")
        A(f"s_cselect_b32 {s(sCNT)}, {R0}, {self.o.get('s0rp', R0)}")
        A(f"s_sub_u32 {s(sT3)}, 8, {s(sCNT)}")
        if self.o.get("hw", 0) > 1:
            A(f"s_sub_u32 {s(sCNT)}, {s(sCNT)}, {self.o.get('hw') - 1}")
        self.w_dma_rot(KV)
        self.signal(VP, 12, HV_I)
        A(f"s_mov_b32 {s(sCNT)}, {s(sT3)}")
        self.w_dma_rot(KV)
        self.ts("iss2")
        A(f"s_cmp_ge_u32 {s(sM)}, 2")
        A("s_cbranch_scc1 L_pw")
        A(f"v_add_u32 v46, {2*49152}, v45")
        self.srd_consts([S_WO, S_WG, S_WU, S_WD])
        for i in range(3):
            A(f"v_add_u32 v12, {64*i}, v0")
            A("v_mul_u32_u24 v13, 0x5556, v12")
            A("v_lshrrev_b32 v13, 18, v13")
            A("v_lshrrev_b32 v14, 1, v13")
            A("v_and_b32 v14, 2, v14")
            A("v_xor_b32 v12, v12, v14")
            A(f"v_mul_u32_u24 v13, {2752 - 192}, v13")
            A(f"v_lshl_add_u32 {v(48+i)}, v12, 4, v13")
        A(f"s_mul_i32 {s(sA0)}, {s(sJ)}, 192")
        A(f"s_mul_i32 {s(sA1)}, {s(sM)}, 6144")
        A("v_lshlrev_b32 v51, 10, v8")
        A("v_and_b32 v13, 6, v8")
        A("v_xor_b32 v13, v13, v9")
        A("v_lshl_add_u32 v51, v13, 4, v51")
        A(f"s_and_b32 {s(sT3)}, {s(sJ)}, 7")
        A(f"s_lshl_b32 {s(sT1)}, {s(sT3)}, 7")
        A(f"s_lshl_b32 {s(sT0)}, {s(sM)}, 13")
        A(f"s_add_u32 {s(sT0)}, {s(sT0)}, {s(sT1)}")
        A(f"v_add_u32 v51, {s(sT0)}, v51")
        A("v_add_u32 v47, 16384, v51")
        A("v_and_b32 v14, 48, v0")
        A("v_lshl_add_u32 v52, v9, 6, v14")
        A("v_lshrrev_b32 v54, 5, v0")
        A(f"v_lshl_add_u32 v54, v54, 5, {s(sA2)}")
        A("v_mul_u32_u24 v54, 2752, v54")
        A("v_and_b32 v13, 31, v0")
        A("v_lshlrev_b32 v13, 7, v13")
        A("v_min_u32 v13, 2748, v13")
        A("v_add_u32 v54, v54, v13")
        A(f"v_lshl_add_u32 v56, v8, 5, {s(sA2)}")
        A("v_lshlrev_b32 v56, 10, v56")
        A("v_lshl_add_u32 v56, v9, 7, v56")
        A(f"s_lshl3_add_u32 {s(sA8)}, {s(sM)}, {s(sT3)}")
        A(f"s_lshl_b32 {s(sA8)}, {s(sA8)}, 12")
        A(f"s_add_u32 {s(sA8)}, {s(sA8)}, {WS_MODL:#x}")
        A("v_lshlrev_b32 v58, 3, v0")
        A(f"s_lshl_b32 {s(sT0)}, {s(sM)}, 8")
        A(f"s_add_u32 {s(sT0)}, {s(sT0)}, {L_MT}")
        A(f"v_lshl_add_u32 v59, v0, 2, {s(sT0)}")
        A(f"s_lshl_b32 {s(sT0)}, {s(sM)}, 8")
        A(f"s_add_u32 {s(sT0)}, {s(sT0)}, {s(sJ)}")
        A(f"s_lshl_b32 {s(sT0)}, {s(sT0)}, 10")
        A(f"s_add_u32 {s(sT0)}, {s(sT0)}, {G_O:#x}")
        A("v_and_b32 v53, 1, v8")
        A("v_lshlrev_b32 v53, 14, v53")
        A("v_lshrrev_b32 v13, 4, v0")
        A("v_lshl_add_u32 v53, v13, 17, v53")
        A("v_lshl_add_u32 v53, v9, 7, v53")
        A(f"v_add_u32 v53, {s(sT0)}, v53")
        A(f"s_lshl1_add_u32 {s(sT0)}, {s(sJ)}, {s(sM)}")
        A(f"s_lshl_b32 {s(sT0)}, {s(sT0)}, 9")
        A(f"s_add_u32 {s(sT0)}, {s(sT0)}, {G_ST:#x}")
        A(f"v_lshl_add_u32 v55, v9, 7, {s(sT0)}")
        A("v_cmp_gt_u32 vcc, 32, v0")
        A("v_cndmask_b32 v53, v55, v53, vcc")
        A(f"s_lshl_b32 {s(sT0)}, {s(sM)}, 17")
        A(f"s_mul_i32 {s(sT1)}, {s(sJ)}, 6144")
        A(f"s_add_u32 {s(sT0)}, {s(sT0)}, {s(sT1)}")
        A(f"s_add_u32 {s(sT0)}, {s(sT0)}, {G_HH:#x}")
        A(f"v_add_u32 v57, {s(sT0)}, v2")
        self.rot_setup()
        A(f"s_mov_b32 {s(sA6)}, {s(sRB)}")
        A(f"s_lshl2_add_u32 {s(sA11)}, {s(sM)}, {s(sEX+1)}")
        A(f"s_mov_b32 {s(sA10)}, {s(sRB)}")
        A(f"s_mul_i32 {s(sA4)}, {s(sEX+1)}, 98304")
        A(f"s_mov_b32 {s(sA5)}, {s(sA4)}")
        A(f"s_mov_b32 {s(sA7)}, {slot_addr(0)}")
        A("s_waitcnt lgkmcnt(0)")
        A(f"s_bitcmp1_b32 {s(sM)}, 0")
        A(f"s_cselect_b64 {s(S_GU,2)}, {s(S_WU,2)}, {s(S_WG,2)}")
        A(f"s_mov_b32 {s(S_GU+2)}, {512*2752}")
        A(f"s_mov_b32 {s(S_GU+3)}, 0x20000")
        A(f"s_sub_u32 {s(sA9)}, {s(sA9)}, 1024")
        A("s_waitcnt vmcnt(0)")
        self.signal(VP, 12, HV_W)
        A(f"v_add_u32 {v(VTAG)}, 1, {v(VTAG)}")
        A(f"v_readfirstlane_b32 {s(sTAG)}, {v(VTAG)}")
        self.ts("w_land")
        CVS = dict(GD=CV_GD, PUB=CV_PUB, A2=CV_A2, KV=CV_KV, H1=CV_H1, O=CV_O, P2L=CV_P2L, X2=CV_X2, ST=CV_ST, E=CV_E)
        NE = 0
        since_tq = None
        since_li = None

        def masked(mask_lo, mask_hi, ins):
            A(f"s_mov_b32 exec_lo, {mask_lo:#x}\ns_mov_b32 exec_hi, {mask_hi:#x}")
            A(ins)
            A("s_mov_b64 exec, -1")

        def share_g():
            A(f"s_and_b32 {s(sT0)}, {s(sA6)}, 15")
            A(f"s_mul_i32 {s(sT0)}, {s(sT0)}, {32*2752}")
            A(f"s_add_u32 {s(sA6)}, {s(sA6)}, 2")
            masked(0x7fffff, 0x7fffff, f"buffer_load_dword v10, v54, {s(S_GU,4)}, {s(sT0)} offen")

        def share_d():
            A(f"s_sub_u32 {s(sT0)}, {s(sA11)}, 44")
            A(f"s_cselect_b32 {s(sA11)}, {s(sA11)}, {s(sT0)}")
            A(f"s_lshl_b32 {s(sT0)}, {s(sA11)}, 15")
            A(f"s_add_u32 {s(sA11)}, {s(sA11)}, 8")
            masked(0xffffffff, 0, f"buffer_load_dword v10, v56, {s(S_WD,4)}, {s(sT0)} offen")
        for act in self.sched.split():
            n = 0
            if act.startswith("w") and act != "wb":
                self.lwait(VQ, 15, CVS[act[1:]], sleep=self.o.get('hs', 2))
            elif act.startswith("@"):
                self.ts(act[1:])
            elif act.startswith("S:"):
                self.scalar_segs(act[2:].split("+"), stamp=False)
            elif act == "so":
                A(f"s_lshl1_add_u32 {s(sT0)}, {s(sA2)}, {s(sM)}")
                A(f"s_lshl_b32 {s(sT0)}, {s(sT0)}, 13")
                A(f"buffer_load_dword v10, v2, {s(S_WO,4)}, {s(sT0)} offen"); n = 1
            elif act == "so3":
                A(f"s_lshl1_add_u32 {s(sT0)}, {s(sA2)}, {s(sM)}")
                A(f"s_lshl_b32 {s(sT0)}, {s(sT0)}, 13")
                masked(0x08080808, 0x08080808, f"buffer_load_dword v10, v2, {s(S_WO,4)}, {s(sT0)} offen"); n = 1
            elif act == "sd3":
                A(f"s_lshl1_add_u32 {s(sT0)}, {s(sA2)}, {s(sM)}")
                A(f"s_mul_i32 {s(sT0)}, {s(sT0)}, {22*1024}")
                A("v_lshlrev_b32 v11, 10, v0")
                masked(0x3fffff, 0, f"buffer_load_dword v10, v11, {s(S_WD,4)}, {s(sT0)} offen offset:384"); n = 1
            elif act == "sg":
                share_g(); n = 1
            elif act == "sd":
                share_d(); n = 1
            elif act == "pre":
                masked(0xffffffff, 0xf, f"buffer_load_dword v10, v53, {s(S_WS,4)}, {s(sG)} offen"); n = 1
            elif act == "pst":
                masked(0, 0xf, f"buffer_load_dword v10, v53, {s(S_WS,4)}, {s(sG)} offen"); n = 1
            elif act == "phh":
                A(f"s_add_u32 {s(sT0)}, {s(sG)}, {2*RS}")
                masked(0xffffffff, 0xffff, f"buffer_load_dword v10, v57, {s(S_WS,4)}, {s(sG)} offen\nbuffer_load_dword v10, v57, {s(S_WS,4)}, {s(sT0)} offen"); n = 2
            elif act == "li":
                since_li = 0
                A(f"s_cmp_lg_u32 {s(sM)}, 0")
                A("s_cbranch_scc1 L_li")
                self.gemv_issue(64, late=True)
                self.gemv_issue2(64, late=True)
                A.label("L_li")
            elif act == "lc":
                A(f"s_cmp_lg_u32 {s(sM)}, 0")
                A("s_cbranch_scc1 L_lc")
                A(f"s_waitcnt vmcnt({min(since_li, 63)})")
                self.gemv_compute(64, None)
                A(f"s_lshl_b32 {s(sT0)}, s2, 9")
                A(f"s_add_u32 {s(sT0)}, {s(sT0)}, {WS_MODL:#x}")
                A(f"v_mov_b32 v28, v27\nv_mov_b32 v27, {v(VTAG)}\nv_mov_b32 v29, {v(VTAG)}")
                A(f"buffer_store_dwordx4 v[26:29], v52, {s(S_WS,4)}, {s(sT0)} offen sc1")
                A.label("L_lc")
            elif act == "tq":
                A(f"s_mov_b32 {s(sCNT)}, 8")
                self.w_dma_rot([(45, 0, L_WQ), (46, 0, L_WQ + 2048)])
                since_tq = -16
                n = 16
            elif act == "sigQ":
                A(f"s_waitcnt vmcnt({since_tq})")
                self.signal(VP, 15, HV_Q)
            elif act == "to":
                A(f"s_mov_b32 {s(sCNT)}, 16")
                A.label("L_wo")
                A(f"s_lshl_b32 {s(sT1)}, {s(sA10)}, 12")
                A(f"s_lshl_b32 {s(sT0)}, {s(sA10)}, 15")
                A(f"s_add_u32 m0, {s(sT1)}, {s(sA3)}")
                A(f"s_add_u32 {s(sA10)}, {s(sA10)}, 1")
                A(f"buffer_load_dwordx4 v51, {s(S_WO,4)}, {s(sT0)} offen lds")
                A("s_add_u32 m0, m0, 2048")
                A(f"s_and_b32 {s(sA10)}, {s(sA10)}, 15")
                A(f"buffer_load_dwordx4 v47, {s(S_WO,4)}, {s(sT0)} offen lds")
                A(f"s_sub_u32 {s(sCNT)}, {s(sCNT)}, 1")
                A(f"s_cmp_lg_u32 {s(sCNT)}, 0")
                A("s_cbranch_scc1 L_wo")
                n = 32
            elif act == "u":
                self.gu_unit(self.o.get("thr_u")); NE += 1; n = 6
            elif act == "sigU":
                assert NE <= 12
                A(f"v_mov_b32 v14, {15 + NE}")
                A("s_waitcnt vmcnt(0)")
                A(f"ds_write_b32 {v(VP)}, v14")
            elif act == "wb":
                L = A.uniq("L_wb")
                A(f"s_lshr_b32 {s(sT0)}, s2, 3")
                A(f"s_or_b32 {s(sT0)}, {s(sT0)}, {s(sM)}")
                A(f"s_cmp_lg_u32 {s(sT0)}, 15")
                A(f"s_cbranch_scc1 {L}")
                A("buffer_wbl2 sc1")
                A.label(L)
            elif act == "v0":
                A("s_waitcnt vmcnt(0)")
            elif act == "mt":
                A(f"s_mov_b32 {s(sCNT)}, {SPIN}")
                A("s_branch L_gat1")
                A.label("L_gat")
                A("s_sleep 8")
                A.label("L_gat1")
                A(f"s_add_u32 {s(sT0)}, {s(sA8)}, 65536")
                for e in range(2):
                    for i in range(8):
                        A(f"buffer_load_dwordx2 {v(64+16*e+2*i,2)}, v58, {s(S_WS,4)}, {s(sT0 if e else sA8)} offen offset:{i*512} sc1")
                A("v_mov_b32 v21, 0")
                A("s_waitcnt vmcnt(0)")
                for i in range(8):
                    for e in range(2):
                        A(f"v_bitop3_b32 v21, v21, {v(65+16*e+2*i)}, {v(VTAG)} bitop3:0xf6")
                        if i:
                            A(f"v_add_f32 {v(64+16*e)}, {v(64+16*e)}, {v(64+16*e+2*i)}")
                A(f"s_sub_u32 {s(sCNT)}, {s(sCNT)}, 1")
                A("s_cbranch_scc1 L_gatd")
                A("v_cmp_ne_u32 vcc, 0, v21")
                A("s_cbranch_vccnz L_gat")
                A.label("L_gatd")
                A(f"s_cmp_eq_u32 {s(sM)}, 0")
                A(f"s_cselect_b32 {s(sT0)}, 1.0, 0")
                A("v_cvt_pk_bf16_f32 v24, v64, v80")
                A(f"v_and_b32 v25, {v(VMASK)}, v24")
                A("v_lshlrev_b32 v24, 16, v24")
                A(f"v_add_f32 v25, {s(sT0)}, v25")
                A("v_cvt_pk_bf16_f32 v25, v25, v25")
                A(f"v_and_b32 v25, {v(VMASK)}, v25")
                A("ds_write2st64_b32 v59, v24, v25 offset0:0 offset1:2")
                A("v_mov_b32 v15, 1")
                A(f"ds_write_b32 {v(VP)}, v15 offset:32")
            else:
                raise ValueError(act)
            if since_tq is not None:
                since_tq += n
            if since_li is not None:
                since_li += n
        A("s_cmp_lg_u32 s2, 0")
        A("s_cbranch_scc1 L_ep_skip")
        A(f"buffer_store_dword {v(VTAG)}, v6, {s(S_WS,4)}, 0 offen sc1")
        A.label("L_ep_skip")
        if self.o.get("hprio", 0):
            A(f"s_setprio {self.o.get('hprio')}")
        D, D2 = self.o.get("d", 2), self.o.get("d2", 4)
        NL = self.o.get("nl", 28)
        A(f"s_mov_b32 {s(sA8)}, {CV_E}")
        A(f"s_mul_i32 {s(sA7)}, {s(sRB)}, {32*2752}")
        A("v_add_u32 v60, " + s(sA0) + ", v48\nv_add_u32 v61, " + s(sA0) + ", v49\nv_add_u32 v62, " + s(sA0) + ", v50")
        A(f"v_add_u32 v48, {16*2752 - 3072}, v60\nv_add_u32 v49, {16*2752}, v61\nv_add_u32 v50, {16*2752 - 1024}, v62")
        A("v_subrev_u32 v61, 1024, v61\nv_subrev_u32 v62, 2048, v62\nv_subrev_u32 v47, 2048, v47")
        A(f"s_cmp_eq_u32 {s(sJ)}, 15")
        A("s_cbranch_scc1 L_ring_w")

        def free(n):
            if n + 4 <= CV_E:
                return
            Ls, Ld = A.uniq("L_fr"), A.uniq("L_frd")
            A(f"s_cmp_lt_u32 {s(sA8)}, {n + 4}")
            A(f"s_cbranch_scc1 {Ls}")
            A.label(Ld)

            def slow():
                self.lwait(VQ, 12, n + 4, sleep=self.o.get("rs", 1))
                A("v_min_u32_dpp v12, v12, v12 quad_perm:[1,0,3,2] row_mask:0xf bank_mask:0xf")
                A("v_min_u32_dpp v12, v12, v12 quad_perm:[2,3,0,1] row_mask:0xf bank_mask:0xf")
                A(f"v_readfirstlane_b32 {s(sA8)}, v12")
            self.outline(Ls, Ld, slow)
        q = []

        def announce(depth):
            if len(q) <= depth:
                return
            done = q[:len(q) - depth]
            del q[:len(q) - depth]
            A(f"s_waitcnt vmcnt({min(63, sum(c for _, c in q))})")
            u = [n for n, _ in done if n is not None]
            if u:
                self.signal(VP, 13, 16 + u[-1])

        def wd_adv(i):
            if i == 41:
                A(f"s_mov_b32 {s(sA4)}, {40*32768}")
            elif i < 41:
                A(f"s_add_u32 {s(sA4)}, {s(sA4)}, 98304")
                A(f"s_cmp_lg_u32 {s(sA4)}, {14*98304}")
                A(f"s_cselect_b32 {s(sA4)}, {s(sA4)}, 0")
                if i in (13, 27):
                    A("v_add_u32 v51, 0x8000, v51\nv_add_u32 v47, 0x8000, v47")
        for n in range(NE, 16):
            free(n)
            for i in range(6):
                if i in (0, 4):
                    A(f"s_add_u32 m0, {s(sA1)}, {slot_addr(n) + i*1024}")
                    A(f"s_add_u32 {s(sT0)}, {s(sA7)}, {32*2752}" if i == 0 else f"s_cmp_lg_u32 {s(sT0)}, {16*32*2752}")
                A(f"buffer_load_dwordx4 {v((60 if i < 3 else 48) + i%3)}, {s(S_GU,4)}, {s(sA7)} offen offset:{(i&3)*1024} lds")
            A(f"s_cselect_b32 {s(sA7)}, {s(sT0)}, 0")
            q.append((n, 6))
            announce(D - 1)
        self.ts("gu_iss")
        A.label("L_ring_w")
        for n in range(16, NL):
            free(n)
            for i in range(3):
                st_ = 3 * (n - 16) + i
                A(f"s_add_u32 m0, {s(sA3)}, {wd_addr(st_)}")
                A(f"buffer_load_dwordx4 v51, {s(S_WD,4)}, {s(sA4)} offen lds")
                A(f"buffer_load_dwordx4 v47, {s(S_WD,4)}, {s(sA4)} offen offset:2048 lds")
                wd_adv(st_)
            q.append((n, 6))
            announce(D - 1 if q[0][0] < 16 else D2 - 1)
        self.ts("wd_iss")
        s0 = 3 * (NL - 16)
        ns = 43 - s0
        regs = [lambda h, i=i: v(64 + 8*i + 4*h, 4) for i in range(7)] + [lambda h, i=i: a(8*i + 4*h, 4) for i in range(16)] + [lambda h, i=i: v(20 + 8*i + 4*h, 4) for i in range(3)]
        assert ns <= len(regs)
        for i in range(ns):
            A(f"buffer_load_dwordx4 {regs[i](0)}, v51, {s(S_WD,4)}, {s(sA4)} offen")
            A(f"buffer_load_dwordx4 {regs[i](1)}, v47, {s(S_WD,4)}, {s(sA4)} offen offset:2048")
            wd_adv(s0 + i)
            if i % 3 == 2 or i == ns - 1:
                q.append((None, 2 * (i % 3 + 1)))
                if q[0][0] is not None or self.o.get("sd", 1):
                    announce(D2 - 1)
        while q and q[0][0] is not None:
            announce(len(q) - 1)
        self.ts("stg_iss")
        A(f"v_add_u32 v16, {s(sA3)}, v1")
        A("v_add_u32 v17, 0x10000, v16")
        A("v_add_u32 v18, 0x20000, v16")
        for n in range(NL, 31):
            free(n)
            last = min(ns, 3 * (n - NL) + 3)
            A(f"s_waitcnt vmcnt({min(63, 2 * (ns - last))})")
            for i in range(3 * (n - NL), last):
                for h in range(2):
                    ad = wd_addr(s0 + i) + h * 2048
                    A(f"ds_write_b128 {v(16 + (ad >> 16))}, {regs[i](h)} offset:{ad & 0xffff}")
            self.signal(VP, 13, 16 + n)
        A("s_waitcnt lgkmcnt(0)")
        self.ts("wd_done")
        assert self.first_check_before_e < NE, (self.first_check_before_e, NE)
        A("s_branch L_fin")
        self.role = "P"
        self.names["P"] = list(self.names["H"][:4])
        self.pwave()

    def finish(self):
        A = self.A
        A.label("L_fin")
        if self.leak:
            A(f"s_lshl3_add_u32 {s(sRT)}, {s(sTS+2)}, {s(sRT)}")
            A(f"s_add_u32 {s(sRT)}, {s(sRT)}, 5000")
            A.label("L_leak")
            A(f"s_sleep 2\ns_memrealtime {s(sTP,2)}\ns_waitcnt lgkmcnt(0)\ns_sub_u32 {s(sT0)}, {s(sTP)}, {s(sRT)}\ns_cmp_lt_i32 {s(sT0)}, 0\ns_cbranch_scc1 L_leak")
        if self.diag:
            A("s_waitcnt vmcnt(0) lgkmcnt(0)")
            A(f"s_bitcmp1_b32 0x51, {s(sW)}")
            A("s_cbranch_scc0 L_end")
            A(f"s_lshl_b32 {s(sT0)}, s2, 9")
            A(f"s_lshl_b32 {s(sT1)}, {s(sW)}, 6")
            A(f"s_add_u32 {s(sT0)}, {s(sT0)}, {s(sT1)}")
            A(f"s_add_u32 {s(sT0)}, {s(sT0)}, {WS_TS:#x}")
            A("s_mov_b64 exec, 1")
            A("v_mov_b32 v6, 0")
            A(f"v_mov_b32 v8, {s(sRT)}")
            A(f"buffer_store_dword v8, v6, {s(S_WS,4)}, {s(sT0)} offen offset:124")
            A(f"s_memrealtime {s(sTP,2)}\ns_waitcnt lgkmcnt(0)\nv_mov_b32 v9, {s(sTP)}")
            A(f"buffer_store_dword v9, v6, {s(S_WS,4)}, {s(sT0)} offen offset:116")
            A(f"v_mov_b32 v9, {s(sFAST)}")
            A(f"buffer_store_dword v9, v6, {s(S_WS,4)}, {s(sT0)} offen offset:120")
            for i in range(20):
                A(f"v_mov_b32 {v(10+i)}, {s(sTS+i)}")
                A(f"buffer_store_dword {v(10+i)}, v6, {s(S_WS,4)}, {s(sT0)} offen offset:{4*i}")
            A("s_waitcnt vmcnt(0)")
        A.label("L_end")
        A("s_endpgm")
        for c in self.cold:
            A.lines += c

    def build(self):
        self.start()
        self.role = "C"
        self.c_start()
        self.c_p1()
        self.c_p2()
        self.c_p3()
        self.c_p4()
        self.role = "H"
        self.helper()
        self.finish()
        hdr = open("header.txt").read()
        return (hdr + "; @launch grid=(256,1,1) block=(512,1,1) lds=163840\n"
                + '.amdgcn_target "amdgcn-amd-amdhsa--gfx950"\n.text\n'
                + f".globl {KNAME}\n.p2align 8\n.type {KNAME},@function\n{KNAME}:\n"
                + self.A.text()
                + f"""
.section .rodata,"a"
.p2align 6
.amdhsa_kernel {KNAME}
  .amdhsa_next_free_vgpr 256
  .amdhsa_next_free_sgpr 102
  .amdhsa_accum_offset 128
  .amdhsa_group_segment_fixed_size 0
  .amdhsa_kernarg_size 104
  .amdhsa_user_sgpr_count 2
  .amdhsa_user_sgpr_kernarg_segment_ptr 1
  .amdhsa_system_sgpr_workgroup_id_x 1
.end_amdhsa_kernel
""")


if __name__ == "__main__":
    import argparse, json
    ap = argparse.ArgumentParser()
    ap.add_argument("-o", default="k20.s")
    ap.add_argument("--diag", action="store_true")
    ap.add_argument("--slow", action="store_true")
    ap.add_argument("--opt", default="")
    ap.add_argument("--leak", default=None)
    args = ap.parse_args()
    o, _, sched = args.opt.partition("|")
    opts = {kv.split("=")[0]: int(kv.split("=")[1]) for kv in o.split(",") if kv}
    g = Gen(diag=args.diag, force_slow=args.slow, opts=opts, sched=sched or None, leak=args.leak)
    t = g.build()
    open(args.o, "w").write(t)
    if args.diag:
        json.dump(g.names, open(args.o + ".ts", "w"))
    print("written", args.o, len(t.splitlines()), "lines")
```
